```python
import torch

def _softmax(x, axis=-1):
    return torch.softmax(x, dim=axis)
def _gelu(x):
    return torch.nn.functional.gelu(x, approximate="tanh")
def _silu(x):
    return torch.nn.functional.silu(x)
def _sigmoid(x):
    return torch.sigmoid(x)
def _layernorm(x, axis=-1, eps=1e-5):
    m = x.mean(dim=axis, keepdim=True)
    v = x.var(dim=axis, keepdim=True, unbiased=False)
    return (x - m) / torch.sqrt(v + eps)
def _scatter_add(tgt, idx, src, axis=0):
    return tgt.clone().index_add_(axis, idx, src)
def _segment_sum(src, seg, n):
    out = torch.zeros((n,) + src.shape[1:], dtype=src.dtype)
    return out.index_add_(0, seg, src)
def _pad(x, pw):
    flat = tuple(v for pair in reversed(pw) for v in pair)
    return torch.nn.functional.pad(x, flat)

kernel_name = 'gated_mix__ssm_conv_h3__grouped_kv_mqa__prompt'

def setup_inputs():

    _w = (lambda a: (lambda t: t.to(torch.bfloat16) if t.is_floating_point() else t)(torch.as_tensor(a)))
    def _A_setup():
        B, S, D = 1, 2048, 640
        ks = 4
        return {
            "q": _w((lambda *s: torch.randn(*s, dtype=torch.bfloat16) * 0.05)(B, S, D)),
            "k": _w((lambda *s: torch.randn(*s, dtype=torch.bfloat16) * 0.2)(B, S, D)),
            "v": _w((lambda *s: torch.randn(*s, dtype=torch.bfloat16) * 0.2)(B, S, D)),
            "shift_k": _w((lambda *s: torch.randn(*s, dtype=torch.bfloat16) * 0.2)(D, ks) * 0.5),
            "ssm_k": _w((lambda *s: torch.randn(*s, dtype=torch.bfloat16) * 0.8)(D, S) * (1.0 / S ** 0.5)),
            "ssm_D": _w((lambda *s: torch.randn(*s, dtype=torch.bfloat16) * 0.2)(D)),
        }
    _A_in = _A_setup()

    def _B_setup():
        B, S, D, H = 1, 2048, 640, 32
        Dh = D // H
        return {
            "x": _w((lambda *s: torch.randn(*s, dtype=torch.bfloat16) * 0.05)(B, S, D)),
            "wq": _w((lambda *s: torch.randn(*s, dtype=torch.bfloat16) * 0.8)(D, H * Dh)),
            "wk": _w((lambda *s: torch.randn(*s, dtype=torch.bfloat16) * 0.8)(D, Dh)),
            "wv": _w((lambda *s: torch.randn(*s, dtype=torch.bfloat16) * 0.05)(D, Dh)),
            "wo": _w((lambda *s: torch.randn(*s, dtype=torch.bfloat16) * 0.05)(H * Dh, D)),
        }
    _B_in = _B_setup()

    return {
        "A_q": _A_in["q"],
        "A_k": _A_in["k"],
        "A_v": _A_in["v"],
        "A_shift_k": _A_in["shift_k"],
        "A_ssm_k": _A_in["ssm_k"],
        "A_ssm_D": _A_in["ssm_D"],
        "B_x": _B_in["x"],
        "B_wq": _B_in["wq"],
        "B_wk": _B_in["wk"],
        "B_wv": _B_in["wv"],
        "B_wo": _B_in["wo"],
        "gate_w": _w((lambda *s: torch.randn(*s, dtype=torch.bfloat16) * 0.05)(640) * 16.0),
    }

def reference(A_q, A_k, A_v, A_shift_k, A_ssm_k, A_ssm_D, B_x, B_wq, B_wk, B_wv, B_wo, gate_w):
    def _A_ref(q, k, v, shift_k, ssm_k, ssm_D):
        B, S, D = q.shape
        ks = shift_k.shape[-1]
        k_pad = _pad(k, ((0, 0), (ks - 1, 0), (0, 0)))
        k_shift = torch.zeros_like(k)
        for t in range(ks):
            k_shift = k_shift + k_pad[:, t:t + S, :] * shift_k[:, ks - 1 - t][None, None, :]
        kv = k_shift * v
        L = 2 * S
        kv_pad = _pad(kv, ((0, 0), (0, S), (0, 0)))
        kf_pad = _pad(ssm_k, ((0, 0), (0, S)))
        kv_f = (lambda x, axes=(-2,-1): torch.fft.rfft2(x.float(), dim=axes))(kv_pad[:, None, :, :], axes=(1, 2))
        kf_f = (lambda x, axes=(-2,-1): torch.fft.rfft2(x.float(), dim=axes))(kf_pad[:, None, :], axes=(1, 2))
        kf_f = (lambda x, *d: x.permute(*d))(kf_f, 1, 2, 0)
        y_f = kv_f * kf_f[None, :, :, :]
        y = (lambda x, s, axes=(-2,-1): torch.fft.irfft2(x, s=s, dim=axes).to(torch.bfloat16))(y_f, (1, L), axes=(1, 2))[:, 0, :S, :]
        y = y + kv * ssm_D[None, None, :]
        return q * y

    def _B_ref(x, wq, wk, wv, wo):
        B, S, D = x.shape
        H = 32
        Dh = D // H
        q = (lambda x, *d: x.permute(*d))((x @ wq).reshape(B, S, H, Dh), 0, 2, 1, 3)
        k = x @ wk
        v = x @ wv
        scores = torch.einsum("bhqd,bkd->bhqk", q, k) * (Dh ** -0.5)
        p = _softmax(scores, axis=-1)
        o = torch.einsum("bhqk,bkd->bhqd", p, v)
        return (lambda x, *d: x.permute(*d))(o, 0, 2, 1, 3).reshape(B, S, H * Dh) @ wo

    x = A_q
    g = _sigmoid((x * gate_w).sum(-1, keepdims=True))
    a = _A_ref(x, A_k, A_v, A_shift_k, A_ssm_k, A_ssm_D)
    b = _B_ref(x, B_wq, B_wk, B_wv, B_wo)
    return g * a + (1 - g) * b
```

```python
class Asm:
    def __init__(self):
        self.L = []
        self._lab = 0
    def __call__(self, s):
        for line in s.split("\n"):
            line = line.strip()
            if not line: continue
            if line.endswith(":") or line.startswith(";") or line.startswith("."):
                self.L.append(line)
            else:
                self.L.append("    " + line)
    def c(self, s):
        self.L.append("    ; " + s)
    def label(self, name):
        self.L.append(name + ":")
    def newlabel(self, p="L"):
        self._lab += 1
        return f"{p}_{self._lab}"
    def nop(self, n):
        while n > 0:
            k = min(n, 16)
            self.L.append(f"    s_nop {k-1}")
            n -= k
    def text(self):
        return "\n".join(self.L) + "\n"

def v(b, n=1):
    return f"v{b}" if n == 1 else f"v[{b}:{b+n-1}]"
def s(b, n=1):
    return f"s{b}" if n == 1 else f"s[{b}:{b+n-1}]"

def srd(a, reg, ptr_lo, size, add=0):
    if add:
        a(f"s_add_u32 s{reg}, s{ptr_lo}, {add}")
        a(f"s_addc_u32 s{reg+1}, s{ptr_lo+1}, 0")
    else:
        a(f"s_mov_b32 s{reg}, s{ptr_lo}")
        a(f"s_mov_b32 s{reg+1}, s{ptr_lo+1}")
    a(f"s_mov_b32 s{reg+2}, {size}")
    a(f"s_mov_b32 s{reg+3}, 0x00020000")

def kernel_header(name):
    return f""".globl {name}
.p2align 8
.type {name},@function
{name}:
"""
def kernel_desc(name, vgpr, sgpr=102, agpr=0):
    acc = (vgpr + 3) // 4 * 4
    return f""".section .rodata,"a"
.p2align 6
.amdhsa_kernel {name}
  .amdhsa_next_free_vgpr {acc + agpr if agpr else vgpr}
  .amdhsa_next_free_sgpr {sgpr}
  .amdhsa_accum_offset {acc}
  .amdhsa_group_segment_fixed_size 0
  .amdhsa_kernarg_size 120
  .amdhsa_user_sgpr_count 2
  .amdhsa_user_sgpr_kernarg_segment_ptr 1
  .amdhsa_system_sgpr_workgroup_id_x 1
  .amdhsa_float_denorm_mode_32 3
  .amdhsa_float_denorm_mode_16_64 3
.end_amdhsa_kernel
.text
"""
```

```python
import sys
from asmlib import *

NAME = "gated_mix__ssm_conv_h3__grouped_kv_mqa__prompt"
KVF_OFF = 0
UR_OFF = 0x40000
YT_OFF = 0x2C0000
O_OFF = 0x540000
G_OFF = 0x7C0000
WS_USED = 0x800000
XB = 2048 * 640 * 2
QSCALE = (20 ** -0.5) * 1.4426950408889634
import struct
def f32bits(x): return struct.unpack("<I", struct.pack("<f", x))[0]

KA = dict(A_q=0, A_k=8, A_v=16, shift_k=24, ssm_k=32, ssm_D=40, B_x=48, wq=56, wk=64, wv=72, wo=80, gate_w=88, out=96, dbg=104, ws=112)

STAMP = False
ST_OFF = 0x7E0000
ST_BASE = 70
def stamp(a, idx, real=False):
    if not STAMP: return
    a(f"s_waitcnt lgkmcnt(0)")
    a(f"{'s_memrealtime' if real else 's_memtime'} s[68:69]")
    a(f"s_waitcnt lgkmcnt(0)")
    a(f"s_mov_b32 s{ST_BASE+idx}, s68")
def stamp_flush(a, srd_ws, s_w, n, vt=120):
    if not STAMP: return
    a(f"s_lshl_b32 s68, s2, 3")
    a(f"s_add_u32 s68, s68, s{s_w}")
    a(f"s_lshl_b32 s68, s68, 6")
    a(f"s_add_u32 s68, s68, {ST_OFF}")
    a(f"s_mov_b64 exec, 1")
    a(f"v_mov_b32 v{vt}, s68")
    for k in range(n):
        a(f"v_mov_b32 v{vt+1}, s{ST_BASE+k}")
        a(f"buffer_store_dword v{vt+1}, v{vt}, s[{srd_ws}:{srd_ws+3}], 0 offen offset:{4*k}")
    a("s_waitcnt vmcnt(0)")

def wg_decode(a, s_i, s_j, s_w, exit_label):
    a(f"s_cmp_ge_u32 s2, 256")
    a(f"s_cbranch_scc1 {exit_label}")
    a(f"v_lshrrev_b32 v1, 6, v0")
    a(f"s_and_b32 s{s_i}, s2, 7")
    a(f"s_lshl_b32 s{s_i}, s{s_i}, 2")
    a(f"s_lshr_b32 s{s_j}, s2, 6")
    a(f"s_add_u32 s{s_i}, s{s_i}, s{s_j}")
    a(f"s_lshr_b32 s{s_j}, s2, 3")
    a(f"s_and_b32 s{s_j}, s{s_j}, 7")
    a(f"v_readfirstlane_b32 s{s_w}, v1")
    a(f"v_and_b32 v1, 63, v0")

def gen_k2(a):
    name = "k2_kernel"
    a.L.append(kernel_header(name))
    END = "k2_end"
    S_I, S_J, S_W = 20, 21, 22
    SRD_X, SRD_WQ, SRD_WS = 4, 8, 12
    wg_decode(a, S_I, S_J, S_W, END)
    stamp(a, 0, True); stamp(a, 1)
    a(f"s_load_dwordx2 s[24:25], s[0:1], {KA['A_q']}")
    a(f"s_load_dwordx2 s[26:27], s[0:1], {KA['wq']}")
    a(f"s_load_dwordx2 s[28:29], s[0:1], {KA['ws']}")
    a(f"s_load_dwordx2 s[30:31], s[0:1], {KA['ssm_k']}")
    a("s_waitcnt lgkmcnt(0)")
    SRD_H = 16
    srd(a, SRD_H, 30, XB)
    srd(a, SRD_X, 24, XB)
    srd(a, SRD_WQ, 26, 640 * 640 * 2)
    srd(a, SRD_WS, 28, WS_USED)
    S_HH, S_PH = 23, 30
    a(f"s_and_b32 s{S_HH}, s{S_W}, 3")
    a(f"s_lshr_b32 s{S_PH}, s{S_W}, 2")

    SLOT = 36864
    V_XD = 2
    V_WD = 3
    T0, T1, T2 = 6, 7, 8
    a(f"v_lshrrev_b32 v{T0}, 4, v1")
    a(f"s_lshl_b32 s31, s{S_W}, 2")
    a(f"v_add_u32 v{T0}, s31, v{T0}")
    a(f"v_and_b32 v{T1}, 15, v1")
    a(f"v_and_b32 v{T2}, 15, v{T0}")
    a(f"v_xor_b32 v{T1}, v{T1}, v{T2}")
    a(f"v_lshlrev_b32 v{T1}, 4, v{T1}")
    a(f"s_lshl_b32 s31, s{S_I}, 6")
    a(f"v_add_u32 v{T0}, s31, v{T0}")
    a(f"s_movk_i32 s32, 1280")
    a(f"v_mul_lo_u32 v{T0}, v{T0}, s32")
    a(f"v_add_u32 v{V_XD}, v{T0}, v{T1}")
    a(f"s_mul_i32 s33, s{S_J}, 160")
    a(f"s_lshl_b32 s31, s{S_W}, 6")
    for t in range(3):
        a(f"v_add_u32 v{T0}, s31, v1")
        if t: a(f"v_add_u32 v{T0}, {512*t}, v{T0}")
        a(f"v_mul_u32_u24 v{T1}, 6554, v{T0}")
        a(f"v_lshrrev_b32 v{T1}, 16, v{T1}")
        a(f"v_mul_u32_u24 v{T2}, 10, v{T1}")
        a(f"v_sub_u32 v{T0}, v{T0}, v{T2}")
        a(f"v_lshlrev_b32 v{T0}, 4, v{T0}")
        a(f"v_and_b32 v{T2}, 0xfff8, v{T1}")
        a(f"v_bfe_u32 v{V_WD+t}, v{T1}, 1, 2")
        a(f"v_or_b32 v{T2}, v{T2}, v{V_WD+t}")
        a(f"v_and_b32 v{T1}, 1, v{T1}")
        a(f"v_lshlrev_b32 v{T1}, 2, v{T1}")
        a(f"v_or_b32 v{T2}, v{T2}, v{T1}")
        a(f"v_mul_lo_u32 v{T2}, v{T2}, s32")
        a(f"v_add_u32 v{T2}, v{T2}, v{T0}")
        a(f"v_add_u32 v{V_WD+t}, s33, v{T2}")

    def dma_chunk(ch, slot):
        base = slot * SLOT
        a(f"s_lshl_b32 s31, s{S_W}, 10")
        a(f"s_add_u32 m0, s31, {base}")
        a(f"s_mov_b32 s34, {256*ch}")
        a(f"buffer_load_dwordx4 v{V_XD}, s[{SRD_X}:{SRD_X+3}], s34 offen lds")
        a(f"s_add_u32 m0, s31, {base + 8192}")
        a(f"s_mov_b32 s34, {256*ch + 40960}")
        a(f"buffer_load_dwordx4 v{V_XD}, s[{SRD_X}:{SRD_X+3}], s34 offen lds")
        a(f"s_mov_b32 s34, {163840*ch}")
        for t in range(3):
            if t == 2:
                lab = a.newlabel("skipw")
                a(f"s_cmp_ge_u32 s{S_W}, 4")
                a(f"s_cbranch_scc1 {lab}")
            a(f"s_add_u32 m0, s31, {base + 16384 + 8192*t}")
            a(f"s_nop 0")
            a(f"buffer_load_dwordx4 v{V_WD+t}, s[{SRD_WQ}:{SRD_WQ+3}], s34 offen lds")
            if t == 2: a.label(lab)

    for ch in range(4): dma_chunk(ch, ch)

    V_XA = 10
    V_WA = 18
    ACC = 20
    XF = 36
    WF = 44
    a(f"v_and_b32 v{T0}, 31, v1")
    a(f"s_lshl_b32 s31, s{S_PH}, 5")
    a(f"v_add_u32 v{T0}, s31, v{T0}")
    a(f"v_lshrrev_b32 v{T1}, 5, v1")
    a(f"v_and_b32 v{T2}, 15, v{T0}")
    a(f"v_xor_b32 v{T2}, v{T2}, v{T1}")
    a(f"v_lshlrev_b32 v{T2}, 4, v{T2}")
    a(f"v_lshlrev_b32 v{T0}, 8, v{T0}")
    a(f"v_add_u32 v{V_XA}, v{T0}, v{T2}")
    for s_ in range(1, 8):
        a(f"v_xor_b32 v{V_XA+s_}, {32*s_}, v{V_XA}")
    a(f"v_bfe_u32 v{T0}, v1, 2, 2")
    a(f"v_lshlrev_b32 v{T0}, 1, v{T0}")
    a(f"v_lshlrev_b32 v{T2}, 3, v{T1}")
    a(f"v_add_u32 v{T0}, v{T0}, v{T2}")
    a(f"v_mul_u32_u24 v{T0}, 160, v{T0}")
    a(f"v_and_b32 v{T2}, 3, v1")
    a(f"v_lshlrev_b32 v{T2}, 3, v{T2}")
    a(f"v_and_b32 v{T1}, 16, v1")
    a(f"v_cmp_ne_u32 vcc, 0, v{T1}")
    a(f"s_mul_i32 s31, s{S_HH}, 40")
    a(f"s_add_u32 s31, s31, 16384")
    a(f"v_mov_b32 v{T1}, 32")
    a(f"v_cndmask_b32 v{T2}, v{T2}, v{T1}, vcc")
    a(f"v_add_u32 v{T0}, v{T0}, v{T2}")
    a(f"v_add_u32 v{V_WA}, s31, v{T0}")
    for r in range(16): a(f"v_mov_b32 v{ACC+r}, 0")

    def q_chunk(slot):
        off = (slot & 1) * SLOT
        def loads(s_):
            b = s_ & 1
            a(f"ds_read_b128 {v(XF+4*b,4)}, v{V_XA+s_} offset:{off}")
            a(f"ds_read_b64_tr_b16 {v(WF+4*b,2)}, v{V_WA} offset:{off + 2560*s_}")
            a(f"ds_read_b64_tr_b16 {v(WF+4*b+2,2)}, v{V_WA} offset:{off + 2560*s_ + 160}")
        loads(0)
        for s_ in range(8):
            if s_ < 7:
                loads(s_+1); a("s_waitcnt lgkmcnt(3)")
            else:
                a("s_waitcnt lgkmcnt(0)")
            b = s_ & 1
            a(f"v_mfma_f32_32x32x16_bf16 {v(ACC,16)}, {v(WF+4*b,4)}, {v(XF+4*b,4)}, {v(ACC,16)}")
    def bump(delta):
        for s_ in range(8): a(f"v_add_u32 v{V_XA+s_}, {delta}, v{V_XA+s_}") if delta > 0 else a(f"v_subrev_u32 v{V_XA+s_}, {-delta}, v{V_XA+s_}")
        a(f"v_add_u32 v{V_WA}, {delta}, v{V_WA}") if delta > 0 else a(f"v_subrev_u32 v{V_WA}, {-delta}, v{V_WA}")

    a("s_waitcnt vmcnt(0)")
    a("s_barrier")
    stamp(a, 2)
    q_chunk(0)
    a("s_barrier")
    dma_chunk(4, 0)
    q_chunk(1)
    bump(2 * SLOT)
    q_chunk(2)
    q_chunk(3)
    bump(-2 * SLOT)
    a("s_waitcnt vmcnt(0)")
    a("s_barrier")
    q_chunk(0)
    a("s_barrier")
    stamp(a, 3)

    QF16, QF8, QG16, QG8 = 4, 8, 10, 14
    SF, SG = 16, 32
    P = 48
    OF, OG = 56, 72
    K16, K8, V0, V1 = 88, 92, 96, 100
    AK16, AK8, AV, AK16N, AK8N, AVN, VDMA = 104, 105, 106, 107, 108, 109, 110
    TT0, TT1, TT2 = 111, 112, 113
    KVSLOT = 24576
    QX_OFF = 3 * KVSLOT
    OX_OFF = QX_OFF + 8 * 2048

    S_BLK, S_SLOTN, S_CH = 36, 37, 38
    a(f"v_lshlrev_b32 v{VDMA}, 4, v1")
    a(f"s_lshl_b32 s31, s{S_PH}, 5")
    a(f"s_add_u32 s31, s31, s{S_HH}")
    a(f"s_mul_i32 s{S_BLK}, s31, 3072")
    a(f"s_mul_i32 s39, s{S_W}, 3072")
    def kv_dma(slot_sgpr_or_const):
        if isinstance(slot_sgpr_or_const, int):
            a(f"s_add_u32 m0, s39, {slot_sgpr_or_const}")
        else:
            a(f"s_add_u32 m0, s39, {slot_sgpr_or_const}")
        a(f"s_nop 0")
        for q in range(3):
            a(f"buffer_load_dwordx4 v{VDMA}, s[{SRD_WS}:{SRD_WS+3}], s{S_BLK} offen offset:{1024*q} lds")
        a(f"s_add_u32 s{S_BLK}, s{S_BLK}, {4*3072}")
    kv_dma(0)
    kv_dma(KVSLOT)

    a.nop(16)
    a(f"s_mov_b32 s31, {hex(f32bits(QSCALE))}")
    for r in range(12): a(f"v_mul_f32 v{ACC+r}, s31, v{ACC+r}")
    for r in range(4): a(f"v_cvt_pk_bf16_f32 v{QF16+r}, v{ACC+2*r}, v{ACC+2*r+1}")
    for r in range(2): a(f"v_cvt_pk_bf16_f32 v{QF8+r}, v{ACC+8+2*r}, v{ACC+8+2*r+1}")
    a(f"v_cmp_gt_u32 vcc, 32, v1")
    a.nop(2)
    for r in range(2): a(f"v_cndmask_b32 v{QF8+r}, 0, v{QF8+r}, vcc")
    a(f"s_lshl_b32 s31, s{S_W}, 11")
    a(f"v_lshlrev_b32 v{TT0}, 5, v1")
    a(f"v_add_u32 v{TT0}, s31, v{TT0}")
    a(f"v_xor_b32 v{TT1}, {4<<11}, v{TT0}")
    a(f"v_add_u32 v{TT0}, {QX_OFF}, v{TT0}")
    a(f"v_add_u32 v{TT1}, {QX_OFF}, v{TT1}")
    a(f"ds_write_b128 v{TT0}, {v(QF16,4)}")
    a(f"ds_write_b64 v{TT0}, {v(QF8,2)} offset:16")
    a("s_waitcnt lgkmcnt(0)")
    a("s_barrier")
    a(f"ds_read_b128 {v(QG16,4)}, v{TT1}")
    a(f"ds_read_b64 {v(QG8,2)}, v{TT1} offset:16")

    a(f"s_mul_i32 s31, s{S_PH}, {4*3072}")
    a(f"v_lshlrev_b32 v{AK16}, 4, v1")
    a(f"v_add_u32 v{AK16}, s31, v{AK16}")
    a(f"v_and_b32 v{TT0}, 31, v1")
    a(f"v_lshlrev_b32 v{TT2}, 3, v{TT0}")
    a(f"v_add_u32 v{TT2}, 1024, v{TT2}")
    a(f"v_mov_b32 v{AK8}, 1280")
    a(f"v_cmp_gt_u32 vcc, 32, v1")
    a.nop(2)
    a(f"v_cndmask_b32 v{AK8}, v{AK8}, v{TT2}, vcc")
    a(f"v_add_u32 v{AK8}, s31, v{AK8}")
    a(f"v_min_u32 v{TT2}, 20, v{TT0}")
    a(f"v_subrev_u32 v{AV}, 16, v{TT0}")
    a(f"v_cmp_lt_u32 vcc, 27, v{TT0}")
    a.nop(2)
    a(f"v_cndmask_b32 v{TT2}, v{TT2}, v{AV}, vcc")
    a(f"v_lshlrev_b32 v{TT2}, 4, v{TT2}")
    a(f"v_lshrrev_b32 v{AV}, 5, v1")
    a(f"v_mul_u32_u24 v{AV}, 336, v{AV}")
    a(f"v_add_u32 v{AV}, v{AV}, v{TT2}")
    a(f"v_add_u32 v{AV}, 1296, v{AV}")
    a(f"v_add_u32 v{AV}, s31, v{AV}")
    for cur, nxt in ((AK16, AK16N), (AK8, AK8N), (AV, AVN)):
        a(f"v_add_u32 v{nxt}, {KVSLOT}, v{cur}")
    for r in range(16):
        a(f"v_mov_b32 v{OF+r}, 0"); a(f"v_mov_b32 v{OG+r}, 0")
    for r in range(8): a(f"v_mov_b32 v{P+r}, 0")
    for r in range(4): a(f"v_mov_b32 v{V1+r}, 0")
    for r in range(12, 16): a(f"v_mov_b32 v{SG+r}, 0")
    a("s_waitcnt vmcnt(3) lgkmcnt(0)")
    a("s_barrier")
    a(f"ds_read_b128 {v(K16,4)}, v{AK16}")
    a(f"ds_read_b64 {v(K8,2)}, v{AK8}")
    a(f"ds_read_b128 {v(V0,4)}, v{AV}")
    a("s_waitcnt lgkmcnt(0)")
    a(f"v_mfma_f32_32x32x16_bf16 {v(SF,16)}, {v(K16,4)}, {v(QF16,4)}, 0")
    a(f"v_mfma_f32_32x32x8_bf16 {v(SF,16)}, {v(K8,2)}, {v(QF8,2)}, {v(SF,16)}")
    a.nop(16)
    a(f"s_mov_b32 s{S_CH}, 0")
    a(f"s_mov_b32 s{S_SLOTN}, {2*KVSLOT}")
    a(f"s_mov_b32 s40, {KVSLOT}")
    a(f"s_mov_b32 s44, {(-2*KVSLOT) & 0xffffffff}")
    a(f"s_mov_b32 s45, {KVSLOT}")

    stamp(a, 4)
    LOOP = "k2_attn_loop"
    a.label(LOOP)
    e = lambda S, i: a(f"v_exp_f32 v{S+i}, v{S+i}")
    c = lambda S, i: a(f"v_cvt_pk_bf16_f32 v{P+i}, v{S+2*i}, v{S+2*i+1}")
    for b in range(4):
        last = (b == 3)
        kA16, kA8, kAV, koff = (AK16N, AK8N, AVN, 0) if last else (AK16, AK8, AV, (b+1)*3072)
        if b == 2:
            a("s_waitcnt vmcnt(0)")
            a("s_barrier")
            lab = a.newlabel("nodma")
            a(f"s_cmp_ge_u32 s{S_CH}, 6")
            a(f"s_cbranch_scc1 {lab}")
            kv_dma(f"s{S_SLOTN}")
            a.label(lab)
        c(SG, 6); c(SG, 7)
        a(f"v_mfma_f32_32x32x16_bf16 {v(SG,16)}, {v(K16,4)}, {v(QG16,4)}, 0")
        a(f"ds_read_b128 {v(K16,4)}, v{kA16} offset:{koff}")
        for i in range(0, 4): e(SF, i)
        c(SF, 0); c(SF, 1)
        a(f"v_mfma_f32_32x32x16_bf16 {v(OG,16)}, {v(V1,4)}, {v(P+4,4)}, {v(OG,16)}")
        a(f"ds_read_b128 {v(V1,4)}, v{AV} offset:{b*3072 + 672}")
        for i in range(4, 8): e(SF, i)
        c(SF, 2); c(SF, 3)
        a(f"v_mfma_f32_32x32x8_bf16 {v(SG,16)}, {v(K8,2)}, {v(QG8,2)}, {v(SG,16)}")
        a(f"ds_read_b64 {v(K8,2)}, v{kA8} offset:{koff}")
        for i in range(8, 12): e(SF, i)
        c(SF, 4); c(SF, 5)
        a("s_waitcnt lgkmcnt(3)")
        a(f"v_mfma_f32_32x32x16_bf16 {v(OF,16)}, {v(V0,4)}, {v(P,4)}, {v(OF,16)}")
        for i in range(12, 16): e(SF, i)
        c(SF, 6); c(SF, 7)
        a("s_waitcnt lgkmcnt(0)")
        a(f"v_mfma_f32_32x32x16_bf16 {v(SF,16)}, {v(K16,4)}, {v(QF16,4)}, 0")
        for i in range(0, 4): e(SG, i)
        c(SG, 0); c(SG, 1)
        a(f"v_mfma_f32_32x32x16_bf16 {v(OF,16)}, {v(V1,4)}, {v(P+4,4)}, {v(OF,16)}")
        for i in range(4, 8): e(SG, i)
        c(SG, 2); c(SG, 3)
        a(f"v_mfma_f32_32x32x8_bf16 {v(SF,16)}, {v(K8,2)}, {v(QF8,2)}, {v(SF,16)}")
        for i in range(8, 12): e(SG, i)
        c(SG, 4); c(SG, 5)
        a(f"v_mfma_f32_32x32x16_bf16 {v(OG,16)}, {v(V0,4)}, {v(P,4)}, {v(OG,16)}")
        a(f"ds_read_b128 {v(V0,4)}, v{kAV} offset:{koff}")
        for i in range(12, 16): e(SG, i)
    a(f"s_add_u32 s{S_CH}, s{S_CH}, 1")
    a(f"s_add_u32 s{S_SLOTN}, s{S_SLOTN}, {KVSLOT}")
    a(f"s_cmp_ge_u32 s{S_SLOTN}, {3*KVSLOT}")
    a(f"s_cselect_b32 s{S_SLOTN}, 0, s{S_SLOTN}")
    a(f"s_add_u32 s40, s40, {KVSLOT}")
    a(f"s_cmp_ge_u32 s40, {3*KVSLOT}")
    a(f"s_cselect_b32 s41, s44, s45")
    a(f"s_cselect_b32 s40, 0, s40")
    for cur, nxt in ((AK16, AK16N), (AK8, AK8N), (AV, AVN)):
        a(f"v_mov_b32 v{cur}, v{nxt}")
        a(f"v_add_u32 v{nxt}, s41, v{nxt}")
    a(f"s_cmp_lt_u32 s{S_CH}, 8")
    a(f"s_cbranch_scc1 {LOOP}")
    stamp(a, 5)
    c(SG, 6); c(SG, 7)
    a.nop(2)
    a(f"v_mfma_f32_32x32x16_bf16 {v(OG,16)}, {v(V1,4)}, {v(P+4,4)}, {v(OG,16)}")
    a("s_waitcnt lgkmcnt(0)")
    a.nop(16)
    a(f"s_mul_i32 s31, s{S_W}, 3072")
    a(f"s_add_u32 s31, s31, {OX_OFF}")
    a(f"v_lshlrev_b32 v{TT0}, 4, v1")
    a(f"v_add_u32 v{TT0}, s31, v{TT0}")
    for q in range(3):
        a(f"ds_write_b128 v{TT0}, {v(OG+4*q,4)} offset:{1024*q}")
    a(f"s_xor_b32 s31, s{S_W}, 4")
    a(f"s_mul_i32 s31, s31, 3072")
    a(f"s_add_u32 s31, s31, {OX_OFF}")
    a(f"v_lshlrev_b32 v{TT1}, 4, v1")
    a(f"v_add_u32 v{TT1}, s31, v{TT1}")
    a("s_waitcnt lgkmcnt(0)")
    a("s_barrier")
    for q in range(3):
        a(f"ds_read_b128 {v(OG+4*q,4)}, v{TT1} offset:{1024*q}")
    a("s_waitcnt lgkmcnt(0)")
    for r in range(12): a(f"v_add_f32 v{OF+r}, v{OF+r}, v{OG+r}")
    a(f"v_mov_b32 v{TT0}, v{OF+8}")
    a(f"v_mov_b32 v{TT1}, v{OF+8}")
    a.nop(2)
    a(f"v_permlane32_swap_b32 v{TT0}, v{TT1}")
    a.nop(2)
    a(f"v_rcp_f32 v{TT1}, v{TT1}")
    a.nop(1)
    for r in range(12): a(f"v_mul_f32 v{OF+r}, v{OF+r}, v{TT1}")
    for r in range(6): a(f"v_cvt_pk_bf16_f32 v{P+r}, v{OF+2*r}, v{OF+2*r+1}")
    a(f"s_lshl_b32 s31, s{S_I}, 6")
    a(f"s_lshl_b32 s33, s{S_PH}, 5")
    a(f"s_add_u32 s31, s31, s33")
    a(f"v_and_b32 v{TT0}, 31, v1")
    a(f"v_add_u32 v{TT0}, s31, v{TT0}")
    a(f"v_mul_lo_u32 v{TT0}, v{TT0}, s32")
    a(f"s_lshl_b32 s31, s{S_J}, 2")
    a(f"s_add_u32 s31, s31, s{S_HH}")
    a(f"s_mul_i32 s31, s31, 40")
    a(f"s_add_u32 s31, s31, {O_OFF}")
    a(f"v_lshrrev_b32 v{TT1}, 5, v1")
    a(f"v_lshlrev_b32 v{TT1}, 3, v{TT1}")
    a(f"v_add_u32 v{TT0}, v{TT0}, v{TT1}")
    a(f"v_add_u32 v{TT0}, s31, v{TT0}")
    a(f"buffer_store_dwordx2 {v(P,2)}, v{TT0}, s[{SRD_WS}:{SRD_WS+3}], 0 offen")
    a(f"buffer_store_dwordx2 {v(P+2,2)}, v{TT0}, s[{SRD_WS}:{SRD_WS+3}], 0 offen offset:16")
    a(f"v_cmp_gt_u32 vcc, 32, v1")
    a(f"s_and_saveexec_b64 s[42:43], vcc")
    a(f"buffer_store_dwordx2 {v(P+4,2)}, v{TT0}, s[{SRD_WS}:{SRD_WS+3}], 0 offen offset:32")
    a(f"s_mov_b64 exec, -1")
    stamp(a, 6)
    gen_conv(a, S_I, S_J, S_W, SRD_WS, SRD_H, None)
    a("s_waitcnt vmcnt(0)")
    stamp(a, 7); stamp(a, 8, True)
    stamp_flush(a, SRD_WS, S_W, 9)
    a.label(END)
    a("s_endpgm")
    a.L.append(kernel_desc(name, 124))


def gen_conv(a, S_I, S_J, S_W, SRD_WS, SRD_H, S_DPTR):
    CHB = 21248; URL = 16640; RB = 65536
    S_CH0, S_NCH, S_CS, S_RHO, S_T = 46, 47, 48, 49, 50
    T0, T1, T2, T3 = 2, 3, 4, 5
    X0, X1, X2 = 8, 12, 16
    C1, C3 = 20, 24
    a(f"s_mul_i32 s{S_CH0}, s{S_I}, 3")
    a(f"s_lshl_b32 s{S_T}, s{S_I}, 1")
    a(f"s_add_u32 s{S_T}, s{S_T}, 16")
    a(f"s_cmp_lt_u32 s{S_I}, 16")
    a(f"s_cselect_b32 s{S_CH0}, s{S_CH0}, s{S_T}")
    a(f"s_cselect_b32 s{S_NCH}, 3, 2")
    a(f"s_mul_i32 s{S_T}, s{S_J}, 80")
    a(f"s_add_u32 s{S_CH0}, s{S_CH0}, s{S_T}")
    a("s_barrier")
    def fill(cs_expr_sgpr):
        a(f"s_add_u32 s51, s{S_CH0}, s{S_CS}")
        a(f"s_lshl_b32 s51, s51, 12")
        a(f"s_and_b32 s52, s{S_W}, 3")
        a(f"s_lshl_b32 s53, s52, 10")
        a(f"s_add_u32 s51, s51, s53")
        a(f"v_lshlrev_b32 v{T0}, 4, v1")
        a(f"buffer_load_dwordx4 {v(X0,4)}, v{T0}, s[{SRD_H}:{SRD_H+3}], s51 offen")
        a(f"buffer_load_dwordx4 {v(X1,4)}, v{T0}, s[{SRD_H}:{SRD_H+3}], s51 offen offset:4")
        a(f"buffer_load_dwordx4 {v(X2,4)}, v{T0}, s[{SRD_H}:{SRD_H+3}], s51 offen offset:8")
        a(f"s_mul_i32 s54, s{S_CS}, {CHB}")
        a(f"s_add_u32 s55, s54, s53")
        a(f"s_add_u32 m0, s55, {URL}")
        a(f"s_add_u32 s51, s51, {UR_OFF}")
        a(f"buffer_load_dwordx4 v{T0}, s[{SRD_WS}:{SRD_WS+3}], s51 offen lds")
        a(f"s_add_u32 s55, s55, 32")
        a(f"v_add_u32 v{T1}, s55, v{T0}")
        a("s_waitcnt vmcnt(1)")
        for k in range(4):
            a(f"v_alignbit_b32 v{C1+k}, v{X1+k}, v{X0+k}, 16")
            a(f"v_alignbit_b32 v{C3+k}, v{X2+k}, v{X1+k}, 16")
        a(f"ds_write_b128 v{T1}, {v(X0,4)}")
        a(f"ds_write_b128 v{T1}, {v(C1,4)} offset:4160")
        a(f"ds_write_b128 v{T1}, {v(X1,4)} offset:8320")
        a(f"ds_write_b128 v{T1}, {v(C3,4)} offset:12480")
        lab1 = a.newlabel("cf"); lab2 = a.newlabel("cf")
        a(f"s_cmp_lg_u32 s52, 0")
        a(f"s_cbranch_scc1 {lab1}")
        for k in range(4): a(f"v_mov_b32 v{C1+k}, 0")
        a(f"v_lshrrev_b32 v{T2}, 1, v1")
        a(f"v_mul_u32_u24 v{T2}, 4160, v{T2}")
        a(f"v_and_b32 v{T3}, 1, v1")
        a(f"v_lshlrev_b32 v{T3}, 4, v{T3}")
        a(f"v_add_u32 v{T2}, v{T2}, v{T3}")
        a(f"v_add_u32 v{T2}, s54, v{T2}")
        a(f"s_mov_b64 exec, 0xff")
        a(f"ds_write_b128 v{T2}, {v(C1,4)}")
        a(f"s_mov_b64 exec, 1")
        a(f"v_lshlrev_b32 v{C1}, 16, v{X0}")
        a(f"v_mov_b32 v{T2}, s54")
        a(f"ds_write_b32 v{T2}, v{C1} offset:{4160+28}")
        a(f"ds_write_b32 v{T2}, v{X0} offset:{8320+28}")
        a(f"ds_write_b32 v{T2}, v{C1} offset:{12480+24}")
        a(f"v_alignbit_b32 v{C1+1}, v{X1}, v{X0}, 16")
        a(f"ds_write_b32 v{T2}, v{C1+1} offset:{12480+28}")
        a(f"s_mov_b64 exec, -1")
        a.label(lab1)
        a(f"s_cmp_lg_u32 s52, 1")
        a(f"s_cbranch_scc1 {lab2}")
        for k in range(4): a(f"v_mov_b32 v{C1+k}, 0")
        a(f"v_add_u32 v{T2}, s54, v{T0}")
        a(f"s_mov_b64 exec, 0xffffffff")
        a(f"ds_write_b128 v{T2}, {v(C1,4)} offset:{URL+4096}")
        a(f"s_mov_b64 exec, -1")
        a.label(lab2)
    a(f"s_lshr_b32 s{S_CS}, s{S_W}, 2")
    fill(None)
    labf = a.newlabel("cf3")
    a(f"s_cmp_lt_u32 s{S_NCH}, 3")
    a(f"s_cbranch_scc1 {labf}")
    a(f"s_cmp_ge_u32 s{S_W}, 4")
    a(f"s_cbranch_scc1 {labf}")
    a(f"s_mov_b32 s{S_CS}, 2")
    fill(None)
    a.label(labf)
    a("s_waitcnt vmcnt(0) lgkmcnt(0)")
    a("s_barrier")

    CA, FA, FB, AD = 16, 48, 80, 112
    VA, VB, VR = 6, 7, 8
    def setup_addr():
        a(f"s_mul_i32 s54, s{S_CS}, {CHB}")
        a(f"s_lshl_b32 s55, s{S_RHO}, 6")
        a(f"s_add_u32 s54, s54, s55")
        a(f"v_and_b32 v{T0}, 15, v1")
        a(f"v_lshrrev_b32 v{T1}, 4, v1")
        a(f"v_add_u32 v{T2}, 1, v{T0}")
        a(f"v_and_b32 v{T3}, 3, v{T2}")
        a(f"v_mul_u32_u24 v{VA}, 4160, v{T3}")
        a(f"v_lshrrev_b32 v{T2}, 2, v{T2}")
        a(f"v_lshlrev_b32 v{T2}, 3, v{T2}")
        a(f"v_lshlrev_b32 v{T3}, 4, v{T1}")
        a(f"v_add_u32 v{VA}, v{VA}, v{T2}")
        a(f"v_add_u32 v{VA}, v{VA}, v{T3}")
        a(f"v_add_u32 v{VA}, s54, v{VA}")
        a(f"v_lshlrev_b32 v{T2}, 5, v{T0}")
        a(f"v_sub_u32 v{VB}, v{T3}, v{T2}")
        a(f"s_add_u32 s54, s54, {URL + 480}")
        a(f"v_add_u32 v{VB}, s54, v{VB}")
    def build_AD():
        a(f"s_load_dwordx2 s[56:57], s[0:1], {KA['ssm_D']}")
        a(f"s_add_u32 s58, s{S_CH0}, s{S_CS}")
        a(f"s_lshr_b32 s59, s58, 1")
        a(f"s_lshl_b32 s59, s59, 2")
        a("s_waitcnt lgkmcnt(0)")
        a(f"s_load_dword s60, s[56:57], s59")
        a("s_waitcnt lgkmcnt(0)")
        a(f"s_and_b32 s58, s58, 1")
        a(f"s_lshl_b32 s58, s58, 4")
        a(f"s_lshr_b32 s60, s60, s58")
        a(f"s_and_b32 s60, s60, 0xffff")
        a(f"v_and_b32 v{T0}, 15, v1")
        a(f"v_lshrrev_b32 v{T1}, 4, v1")
        a(f"v_lshlrev_b32 v{T1}, 3, v{T1}")
        a(f"v_add_u32 v{T0}, v{T0}, v{T1}")
        a(f"v_sub_u32 v{T0}, 15, v{T0}")
        a(f"v_and_b32 v{T1}, 1, v{T0}")
        a(f"v_lshlrev_b32 v{T1}, 4, v{T1}")
        a(f"v_mov_b32 v{T2}, s60")
        a(f"v_lshlrev_b32 v{T2}, v{T1}, v{T2}")
        a(f"v_lshrrev_b32 v{T0}, 1, v{T0}")
        for k in range(4):
            a(f"v_cmp_eq_u32 vcc, {k}, v{T0}")
            a.nop(2)
            a(f"v_cndmask_b32 v{AD+k}, 0, v{T2}, vcc")
    def phase(first):
        a(f"ds_read_b64 {v(FA,2)}, v{VA}")
        a(f"ds_read_b64 {v(FA+2,2)}, v{VA} offset:8")
        for vv in range(8):
            a(f"ds_read_b128 {v(FB+4*vv,4)}, v{VB} offset:{512*(7-vv)}")
        a("s_waitcnt lgkmcnt(0)")
        for i in range(1, 8):
            a(f"ds_read_b64 {v(FA+4*i,2)}, v{VA} offset:{512*i}")
            a(f"ds_read_b64 {v(FA+4*i+2,2)}, v{VA} offset:{512*i+8}")
        for vv in range(8):
            a(f"v_mfma_f32_16x16x32_bf16 {v(CA+4*vv,4)}, {v(FA,4)}, {v(FB+4*vv,4)}, {v(CA+4*vv,4)}")
        lab = a.newlabel("noD")
        a(f"s_cmp_lg_u32 s{S_RHO}, 0")
        a(f"s_cbranch_scc1 {lab}")
        for vv in range(8):
            a(f"v_mfma_f32_16x16x32_bf16 {v(CA+4*vv,4)}, {v(AD,4)}, {v(FB+4*vv,4)}, {v(CA+4*vv,4)}")
        a.label(lab)
        a("s_waitcnt lgkmcnt(0)")
        for i in range(1, 8):
            for vv in range(8 - i):
                t = i + vv
                a(f"v_mfma_f32_16x16x32_bf16 {v(CA+4*t,4)}, {v(FA+4*i,4)}, {v(FB+4*vv,4)}, {v(CA+4*t,4)}")
    def reduce_store(ngrp):
        a.nop(16)
        a(f"s_lshl_b32 s54, s{S_W}, 13")
        a(f"s_add_u32 s54, s54, {RB}")
        a(f"v_lshlrev_b32 v{T0}, 4, v1")
        a(f"v_add_u32 v{T1}, s54, v{T0}")
        for t in range(8):
            a(f"ds_write_b128 v{T1}, {v(CA+4*t,4)} offset:{1024*t}")
        a("s_waitcnt lgkmcnt(0)")
        a("s_barrier")
        ntile = 8 // ngrp
        if ngrp == 4:
            a(f"s_and_b32 s54, s{S_W}, 4")
            a(f"s_lshl_b32 s54, s54, 13")
            a(f"s_and_b32 s55, s{S_W}, 3")
            a(f"s_lshl_b32 s55, s55, 1")
        else:
            a(f"s_mov_b32 s54, 0")
            a(f"s_mov_b32 s55, s{S_W}")
        a(f"s_lshl_b32 s56, s55, 10")
        a(f"s_add_u32 s54, s54, s56")
        a(f"s_add_u32 s54, s54, {RB}")
        a(f"v_add_u32 v{T1}, s54, v{T0}")
        for tt in range(ntile):
            for p_ in range(ngrp):
                a(f"ds_read_b128 {v(FA+4*(tt*ngrp+p_),4)}, v{T1} offset:{8192*p_ + 1024*tt}")
        a("s_waitcnt lgkmcnt(0)")
        a(f"s_add_u32 s56, s{S_CH0}, s{S_CS}")
        a(f"s_lshl_b32 s56, s56, 12")
        a(f"s_lshl_b32 s57, s55, 9")
        a(f"s_add_u32 s56, s56, s57")
        a(f"s_add_u32 s56, s56, {YT_OFF}")
        a(f"v_and_b32 v{T2}, 15, v1")
        a(f"v_lshlrev_b32 v{T2}, 5, v{T2}")
        a(f"v_lshrrev_b32 v{T3}, 4, v1")
        a(f"v_lshlrev_b32 v{T3}, 3, v{T3}")
        a(f"v_add_u32 v{T2}, v{T2}, v{T3}")
        for tt in range(ntile):
            b0 = FA + 4 * tt * ngrp
            for p_ in range(1, ngrp):
                for r in range(4): a(f"v_add_f32 v{b0+r}, v{b0+r}, v{b0+4*p_+r}")
            a(f"v_cvt_pk_bf16_f32 v{FB+2*tt}, v{b0}, v{b0+1}")
            a(f"v_cvt_pk_bf16_f32 v{FB+2*tt+1}, v{b0+2}, v{b0+3}")
            a(f"buffer_store_dwordx2 {v(FB+2*tt,2)}, v{T2}, s[{SRD_WS}:{SRD_WS+3}], s56 offen offset:{512*tt}")
        a("s_barrier")
    a(f"s_lshr_b32 s{S_CS}, s{S_W}, 2")
    build_AD()
    for r in range(32): a(f"v_mov_b32 v{CA+r}, 0")
    for ph in range(2):
        a(f"s_and_b32 s{S_RHO}, s{S_W}, 3")
        a(f"s_lshl_b32 s{S_RHO}, s{S_RHO}, 1")
        if ph: a(f"s_add_u32 s{S_RHO}, s{S_RHO}, 1")
        setup_addr()
        phase(ph == 0)
    reduce_store(4)
    lab = a.newlabel("noC")
    a(f"s_cmp_lt_u32 s{S_NCH}, 3")
    a(f"s_cbranch_scc1 {lab}")
    a(f"s_mov_b32 s{S_CS}, 2")
    build_AD()
    for r in range(32): a(f"v_mov_b32 v{CA+r}, 0")
    a(f"s_mov_b32 s{S_RHO}, s{S_W}")
    setup_addr()
    phase(True)
    reduce_store(8)
    a.label(lab)

def gen_k1(a):
    name = "k1_kernel"
    a.L.append(kernel_header(name))
    END = "k1_end"
    S_I, S_J, S_W = 20, 21, 22
    SRD_X, SRD_W, SRD_WS, SRD_K, SRD_V, SRD_SH, SRD_Q, SRD_GW = 4, 8, 12, 44, 48, 52, 56, 60
    wg_decode(a, S_I, S_J, S_W, END)
    a(f"s_load_dwordx4 s[24:27], s[0:1], {KA['A_q']}")
    a(f"s_load_dwordx4 s[28:31], s[0:1], {KA['A_v']}")
    a(f"s_load_dwordx2 s[32:33], s[0:1], {KA['A_q']}")
    a(f"s_load_dwordx4 s[36:39], s[0:1], {KA['wk']}")
    a(f"s_load_dwordx2 s[40:41], s[0:1], {KA['gate_w']}")
    a(f"s_load_dwordx2 s[42:43], s[0:1], {KA['ws']}")
    a("s_waitcnt lgkmcnt(0)")
    srd(a, SRD_X, 32, XB)
    srd(a, SRD_WS, 42, WS_USED)
    srd(a, SRD_Q, 24, XB)
    srd(a, SRD_K, 26, XB)
    srd(a, SRD_V, 28, XB)
    srd(a, SRD_SH, 30, 640 * 4 * 2)
    srd(a, SRD_GW, 40, 1280)
    a(f"s_bitcmp1_b32 s{S_J}, 1")
    a(f"s_cselect_b32 s{SRD_W}, s38, s36")
    a(f"s_cselect_b32 s{SRD_W+1}, s39, s37")
    a(f"s_mov_b32 s{SRD_W+2}, 25600")
    a(f"s_mov_b32 s{SRD_W+3}, 0x00020000")
    a(f"s_movk_i32 s32, 1280")
    T0, T1, T2, T3 = 2, 3, 4, 5
    LA_END = "k1_a_end"
    a(f"s_cmp_ge_u32 s{S_J}, 4")
    a(f"s_cbranch_scc1 {LA_END}")
    WL = 0; RED = 4 * 7168
    XF = 16
    WF = 56
    ACC = 64
    a(f"s_and_b32 s33, s{S_J}, 1")
    a(f"s_lshl_b32 s34, s{S_I}, 1")
    a(f"s_add_u32 s33, s33, s34")
    LA_MID = "k1_a_mid"
    a(f"s_cmp_ge_u32 s{S_W}, 4")
    a(f"s_cbranch_scc1 {LA_MID}")
    a(f"v_and_b32 v{T0}, 31, v1")
    a(f"s_lshl_b32 s34, s33, 5")
    a(f"v_add_u32 v{T0}, s34, v{T0}")
    a(f"v_mul_lo_u32 v{T0}, v{T0}, s32")
    a(f"v_lshrrev_b32 v{T1}, 5, v1")
    a(f"v_lshlrev_b32 v{T2}, 4, v{T1}")
    a(f"v_add_u32 v{T0}, v{T0}, v{T2}")
    a(f"s_mul_i32 s34, s{S_W}, 320")
    for s_ in range(10):
        a(f"buffer_load_dwordx4 {v(XF+4*s_,4)}, v{T0}, s[{SRD_X}:{SRD_X+3}], s34 offen offset:{32*s_}")
    a(f"v_lshlrev_b32 v{T2}, 4, v1")
    a(f"s_mul_i32 s34, s{S_W}, 6400")
    a(f"s_mul_i32 s35, s{S_W}, 7168")
    for q in range(7):
        a(f"s_add_u32 m0, s35, {WL + 1024*q}")
        a(f"s_add_u32 s23, s34, {1024*q}")
        a(f"buffer_load_dwordx4 v{T2}, s[{SRD_W}:{SRD_W+3}], s23 offen lds")
    a(f"v_bfe_u32 v{T2}, v1, 2, 2")
    a(f"v_lshlrev_b32 v{T1}, 3, v{T1}")
    a(f"v_add_u32 v{T2}, v{T2}, v{T1}")
    a(f"v_mul_u32_u24 v{T2}, 40, v{T2}")
    a(f"v_and_b32 v{T3}, 16, v1")
    a(f"v_lshlrev_b32 v{T3}, 1, v{T3}")
    a(f"v_add_u32 v{T2}, v{T2}, v{T3}")
    a(f"v_and_b32 v{T3}, 3, v1")
    a(f"v_lshlrev_b32 v{T3}, 3, v{T3}")
    a(f"v_add_u32 v{T2}, v{T2}, v{T3}")
    a(f"v_add_u32 v{T2}, s35, v{T2}")
    for r in range(16): a(f"v_mov_b32 v{ACC+r}, 0")
    a("s_waitcnt vmcnt(0)")
    labV = a.newlabel("kindV"); labD = a.newlabel("kindD")
    a(f"s_bitcmp1_b32 s{S_J}, 1")
    a(f"s_cbranch_scc1 {labV}")
    for kind in range(2):
        for s_ in range(10):
            b = s_ & 1
            a(f"ds_read_b64_tr_b16 {v(WF+4*b,2)}, v{T2} offset:{WL + 640*s_}")
            a(f"ds_read_b64_tr_b16 {v(WF+4*b+2,2)}, v{T2} offset:{WL + 640*s_ + 160}")
            a("s_waitcnt lgkmcnt(0)")
            if kind == 0:
                a(f"v_mfma_f32_32x32x16_bf16 {v(ACC,16)}, {v(WF+4*b,4)}, {v(XF+4*s_,4)}, {v(ACC,16)}")
            else:
                a(f"v_mfma_f32_32x32x16_bf16 {v(ACC,16)}, {v(XF+4*s_,4)}, {v(WF+4*b,4)}, {v(ACC,16)}")
        if kind == 0:
            a(f"s_branch {labD}")
            a.label(labV)
    a.label(labD)
    a.nop(16)
    a(f"s_lshl_b32 s34, s{S_W}, 12")
    a(f"v_lshlrev_b32 v{T0}, 4, v1")
    a(f"v_add_u32 v{T1}, s34, v{T0}")
    for q in range(4):
        a(f"ds_write_b128 v{T1}, {v(ACC+4*q,4)} offset:{RED + 1024*q}")
    a("s_waitcnt lgkmcnt(0)")
    a.label(LA_MID)
    a("s_barrier")
    a(f"s_cmp_ge_u32 s{S_W}, 4")
    a(f"s_cbranch_scc1 {LA_END}")
    a(f"s_lshl_b32 s34, s{S_W}, 10")
    a(f"v_lshlrev_b32 v{T0}, 4, v1")
    a(f"v_add_u32 v{T1}, s34, v{T0}")
    for p_ in range(4):
        a(f"ds_read_b128 {v(XF+4*p_,4)}, v{T1} offset:{RED + 4096*p_}")
    a("s_waitcnt lgkmcnt(0)")
    for p_ in range(1, 4):
        for r in range(4): a(f"v_add_f32 v{XF+r}, v{XF+r}, v{XF+4*p_+r}")
    a(f"v_cvt_pk_bf16_f32 v{WF}, v{XF}, v{XF+1}")
    a(f"v_cvt_pk_bf16_f32 v{WF+1}, v{XF+2}, v{XF+3}")
    a(f"s_mul_i32 s34, s33, 3072")
    labV2 = a.newlabel("stV")
    a(f"s_bitcmp1_b32 s{S_J}, 1")
    a(f"s_cbranch_scc1 {labV2}")
    labK2 = a.newlabel("stK2"); labK3 = a.newlabel("stK3")
    a(f"s_cmp_ge_u32 s{S_W}, 2")
    a(f"s_cbranch_scc1 {labK2}")
    a(f"s_lshl_b32 s35, s{S_W}, 3")
    a(f"v_add_u32 v{T1}, s35, v{T0}")
    a(f"buffer_store_dwordx2 {v(WF,2)}, v{T1}, s[{SRD_WS}:{SRD_WS+3}], s34 offen")
    a(f"s_branch {LA_END}")
    a.label(labK2)
    a(f"s_cmp_ge_u32 s{S_W}, 3")
    a(f"s_cbranch_scc1 {labK3}")
    a(f"v_lshlrev_b32 v{T1}, 3, v1")
    a(f"s_mov_b64 exec, 0xffffffff")
    a(f"buffer_store_dwordx2 {v(WF,2)}, v{T1}, s[{SRD_WS}:{SRD_WS+3}], s34 offen offset:1024")
    a(f"s_mov_b64 exec, -1")
    a(f"s_branch {LA_END}")
    a.label(labK3)
    a(f"v_mov_b32 v{WF}, 0x3f80")
    a(f"v_mov_b32 v{WF+1}, 0")
    a(f"v_mov_b32 v{T1}, 0")
    a(f"s_mov_b64 exec, 1")
    a(f"buffer_store_dwordx2 {v(WF,2)}, v{T1}, s[{SRD_WS}:{SRD_WS+3}], s34 offen offset:1280")
    a(f"s_mov_b64 exec, -1")
    a(f"s_branch {LA_END}")
    a.label(labV2)
    a(f"s_lshr_b32 s35, s{S_W}, 1")
    a(f"s_mul_i32 s35, s35, 672")
    a(f"s_and_b32 s23, s{S_W}, 1")
    a(f"s_lshl_b32 s23, s23, 3")
    a(f"s_add_u32 s35, s35, s23")
    a(f"s_add_u32 s35, s35, 1296")
    a(f"v_and_b32 v{T2}, 31, v1")
    a(f"v_lshlrev_b32 v{T1}, 4, v{T2}")
    a(f"v_lshrrev_b32 v{T3}, 5, v1")
    a(f"v_mul_u32_u24 v{T3}, 336, v{T3}")
    a(f"v_add_u32 v{T1}, v{T1}, v{T3}")
    a(f"v_add_u32 v{T1}, s35, v{T1}")
    a(f"v_mov_b32 v{T3}, 0x3f803f80")
    a(f"v_cmp_eq_u32 vcc, 20, v{T2}")
    a.nop(2)
    a(f"v_cndmask_b32 v{WF}, v{WF}, v{T3}, vcc")
    a(f"v_cndmask_b32 v{WF+1}, v{WF+1}, v{T3}, vcc")
    a(f"v_cmp_gt_u32 vcc, 21, v{T2}")
    a(f"s_and_saveexec_b64 s[64:65], vcc")
    a(f"buffer_store_dwordx2 {v(WF,2)}, v{T1}, s[{SRD_WS}:{SRD_WS+3}], s34 offen")
    a(f"s_mov_b64 exec, -1")
    a.label(LA_END)

    QD, GD, GA = 16, 24, 32
    a(f"s_lshl_b32 s33, s{S_I}, 6")
    a(f"s_lshl_b32 s34, s{S_J}, 3")
    a(f"s_add_u32 s33, s33, s34")
    a(f"s_add_u32 s33, s33, s{S_W}")
    a(f"s_mul_i32 s34, s33, 1280")
    a(f"v_lshlrev_b32 v{T0}, 5, v1")
    a(f"v_mov_b32 v{GA}, 0")
    a(f"v_cmp_gt_u32 vcc, 40, v1")
    a(f"s_and_saveexec_b64 s[64:65], vcc")
    a(f"buffer_load_dwordx4 {v(QD,4)}, v{T0}, s[{SRD_Q}:{SRD_Q+3}], s34 offen")
    a(f"buffer_load_dwordx4 {v(QD+4,4)}, v{T0}, s[{SRD_Q}:{SRD_Q+3}], s34 offen offset:16")
    a(f"buffer_load_dwordx4 {v(GD,4)}, v{T0}, s[{SRD_GW}:{SRD_GW+3}], 0 offen")
    a(f"buffer_load_dwordx4 {v(GD+4,4)}, v{T0}, s[{SRD_GW}:{SRD_GW+3}], 0 offen offset:16")
    a("s_waitcnt vmcnt(0)")
    for k in range(8):
        a(f"v_dot2_f32_bf16 v{GA}, v{QD+k}, v{GD+k}, v{GA}")
    a(f"s_mov_b64 exec, -1")
    for pat in ("quad_perm:[1,0,3,2]", "quad_perm:[2,3,0,1]", "row_half_mirror", "row_mirror"):
        a.nop(2)
        a(f"v_add_f32_dpp v{GA}, v{GA}, v{GA} {pat} row_mask:0xf bank_mask:0xf")
    a.nop(2)
    a(f"v_readlane_b32 s34, v{GA}, 0")
    a(f"v_readlane_b32 s35, v{GA}, 16")
    a(f"v_readlane_b32 s23, v{GA}, 32")
    a.nop(2)
    a(f"v_mov_b32 v{GA}, s34")
    a(f"v_add_f32 v{GA}, s35, v{GA}")
    a(f"v_add_f32 v{GA}, s23, v{GA}")
    a(f"v_mul_f32 v{GA}, {hex(f32bits(-1.4426950408889634))}, v{GA}")
    a(f"v_exp_f32 v{GA}, v{GA}")
    a.nop(1)
    a(f"v_add_f32 v{GA}, 1.0, v{GA}")
    a(f"v_rcp_f32 v{GA}, v{GA}")
    a(f"s_lshl_b32 s33, s33, 2")
    a(f"s_add_u32 s33, s33, {G_OFF}")
    a(f"v_mov_b32 v{T0}, 0")
    a(f"s_mov_b64 exec, 1")
    a(f"buffer_store_dword v{GA}, v{T0}, s[{SRD_WS}:{SRD_WS+3}], s33 offen")
    a(f"s_mov_b64 exec, -1")

    a(f"s_cmp_lt_u32 s{S_W}, 3")
    a(f"s_cbranch_scc1 {END}")
    KD, VD, SH = 16, 28, 36
    KA_, KB_ = 40, 52
    WA_, WB_ = 64, 68
    UA, UB = 72, 80
    a(f"s_sub_u32 s33, s{S_W}, 3")
    a(f"s_lshl_b32 s33, s33, 6")
    a(f"v_add_u32 v{T0}, s33, v1")
    a(f"v_lshrrev_b32 v{T1}, 3, v{T0}")
    a(f"v_and_b32 v{T2}, 7, v{T0}")
    a(f"v_lshlrev_b32 v{T2}, 3, v{T2}")
    a(f"s_lshl_b32 s33, s{S_I}, 6")
    a(f"v_add_u32 v{T2}, s33, v{T2}")
    a(f"v_mul_lo_u32 v{T3}, v{T2}, s32")
    a(f"s_mul_i32 s34, s{S_J}, 160")
    a(f"v_lshlrev_b32 v6, 2, v{T1}")
    a(f"v_add_u32 v6, s34, v6")
    a(f"v_add_u32 v{T3}, v{T3}, v6")
    a(f"v_add_u32 v7, 5120, v{T3}")
    a(f"v_subrev_u32 v8, 3840, v{T3}")
    for r in range(3): a(f"buffer_load_dword v{KD+r}, v8, s[{SRD_K}:{SRD_K+3}], 0 offen offset:{1280*r}")
    for r in range(4): a(f"buffer_load_dword v{KD+3+r}, v{T3}, s[{SRD_K}:{SRD_K+3}], 0 offen offset:{1280*r}")
    for r in range(4): a(f"buffer_load_dword v{KD+7+r}, v7, s[{SRD_K}:{SRD_K+3}], 0 offen offset:{1280*r}")
    for r in range(4): a(f"buffer_load_dword v{VD+r}, v{T3}, s[{SRD_V}:{SRD_V+3}], 0 offen offset:{1280*r}")
    for r in range(4): a(f"buffer_load_dword v{VD+4+r}, v7, s[{SRD_V}:{SRD_V+3}], 0 offen offset:{1280*r}")
    a(f"v_lshlrev_b32 v9, 2, v6")
    a(f"buffer_load_dwordx4 {v(SH,4)}, v9, s[{SRD_SH}:{SRD_SH+3}], 0 offen")
    a(f"v_lshlrev_b32 v10, 11, v6")
    a(f"v_lshlrev_b32 v11, 1, v{T2}")
    a(f"v_sub_u32 v10, v10, v11")
    a(f"v_add_u32 v10, {UR_OFF + 4080}, v10")
    a("s_waitcnt vmcnt(0)")
    for r in range(11):
        a(f"v_lshlrev_b32 v{KA_+r}, 16, v{KD+r}")
        a(f"v_and_b32 v{KB_+r}, 0xffff0000, v{KD+r}")
    for (W, base) in ((WA_, SH), (WB_, SH + 2)):
        a(f"v_lshlrev_b32 v{W}, 16, v{base}")
        a(f"v_and_b32 v{W+1}, 0xffff0000, v{base}")
        a(f"v_lshlrev_b32 v{W+2}, 16, v{base+1}")
        a(f"v_and_b32 v{W+3}, 0xffff0000, v{base+1}")
    for e in range(8):
        for (U, Kf, W, lo) in ((UA, KA_, WA_, True), (UB, KB_, WB_, False)):
            a(f"v_mul_f32 v{U+e}, v{Kf+e+3}, v{W}")
            for jx in range(1, 4):
                a(f"v_fmac_f32 v{U+e}, v{Kf+e+3-jx}, v{W+jx}")
            if lo: a(f"v_lshlrev_b32 v12, 16, v{VD+e}")
            else: a(f"v_and_b32 v12, 0xffff0000, v{VD+e}")
            a(f"v_mul_f32 v{U+e}, v{U+e}, v12")
    for (U, O_, off) in ((UA, KD, 0), (UB, KD + 4, 4096)):
        for i in range(4):
            a(f"v_cvt_pk_bf16_f32 v{O_+i}, v{U+7-2*i}, v{U+6-2*i}")
        if off:
            a(f"v_add_u32 v10, {off}, v10")
        a(f"buffer_store_dwordx4 {v(O_,4)}, v10, s[{SRD_WS}:{SRD_WS+3}], 0 offen")
    a.label(END)
    a("s_endpgm")
    a.L.append(kernel_desc(name, 96))

def gen_k3(a):
    name = "k3_kernel"
    a.L.append(kernel_header(name))
    END = "k3_end"
    S_I, S_J, S_W = 20, 21, 22
    SRD_WO, SRD_WS, SRD_Q, SRD_OUT = 4, 8, 12, 16
    wg_decode(a, S_I, S_J, S_W, END)
    a(f"s_load_dwordx2 s[24:25], s[0:1], {KA['wo']}")
    a(f"s_load_dwordx2 s[26:27], s[0:1], {KA['ws']}")
    a(f"s_load_dwordx2 s[28:29], s[0:1], {KA['A_q']}")
    a(f"s_load_dwordx2 s[30:31], s[0:1], {KA['out']}")
    a("s_waitcnt lgkmcnt(0)")
    srd(a, SRD_WO, 24, 640 * 640 * 2)
    srd(a, SRD_WS, 26, WS_USED)
    srd(a, SRD_Q, 28, XB)
    srd(a, SRD_OUT, 30, XB)
    a(f"s_movk_i32 s32, 1280")
    T0, T1, T2, T3 = 2, 3, 4, 5
    WD = 6
    YL = 102400
    a(f"s_mul_i32 s33, s{S_J}, 160")
    a(f"s_lshl_b32 s34, s{S_W}, 6")
    for t in range(5):
        a(f"v_add_u32 v{T0}, s34, v1")
        if t: a(f"v_add_u32 v{T0}, {256*t}, v{T0}")
        a(f"v_mul_u32_u24 v{T1}, 6554, v{T0}")
        a(f"v_lshrrev_b32 v{T1}, 16, v{T1}")
        a(f"v_mul_u32_u24 v{T2}, 10, v{T1}")
        a(f"v_sub_u32 v{T0}, v{T0}, v{T2}")
        a(f"v_lshlrev_b32 v{T0}, 4, v{T0}")
        a(f"v_and_b32 v{T2}, 0xfff3, v{T1}")
        a(f"v_bfe_u32 v{T3}, v{T1}, 2, 1")
        a(f"v_lshlrev_b32 v{T3}, 3, v{T3}")
        a(f"v_or_b32 v{T2}, v{T2}, v{T3}")
        a(f"v_bfe_u32 v{T3}, v{T1}, 3, 1")
        a(f"v_lshlrev_b32 v{T3}, 2, v{T3}")
        a(f"v_or_b32 v{T2}, v{T2}, v{T3}")
        a(f"v_mul_lo_u32 v{T2}, v{T2}, s32")
        a(f"v_add_u32 v{T2}, v{T2}, v{T0}")
        a(f"v_add_u32 v{WD+t}, s33, v{T2}")
    a(f"s_lshl_b32 s34, s{S_W}, 10")
    for t in range(25):
        a(f"s_add_u32 m0, s34, {4096*t}")
        a(f"s_mov_b32 s35, {(t//5)*128*1280}")
        a(f"buffer_load_dwordx4 v{WD+t%5}, s[{SRD_WO}:{SRD_WO+3}], s35 offen lds")
    a(f"v_lshrrev_b32 v{T0}, 3, v1")
    a(f"v_lshlrev_b32 v{T0}, 12, v{T0}")
    a(f"v_and_b32 v{T1}, 7, v1")
    a(f"v_lshlrev_b32 v{T1}, 4, v{T1}")
    a(f"v_add_u32 v{T0}, v{T0}, v{T1}")
    a(f"s_mul_i32 s33, s{S_J}, {80*4096}")
    a(f"s_lshl_b32 s35, s{S_I}, 7")
    a(f"s_add_u32 s33, s33, s35")
    a(f"s_add_u32 s33, s33, {YT_OFF}")
    a(f"s_lshl_b32 s35, s{S_W}, 15")
    a(f"s_add_u32 s33, s33, s35")
    for t in range(3):
        lab = a.newlabel("ysk")
        if t == 2:
            a(f"s_cmp_ge_u32 s{S_W}, 2")
            a(f"s_cbranch_scc1 {lab}")
        a(f"s_add_u32 m0, s34, {YL + 4096*t}")
        a(f"s_add_u32 s35, s33, {t*32*4096}")
        a(f"buffer_load_dwordx4 v{T0}, s[{SRD_WS}:{SRD_WS+3}], s35 offen lds")
        if t == 2: a.label(lab)
    OFR = 16
    a(f"v_and_b32 v{T0}, 15, v1")
    a(f"s_lshl_b32 s33, s{S_I}, 6")
    a(f"s_lshl_b32 s35, s{S_W}, 4")
    a(f"s_add_u32 s33, s33, s35")
    a(f"v_add_u32 v{T0}, s33, v{T0}")
    a(f"v_lshlrev_b32 v{T3}, 2, v{T0}")
    a(f"v_mul_lo_u32 v{T0}, v{T0}, s32")
    a(f"v_lshrrev_b32 v{T1}, 4, v1")
    a(f"v_lshlrev_b32 v{T2}, 4, v{T1}")
    a(f"v_add_u32 v{T2}, v{T2}, v{T0}")
    a(f"s_mov_b32 s35, {O_OFF}")
    for s_ in range(20):
        a(f"buffer_load_dwordx4 {v(OFR+4*s_,4)}, v{T2}, s[{SRD_WS}:{SRD_WS+3}], s35 offen offset:{64*s_}")
    QF = 96
    GV = 106
    a(f"v_lshlrev_b32 v{T1}, 3, v{T1}")
    a(f"v_add_u32 v{T0}, v{T0}, v{T1}")
    a(f"s_mul_i32 s33, s{S_J}, 160")
    a(f"v_add_u32 v11, s33, v{T0}")
    for mt in range(5):
        a(f"buffer_load_dwordx2 {v(QF+2*mt,2)}, v11, s[{SRD_Q}:{SRD_Q+3}], 0 offen offset:{32*mt}")
    a(f"s_mov_b32 s35, {G_OFF}")
    a(f"buffer_load_dword v{GV}, v{T3}, s[{SRD_WS}:{SRD_WS+3}], s35 offen")
    ACC = 108
    AF = 128
    a(f"v_lshrrev_b32 v{T0}, 5, v1")
    a(f"v_lshlrev_b32 v{T0}, 4, v{T0}")
    a(f"v_bfe_u32 v{T1}, v1, 4, 1")
    a(f"v_lshlrev_b32 v{T1}, 2, v{T1}")
    a(f"v_add_u32 v{T0}, v{T0}, v{T1}")
    a(f"v_bfe_u32 v{T1}, v1, 2, 2")
    a(f"v_add_u32 v{T0}, v{T0}, v{T1}")
    a(f"v_mul_u32_u24 v{T0}, 160, v{T0}")
    a(f"v_and_b32 v{T1}, 3, v1")
    a(f"v_lshlrev_b32 v{T1}, 3, v{T1}")
    a(f"v_add_u32 v12, v{T0}, v{T1}")
    a(f"v_add_u32 v13, 51200, v12")
    for r in range(20): a(f"v_mov_b32 v{ACC+r}, 0")
    a("s_waitcnt vmcnt(0)")
    a("s_barrier")
    def lds(s_):
        b = s_ & 1
        va = 12 if s_ < 10 else 13
        o0 = (s_ % 10) * 5120
        for mt in range(5):
            a(f"ds_read_b64_tr_b16 {v(AF+20*b+4*mt,2)}, v{va} offset:{o0 + 32*mt}")
            a(f"ds_read_b64_tr_b16 {v(AF+20*b+4*mt+2,2)}, v{va} offset:{o0 + 1280 + 32*mt}")
    lds(0)
    for s_ in range(20):
        if s_ < 19:
            lds(s_ + 1); a("s_waitcnt lgkmcnt(10)")
        else:
            a("s_waitcnt lgkmcnt(0)")
        b = s_ & 1
        for mt in range(5):
            a(f"v_mfma_f32_16x16x32_bf16 {v(ACC+4*mt,4)}, {v(AF+20*b+4*mt,4)}, {v(OFR+4*s_,4)}, {v(ACC+4*mt,4)}")
    a(f"v_bfe_u32 v{T0}, v1, 2, 4")
    a(f"v_lshlrev_b32 v{T0}, 7, v{T0}")
    a(f"v_and_b32 v{T1}, 3, v1")
    a(f"v_lshlrev_b32 v{T1}, 3, v{T1}")
    a(f"v_add_u32 v{T0}, v{T0}, v{T1}")
    a(f"s_lshl_b32 s33, s{S_W}, 5")
    a(f"s_add_u32 s33, s33, {YL}")
    a(f"v_add_u32 v{T0}, s33, v{T0}")
    YF = 16
    for mt in range(5):
        a(f"ds_read_b64_tr_b16 {v(YF+2*mt,2)}, v{T0} offset:{2048*mt}")
    a(f"v_sub_f32 v{GV+1}, 1.0, v{GV}")
    a("s_waitcnt lgkmcnt(0)")
    a.nop(8)
    for mt in range(5):
        for hlf in range(2):
            yq = YF + 2*mt + hlf; qq = QF + 2*mt + hlf
            a(f"v_lshlrev_b32 v30, 16, v{yq}")
            a(f"v_and_b32 v31, 0xffff0000, v{yq}")
            a(f"v_lshlrev_b32 v32, 16, v{qq}")
            a(f"v_and_b32 v33, 0xffff0000, v{qq}")
            a(f"v_mul_f32 v30, v30, v32")
            a(f"v_mul_f32 v31, v31, v33")
            a(f"v_mul_f32 v30, v30, v{GV}")
            a(f"v_mul_f32 v31, v31, v{GV}")
            a(f"v_fmac_f32 v30, v{ACC+4*mt+2*hlf}, v{GV+1}")
            a(f"v_fmac_f32 v31, v{ACC+4*mt+2*hlf+1}, v{GV+1}")
            a(f"v_cvt_pk_bf16_f32 v{40+2*mt+hlf}, v30, v31")
        a(f"buffer_store_dwordx2 {v(40+2*mt,2)}, v11, s[{SRD_OUT}:{SRD_OUT+3}], 0 offen offset:{32*mt}")
    a.label(END)
    a("s_endpgm")
    a.L.append(kernel_desc(name, 168))

HEADER = """; Kernarg: 12 inputs, out, debug, ws (see .s.ref)
{launches}
.amdgcn_target "amdgcn-amd-amdhsa--gfx950"
.text
"""

def main(out, which):
    a = Asm()
    launches = []
    if "k1" in which:
        launches.append("; @launch kernel=k1_kernel grid=(256,1,1) block=(512,1,1) lds=49152")
        gen_k1(a)
    if "k2" in which:
        launches.append("; @launch kernel=k2_kernel grid=(256,1,1) block=(512,1,1) lds=147456")
        gen_k2(a)
    if "k3" in which:
        launches.append("; @launch kernel=k3_kernel grid=(256,1,1) block=(256,1,1) lds=112640")
        gen_k3(a)
    txt = HEADER.format(launches="\n".join(launches)) + a.text()
    open(out, "w").write(txt)

if __name__ == "__main__":
    if len(sys.argv) > 3 and "stamp" in sys.argv[3]: STAMP = True
    main(sys.argv[1], sys.argv[2].split(","))
```

```python
import sys, struct
from asmlib import *

NAME = "gated_mix__ssm_conv_h3__grouped_kv_mqa__prompt"
KVF_OFF = 0
UR_OFF = 0x40000
YT_OFF = 0x2C0000
O_OFF = 0x540000
FL_OFF = 0x7F0000
H1 = FL_OFF
H2 = FL_OFF + 0x800
H3 = FL_OFF + 0x1800
H4 = FL_OFF + 0x2800
ST_OFF = 0x7E0000
WS_USED = 0x800000
XB = 2048 * 640 * 2
QSCALE = (20 ** -0.5) * 1.4426950408889634
def f32bits(x): return struct.unpack("<I", struct.pack("<f", x))[0]
OPT = set()
POLL_MAX = 40000

SRD_X, SRD_WQ, SRD_WS, SRD_H = 4, 8, 12, 16
S_I, S_J, S_W, S_HH, S_G, S_NONCE, S_1280, S_ROT = 20, 21, 22, 23, 24, 25, 26, 27
SRD_K, SRD_V, SRD_SH, SRD_W, SRD_GW, SRD_WO, SRD_OUT, SRD_DBG = 44, 48, 52, 56, 60, 64, 68, 72
S_DPTR = 76
SLOT = 36864
GWL = 147456
GP = GWL + 1280
UNIT_W = 3 * SLOT
UNIT_R = UNIT_W + 4 * 7168
PERS = 161792
G_L = PERS
CNT = PERS + 256
C_FULL, C_DONE, C_CS, C_CD, C_NONCE = CNT, CNT + 8, CNT + 16, CNT + 20, CNT + 24
KVSLOT = 12288
RING = [0, 3 * KVSLOT]
CONVB = 73728
RB = CONVB + 21248
QX = RB + 32768
WOL = 36864
YL = 139264
OXB = 149504
OXA = 0
PX = 12288
LDS_BYTES = 163840
V_ST = 255

def stamp(a, idx, real=False):
    if "stamp" not in OPT: return
    a(f"s_waitcnt lgkmcnt(0)")
    a(f"{'s_memrealtime' if real else 's_memtime'} s[98:99]")
    a(f"s_waitcnt lgkmcnt(0)")
    a(f"v_writelane_b32 v{V_ST}, s98, {idx}")
def stamp_flush(a):
    if "stamp" not in OPT: return
    a(f"s_mov_b64 exec, -1")
    a(f"s_lshl_b32 s98, s2, 3")
    a(f"s_add_u32 s98, s98, s{S_W}")
    a(f"s_lshl_b32 s98, s98, 6")
    a(f"s_add_u32 s98, s98, {ST_OFF}")
    a(f"v_lshlrev_b32 v254, 2, v1")
    a(f"s_mov_b64 exec, 0xffff")
    a(f"buffer_store_dword v{V_ST}, v254, s[{SRD_WS}:{SRD_WS+3}], s98 offen")
    a("s_waitcnt vmcnt(0)")

def R(b): return f"s[{b}:{b+3}]"

def poll_global(a, vaddr, soff, nload, check, vt):
    lp = a.newlabel("poll"); dn = a.newlabel("pdone")
    a(f"s_mov_b32 s43, 0")
    a.label(lp)
    nload()
    a("s_waitcnt vmcnt(0)")
    check()
    a(f"s_cbranch_scc1 {dn}")
    a(f"s_add_u32 s43, s43, 1")
    a(f"s_cmp_lt_u32 s43, {POLL_MAX}")
    a(f"s_cbranch_scc0 {dn}")
    a("s_sleep 1")
    a(f"s_branch {lp}")
    a.label(dn)

def poll_flags(a, vaddr, soff, lanes_mask, vt):
    def ld(): a(f"buffer_load_dword v{vt}, v{vaddr}, {R(SRD_WS)}, {soff} offen sc1")
    def ck():
        a(f"v_cmp_ne_u32 vcc, s{S_NONCE}, v{vt}")
        a(f"s_nop 1")
        a(f"s_and_b64 vcc, vcc, s[40:41]")
        a(f"s_cmp_eq_u64 vcc, 0")
    a(f"s_mov_b32 s40, {lanes_mask & 0xffffffff}")
    a(f"s_mov_b32 s41, {(lanes_mask >> 32) & 0xffffffff}")
    poll_global(a, vaddr, soff, ld, ck, vt)

def lds_wait_ge(a, vaddr_off, target_sgpr_or_imm, vt, vz):
    lp = a.newlabel("lw"); dn = a.newlabel("lwd")
    a(f"s_mov_b32 s43, 0")
    a.label(lp)
    a(f"ds_read_b32 v{vt}, v{vz}")
    a("s_waitcnt lgkmcnt(0)")
    a(f"v_readfirstlane_b32 s42, v{vt}")
    a("s_nop 3")
    a(f"s_cmp_ge_u32 s42, {target_sgpr_or_imm}")
    a(f"s_cbranch_scc1 {dn}")
    a(f"s_add_u32 s43, s43, 1")
    a(f"s_cmp_lt_u32 s43, {POLL_MAX * 16}")
    a(f"s_cbranch_scc1 {lp}")
    a.label(dn)

def lds_add1(a, vaddr, vone):
    a("s_mov_b64 exec, 1")
    a(f"ds_add_u32 v{vaddr}, v{vone}")
    a("s_mov_b64 exec, -1")

def gen(a):
    name = NAME + "_kernel"
    a.L.append(kernel_header(name))
    END = "f_end"
    a(f"s_cmp_ge_u32 s2, 256")
    a(f"s_cbranch_scc1 {END}")
    a(f"s_load_dwordx16 s[76:91], s[0:1], 0")
    a(f"s_load_dwordx8 s[92:99], s[0:1], 64")
    a(f"s_load_dwordx4 s[28:31], s[0:1], 96")
    a(f"s_load_dwordx2 s[32:33], s[0:1], 112")
    a(f"v_lshrrev_b32 v1, 6, v0")
    a(f"s_and_b32 s{S_I}, s2, 7")
    a(f"s_lshl_b32 s{S_I}, s{S_I}, 2")
    a(f"s_lshr_b32 s{S_J}, s2, 6")
    a(f"s_add_u32 s{S_I}, s{S_I}, s{S_J}")
    a(f"s_lshr_b32 s{S_J}, s2, 3")
    a(f"s_and_b32 s{S_J}, s{S_J}, 7")
    a(f"v_readfirstlane_b32 s{S_W}, v1")
    a(f"v_and_b32 v1, 63, v0")
    a(f"s_movk_i32 s{S_1280}, 1280")
    a(f"s_add_u32 s{S_ROT}, s{S_I}, s{S_J}")
    a(f"s_and_b32 s{S_ROT}, s{S_ROT}, 7")
    a(f"s_and_b32 s{S_HH}, s{S_W}, 3")
    a(f"s_lshr_b32 s{S_G}, s{S_W}, 2")
    a("s_waitcnt lgkmcnt(0)")
    srd(a, SRD_X, 76, XB)
    srd(a, SRD_WS, 32, WS_USED)
    srd(a, SRD_WQ, 90, 640 * 640 * 2)
    srd(a, SRD_GW, 98, 1280)
    a(f"s_cmp_ge_u32 s{S_J}, 4")
    a(f"s_cselect_b32 s{SRD_W}, s94, s92")
    a(f"s_cselect_b32 s{SRD_W+1}, s95, s93")
    a(f"s_mov_b32 s{SRD_W+2}, 25600")
    a(f"s_mov_b32 s{SRD_W+3}, 0x00020000")
    srd(a, SRD_K, 78, XB)
    srd(a, SRD_V, 80, XB)
    srd(a, SRD_SH, 82, 640 * 4 * 2)
    srd(a, SRD_H, 84, XB)
    srd(a, SRD_WO, 96, 640 * 640 * 2)
    srd(a, SRD_OUT, 28, XB)
    srd(a, SRD_DBG, 30, 256)
    a(f"s_mov_b32 s{S_DPTR}, s86")
    a(f"s_mov_b32 s{S_DPTR+1}, s87")
    for r in (200, 201, 202, 203, 204, 205, 114): a(f"v_mov_b32 v{r}, 0")
    stamp(a, 0, True); stamp(a, 1)
    T0, T1, T2, T3 = 2, 3, 116, 117
    B_START = "f_bstart"; QPROJ = "f_qproj"
    a(f"s_cmp_ge_u32 s{S_W}, 4")
    a(f"s_cbranch_scc1 {B_START}")

    XF, WF, UACC = 16, 36, 44
    a(f"s_and_b32 s28, s{S_J}, 3")
    a(f"s_lshl_b32 s28, s28, 4")
    a(f"s_lshl_b32 s29, s{S_I}, 6")
    a(f"s_add_u32 s28, s28, s29")
    a(f"v_and_b32 v{T0}, 15, v1")
    a(f"v_add_u32 v{T0}, s28, v{T0}")
    a(f"v_mul_lo_u32 v{T0}, v{T0}, s{S_1280}")
    a(f"v_lshrrev_b32 v{T1}, 4, v1")
    a(f"v_lshlrev_b32 v{T2}, 4, v{T1}")
    a(f"v_add_u32 v{T0}, v{T0}, v{T2}")
    a(f"s_mul_i32 s29, s{S_W}, 320")
    for s_ in range(5):
        a(f"buffer_load_dwordx4 {v(XF+4*s_,4)}, v{T0}, {R(SRD_X)}, s29 offen offset:{64*s_}")
    a(f"v_lshlrev_b32 v{T2}, 4, v1")
    a(f"s_mul_i32 s29, s{S_W}, 6400")
    a(f"s_mul_i32 s30, s{S_W}, 7168")
    for q in range(7):
        a(f"s_add_u32 m0, s30, {UNIT_W + 1024*q}")
        a(f"s_add_u32 s31, s29, {1024*q}")
        a(f"buffer_load_dwordx4 v{T2}, {R(SRD_W)}, s31 offen lds")
    lz = a.newlabel("nz")
    a(f"s_cmp_lg_u32 s{S_W}, 0")
    a(f"s_cbranch_scc1 {lz}")
    a(f"v_mov_b32 v4, 0")
    a(f"v_lshlrev_b32 v5, 2, v1")
    a(f"v_add_u32 v5, {CNT}, v5")
    a(f"s_mov_b64 exec, 0x3f")
    a(f"ds_write_b32 v5, v4")
    a(f"s_mov_b64 exec, -1")
    a.label(lz)
    a(f"v_bfe_u32 v{T2}, v1, 2, 2")
    a(f"v_lshlrev_b32 v{T1}, 3, v{T1}")
    a(f"v_add_u32 v{T2}, v{T2}, v{T1}")
    a(f"v_mul_u32_u24 v{T2}, 40, v{T2}")
    a(f"v_and_b32 v{T3}, 3, v1")
    a(f"v_lshlrev_b32 v{T3}, 3, v{T3}")
    a(f"v_add_u32 v{T2}, v{T2}, v{T3}")
    a(f"s_add_u32 s30, s30, {UNIT_W}")
    a(f"v_add_u32 v{T2}, s30, v{T2}")
    for r in range(8): a(f"v_mov_b32 v{UACC+r}, 0")
    a("s_waitcnt vmcnt(0)")
    labV = a.newlabel("kindV"); labD = a.newlabel("kindD")
    WFA = 52
    for s_ in range(5):
        for dt in range(2):
            for jj in range(2):
                a(f"ds_read_b64_tr_b16 {v(WFA+8*s_+4*dt+2*jj,2)}, v{T2} offset:{1280*s_ + 160*jj + 32*dt}")
        if s_ == 2: a("s_waitcnt lgkmcnt(0)")
    a("s_waitcnt lgkmcnt(0)")
    a(f"s_cmp_ge_u32 s{S_J}, 4")
    a(f"s_cbranch_scc1 {labV}")
    for kind in range(2):
        for s_ in range(5):
            for dt in range(2):
                w_ = v(WFA+8*s_+4*dt, 4); x_ = v(XF+4*s_, 4)
                A_, B_ = (w_, x_) if kind == 0 else (x_, w_)
                a(f"v_mfma_f32_16x16x32_bf16 {v(UACC+4*dt,4)}, {A_}, {B_}, {v(UACC+4*dt,4)}")
        if kind == 0:
            a(f"s_branch {labD}")
            a.label(labV)
    a.label(labD)
    a.nop(8)
    a(f"s_lshl_b32 s29, s{S_W}, 11")
    a(f"s_add_u32 s29, s29, {UNIT_R}")
    a(f"v_lshlrev_b32 v{T0}, 4, v1")
    a(f"v_add_u32 v{T1}, s29, v{T0}")
    a(f"ds_write_b128 v{T1}, {v(UACC,4)}")
    a(f"ds_write_b128 v{T1}, {v(UACC+4,4)} offset:1024")
    ln = a.newlabel("nn")
    a(f"s_cmp_lg_u32 s{S_W}, 0")
    a(f"s_cbranch_scc1 {ln}")
    a(f"v_mov_b32 v4, 0")
    def ld(): a(f"buffer_load_dword v5, v4, {R(SRD_DBG)}, 0 offen sc1")
    def ck():
        a(f"v_readfirstlane_b32 s42, v5")
        a("s_nop 3")
        a(f"s_cmp_lg_u32 s42, 0")
    poll_global(a, None, None, ld, ck, None)
    a(f"v_mov_b32 v4, {C_NONCE}")
    a(f"ds_write_b32 v4, v5")
    a.label(ln)
    a("s_waitcnt lgkmcnt(0)")
    a("s_barrier")
    lq = a.newlabel("toq")
    a(f"s_cmp_lg_u32 s{S_W}, 0")
    a(f"s_cbranch_scc1 {QPROJ}")
    a(f"v_readfirstlane_b32 s{S_NONCE}, v5")
    a(f"v_add_u32 v{T1}, {UNIT_R}, v{T0}")
    for p_ in range(4):
        a(f"ds_read_b128 {v(XF+8*p_,4)}, v{T1} offset:{2048*p_}")
        a(f"ds_read_b128 {v(XF+8*p_+4,4)}, v{T1} offset:{2048*p_+1024}")
    a("s_waitcnt lgkmcnt(0)")
    for p_ in range(1, 4):
        for r in range(8): a(f"v_add_f32 v{XF+r}, v{XF+r}, v{XF+8*p_+r}")
    for r in range(4): a(f"v_cvt_pk_bf16_f32 v{WF+r}, v{XF+2*r}, v{XF+2*r+1}")
    a(f"s_lshl_b32 s28, s{S_I}, 1")
    a(f"s_bfe_u32 s29, s{S_J}, 0x10001")
    a(f"s_add_u32 s28, s28, s29")
    a(f"s_mul_i32 s29, s28, 3072")
    a(f"s_and_b32 s30, s{S_J}, 1")
    a(f"v_and_b32 v{T0}, 15, v1")
    a(f"v_bfe_u32 v{T1}, v1, 4, 1")
    a(f"v_lshrrev_b32 v{T2}, 5, v1")
    a(f"v_lshlrev_b32 v{T2}, 3, v{T2}")
    labV2 = a.newlabel("stV"); labP = a.newlabel("pub")
    a(f"s_cmp_ge_u32 s{S_J}, 4")
    a(f"s_cbranch_scc1 {labV2}")
    a(f"s_lshl_b32 s31, s30, 4")
    a(f"v_add_u32 v{T0}, s31, v{T0}")
    a(f"v_lshlrev_b32 v{T1}, 5, v{T1}")
    a(f"v_add_u32 v{T1}, v{T1}, v{T0}")
    a(f"v_lshlrev_b32 v{T1}, 4, v{T1}")
    a(f"v_add_u32 v{T1}, v{T1}, v{T2}")
    a(f"buffer_store_dwordx2 {v(WF,2)}, v{T1}, {R(SRD_WS)}, s29 offen sc1")
    a(f"v_lshlrev_b32 v{T0}, 3, v{T0}")
    a(f"v_add_u32 v{T0}, 1024, v{T0}")
    a(f"v_mov_b32 v{T1}, 1280")
    a(f"v_mov_b32 v{T2}, 0x3f803f80")
    a(f"v_mov_b32 v{T3}, 0x3f80")
    a(f"v_cmp_eq_u32 vcc, 16, v1")
    a.nop(2)
    a(f"v_cndmask_b32 v{T0}, v{T0}, v{T1}, vcc")
    a(f"v_cndmask_b32 v{WF+2}, v{WF+2}, v{T2}, vcc")
    a(f"v_cndmask_b32 v{WF+3}, v{WF+3}, v{T3}, vcc")
    a(f"s_mov_b32 s41, 0xffff")
    a(f"s_cmp_eq_u32 s30, 0")
    a(f"s_cselect_b32 s40, 0x1ffff, s41")
    a(f"s_mov_b32 s41, 0")
    a(f"s_mov_b64 exec, s[40:41]")
    a(f"buffer_store_dwordx2 {v(WF+2,2)}, v{T0}, {R(SRD_WS)}, s29 offen sc1")
    a(f"s_mov_b64 exec, -1")
    a(f"s_branch {labP}")
    a.label(labV2)
    a(f"s_mul_i32 s31, s30, 672")
    a(f"s_add_u32 s31, s31, 1296")
    a(f"v_mul_u32_u24 v{T1}, 336, v{T1}")
    a(f"v_add_u32 v{T1}, v{T1}, v{T2}")
    a(f"v_lshlrev_b32 v{T2}, 4, v{T0}")
    a(f"v_add_u32 v{T1}, v{T1}, v{T2}")
    a(f"v_add_u32 v{T1}, s31, v{T1}")
    a(f"buffer_store_dwordx2 {v(WF,2)}, v{T1}, {R(SRD_WS)}, s29 offen sc1")
    a(f"v_mov_b32 v{T2}, 0x3f803f80")
    a(f"v_cmp_eq_u32 vcc, 4, v{T0}")
    a.nop(2)
    a(f"v_cndmask_b32 v{WF+2}, v{WF+2}, v{T2}, vcc")
    a(f"v_cndmask_b32 v{WF+3}, v{WF+3}, v{T2}, vcc")
    a(f"v_cmp_gt_u32 vcc, 5, v{T0}")
    a(f"s_and_saveexec_b64 s[40:41], vcc")
    a(f"buffer_store_dwordx2 {v(WF+2,2)}, v{T1}, {R(SRD_WS)}, s29 offen offset:256 sc1")
    a(f"s_mov_b64 exec, -1")
    a.label(labP)
    a(f"s_lshr_b32 s29, s28, 2")
    a(f"s_lshl_b32 s29, s29, 7")
    a(f"s_and_b32 s31, s28, 3")
    a(f"s_lshl_b32 s31, s31, 2")
    a(f"s_lshl_b32 s30, s30, 1")
    a(f"s_add_u32 s31, s31, s30")
    a(f"s_lshr_b32 s30, s{S_J}, 2")
    a(f"s_add_u32 s31, s31, s30")
    a(f"s_lshl_b32 s31, s31, 2")
    a(f"s_add_u32 s29, s29, s31")
    a(f"s_add_u32 s29, s29, {H1}")
    a(f"v_mov_b32 v{T0}, 0")
    a(f"v_mov_b32 v{T1}, s{S_NONCE}")
    a("s_waitcnt vmcnt(0)")
    a(f"s_mov_b64 exec, 1")
    a(f"buffer_store_dword v{T1}, v{T0}, {R(SRD_WS)}, s29 offen sc1")
    a(f"s_mov_b64 exec, -1")
    a(f"s_branch {QPROJ}")

    a.label(B_START)
    V_XD, V_WD = 200, 201
    ll = a.newlabel("nolead")
    a(f"s_cmp_lg_u32 s2, 0")
    a(f"s_cbranch_scc1 {ll}")
    a(f"s_cmp_lg_u32 s{S_W}, 4")
    a(f"s_cbranch_scc1 {ll}")
    a(f"s_memrealtime s[28:29]")
    a("s_waitcnt lgkmcnt(0)")
    a(f"s_or_b32 s28, s28, 1")
    a(f"v_mov_b32 v{T0}, 0")
    a(f"v_mov_b32 v{T1}, s28")
    a(f"s_mov_b64 exec, 1")
    a(f"buffer_store_dword v{T1}, v{T0}, {R(SRD_DBG)}, 0 offen sc1")
    a(f"s_mov_b64 exec, -1")
    a.label(ll)
    a(f"v_lshrrev_b32 v{T0}, 4, v1")
    a(f"s_lshl_b32 s28, s{S_HH}, 2")
    a(f"v_add_u32 v{T0}, s28, v{T0}")
    a(f"v_and_b32 v{T1}, 15, v1")
    a(f"v_xor_b32 v{T1}, v{T1}, v{T0}")
    a(f"v_lshlrev_b32 v{T1}, 4, v{T1}")
    a(f"s_lshl_b32 s28, s{S_I}, 6")
    a(f"v_add_u32 v{T0}, s28, v{T0}")
    a(f"v_mul_lo_u32 v{T0}, v{T0}, s{S_1280}")
    a(f"v_add_u32 v{V_XD}, v{T0}, v{T1}")
    a(f"s_mul_i32 s29, s{S_J}, 160")
    a(f"s_lshl_b32 s28, s{S_HH}, 6")
    for t in range(5):
        a(f"v_add_u32 v{T0}, s28, v1")
        if t: a(f"v_add_u32 v{T0}, {256*t}, v{T0}")
        a(f"v_mul_u32_u24 v{T1}, 6554, v{T0}")
        a(f"v_lshrrev_b32 v{T1}, 16, v{T1}")
        a(f"v_mul_u32_u24 v{T2}, 10, v{T1}")
        a(f"v_sub_u32 v{T0}, v{T0}, v{T2}")
        a(f"v_lshlrev_b32 v{T0}, 4, v{T0}")
        a(f"v_and_b32 v{T2}, 0xfff8, v{T1}")
        a(f"v_bfe_u32 v{T3}, v{T1}, 1, 2")
        a(f"v_or_b32 v{T2}, v{T2}, v{T3}")
        a(f"v_and_b32 v{T1}, 1, v{T1}")
        a(f"v_lshlrev_b32 v{T1}, 2, v{T1}")
        a(f"v_or_b32 v{T2}, v{T2}, v{T1}")
        a(f"v_mul_lo_u32 v{T2}, v{T2}, s{S_1280}")
        a(f"v_add_u32 v{T2}, v{T2}, v{T0}")
        a(f"v_add_u32 v{V_WD+t}, s29, v{T2}")
    def dma_chunk(ch, slot):
        base = slot * SLOT
        a(f"s_lshl_b32 s28, s{S_HH}, 10")
        for t in range(4):
            a(f"s_add_u32 m0, s28, {base + 4096*t}")
            a(f"s_mov_b32 s29, {256*ch + 16*1280*t}")
            a(f"buffer_load_dwordx4 v{V_XD}, {R(SRD_X)}, s29 offen lds")
        a(f"s_mov_b32 s29, {163840*ch}")
        for t in range(5):
            a(f"s_add_u32 m0, s28, {base + 16384 + 4096*t}")
            a(f"s_nop 0")
            a(f"buffer_load_dwordx4 v{V_WD+t}, {R(SRD_WQ)}, s29 offen lds")
    a(f"s_mul_i32 s28, s{S_HH}, 320")
    a(f"s_add_u32 m0, s28, {GWL}")
    a(f"v_lshlrev_b32 v{T0}, 4, v1")
    a(f"s_mov_b64 exec, 0xfffff")
    a(f"buffer_load_dwordx4 v{T0}, {R(SRD_GW)}, s28 offen lds")
    a(f"s_mov_b64 exec, -1")
    for ch in range(3): dma_chunk(ch, ch)
    a("s_barrier")

    a.label(QPROJ)
    stamp(a, 2)
    V_XA, V_WA = 206, 214
    QACC, GACC, GWF, QXF, QWF = 128, 144, 160, 216, 224
    KD, VD, SH = 16, 28, 36
    V_UB, V_UB2, V_UH, V_USH, V_UST = 40, 41, 42, 43, 114
    def uprep_loads():
        a(f"v_lshrrev_b32 v{T0}, 3, v1")
        a(f"s_mul_i32 s28, s{S_W}, 5")
        a(f"v_add_u32 v{T0}, s28, v{T0}")
        a(f"v_and_b32 v{T1}, 7, v1")
        a(f"v_lshlrev_b32 v{T1}, 3, v{T1}")
        a(f"s_lshl_b32 s28, s{S_I}, 6")
        a(f"v_add_u32 v{T1}, s28, v{T1}")
        a(f"v_mul_lo_u32 v{V_UB}, v{T1}, s{S_1280}")
        a(f"s_mul_i32 s28, s{S_J}, 160")
        a(f"v_lshlrev_b32 v{T0}, 2, v{T0}")
        a(f"v_add_u32 v{T0}, s28, v{T0}")
        a(f"v_add_u32 v{V_UB}, v{V_UB}, v{T0}")
        a(f"v_add_u32 v{V_UB2}, 5120, v{V_UB}")
        a(f"v_subrev_u32 v{V_UH}, 3840, v{V_UB}")
        a(f"v_lshlrev_b32 v{V_USH}, 2, v{T0}")
        a(f"v_lshlrev_b32 v{V_UST}, 11, v{T0}")
        a(f"v_lshlrev_b32 v{T1}, 1, v{T1}")
        a(f"v_sub_u32 v{V_UST}, v{V_UST}, v{T1}")
        a(f"v_add_u32 v{V_UST}, {UR_OFF + 4080}, v{V_UST}")
        a(f"s_mov_b32 exec_lo, -1")
        a(f"s_mov_b32 exec_hi, 0xff")
        for r in range(3): a(f"buffer_load_dword v{KD+r}, v{V_UH}, {R(SRD_K)}, 0 offen offset:{1280*r}")
        for r in range(4): a(f"buffer_load_dword v{KD+3+r}, v{V_UB}, {R(SRD_K)}, 0 offen offset:{1280*r}")
        for r in range(4): a(f"buffer_load_dword v{KD+7+r}, v{V_UB2}, {R(SRD_K)}, 0 offen offset:{1280*r}")
        for r in range(4): a(f"buffer_load_dword v{VD+r}, v{V_UB}, {R(SRD_V)}, 0 offen offset:{1280*r}")
        for r in range(4): a(f"buffer_load_dword v{VD+4+r}, v{V_UB2}, {R(SRD_V)}, 0 offen offset:{1280*r}")
        a(f"buffer_load_dwordx4 {v(SH,4)}, v{V_USH}, {R(SRD_SH)}, 0 offen")
        a(f"s_mov_b64 exec, -1")
    NU = 20
    la = a.newlabel("ua")
    a(f"s_cmp_ge_u32 s{S_W}, 4")
    a(f"s_cbranch_scc1 {la}")
    uprep_loads()
    a.label(la)
    a(f"v_and_b32 v{T0}, 31, v1")
    a(f"s_lshl_b32 s28, s{S_G}, 5")
    a(f"v_add_u32 v{T0}, s28, v{T0}")
    a(f"v_lshrrev_b32 v{T1}, 5, v1")
    a(f"v_and_b32 v{T2}, 15, v{T0}")
    a(f"v_xor_b32 v{T2}, v{T2}, v{T1}")
    a(f"v_lshlrev_b32 v{T2}, 4, v{T2}")
    a(f"v_lshlrev_b32 v{T0}, 8, v{T0}")
    a(f"v_add_u32 v{V_XA}, v{T0}, v{T2}")
    for s_ in range(1, 8): a(f"v_xor_b32 v{V_XA+s_}, {32*s_}, v{V_XA}")
    a(f"v_bfe_u32 v{T0}, v1, 2, 2")
    a(f"v_lshlrev_b32 v{T0}, 1, v{T0}")
    a(f"v_lshlrev_b32 v{T2}, 3, v{T1}")
    a(f"v_add_u32 v{T0}, v{T0}, v{T2}")
    a(f"v_mul_u32_u24 v{T0}, 160, v{T0}")
    a(f"v_and_b32 v{T2}, 3, v1")
    a(f"v_lshlrev_b32 v{T2}, 3, v{T2}")
    a(f"v_and_b32 v{T3}, 16, v1")
    a(f"v_cmp_ne_u32 vcc, 0, v{T3}")
    a(f"s_mul_i32 s28, s{S_HH}, 40")
    a(f"s_add_u32 s28, s28, 16384")
    a(f"v_mov_b32 v{T3}, 32")
    a(f"v_cndmask_b32 v{T2}, v{T2}, v{T3}, vcc")
    a(f"v_add_u32 v{T0}, v{T0}, v{T2}")
    a(f"v_add_u32 v{V_WA}, s28, v{T0}")
    for r in range(16):
        a(f"v_mov_b32 v{QACC+r}, 0"); a(f"v_mov_b32 v{GACC+r}, 0")
    a(f"v_lshlrev_b32 v{T1}, 4, v{T1}")
    a(f"s_lshl_b32 s28, s{S_HH}, 5")
    a(f"s_add_u32 s28, s28, {GWL}")
    a(f"v_add_u32 v{T1}, s28, v{T1}")

    def bwait(n):
        lb = a.newlabel("bw")
        a(f"s_cmp_lt_u32 s{S_W}, 4")
        a(f"s_cbranch_scc1 {lb}")
        a(f"s_waitcnt vmcnt({n})")
        a.label(lb)
    def bdo(fn):
        lb = a.newlabel("bd")
        a(f"s_cmp_lt_u32 s{S_W}, 4")
        a(f"s_cbranch_scc1 {lb}")
        fn()
        a.label(lb)
    def q_chunk(ch, slot):
        off = (slot & 1) * SLOT
        def loads(s_):
            b = s_ & 1
            a(f"ds_read_b128 {v(QXF+4*b,4)}, v{V_XA+s_} offset:{off}")
            a(f"ds_read_b64_tr_b16 {v(QWF+4*b,2)}, v{V_WA} offset:{off + 2560*s_}")
            a(f"ds_read_b64_tr_b16 {v(QWF+4*b+2,2)}, v{V_WA} offset:{off + 2560*s_ + 160}")
        loads(0)
        for s_ in range(8):
            if s_ < 7:
                loads(s_+1); a("s_waitcnt lgkmcnt(3)")
            else:
                a("s_waitcnt lgkmcnt(0)")
            b = s_ & 1
            a(f"v_mfma_f32_32x32x16_bf16 {v(QACC,16)}, {v(QWF+4*b,4)}, {v(QXF+4*b,4)}, {v(QACC,16)}")
            lg = a.newlabel("ng")
            a(f"s_cmp_lg_u32 s{S_HH}, {s_ & 3}")
            a(f"s_cbranch_scc1 {lg}")
            t = (8 * ch + s_) >> 2
            a(f"v_mfma_f32_32x32x16_bf16 {v(GACC,16)}, {v(GWF+4*t,4)}, {v(QXF+4*b,4)}, {v(GACC,16)}")
            a.label(lg)
    def bump(delta):
        op = "v_add_u32" if delta > 0 else "v_subrev_u32"
        for s_ in range(8): a(f"{op} v{V_XA+s_}, {abs(delta)}, v{V_XA+s_}")
        a(f"{op} v{V_WA}, {abs(delta)}, v{V_WA}")

    bwait(18)
    a("s_waitcnt lgkmcnt(0)")
    a("s_barrier")
    bdo(lambda: dma_chunk(3, 3))
    for t in range(10):
        a(f"ds_read_b128 {v(GWF+4*t,4)}, v{T1} offset:{128*t}")
    a(f"v_mov_b32 v{T2}, {C_NONCE}")
    a(f"ds_read_b32 v{T3}, v{T2}")
    a("s_waitcnt lgkmcnt(0)")
    a(f"v_readfirstlane_b32 s{S_NONCE}, v{T3}")
    q_chunk(0, 0)
    bwait(18)
    a("s_barrier")
    def b4():
        dma_chunk(4, 0)
        uprep_loads()
    bdo(b4)
    q_chunk(1, 1)
    bump(2 * SLOT)
    bwait(18 + NU)
    a("s_barrier")
    q_chunk(2, 2)
    bwait(9 + NU)
    a("s_barrier")
    q_chunk(3, 3)
    bump(-2 * SLOT)
    bwait(NU)
    a("s_barrier")
    q_chunk(4, 0)
    stamp(a, 3)

    QF16, QF8, QG16, QG8 = 4, 8, 10, 14
    SF, SG = 16, 32
    P = 48
    OF, OG = 56, 72
    K16, K8, V0, V1 = 88, 92, 96, 100
    AK16, AK8, AV, AK16N, AK8N, AVN = 104, 105, 106, 107, 108, 109
    V_L16, V_ONE, V_CF, V_CD, V_CT = 110, 111, 112, 113, 115
    KVST = 116
    a.nop(16)
    a(f"s_mov_b32 s28, {hex(f32bits(QSCALE))}")
    for r in range(12): a(f"v_mul_f32 v{QACC+r}, s28, v{QACC+r}")
    for r in range(4): a(f"v_cvt_pk_bf16_f32 v{QF16+r}, v{QACC+2*r}, v{QACC+2*r+1}")
    for r in range(2): a(f"v_cvt_pk_bf16_f32 v{QF8+r}, v{QACC+8+2*r}, v{QACC+8+2*r+1}")
    a(f"v_cmp_gt_u32 vcc, 32, v1")
    a.nop(2)
    for r in range(2): a(f"v_cndmask_b32 v{QF8+r}, 0, v{QF8+r}, vcc")
    a("s_barrier")
    a(f"s_lshl_b32 s28, s{S_W}, 11")
    a(f"v_lshlrev_b32 v{T0}, 5, v1")
    a(f"v_add_u32 v{T0}, s28, v{T0}")
    a(f"v_xor_b32 v{T1}, {4<<11}, v{T0}")
    a(f"v_add_u32 v{T0}, {QX}, v{T0}")
    a(f"v_add_u32 v{T1}, {QX}, v{T1}")
    a(f"ds_write_b128 v{T0}, {v(QF16,4)}")
    a(f"ds_write_b64 v{T0}, {v(QF8,2)} offset:16")
    a(f"s_lshl_b32 s28, s{S_W}, 7")
    a(f"s_add_u32 s28, s28, {GP}")
    a(f"v_lshlrev_b32 v{T0}, 2, v1")
    a(f"v_add_u32 v{T0}, s28, v{T0}")
    a(f"s_mov_b64 exec, 0xffffffff")
    a(f"ds_write_b32 v{T0}, v{GACC}")
    a(f"s_mov_b64 exec, -1")
    a(f"v_mov_b32 v{V_CT}, v{T1}")
    KA_, KB_, WA_, WB_, UA, UB = 40, 52, 64, 68, 72, 80
    a("s_waitcnt vmcnt(0)")
    for r in range(11):
        a(f"v_lshlrev_b32 v{KA_+r}, 16, v{KD+r}")
        a(f"v_and_b32 v{KB_+r}, 0xffff0000, v{KD+r}")
    for (W, base) in ((WA_, SH), (WB_, SH + 2)):
        a(f"v_lshlrev_b32 v{W}, 16, v{base}")
        a(f"v_and_b32 v{W+1}, 0xffff0000, v{base}")
        a(f"v_lshlrev_b32 v{W+2}, 16, v{base+1}")
        a(f"v_and_b32 v{W+3}, 0xffff0000, v{base+1}")
    for e_ in range(8):
        for (U, Kf, W, lo) in ((UA, KA_, WA_, True), (UB, KB_, WB_, False)):
            a(f"v_mul_f32 v{U+e_}, v{Kf+e_+3}, v{W}")
            for jx in range(1, 4):
                a(f"v_fmac_f32 v{U+e_}, v{Kf+e_+3-jx}, v{W+jx}")
            if lo: a(f"v_lshlrev_b32 v88, 16, v{VD+e_}")
            else: a(f"v_and_b32 v88, 0xffff0000, v{VD+e_}")
            a(f"v_mul_f32 v{U+e_}, v{U+e_}, v88")
    a(f"s_mov_b32 exec_lo, -1")
    a(f"s_mov_b32 exec_hi, 0xff")
    for (U, O_, off) in ((UA, KD, 0), (UB, KD + 4, 4096)):
        for i in range(4):
            a(f"v_cvt_pk_bf16_f32 v{O_+i}, v{U+7-2*i}, v{U+6-2*i}")
        if off: a(f"v_add_u32 v{V_UST}, {off}, v{V_UST}")
        a(f"buffer_store_dwordx4 {v(O_,4)}, v{V_UST}, {R(SRD_WS)}, 0 offen sc1")
    a(f"s_mov_b64 exec, -1")
    a("s_waitcnt vmcnt(0) lgkmcnt(0)")
    a("s_barrier")
    def flag_addr_ji(base, sd):
        a(f"s_lshl_b32 s{sd}, s{S_J}, 9")
        a(f"s_lshr_b32 s30, s{S_I}, 3")
        a(f"s_lshl_b32 s30, s30, 7")
        a(f"s_add_u32 s{sd}, s{sd}, s30")
        a(f"s_and_b32 s30, s{S_I}, 7")
        a(f"s_lshl_b32 s30, s30, 2")
        a(f"s_add_u32 s{sd}, s{sd}, s30")
        a(f"s_add_u32 s{sd}, s{sd}, {base}")
    def flag_store(sd):
        a(f"v_mov_b32 v{T0}, 0")
        a(f"v_mov_b32 v{T1}, s{S_NONCE}")
        a(f"s_mov_b64 exec, 1")
        a(f"buffer_store_dword v{T1}, v{T0}, {R(SRD_WS)}, s{sd} offen sc1")
        a(f"s_mov_b64 exec, -1")
    lf = a.newlabel("uf")
    a(f"s_cmp_lg_u32 s{S_W}, 4")
    a(f"s_cbranch_scc1 {lf}")
    flag_addr_ji(H2, 29)
    flag_store(29)
    a.label(lf)
    lf = a.newlabel("gf")
    a(f"s_cmp_lg_u32 s{S_W}, 7")
    a(f"s_cbranch_scc1 {lf}")
    a(f"v_lshrrev_b32 v{T0}, 5, v1")
    a(f"v_lshlrev_b32 v{T0}, 9, v{T0}")
    a(f"v_and_b32 v{T1}, 31, v1")
    a(f"v_lshlrev_b32 v{T1}, 2, v{T1}")
    a(f"v_add_u32 v{T0}, v{T0}, v{T1}")
    a(f"v_add_u32 v{T0}, {GP}, v{T0}")
    for k in range(4): a(f"ds_read_b32 v{16+k}, v{T0} offset:{128*k}")
    a("s_waitcnt lgkmcnt(0)")
    a(f"v_add_f32 v16, v16, v17")
    a(f"v_add_f32 v18, v18, v19")
    a(f"v_add_f32 v16, v16, v18")
    a(f"v_mul_f32 v16, {hex(f32bits(-1.4426950408889634))}, v16")
    a(f"v_exp_f32 v16, v16")
    a.nop(1)
    a(f"v_add_f32 v16, 1.0, v16")
    a(f"v_rcp_f32 v16, v16")
    a(f"v_lshlrev_b32 v{T0}, 2, v1")
    a(f"v_add_u32 v{T0}, {G_L}, v{T0}")
    a.nop(1)
    a(f"ds_write_b32 v{T0}, v16")
    a.label(lf)
    a(f"ds_read_b128 {v(QG16,4)}, v{V_CT}")
    a(f"ds_read_b64 {v(QG8,2)}, v{V_CT} offset:16")
    stamp(a, 4)

    S_T, S_BLK, S_SLOT, S_NXT, S_FT, S_DT = 34, 35, 36, 37, 38, 39
    S_RB = 78
    S_M2, S_P1, S_DL = 79, 80, 81
    a(f"s_mul_i32 s{S_RB}, s{S_G}, {3*KVSLOT}")
    a(f"v_lshlrev_b32 v{V_L16}, 4, v1")
    a(f"v_mov_b32 v{V_ONE}, 1")
    a(f"s_lshl_b32 s28, s{S_G}, 2")
    a(f"s_add_u32 s29, s28, {C_FULL}")
    a(f"v_mov_b32 v{V_CF}, s29")
    a(f"s_add_u32 s29, s28, {C_DONE}")
    a(f"v_mov_b32 v{V_CD}, s29")
    a(f"v_lshrrev_b32 v{T0}, 2, v1")
    a(f"v_lshlrev_b32 v{T0}, 7, v{T0}")
    a(f"v_and_b32 v{T1}, 3, v1")
    a(f"v_lshlrev_b32 v{T1}, 2, v{T1}")
    a(f"v_add_u32 v{T0}, v{T0}, v{T1}")
    a(f"s_lshl_b32 s28, s{S_G}, 10")
    a(f"s_lshl_b32 s29, s{S_HH}, 4")
    a(f"s_add_u32 s28, s28, s29")
    a(f"s_add_u32 s28, s28, {H1}")
    poll_flags(a, T0, "s28", 0xffffffff, T1)
    stamp(a, 5)
    def blk_off(t_sgpr_or_int):
        if isinstance(t_sgpr_or_int, int): a(f"s_add_u32 s28, s{S_ROT}, {t_sgpr_or_int}")
        else: a(f"s_add_u32 s28, s{S_ROT}, {t_sgpr_or_int}")
        a(f"s_and_b32 s28, s28, 7")
        a(f"s_lshl_b32 s28, s28, 2")
        a(f"s_lshl_b32 s29, s{S_G}, 5")
        a(f"s_add_u32 s28, s28, s29")
        a(f"s_add_u32 s28, s28, s{S_HH}")
        a(f"s_mul_i32 s{S_BLK}, s28, 3072")
    def kv_load():
        for q in range(3):
            a(f"buffer_load_dwordx4 {v(KVST+4*q,4)}, v{V_L16}, {R(SRD_WS)}, s{S_BLK} offen offset:{1024*q} sc1")
    V_KW = 114
    def kv_write():
        for q in range(3):
            a(f"ds_write_b128 v{V_KW}, {v(KVST+4*q,4)} offset:{1024*q}")
    a(f"s_mul_i32 s29, s{S_HH}, 3072")
    a(f"s_add_u32 s82, s{S_RB}, s29")
    for t in range(2):
        blk_off(t)
        kv_load()
        a(f"s_add_u32 s29, s82, {t*KVSLOT}")
        a(f"v_add_u32 v{V_KW}, s29, v{V_L16}")
        a("s_waitcnt vmcnt(0)")
        kv_write()
        lds_add1(a, V_CF, V_ONE)
    blk_off(2)
    kv_load()
    a(f"v_add_u32 v{AK16}, s{S_RB}, v{V_L16}")
    a(f"v_and_b32 v{T0}, 31, v1")
    a(f"v_lshlrev_b32 v{T1}, 3, v{T0}")
    a(f"v_add_u32 v{T1}, 1024, v{T1}")
    a(f"v_mov_b32 v{AK8}, 1280")
    a(f"v_cmp_gt_u32 vcc, 32, v1")
    a.nop(2)
    a(f"v_cndmask_b32 v{AK8}, v{AK8}, v{T1}, vcc")
    a(f"v_add_u32 v{AK8}, s{S_RB}, v{AK8}")
    a(f"v_min_u32 v{T1}, 20, v{T0}")
    a(f"v_subrev_u32 v{AV}, 16, v{T0}")
    a(f"v_cmp_lt_u32 vcc, 27, v{T0}")
    a.nop(2)
    a(f"v_cndmask_b32 v{T1}, v{T1}, v{AV}, vcc")
    a(f"v_lshlrev_b32 v{T1}, 4, v{T1}")
    a(f"v_lshrrev_b32 v{AV}, 5, v1")
    a(f"v_mul_u32_u24 v{AV}, 336, v{AV}")
    a(f"v_add_u32 v{AV}, v{AV}, v{T1}")
    a(f"v_add_u32 v{AV}, 1296, v{AV}")
    a(f"v_add_u32 v{AV}, s{S_RB}, v{AV}")
    for cur, nxt in ((AK16, AK16N), (AK8, AK8N), (AV, AVN)):
        a(f"v_add_u32 v{nxt}, {KVSLOT}, v{cur}")
    for r in range(16):
        a(f"v_mov_b32 v{OF+r}, 0"); a(f"v_mov_b32 v{OG+r}, 0")
    for r in range(8): a(f"v_mov_b32 v{P+r}, 0")
    for r in range(4): a(f"v_mov_b32 v{V1+r}, 0")
    for r in range(12, 16): a(f"v_mov_b32 v{SG+r}, 0")
    lds_wait_ge(a, None, 4, V_CT, V_CF)
    a(f"ds_read_b128 {v(K16,4)}, v{AK16}")
    a(f"ds_read_b64 {v(K8,2)}, v{AK8}")
    a(f"ds_read_b128 {v(V0,4)}, v{AV}")
    a("s_waitcnt lgkmcnt(0)")
    a(f"v_mfma_f32_32x32x16_bf16 {v(SF,16)}, {v(K16,4)}, {v(QF16,4)}, 0")
    a(f"v_mfma_f32_32x32x8_bf16 {v(SF,16)}, {v(K8,2)}, {v(QF8,2)}, {v(SF,16)}")
    a.nop(16)
    a(f"s_mov_b32 s{S_T}, 0")
    a(f"s_mov_b32 s{S_SLOT}, {2*KVSLOT}")
    a(f"s_mov_b32 s{S_NXT}, {KVSLOT}")
    a(f"s_mov_b32 s{S_M2}, {(-2*KVSLOT) & 0xffffffff}")
    a(f"s_mov_b32 s{S_P1}, {KVSLOT}")
    a(f"s_mov_b32 s{S_FT}, 8")
    a(f"s_mov_b32 s{S_DT}, 0")
    stamp(a, 6)
    LOOP = "f_attn"; CONV = "f_conv"; ALOOP_END = "f_attn_end"
    a.label(LOOP)
    e = lambda S, i: a(f"v_exp_f32 v{S+i}, v{S+i}")
    c = lambda S, i: a(f"v_cvt_pk_bf16_f32 v{P+i}, v{S+2*i}, v{S+2*i+1}")
    def check_cnt(target, retry_addr):
        ok = a.newlabel("ok")
        a(f"v_readfirstlane_b32 s42, v{V_CT}")
        a("s_nop 3")
        a(f"s_cmp_ge_u32 s42, {target}")
        a(f"s_cbranch_scc1 {ok}")
        lds_wait_ge(a, None, target, V_CT, retry_addr)
        a.label(ok)
    for b in range(4):
        last = (b == 3)
        kA16, kA8, kAV, koff = (AK16N, AK8N, AVN, 0) if last else (AK16, AK8, AV, (b+1)*3072)
        extra = b in (1, 2)
        c(SG, 6); c(SG, 7)
        a(f"v_mfma_f32_32x32x16_bf16 {v(SG,16)}, {v(K16,4)}, {v(QG16,4)}, 0")
        a(f"ds_read_b128 {v(K16,4)}, v{kA16} offset:{koff}")
        if b == 1: a(f"ds_read_b32 v{V_CT}, v{V_CD}")
        if b == 2: a(f"ds_read_b32 v{V_CT}, v{V_CF}")
        for i in range(0, 4): e(SF, i)
        c(SF, 0); c(SF, 1)
        a(f"v_mfma_f32_32x32x16_bf16 {v(OG,16)}, {v(V1,4)}, {v(P+4,4)}, {v(OG,16)}")
        a(f"ds_read_b128 {v(V1,4)}, v{AV} offset:{b*3072 + 672}")
        for i in range(4, 8): e(SF, i)
        c(SF, 2); c(SF, 3)
        a(f"v_mfma_f32_32x32x8_bf16 {v(SG,16)}, {v(K8,2)}, {v(QG8,2)}, {v(SG,16)}")
        a(f"ds_read_b64 {v(K8,2)}, v{kA8} offset:{koff}")
        for i in range(8, 12): e(SF, i)
        c(SF, 4); c(SF, 5)
        a(f"s_waitcnt lgkmcnt({4 if extra else 3})")
        a(f"v_mfma_f32_32x32x16_bf16 {v(OF,16)}, {v(V0,4)}, {v(P,4)}, {v(OF,16)}")
        for i in range(12, 16): e(SF, i)
        c(SF, 6); c(SF, 7)
        a("s_waitcnt lgkmcnt(0)")
        a(f"v_mfma_f32_32x32x16_bf16 {v(SF,16)}, {v(K16,4)}, {v(QF16,4)}, 0")
        if b == 0:
            lb = a.newlabel("nd")
            a(f"s_cmp_eq_u32 s{S_T}, 0")
            a(f"s_cbranch_scc1 {lb}")
            lds_add1(a, V_CD, V_ONE)
            a.label(lb)
        if b == 1:
            lb = a.newlabel("nw")
            a(f"s_cmp_ge_u32 s{S_T}, 6")
            a(f"s_cbranch_scc1 {lb}")
            check_cnt(f"s{S_DT}", V_CD)
            a(f"s_add_u32 s29, s82, s{S_SLOT}")
            a(f"v_add_u32 v{V_KW}, s29, v{V_L16}")
            a("s_waitcnt vmcnt(0)")
            kv_write()
            lds_add1(a, V_CF, V_ONE)
            a(f"s_cmp_ge_u32 s{S_T}, 5")
            a(f"s_cbranch_scc1 {lb}")
            a(f"s_add_u32 s30, s{S_T}, 3")
            blk_off("s30")
            kv_load()
            a.label(lb)
        if b == 2:
            lb = a.newlabel("nf")
            a(f"s_cmp_ge_u32 s{S_T}, 7")
            a(f"s_cbranch_scc1 {lb}")
            check_cnt(f"s{S_FT}", V_CF)
            a.label(lb)
        for i in range(0, 4): e(SG, i)
        c(SG, 0); c(SG, 1)
        a(f"v_mfma_f32_32x32x16_bf16 {v(OF,16)}, {v(V1,4)}, {v(P+4,4)}, {v(OF,16)}")
        for i in range(4, 8): e(SG, i)
        c(SG, 2); c(SG, 3)
        a(f"v_mfma_f32_32x32x8_bf16 {v(SF,16)}, {v(K8,2)}, {v(QF8,2)}, {v(SF,16)}")
        for i in range(8, 12): e(SG, i)
        c(SG, 4); c(SG, 5)
        a(f"v_mfma_f32_32x32x16_bf16 {v(OG,16)}, {v(V0,4)}, {v(P,4)}, {v(OG,16)}")
        a(f"ds_read_b128 {v(V0,4)}, v{kAV} offset:{koff}")
        for i in range(12, 16): e(SG, i)
    a(f"s_add_u32 s{S_T}, s{S_T}, 1")
    a(f"s_add_u32 s{S_FT}, s{S_FT}, 4")
    a(f"s_add_u32 s{S_DT}, s{S_DT}, 4")
    a(f"s_add_u32 s{S_SLOT}, s{S_SLOT}, {KVSLOT}")
    a(f"s_cmp_ge_u32 s{S_SLOT}, {3*KVSLOT}")
    a(f"s_cselect_b32 s{S_SLOT}, 0, s{S_SLOT}")
    a(f"s_add_u32 s{S_NXT}, s{S_NXT}, {KVSLOT}")
    a(f"s_cmp_ge_u32 s{S_NXT}, {3*KVSLOT}")
    a(f"s_cselect_b32 s{S_DL}, s{S_M2}, s{S_P1}")
    a(f"s_cselect_b32 s{S_NXT}, 0, s{S_NXT}")
    for cur, nxt in ((AK16, AK16N), (AK8, AK8N), (AV, AVN)):
        a(f"v_mov_b32 v{cur}, v{nxt}")
        a(f"v_add_u32 v{nxt}, s{S_DL}, v{nxt}")
    CONV_AT = 2
    a(f"s_lshl_b32 s28, s{S_G}, 4")
    a(f"s_add_u32 s28, s28, s{S_T}")
    a(f"s_cmp_eq_u32 s28, {CONV_AT}")
    a(f"s_cbranch_scc1 {CONV}")
    a.label("f_attn_cont")
    a(f"s_cmp_lt_u32 s{S_T}, 8")
    a(f"s_cbranch_scc1 {LOOP}")
    a(f"s_branch {ALOOP_END}")

    a.label(CONV)
    stamp(a, 7)
    gen_conv(a, stamp)
    stamp(a, 8)
    a(f"s_branch f_attn_cont")

    a.label(ALOOP_END)
    stamp(a, 9)
    c(SG, 6); c(SG, 7)
    a.nop(2)
    a(f"v_mfma_f32_32x32x16_bf16 {v(OG,16)}, {v(V1,4)}, {v(P+4,4)}, {v(OG,16)}")
    a("s_waitcnt lgkmcnt(0) vmcnt(0)")

    TAILA = "f_taila"
    WD = 128
    QT, GV = 136, 146
    a(f"s_cmp_lt_u32 s{S_W}, 4")
    a(f"s_cbranch_scc1 {TAILA}")
    a(f"v_mov_b32 v{T0}, {C_CD}")
    lds_wait_ge(a, None, 1, T1, T0)
    lds_add1(a, V_CD, V_ONE)
    lds_wait_ge(a, None, 32, T1, V_CD)
    a(f"s_mul_i32 s29, s{S_J}, 160")
    a(f"s_lshl_b32 s28, s{S_HH}, 6")
    for t in range(5):
        a(f"v_add_u32 v{T0}, s28, v1")
        if t: a(f"v_add_u32 v{T0}, {256*t}, v{T0}")
        a(f"v_mul_u32_u24 v{T1}, 6554, v{T0}")
        a(f"v_lshrrev_b32 v{T1}, 16, v{T1}")
        a(f"v_mul_u32_u24 v{T2}, 10, v{T1}")
        a(f"v_sub_u32 v{T0}, v{T0}, v{T2}")
        a(f"v_lshlrev_b32 v{T0}, 4, v{T0}")
        a(f"v_and_b32 v{T2}, 0xfff3, v{T1}")
        a(f"v_bfe_u32 v{T3}, v{T1}, 2, 1")
        a(f"v_lshlrev_b32 v{T3}, 3, v{T3}")
        a(f"v_or_b32 v{T2}, v{T2}, v{T3}")
        a(f"v_bfe_u32 v{T3}, v{T1}, 3, 1")
        a(f"v_lshlrev_b32 v{T3}, 2, v{T3}")
        a(f"v_or_b32 v{T2}, v{T2}, v{T3}")
        a(f"v_mul_lo_u32 v{T2}, v{T2}, s{S_1280}")
        a(f"v_add_u32 v{T2}, v{T2}, v{T0}")
        a(f"v_add_u32 v{WD+t}, s29, v{T2}")
    a(f"s_lshl_b32 s28, s{S_HH}, 10")
    for t in range(25):
        a(f"s_add_u32 m0, s28, {WOL + 4096*t}")
        a(f"s_mov_b32 s29, {(t//5)*128*1280}")
        a(f"buffer_load_dwordx4 v{WD+t%5}, {R(SRD_WO)}, s29 offen lds")
    a(f"v_lshrrev_b32 v{T0}, 3, v1")
    a(f"v_lshlrev_b32 v{T0}, 7, v{T0}")
    a(f"v_and_b32 v{T1}, 7, v1")
    a(f"v_lshlrev_b32 v{T1}, 2, v{T1}")
    a(f"v_add_u32 v{T0}, v{T0}, v{T1}")
    a(f"s_lshl_b32 s28, s{S_J}, 9")
    a(f"s_add_u32 s28, s28, {H3}")
    poll_flags(a, T0, "s28", 0xffffffff, T1)
    a(f"v_lshrrev_b32 v{T0}, 3, v1")
    a(f"v_lshlrev_b32 v{T0}, 12, v{T0}")
    a(f"v_and_b32 v{T1}, 7, v1")
    a(f"v_lshlrev_b32 v{T1}, 4, v{T1}")
    a(f"v_add_u32 v{T0}, v{T0}, v{T1}")
    a(f"s_mul_i32 s28, s{S_J}, {80*4096}")
    a(f"s_lshl_b32 s29, s{S_I}, 7")
    a(f"s_add_u32 s28, s28, s29")
    a(f"s_add_u32 s28, s28, {YT_OFF}")
    a(f"s_lshl_b32 s29, s{S_HH}, 15")
    a(f"s_add_u32 s28, s28, s29")
    YS = 148
    for t in range(3):
        lab = a.newlabel("ysk")
        if t == 2:
            a(f"s_cmp_ge_u32 s{S_HH}, 2")
            a(f"s_cbranch_scc1 {lab}")
        a(f"s_add_u32 s29, s28, {t*32*4096}")
        a(f"buffer_load_dwordx4 {v(YS+4*t,4)}, v{T0}, {R(SRD_WS)}, s29 offen sc1")
        if t == 2: a.label(lab)
    a(f"s_lshl_b32 s28, s{S_HH}, 10")
    a(f"s_add_u32 s28, s28, {YL}")
    a(f"v_add_u32 v{T1}, s28, v{V_L16}")
    a(f"s_mul_i32 s28, s{S_HH}, 3072")
    a(f"s_add_u32 s28, s28, {OXB}")
    a(f"v_add_u32 v{T0}, s28, v{V_L16}")
    a.nop(4)
    for q in range(3): a(f"ds_write_b128 v{T0}, {v(OG+4*q,4)} offset:{1024*q}")
    a("s_waitcnt vmcnt(0)")
    for t in range(3):
        lab = a.newlabel("ysw")
        if t == 2:
            a(f"s_cmp_ge_u32 s{S_HH}, 2")
            a(f"s_cbranch_scc1 {lab}")
        a(f"ds_write_b128 v{T1}, {v(YS+4*t,4)} offset:{4096*t}")
        if t == 2: a.label(lab)
    a.label(TAILA)
    stamp(a, 10)
    V_OUT = 147
    a(f"v_and_b32 v{T0}, 15, v1")
    a(f"s_lshl_b32 s28, s{S_I}, 6")
    a(f"s_lshl_b32 s29, s{S_HH}, 4")
    a(f"s_add_u32 s28, s28, s29")
    a(f"v_add_u32 v{T0}, s28, v{T0}")
    a(f"v_mul_lo_u32 v{T0}, v{T0}, s{S_1280}")
    a(f"v_lshrrev_b32 v{T1}, 4, v1")
    a(f"v_lshlrev_b32 v{T2}, 3, v{T1}")
    a(f"v_add_u32 v{T2}, v{T2}, v{T0}")
    a(f"s_mul_i32 s28, s{S_J}, 160")
    a(f"v_add_u32 v{V_OUT}, s28, v{T2}")
    for mt in range(5):
        a(f"buffer_load_dwordx2 {v(QT+2*mt,2)}, v{V_OUT}, {R(SRD_X)}, 0 offen offset:{32*mt}")
    V_OLD = 160
    a(f"v_lshlrev_b32 v{T1}, 4, v{T1}")
    a(f"v_add_u32 v{V_OLD}, v{T0}, v{T1}")
    a("s_waitcnt lgkmcnt(0)")
    a("s_barrier")
    lj = a.newlabel("j2")
    a(f"s_cmp_ge_u32 s{S_W}, 4")
    a(f"s_cbranch_scc1 {lj}")
    a(f"s_mul_i32 s28, s{S_HH}, 3072")
    a(f"v_add_u32 v{T0}, s28, v{V_L16}")
    for q in range(3): a(f"ds_write_b128 v{T0}, {v(OG+4*q,4)} offset:{OXA + 1024*q}")
    a("s_waitcnt lgkmcnt(0)")
    a.label(lj)
    a("s_barrier")
    a(f"s_mul_i32 s28, s{S_HH}, 3072")
    a(f"s_cmp_ge_u32 s{S_W}, 4")
    a(f"s_cselect_b32 s29, {OXA}, {OXB}")
    a(f"s_add_u32 s28, s28, s29")
    a(f"v_add_u32 v{T0}, s28, v{V_L16}")
    for q in range(3): a(f"ds_read_b128 {v(OG+4*q,4)}, v{T0} offset:{1024*q}")
    a("s_waitcnt lgkmcnt(0)")
    for r in range(12): a(f"v_add_f32 v{OF+r}, v{OF+r}, v{OG+r}")
    a(f"v_mov_b32 v{T0}, v{OF+8}")
    a(f"v_mov_b32 v{T1}, v{OF+8}")
    a.nop(2)
    a(f"v_permlane32_swap_b32 v{T0}, v{T1}")
    a.nop(2)
    a(f"v_rcp_f32 v{T1}, v{T1}")
    a.nop(1)
    for r in range(12): a(f"v_mul_f32 v{OF+r}, v{OF+r}, v{T1}")
    for r in range(6): a(f"v_cvt_pk_bf16_f32 v{P+r}, v{OF+2*r}, v{OF+2*r+1}")
    a(f"s_lshl_b32 s28, s{S_I}, 6")
    a(f"s_lshl_b32 s29, s{S_G}, 5")
    a(f"s_add_u32 s28, s28, s29")
    a(f"v_and_b32 v{T0}, 31, v1")
    a(f"v_add_u32 v{T0}, s28, v{T0}")
    a(f"v_mul_lo_u32 v{T0}, v{T0}, s{S_1280}")
    a(f"s_lshl_b32 s28, s{S_J}, 2")
    a(f"s_add_u32 s28, s28, s{S_HH}")
    a(f"s_mul_i32 s28, s28, 40")
    a(f"s_add_u32 s28, s28, {O_OFF}")
    a(f"v_lshrrev_b32 v{T1}, 5, v1")
    a(f"v_lshlrev_b32 v{T1}, 3, v{T1}")
    a(f"v_add_u32 v{T0}, v{T0}, v{T1}")
    a(f"buffer_store_dwordx2 {v(P,2)}, v{T0}, {R(SRD_WS)}, s28 offen sc1")
    a(f"buffer_store_dwordx2 {v(P+2,2)}, v{T0}, {R(SRD_WS)}, s28 offen offset:16 sc1")
    a(f"s_mov_b64 exec, 0xffffffff")
    a(f"buffer_store_dwordx2 {v(P+4,2)}, v{T0}, {R(SRD_WS)}, s28 offen offset:32 sc1")
    a(f"s_mov_b64 exec, -1")
    a("s_waitcnt vmcnt(0)")
    a("s_barrier")
    stamp(a, 11)
    lf = a.newlabel("of")
    a(f"s_cmp_lg_u32 s{S_W}, 0")
    a(f"s_cbranch_scc1 {lf}")
    a(f"s_lshl_b32 s29, s{S_I}, 7")
    a(f"s_lshl_b32 s30, s{S_J}, 2")
    a(f"s_add_u32 s29, s29, s30")
    a(f"s_add_u32 s29, s29, {H4}")
    flag_store(29)
    a.label(lf)
    V_WT, V_WT2 = 161, 162
    a(f"v_lshrrev_b32 v{T0}, 5, v1")
    a(f"v_lshlrev_b32 v{T0}, 4, v{T0}")
    a(f"v_bfe_u32 v{T1}, v1, 4, 1")
    a(f"v_lshlrev_b32 v{T1}, 2, v{T1}")
    a(f"v_add_u32 v{T0}, v{T0}, v{T1}")
    a(f"v_bfe_u32 v{T1}, v1, 2, 2")
    a(f"v_add_u32 v{T0}, v{T0}, v{T1}")
    a(f"v_mul_u32_u24 v{T0}, 160, v{T0}")
    a(f"v_and_b32 v{T1}, 3, v1")
    a(f"v_lshlrev_b32 v{T1}, 3, v{T1}")
    a(f"v_add_u32 v{T0}, v{T0}, v{T1}")
    a(f"s_mul_i32 s28, s{S_G}, 51200")
    a(f"s_add_u32 s28, s28, {WOL}")
    a(f"v_add_u32 v{V_WT}, s28, v{T0}")
    a(f"v_lshlrev_b32 v{T0}, 2, v1")
    a(f"s_lshl_b32 s28, s{S_I}, 7")
    a(f"s_add_u32 s28, s28, {H4}")
    OFR, ACC, AF = 16, 56, 164
    def ldsA(s_):
        b = s_ & 1
        for mt in range(5):
            a(f"ds_read_b64_tr_b16 {v(AF+20*b+4*mt,2)}, v{V_WT} offset:{s_*5120 + 32*mt}")
            a(f"ds_read_b64_tr_b16 {v(AF+20*b+4*mt+2,2)}, v{V_WT} offset:{s_*5120 + 1280 + 32*mt}")
    poll_flags(a, T0, "s28", 0xff, T1)
    stamp(a, 12)
    a(f"s_mul_i32 s28, s{S_G}, 640")
    a(f"s_add_u32 s28, s28, {O_OFF}")
    for s_ in range(10):
        a(f"buffer_load_dwordx4 {v(OFR+4*s_,4)}, v{V_OLD}, {R(SRD_WS)}, s28 offen offset:{64*s_} sc1")
    for r in range(20): a(f"v_mov_b32 v{ACC+r}, 0")
    ldsA(0)
    for s_ in range(10):
        if s_ < 9:
            ldsA(s_ + 1); a(f"s_waitcnt lgkmcnt(10) vmcnt({9 - s_})")
        else:
            a("s_waitcnt lgkmcnt(0) vmcnt(0)")
        b = s_ & 1
        for mt in range(5):
            a(f"v_mfma_f32_16x16x32_bf16 {v(ACC+4*mt,4)}, {v(AF+20*b+4*mt,4)}, {v(OFR+4*s_,4)}, {v(ACC+4*mt,4)}")
    a.nop(8)
    a(f"s_mul_i32 s28, s{S_HH}, 5120")
    a(f"s_add_u32 s28, s28, {PX}")
    a(f"v_add_u32 v{T0}, s28, v{V_L16}")
    lb = a.newlabel("px")
    a(f"s_cmp_lt_u32 s{S_W}, 4")
    a(f"s_cbranch_scc1 {lb}")
    for mt in range(5): a(f"ds_write_b128 v{T0}, {v(ACC+4*mt,4)} offset:{1024*mt}")
    a("s_waitcnt lgkmcnt(0)")
    a.label(lb)
    a("s_barrier")
    a(f"s_cmp_ge_u32 s{S_W}, 4")
    a(f"s_cbranch_scc1 f_fin")
    for mt in range(5): a(f"ds_read_b128 {v(AF+4*mt,4)}, v{T0} offset:{1024*mt}")
    a(f"v_bfe_u32 v{T0}, v1, 2, 4")
    a(f"v_lshlrev_b32 v{T0}, 7, v{T0}")
    a(f"v_and_b32 v{T1}, 3, v1")
    a(f"v_lshlrev_b32 v{T1}, 3, v{T1}")
    a(f"v_add_u32 v{T0}, v{T0}, v{T1}")
    a(f"s_lshl_b32 s28, s{S_HH}, 5")
    a(f"s_add_u32 s28, s28, {YL}")
    a(f"v_add_u32 v{T0}, s28, v{T0}")
    YF = 16
    for mt in range(5): a(f"ds_read_b64_tr_b16 {v(YF+2*mt,2)}, v{T0} offset:{2048*mt}")
    a(f"v_and_b32 v{T1}, 15, v1")
    a(f"v_lshlrev_b32 v{T1}, 2, v{T1}")
    a(f"s_lshl_b32 s28, s{S_HH}, 6")
    a(f"s_add_u32 s28, s28, {G_L}")
    a(f"v_add_u32 v{T1}, s28, v{T1}")
    a(f"ds_read_b32 v{GV}, v{T1}")
    a("s_waitcnt lgkmcnt(0)")
    a(f"v_sub_f32 v{T1}, 1.0, v{GV}")
    for mt in range(5):
        for r in range(4): a(f"v_add_f32 v{ACC+4*mt+r}, v{ACC+4*mt+r}, v{AF+4*mt+r}")
    for mt in range(5):
        for hlf in range(2):
            yq = YF + 2*mt + hlf; qq = QT + 2*mt + hlf
            a(f"v_lshlrev_b32 v30, 16, v{yq}")
            a(f"v_and_b32 v31, 0xffff0000, v{yq}")
            a(f"v_lshlrev_b32 v32, 16, v{qq}")
            a(f"v_and_b32 v33, 0xffff0000, v{qq}")
            a(f"v_mul_f32 v30, v30, v32")
            a(f"v_mul_f32 v31, v31, v33")
            a(f"v_mul_f32 v30, v30, v{GV}")
            a(f"v_mul_f32 v31, v31, v{GV}")
            a(f"v_fmac_f32 v30, v{ACC+4*mt+2*hlf}, v{T1}")
            a(f"v_fmac_f32 v31, v{ACC+4*mt+2*hlf+1}, v{T1}")
            a(f"v_cvt_pk_bf16_f32 v{40+2*mt+hlf}, v30, v31")
        a(f"buffer_store_dwordx2 {v(40+2*mt,2)}, v{V_OUT}, {R(SRD_OUT)}, 0 offen offset:{32*mt}")
    a.label("f_fin")
    if "stamp" in OPT:
        a("s_waitcnt vmcnt(0)")
        stamp(a, 13); stamp(a, 14, True)
        stamp_flush(a)
    a.label(END)
    a("s_endpgm")
    a.L.append(kernel_desc(name, 256))

def gen_conv(a, stamp):
    CHB = CONVB; URL = 16640
    S_CH0, S_NCH, S_K, S_CST = 83, 84, 85, 86
    T0, T1, T2, T3 = 2, 3, 250, 251
    X0, X1, X2, UR = 128, 132, 136, 140
    C1, C3 = 144, 148
    CA, FA, FB, AD = 152, 184, 216, 128
    VA, VB, VCS, VONE, VL16 = 248, 249, 252, 111, 110
    a(f"s_mul_i32 s{S_CH0}, s{S_I}, 3")
    a(f"s_lshl_b32 s28, s{S_I}, 1")
    a(f"s_add_u32 s28, s28, 16")
    a(f"s_cmp_lt_u32 s{S_I}, 16")
    a(f"s_cselect_b32 s{S_CH0}, s{S_CH0}, s28")
    a(f"s_cselect_b32 s{S_NCH}, 3, 2")
    a(f"s_mul_i32 s28, s{S_J}, 80")
    a(f"s_add_u32 s{S_CH0}, s{S_CH0}, s28")
    a(f"v_mov_b32 v{VCS}, {C_CS}")
    a(f"s_mov_b32 s{S_CST}, 0")
    def gsync():
        a("s_waitcnt lgkmcnt(0)")
        lds_add1(a, VCS, VONE)
        a(f"s_add_u32 s{S_CST}, s{S_CST}, 4")
        lds_wait_ge(a, None, f"s{S_CST}", T3, VCS)
    a(f"v_lshrrev_b32 v{T0}, 3, v1")
    a(f"v_lshlrev_b32 v{T0}, 7, v{T0}")
    a(f"v_and_b32 v{T1}, 7, v1")
    a(f"v_lshlrev_b32 v{T1}, 2, v{T1}")
    a(f"v_add_u32 v{T0}, v{T0}, v{T1}")
    a(f"s_lshl_b32 s28, s{S_J}, 9")
    a(f"s_add_u32 s28, s28, {H2}")
    poll_flags(a, T0, "s28", 0xffffffff, T1)
    a(f"v_and_b32 v{T0}, 15, v1")
    a(f"v_lshrrev_b32 v{T1}, 4, v1")
    a(f"v_add_u32 v{T2}, 1, v{T0}")
    a(f"v_and_b32 v{T3}, 3, v{T2}")
    a(f"v_mul_u32_u24 v{VA}, 4160, v{T3}")
    a(f"v_lshrrev_b32 v{T2}, 2, v{T2}")
    a(f"v_lshlrev_b32 v{T2}, 3, v{T2}")
    a(f"v_lshlrev_b32 v{T3}, 4, v{T1}")
    a(f"v_add_u32 v{VA}, v{VA}, v{T2}")
    a(f"v_add_u32 v{VA}, v{VA}, v{T3}")
    a(f"s_lshl_b32 s28, s{S_HH}, 7")
    a(f"s_add_u32 s28, s28, {CHB}")
    a(f"v_add_u32 v{VA}, s28, v{VA}")
    a(f"v_lshlrev_b32 v{T2}, 5, v{T0}")
    a(f"v_sub_u32 v{VB}, v{T3}, v{T2}")
    a(f"s_add_u32 s28, s28, {URL + 480}")
    a(f"v_add_u32 v{VB}, s28, v{VB}")
    lz = a.newlabel("cz")
    a(f"s_cmp_lg_u32 s{S_HH}, 1")
    a(f"s_cbranch_scc1 {lz}")
    for k in range(4): a(f"v_mov_b32 v{C1+k}, 0")
    a(f"v_add_u32 v{T2}, {CHB + URL + 4096}, v{VL16}")
    a(f"s_mov_b64 exec, 0xffffffff")
    a(f"ds_write_b128 v{T2}, {v(C1,4)}")
    a(f"s_mov_b64 exec, -1")
    a.label(lz)
    a(f"s_mov_b32 s{S_K}, 0")
    CL = "f_convloop"
    a.label(CL)
    a(f"s_add_u32 s87, s{S_CH0}, s{S_K}")
    a(f"s_lshl_b32 s28, s87, 12")
    a(f"s_lshl_b32 s29, s{S_HH}, 10")
    a(f"s_add_u32 s28, s28, s29")
    a(f"buffer_load_dwordx4 {v(X0,4)}, v{VL16}, {R(SRD_H)}, s28 offen")
    a(f"buffer_load_dwordx4 {v(X1,4)}, v{VL16}, {R(SRD_H)}, s28 offen offset:4")
    a(f"buffer_load_dwordx4 {v(X2,4)}, v{VL16}, {R(SRD_H)}, s28 offen offset:8")
    a(f"s_add_u32 s30, s28, {UR_OFF}")
    a(f"buffer_load_dwordx4 {v(UR,4)}, v{VL16}, {R(SRD_WS)}, s30 offen sc1")
    a(f"s_lshr_b32 s30, s87, 1")
    a(f"s_lshl_b32 s30, s30, 2")
    a(f"s_load_dword s88, s[{S_DPTR}:{S_DPTR+1}], s30")
    a(f"s_add_u32 s29, s29, {CHB}")
    a(f"v_add_u32 v{T2}, s29, v{VL16}")
    a("s_waitcnt vmcnt(0)")
    for k in range(4):
        a(f"v_alignbit_b32 v{C1+k}, v{X1+k}, v{X0+k}, 16")
        a(f"v_alignbit_b32 v{C3+k}, v{X2+k}, v{X1+k}, 16")
    a(f"ds_write_b128 v{T2}, {v(X0,4)} offset:32")
    a(f"ds_write_b128 v{T2}, {v(C1,4)} offset:{4160+32}")
    a(f"ds_write_b128 v{T2}, {v(X1,4)} offset:{8320+32}")
    a(f"ds_write_b128 v{T2}, {v(C3,4)} offset:{12480+32}")
    a(f"ds_write_b128 v{T2}, {v(UR,4)} offset:{URL}")
    lab1 = a.newlabel("cf")
    a(f"s_cmp_lg_u32 s{S_HH}, 0")
    a(f"s_cbranch_scc1 {lab1}")
    a(f"v_alignbit_b32 v{C3}, v{X1}, v{X0}, 16")
    a(f"v_lshlrev_b32 v{C3+1}, 16, v{X0}")
    for k in range(4): a(f"v_mov_b32 v{C1+k}, 0")
    a(f"v_lshrrev_b32 v{T2}, 1, v1")
    a(f"v_mul_u32_u24 v{T2}, 4160, v{T2}")
    a(f"v_and_b32 v{T3}, 1, v1")
    a(f"v_lshlrev_b32 v{T3}, 4, v{T3}")
    a(f"v_add_u32 v{T2}, v{T2}, v{T3}")
    a(f"v_add_u32 v{T2}, {CHB}, v{T2}")
    a(f"s_mov_b64 exec, 0xff")
    a(f"ds_write_b128 v{T2}, {v(C1,4)}")
    a(f"s_mov_b64 exec, 1")
    a(f"v_mov_b32 v{T2}, {CHB}")
    a(f"ds_write_b32 v{T2}, v{C3+1} offset:{4160+28}")
    a(f"ds_write_b32 v{T2}, v{X0} offset:{8320+28}")
    a(f"ds_write_b32 v{T2}, v{C3+1} offset:{12480+24}")
    a(f"ds_write_b32 v{T2}, v{C3} offset:{12480+28}")
    a(f"s_mov_b64 exec, -1")
    a.label(lab1)
    gsync()
    a(f"s_and_b32 s30, s87, 1")
    a(f"s_lshl_b32 s30, s30, 4")
    a(f"s_lshr_b32 s88, s88, s30")
    a(f"s_and_b32 s88, s88, 0xffff")
    a(f"v_and_b32 v{T0}, 15, v1")
    a(f"v_lshrrev_b32 v{T1}, 4, v1")
    a(f"v_lshlrev_b32 v{T1}, 3, v{T1}")
    a(f"v_add_u32 v{T0}, v{T0}, v{T1}")
    a(f"v_sub_u32 v{T0}, 15, v{T0}")
    a(f"v_and_b32 v{T1}, 1, v{T0}")
    a(f"v_lshlrev_b32 v{T1}, 4, v{T1}")
    a(f"v_mov_b32 v{T2}, s88")
    a(f"v_lshlrev_b32 v{T2}, v{T1}, v{T2}")
    a(f"v_lshrrev_b32 v{T0}, 1, v{T0}")
    for k in range(4):
        a(f"v_cmp_eq_u32 vcc, {k}, v{T0}")
        a.nop(2)
        a(f"v_cndmask_b32 v{AD+k}, 0, v{T2}, vcc")
    for r in range(32): a(f"v_mov_b32 v{CA+r}, 0")
    for ph in range(2):
        o = 64 * ph
        a(f"ds_read_b64 {v(FA,2)}, v{VA} offset:{o}")
        a(f"ds_read_b64 {v(FA+2,2)}, v{VA} offset:{o+8}")
        for vv in range(8):
            a(f"ds_read_b128 {v(FB+4*vv,4)}, v{VB} offset:{o + 512*(7-vv)}")
        a("s_waitcnt lgkmcnt(0)")
        for i in range(1, 8):
            a(f"ds_read_b64 {v(FA+4*i,2)}, v{VA} offset:{o + 512*i}")
            a(f"ds_read_b64 {v(FA+4*i+2,2)}, v{VA} offset:{o + 512*i+8}")
        for vv in range(8):
            a(f"v_mfma_f32_16x16x32_bf16 {v(CA+4*vv,4)}, {v(FA,4)}, {v(FB+4*vv,4)}, {v(CA+4*vv,4)}")
        if ph == 0:
            lab = a.newlabel("noD")
            a(f"s_cmp_lg_u32 s{S_HH}, 0")
            a(f"s_cbranch_scc1 {lab}")
            for vv in range(8):
                a(f"v_mfma_f32_16x16x32_bf16 {v(CA+4*vv,4)}, {v(AD,4)}, {v(FB+4*vv,4)}, {v(CA+4*vv,4)}")
            a.label(lab)
        a("s_waitcnt lgkmcnt(0)")
        for i in range(1, 8):
            for vv in range(8 - i):
                t = i + vv
                a(f"v_mfma_f32_16x16x32_bf16 {v(CA+4*t,4)}, {v(FA+4*i,4)}, {v(FB+4*vv,4)}, {v(CA+4*t,4)}")
    a.nop(8)
    a(f"s_lshl_b32 s28, s{S_HH}, 13")
    a(f"s_add_u32 s28, s28, {RB}")
    a(f"v_add_u32 v{T1}, s28, v{VL16}")
    for t in range(8): a(f"ds_write_b128 v{T1}, {v(CA+4*t,4)} offset:{1024*t}")
    gsync()
    a(f"s_lshl_b32 s28, s{S_HH}, 11")
    a(f"s_add_u32 s28, s28, {RB}")
    a(f"v_add_u32 v{T1}, s28, v{VL16}")
    for tt in range(2):
        for p_ in range(4):
            a(f"ds_read_b128 {v(FA+16*tt+4*p_,4)}, v{T1} offset:{8192*p_ + 1024*tt}")
    a(f"s_lshl_b32 s28, s87, 12")
    a(f"s_lshl_b32 s29, s{S_HH}, 10")
    a(f"s_add_u32 s28, s28, s29")
    a(f"s_add_u32 s28, s28, {YT_OFF}")
    a(f"v_and_b32 v{T2}, 15, v1")
    a(f"v_lshlrev_b32 v{T2}, 5, v{T2}")
    a(f"v_lshrrev_b32 v{T3}, 4, v1")
    a(f"v_lshlrev_b32 v{T3}, 3, v{T3}")
    a(f"v_add_u32 v{T2}, v{T2}, v{T3}")
    a("s_waitcnt lgkmcnt(0)")
    for tt in range(2):
        b0 = FA + 16 * tt
        for p_ in range(1, 4):
            for r in range(4): a(f"v_add_f32 v{b0+r}, v{b0+r}, v{b0+4*p_+r}")
        a(f"v_cvt_pk_bf16_f32 v{FB+2*tt}, v{b0}, v{b0+1}")
        a(f"v_cvt_pk_bf16_f32 v{FB+2*tt+1}, v{b0+2}, v{b0+3}")
        a(f"buffer_store_dwordx2 {v(FB+2*tt,2)}, v{T2}, {R(SRD_WS)}, s28 offen offset:{512*tt} sc1")
    gsync()
    a(f"s_add_u32 s{S_K}, s{S_K}, 1")
    a(f"s_cmp_lt_u32 s{S_K}, s{S_NCH}")
    a(f"s_cbranch_scc1 {CL}")
    a("s_waitcnt vmcnt(0)")
    gsync()
    lf = a.newlabel("yf")
    a(f"s_cmp_lg_u32 s{S_HH}, 0")
    a(f"s_cbranch_scc1 {lf}")
    a(f"s_lshl_b32 s29, s{S_J}, 9")
    a(f"s_lshr_b32 s30, s{S_I}, 3")
    a(f"s_lshl_b32 s30, s30, 7")
    a(f"s_add_u32 s29, s29, s30")
    a(f"s_and_b32 s30, s{S_I}, 7")
    a(f"s_lshl_b32 s30, s30, 2")
    a(f"s_add_u32 s29, s29, s30")
    a(f"s_add_u32 s29, s29, {H3}")
    a(f"v_mov_b32 v{T0}, 0")
    a(f"v_mov_b32 v{T1}, s{S_NONCE}")
    a(f"s_mov_b64 exec, 1")
    a(f"buffer_store_dword v{T1}, v{T0}, {R(SRD_WS)}, s29 offen sc1")
    a(f"v_mov_b32 v{T0}, {C_CD}")
    a(f"ds_write_b32 v{T0}, v{VONE}")
    a(f"s_mov_b64 exec, -1")
    a.label(lf)

HEADER = """; gated_mix: fused single kernel (generated by dev/gen2.py)
; @launch grid=(256,1,1) block=(512,1,1) lds=163840
.amdgcn_target "amdgcn-amd-amdhsa--gfx950"
.text
"""
if __name__ == "__main__":
    if len(sys.argv) > 2: OPT.update(sys.argv[2].split(","))
    a = Asm()
    gen(a)
    open(sys.argv[1], "w").write(HEADER + a.text())
```

```python
import sys, struct
from asmlib import *

NAME = "gated_mix__ssm_conv_h3__grouped_kv_mqa__prompt"
KVF_OFF = 0
UR_OFF = 0x40000
YT_OFF = 0x2C0000
O_OFF = 0x540000
FL_OFF = 0x7C0000
H1 = FL_OFF
H2 = FL_OFF + 0x4000
H3 = FL_OFF + 0xC000
H4 = FL_OFF + 0x14000
ST_OFF = 0x800000
WS_USED = 0x900000
XB = 2048 * 640 * 2
QSCALE = (20 ** -0.5) * 1.4426950408889634
def f32bits(x): return struct.unpack("<I", struct.pack("<f", x))[0]
OPT = set()
POLL_MAX = 40000

SRD_X, SRD_WQ, SRD_WS, SRD_H = 4, 8, 12, 16
S_I, S_J, S_W, S_HH, S_G, S_NONCE, S_1280, S_ROT = 20, 21, 22, 23, 24, 25, 26, 27
SRD_K, SRD_V, SRD_SH, SRD_W, SRD_GW, SRD_WO, SRD_OUT, SRD_DBG = 44, 48, 52, 56, 60, 64, 68, 72
S_DPTR = 76
SLOT = 36864
UNIT_W = 3 * SLOT
UNIT_R = 147456
GWL = 155648
GP = GWL + 1280
PERS = 161792
G_L = PERS
CNT = PERS + 256
C_FULL, C_DONE = CNT, CNT + 32
C_NONCE, C_KVOK, C_UCNT, C_BDONE, C_CVD = CNT + 64, CNT + 68, CNT + 72, CNT + 76, CNT + 80
C_UOK, C_YOK, C_OCNT, C_OOK = CNT + 84, CNT + 88, CNT + 92, CNT + 96
BLK = 2688
KVSLOT = 4 * BLK
RING_STRIDE = 57856
UT_K = 36864
UT_V = UT_K + 10720
OXB = 32256
CONVB = 90112
CHB = 21248
QX = 90112
WOL = 57856
OST = 0
YL = 10240
PX = 32256
LDS_BYTES = 163840
V_ST = 167
NVGPR = 168

STAMPS = []
def stamp(a, name, real=False):
    if "stamp" not in OPT: return
    if name in STAMPS: idx = STAMPS.index(name)
    else:
        STAMPS.append(name); idx = len(STAMPS) - 1
    a(f"s_waitcnt lgkmcnt(0)")
    a(f"{'s_memrealtime' if real else 's_memtime'} s[98:99]")
    a(f"s_waitcnt lgkmcnt(0)")
    a(f"v_writelane_b32 v{V_ST}, s98, {idx}")
def stamp_flush(a):
    if "stamp" not in OPT: return
    a(f"s_mov_b64 exec, -1")
    a(f"s_mul_i32 s98, s2, 9")
    a(f"s_add_u32 s98, s98, s{S_W}")
    a(f"s_lshl_b32 s98, s98, 8")
    a(f"s_add_u32 s98, s98, {ST_OFF}")
    a(f"v_lshlrev_b32 v166, 2, v1")
    a(f"buffer_store_dword v{V_ST}, v166, s[{SRD_WS}:{SRD_WS+3}], s98 offen")
    a("s_waitcnt vmcnt(0)")

def R(b): return f"s[{b}:{b+3}]"

def poll_global(a, nload, check, sleep=1):
    lp = a.newlabel("poll"); dn = a.newlabel("pdone")
    a(f"s_mov_b32 s43, 0")
    a.label(lp)
    nload()
    a("s_waitcnt vmcnt(0)")
    check()
    a(f"s_cbranch_scc1 {dn}")
    a(f"s_add_u32 s43, s43, 1")
    a(f"s_cmp_lt_u32 s43, {POLL_MAX}")
    a(f"s_cbranch_scc0 {dn}")
    a(f"s_sleep {sleep}")
    a(f"s_branch {lp}")
    a.label(dn)

def poll_flags(a, vaddr, soff, lanes_mask, vt, n=1):
    def ld():
        if n == 1: a(f"buffer_load_dword v{vt}, v{vaddr}, {R(SRD_WS)}, {soff} offen sc1")
        else: a(f"buffer_load_dwordx4 {v(vt,4)}, v{vaddr}, {R(SRD_WS)}, {soff} offen sc1")
    def ck():
        if n == 4:
            for k in range(4): a(f"v_xor_b32 v{vt+k}, s{S_NONCE}, v{vt+k}")
            a(f"v_or_b32 v{vt}, v{vt}, v{vt+1}")
            a(f"v_or_b32 v{vt+2}, v{vt+2}, v{vt+3}")
            a(f"v_or_b32 v{vt}, v{vt}, v{vt+2}")
            a(f"v_cmp_ne_u32 vcc, 0, v{vt}")
        else:
            a(f"v_cmp_ne_u32 vcc, s{S_NONCE}, v{vt}")
        a(f"s_nop 1")
        a(f"s_and_b64 vcc, vcc, s[40:41]")
        a(f"s_cmp_eq_u64 vcc, 0")
    a(f"s_mov_b32 s40, {lanes_mask & 0xffffffff}")
    a(f"s_mov_b32 s41, {(lanes_mask >> 32) & 0xffffffff}")
    poll_global(a, ld, ck)

def lds_wait_ge(a, target, vt, vaddr, sleep=1):
    lp = a.newlabel("lw"); dn = a.newlabel("lwd")
    a(f"s_mov_b32 s43, 0")
    a.label(lp)
    a(f"ds_read_b32 v{vt}, v{vaddr}")
    a("s_waitcnt lgkmcnt(0)")
    a(f"v_readfirstlane_b32 s42, v{vt}")
    a("s_nop 3")
    a(f"s_cmp_ge_u32 s42, {target}")
    a(f"s_cbranch_scc1 {dn}")
    a(f"s_add_u32 s43, s43, 1")
    a(f"s_cmp_lt_u32 s43, {POLL_MAX * 8}")
    a(f"s_cbranch_scc0 {dn}")
    if sleep: a(f"s_sleep {sleep}")
    a(f"s_branch {lp}")
    a.label(dn)

def lds_wait_imm(a, addr, target, vt, va, sleep=1):
    a(f"v_mov_b32 v{va}, {addr}")
    lds_wait_ge(a, target, vt, va, sleep)

def lds_add1(a, vaddr, vone):
    a("s_mov_b64 exec, 1")
    a(f"ds_add_u32 v{vaddr}, v{vone}")
    a("s_mov_b64 exec, -1")
def lds_add1_imm(a, addr, va, vo):
    a(f"v_mov_b32 v{va}, {addr}")
    a(f"v_mov_b32 v{vo}, 1")
    lds_add1(a, va, vo)

def if_wave(a, cmp, val, fn, sreg=None):
    lb = a.newlabel("ifw")
    inv = {"eq": "lg", "lt": "ge", "ge": "lt", "lg": "eq"}[cmp]
    a(f"s_cmp_{inv}_u32 s{sreg if sreg is not None else S_W}, {val}")
    a(f"s_cbranch_scc1 {lb}")
    fn()
    a.label(lb)

def flag_addr_ji(a, base, sd):
    a(f"s_lshl_b32 s{sd}, s{S_J}, 9")
    a(f"s_lshr_b32 s30, s{S_I}, 3")
    a(f"s_lshl_b32 s30, s30, 7")
    a(f"s_add_u32 s{sd}, s{sd}, s30")
    a(f"s_and_b32 s30, s{S_I}, 7")
    a(f"s_lshl_b32 s30, s30, 2")
    a(f"s_add_u32 s{sd}, s{sd}, s30")
    a(f"s_add_u32 s{sd}, s{sd}, {base}")
def flag_store(a, sd, t0, t1):
    a(f"v_mov_b32 v{t0}, 0")
    a(f"v_mov_b32 v{t1}, s{S_NONCE}")
    a(f"s_mov_b64 exec, 1")
    a(f"buffer_store_dword v{t1}, v{t0}, {R(SRD_WS)}, s{sd} offen sc1")
    a(f"s_mov_b64 exec, -1")
def flags32_addr(a, vd, vt):
    a(f"v_lshrrev_b32 v{vd}, 3, v1")
    a(f"v_lshlrev_b32 v{vd}, 7, v{vd}")
    a(f"v_and_b32 v{vt}, 7, v1")
    a(f"v_lshlrev_b32 v{vt}, 2, v{vt}")
    a(f"v_add_u32 v{vd}, v{vd}, v{vt}")

def gen(a):
    name = NAME + "_kernel"
    a.L.append(kernel_header(name))
    END = "f_end"
    a(f"s_cmp_ge_u32 s2, 256")
    a(f"s_cbranch_scc1 {END}")
    a(f"s_load_dwordx16 s[76:91], s[0:1], 0")
    a(f"s_load_dwordx8 s[92:99], s[0:1], 64")
    a(f"s_load_dwordx4 s[28:31], s[0:1], 96")
    a(f"s_load_dwordx2 s[32:33], s[0:1], 112")
    a(f"v_lshrrev_b32 v1, 6, v0")
    a(f"s_and_b32 s{S_I}, s2, 7")
    a(f"s_lshl_b32 s{S_I}, s{S_I}, 2")
    a(f"s_lshr_b32 s{S_J}, s2, 6")
    a(f"s_add_u32 s{S_I}, s{S_I}, s{S_J}")
    a(f"s_lshr_b32 s{S_J}, s2, 3")
    a(f"s_and_b32 s{S_J}, s{S_J}, 7")
    a(f"v_readfirstlane_b32 s{S_W}, v1")
    a(f"v_and_b32 v1, 63, v0")
    a(f"s_movk_i32 s{S_1280}, 1280")
    a(f"s_add_u32 s{S_ROT}, s{S_I}, s{S_J}")
    a(f"s_and_b32 s{S_ROT}, s{S_ROT}, 7")
    a(f"s_and_b32 s{S_HH}, s{S_W}, 3")
    a(f"s_lshr_b32 s{S_G}, s{S_W}, 2")
    T0, T1, T2, T3 = 2, 3, 116, 117
    V_XD, V_WD, V_UST = 161, 162, 165
    for r in (161, 162, 163, 164, 165): a(f"v_mov_b32 v{r}, 0")
    a("s_waitcnt lgkmcnt(0)")
    srd(a, SRD_X, 76, XB)
    srd(a, SRD_WS, 32, WS_USED)
    srd(a, SRD_DBG, 30, 256)
    srd(a, SRD_WQ, 90, 640 * 640 * 2)
    a(f"s_cmp_ge_u32 s{S_J}, 4")
    a(f"s_cselect_b32 s{SRD_W}, s94, s92")
    a(f"s_cselect_b32 s{SRD_W+1}, s95, s93")
    a(f"s_mov_b32 s{SRD_W+2}, 25600")
    a(f"s_mov_b32 s{SRD_W+3}, 0x00020000")
    srd(a, SRD_GW, 98, 1280)
    srd(a, SRD_K, 78, XB)
    srd(a, SRD_V, 80, XB)
    srd(a, SRD_SH, 82, 640 * 4 * 2)
    srd(a, SRD_H, 84, XB)
    srd(a, SRD_WO, 96, 640 * 640 * 2)
    srd(a, SRD_OUT, 28, XB)
    a(f"s_mov_b32 s{S_DPTR}, s86")
    a(f"s_mov_b32 s{S_DPTR+1}, s87")
    if "stamp" in OPT: a(f"v_mov_b32 v{V_ST}, 0")
    stamp(a, "rt0", True); stamp(a, "t0")
    PSTART = "f_pstart"; QPROJ = "f_qproj"; DMA0 = "f_dma0"
    a(f"s_cmp_eq_u32 s{S_W}, 8")
    a(f"s_cbranch_scc1 {PSTART}")

    XF, UACC, WFA = 16, 44, 52
    def unit_loads():
        a(f"s_and_b32 s28, s{S_J}, 3")
        a(f"s_lshl_b32 s28, s28, 4")
        a(f"s_lshl_b32 s29, s{S_I}, 6")
        a(f"s_add_u32 s28, s28, s29")
        a(f"v_and_b32 v{T0}, 15, v1")
        a(f"v_add_u32 v{T0}, s28, v{T0}")
        a(f"v_mul_lo_u32 v{T0}, v{T0}, s{S_1280}")
        a(f"v_lshrrev_b32 v{T1}, 4, v1")
        a(f"v_lshlrev_b32 v{T2}, 4, v{T1}")
        a(f"v_add_u32 v{T0}, v{T0}, v{T2}")
        a(f"s_mul_i32 s29, s{S_W}, 320")
        for s_ in range(5):
            a(f"buffer_load_dwordx4 {v(XF+4*s_,4)}, v{T0}, {R(SRD_X)}, s29 offen offset:{64*s_}")
        a(f"v_lshlrev_b32 v{T2}, 4, v1")
        a(f"s_mul_i32 s29, s{S_W}, 6400")
        a(f"s_mul_i32 s30, s{S_W}, 7168")
        for q in range(7):
            a(f"s_add_u32 m0, s30, {UNIT_W + 1024*q}")
            a(f"s_add_u32 s31, s29, {1024*q}")
            a(f"buffer_load_dwordx4 v{T2}, {R(SRD_W)}, s31 offen lds")
    if_wave(a, "lt", 4, lambda: (a("s_setprio 2"), unit_loads(), a("s_setprio 0")))
    a(f"v_lshrrev_b32 v{T0}, 4, v1")
    a(f"s_lshl_b32 s28, s{S_W}, 2")
    a(f"v_add_u32 v{T0}, s28, v{T0}")
    a(f"v_xor_b32 v{T1}, v1, v{T0}")
    a(f"v_and_b32 v{T1}, 15, v{T1}")
    a(f"v_lshlrev_b32 v{T1}, 4, v{T1}")
    a(f"s_lshl_b32 s28, s{S_I}, 6")
    a(f"v_add_u32 v{T0}, s28, v{T0}")
    a(f"v_mul_lo_u32 v{T0}, v{T0}, s{S_1280}")
    a(f"v_add_u32 v{V_XD}, v{T0}, v{T1}")
    a(f"s_mul_i32 s29, s{S_J}, 160")
    a(f"s_lshl_b32 s28, s{S_W}, 6")
    for t in range(3):
        a(f"v_add_u32 v{T0}, s28, v1")
        if t: a(f"v_add_u32 v{T0}, {512*t}, v{T0}")
        a(f"v_mul_u32_u24 v{T1}, 6554, v{T0}")
        a(f"v_lshrrev_b32 v{T1}, 16, v{T1}")
        a(f"v_mul_u32_u24 v{T2}, 10, v{T1}")
        a(f"v_sub_u32 v{T0}, v{T0}, v{T2}")
        a(f"v_lshlrev_b32 v{T0}, 4, v{T0}")
        a(f"v_and_b32 v{T2}, 0xfff8, v{T1}")
        a(f"v_bfe_u32 v{T3}, v{T1}, 1, 2")
        a(f"v_or_b32 v{T2}, v{T2}, v{T3}")
        a(f"v_and_b32 v{T1}, 1, v{T1}")
        a(f"v_lshlrev_b32 v{T1}, 2, v{T1}")
        a(f"v_or_b32 v{T2}, v{T2}, v{T1}")
        a(f"v_mul_lo_u32 v{T2}, v{T2}, s{S_1280}")
        a(f"v_add_u32 v{T2}, v{T2}, v{T0}")
        a(f"v_add_u32 v{V_WD+t}, s29, v{T2}")
    def dma_chunk(ch, slot):
        base = slot * SLOT
        a(f"s_lshl_b32 s28, s{S_W}, 10")
        for t in range(2):
            a(f"s_add_u32 m0, s28, {base + 8192*t}")
            a(f"s_mov_b32 s29, {256*ch + 32*1280*t}")
            a(f"buffer_load_dwordx4 v{V_XD}, {R(SRD_X)}, s29 offen lds")
        a(f"s_mov_b32 s29, {163840*ch}")
        for t in range(3):
            def one(t=t):
                a(f"s_add_u32 m0, s28, {base + 16384 + 8192*t}")
                a(f"s_nop 0")
                a(f"buffer_load_dwordx4 v{V_WD+t}, {R(SRD_WQ)}, s29 offen lds")
            if t < 2: one()
            else: if_wave(a, "lt", 4, one)
    def wait_vm(nA, nB):
        la = a.newlabel("wa"); lb = a.newlabel("wb")
        a(f"s_cmp_lt_u32 s{S_W}, 4")
        a(f"s_cbranch_scc1 {la}")
        a(f"s_waitcnt vmcnt({nB})")
        a(f"s_branch {lb}")
        a.label(la)
        a(f"s_waitcnt vmcnt({nA})")
        a.label(lb)
    def gw():
        a(f"s_mul_i32 s28, s{S_HH}, 320")
        a(f"s_add_u32 m0, s28, {GWL}")
        a(f"v_lshlrev_b32 v{T0}, 4, v1")
        a(f"s_mov_b64 exec, 0xfffff")
        a(f"buffer_load_dwordx4 v{T0}, {R(SRD_GW)}, s28 offen lds")
        a(f"s_mov_b64 exec, -1")
    if_wave(a, "ge", 4, gw)
    for ch in range(3): dma_chunk(ch, ch)
    NA, NB = 5, 4
    def unit_compute():
        a(f"v_lshrrev_b32 v{T1}, 4, v1")
        a(f"v_bfe_u32 v{T2}, v1, 2, 2")
        a(f"v_lshlrev_b32 v{T1}, 3, v{T1}")
        a(f"v_add_u32 v{T2}, v{T2}, v{T1}")
        a(f"v_mul_u32_u24 v{T2}, 40, v{T2}")
        a(f"v_and_b32 v{T3}, 3, v1")
        a(f"v_lshlrev_b32 v{T3}, 3, v{T3}")
        a(f"v_add_u32 v{T2}, v{T2}, v{T3}")
        a(f"s_mul_i32 s30, s{S_W}, 7168")
        a(f"s_add_u32 s30, s30, {UNIT_W}")
        a(f"v_add_u32 v{T2}, s30, v{T2}")
        for r in range(8): a(f"v_mov_b32 v{UACC+r}, 0")
        a(f"s_waitcnt vmcnt({3*NA})")
        stamp(a, "unitld")
        for s_ in range(5):
            for dt in range(2):
                for jj in range(2):
                    a(f"ds_read_b64_tr_b16 {v(WFA+8*s_+4*dt+2*jj,2)}, v{T2} offset:{1280*s_ + 160*jj + 32*dt}")
            if s_ == 2: a("s_waitcnt lgkmcnt(4)")
        labV = a.newlabel("kindV"); labD = a.newlabel("kindD")
        a("s_waitcnt lgkmcnt(0)")
        a(f"s_cmp_ge_u32 s{S_J}, 4")
        a(f"s_cbranch_scc1 {labV}")
        for kind in range(2):
            for s_ in range(5):
                for dt in range(2):
                    w_ = v(WFA+8*s_+4*dt, 4); x_ = v(XF+4*s_, 4)
                    A_, B_ = (w_, x_) if kind == 0 else (x_, w_)
                    a(f"v_mfma_f32_16x16x32_bf16 {v(UACC+4*dt,4)}, {A_}, {B_}, {v(UACC+4*dt,4)}")
            if kind == 0:
                a(f"s_branch {labD}")
                a.label(labV)
        a.label(labD)
        a.nop(8)
        a(f"s_lshl_b32 s29, s{S_W}, 11")
        a(f"s_add_u32 s29, s29, {UNIT_R}")
        a(f"v_lshlrev_b32 v{T0}, 4, v1")
        a(f"v_add_u32 v{T1}, s29, v{T0}")
        a(f"ds_write_b128 v{T1}, {v(UACC,4)}")
        a(f"ds_write_b128 v{T1}, {v(UACC+4,4)} offset:1024")
        a("s_waitcnt lgkmcnt(0)")
    if_wave(a, "lt", 4, unit_compute)
    a("s_barrier")
    stamp(a, "b1")
    dma_chunk(3, 3)

    V_XA, V_WA = 152, 160
    QACC, GACC, GWF, QXF, QWF = 44, 60, 76, 128, 140
    KD, VD, SH = 16, 28, 36
    V_UB, V_UB2, V_UH, V_USH = 40, 41, 42, 43
    V_SHA = 166
    def uprep_loads():
        a(f"v_lshrrev_b32 v{T0}, 3, v1")
        a(f"s_mul_i32 s28, s{S_W}, 5")
        a(f"v_add_u32 v{T0}, s28, v{T0}")
        a(f"s_mul_i32 s28, s{S_J}, 160")
        a(f"v_lshlrev_b32 v{T1}, 2, v{T0}")
        a(f"v_add_u32 v{T1}, s28, v{T1}")
        a(f"v_lshlrev_b32 v{T2}, 2, v{T1}")
        a(f"buffer_load_dwordx4 {v(SH,4)}, v{T2}, {R(SRD_SH)}, 0 offen")
        a(f"v_lshlrev_b32 v{V_UST}, 11, v{T1}")
        a(f"v_and_b32 v{T2}, 7, v1")
        a(f"v_lshlrev_b32 v{T2}, 3, v{T2}")
        a(f"s_lshl_b32 s28, s{S_I}, 6")
        a(f"v_add_u32 v{T2}, s28, v{T2}")
        a(f"v_lshlrev_b32 v{T2}, 1, v{T2}")
        a(f"v_sub_u32 v{V_UST}, v{V_UST}, v{T2}")
        a(f"v_add_u32 v{V_UST}, {UR_OFF + 4080}, v{V_UST}")
        for t in range(3):
            def one(t=t):
                a(f"s_add_u32 s28, s{S_W}, {8*t}")
                a(f"s_cmp_lt_u32 s28, 11")
                a(f"s_cselect_b32 s30, 0, 11")
                a(f"s_cselect_b32 s31, 1, 0")
                a(f"s_sub_u32 s29, s28, s30")
                a(f"s_lshl_b32 s30, s29, 6")
                a(f"v_add_u32 v{T0}, s30, v1")
                a(f"v_mul_u32_u24 v{T1}, 6554, v{T0}")
                a(f"v_lshrrev_b32 v{T1}, 16, v{T1}")
                a(f"v_mul_u32_u24 v{T2}, 10, v{T1}")
                a(f"v_sub_u32 v{T0}, v{T0}, v{T2}")
                a(f"v_lshrrev_b32 v{T2}, 3, v{T1}")
                a(f"v_sub_u32 v{T0}, v{T0}, v{T2}")
                a(f"v_add_u32 v{T2}, 10, v{T0}")
                a(f"v_min_u32 v{T0}, v{T0}, v{T2}")
                a(f"v_lshlrev_b32 v{T0}, 4, v{T0}")
                a(f"s_lshl_b32 s30, s{S_I}, 6")
                a(f"s_mul_i32 s35, s31, 3")
                a(f"s_sub_u32 s30, s30, s35")
                a(f"v_add_u32 v{T1}, s30, v{T1}")
                a(f"v_mul_lo_u32 v{T1}, v{T1}, s{S_1280}")
                a(f"v_add_u32 v{T0}, v{T0}, v{T1}")
                a(f"s_mul_i32 s30, s{S_J}, 160")
                a(f"v_add_u32 v{T0}, s30, v{T0}")
                a(f"s_lshl_b32 s29, s29, 10")
                lv = a.newlabel("uv"); ld_ = a.newlabel("ud")
                a(f"s_cmp_eq_u32 s31, 0")
                a(f"s_cbranch_scc1 {lv}")
                a(f"s_add_u32 m0, s29, {UT_K}")
                a(f"s_cmp_eq_u32 s28, 10")
                a(f"s_cselect_b32 s40, 0x3fffffff, -1")
                a(f"s_cselect_b32 s41, 0, -1")
                a(f"s_mov_b64 exec, s[40:41]")
                a(f"buffer_load_dwordx4 v{T0}, {R(SRD_K)}, 0 offen lds")
                a(f"s_mov_b64 exec, -1")
                a(f"s_branch {ld_}")
                a.label(lv)
                a(f"s_add_u32 m0, s29, {UT_V}")
                a(f"s_nop 0")
                a(f"buffer_load_dwordx4 v{T0}, {R(SRD_V)}, 0 offen lds")
                a.label(ld_)
            if t < 2: one()
            else: if_wave(a, "lt", 5, one)
    NU = 3
    a(f"v_and_b32 v{T0}, 31, v1")
    a(f"s_lshl_b32 s28, s{S_G}, 5")
    a(f"v_add_u32 v{T0}, s28, v{T0}")
    a(f"v_lshrrev_b32 v{T1}, 5, v1")
    a(f"v_and_b32 v{T2}, 15, v{T0}")
    a(f"v_xor_b32 v{T2}, v{T2}, v{T1}")
    a(f"v_lshlrev_b32 v{T2}, 4, v{T2}")
    a(f"v_lshlrev_b32 v{T0}, 8, v{T0}")
    a(f"v_add_u32 v{V_XA}, v{T0}, v{T2}")
    for s_ in range(1, 8): a(f"v_xor_b32 v{V_XA+s_}, {32*s_}, v{V_XA}")
    a(f"v_bfe_u32 v{T0}, v1, 2, 2")
    a(f"v_lshlrev_b32 v{T0}, 1, v{T0}")
    a(f"v_lshlrev_b32 v{T2}, 3, v{T1}")
    a(f"v_add_u32 v{T0}, v{T0}, v{T2}")
    a(f"v_mul_u32_u24 v{T0}, 160, v{T0}")
    a(f"v_and_b32 v{T2}, 3, v1")
    a(f"v_lshlrev_b32 v{T2}, 3, v{T2}")
    a(f"v_and_b32 v{T3}, 16, v1")
    a(f"v_cmp_ne_u32 vcc, 0, v{T3}")
    a(f"s_mul_i32 s28, s{S_HH}, 40")
    a(f"s_add_u32 s28, s28, 16384")
    a(f"v_mov_b32 v{T3}, 32")
    a(f"v_cndmask_b32 v{T2}, v{T2}, v{T3}, vcc")
    a(f"v_add_u32 v{T0}, v{T0}, v{T2}")
    a(f"v_add_u32 v{V_WA}, s28, v{T0}")
    for r in range(16):
        a(f"v_mov_b32 v{QACC+r}, 0"); a(f"v_mov_b32 v{GACC+r}, 0")
    a(f"v_lshlrev_b32 v{T1}, 4, v{T1}")
    a(f"s_lshl_b32 s28, s{S_HH}, 5")
    a(f"s_add_u32 s28, s28, {GWL}")
    a(f"v_add_u32 v{T1}, s28, v{T1}")
    def q_chunk(ch, slot):
        off = (slot & 1) * SLOT
        def loads(s_):
            b = s_ % 3
            a(f"ds_read_b128 {v(QXF+4*b,4)}, v{V_XA+s_} offset:{off}")
            a(f"ds_read_b64_tr_b16 {v(QWF+4*b,2)}, v{V_WA} offset:{off + 2560*s_}")
            a(f"ds_read_b64_tr_b16 {v(QWF+4*b+2,2)}, v{V_WA} offset:{off + 2560*s_ + 160}")
        loads(0); loads(1)
        for s_ in range(8):
            if s_ < 6:
                loads(s_+2); a("s_waitcnt lgkmcnt(6)")
            elif s_ == 6: a("s_waitcnt lgkmcnt(3)")
            else: a("s_waitcnt lgkmcnt(0)")
            b = s_ % 3
            a(f"v_mfma_f32_32x32x16_bf16 {v(QACC,16)}, {v(QWF+4*b,4)}, {v(QXF+4*b,4)}, {v(QACC,16)}")
            lg = a.newlabel("ng")
            a(f"s_cmp_lg_u32 s{S_HH}, {s_ & 3}")
            a(f"s_cbranch_scc1 {lg}")
            t = (8 * ch + s_) >> 2
            a(f"v_mfma_f32_32x32x16_bf16 {v(GACC,16)}, {v(GWF+4*t,4)}, {v(QXF+4*b,4)}, {v(GACC,16)}")
            a.label(lg)
    def bump(delta):
        op = "v_add_u32" if delta > 0 else "v_subrev_u32"
        for s_ in range(8): a(f"{op} v{V_XA+s_}, {abs(delta)}, v{V_XA+s_}")
        a(f"{op} v{V_WA}, {abs(delta)}, v{V_WA}")
    wait_vm(3*NA, 3*NB)
    a("s_barrier")
    stamp(a, "b2")
    for t in range(10):
        a(f"ds_read_b128 {v(GWF+4*t,4)}, v{T1} offset:{128*t}")
    a(f"v_mov_b32 v{T2}, {C_NONCE}")
    a(f"ds_read_b32 v{T3}, v{T2}")
    a("s_waitcnt lgkmcnt(0)")
    a(f"v_readfirstlane_b32 s{S_NONCE}, v{T3}")
    q_chunk(0, 0)
    wait_vm(2*NA, 2*NB)
    a("s_barrier")
    stamp(a, "b3")
    dma_chunk(4, 0)
    q_chunk(1, 1)
    bump(2 * SLOT)
    wait_vm(2*NA, 2*NB)
    a("s_barrier")
    stamp(a, "b4")
    uprep_loads()
    q_chunk(2, 2)
    wait_vm(NA + NU, NB + NU)
    a("s_barrier")
    stamp(a, "b5")
    q_chunk(3, 3)
    bump(-2 * SLOT)
    a(f"s_waitcnt vmcnt({NU})")
    a("s_barrier")
    stamp(a, "b6")
    q_chunk(4, 0)
    stamp(a, "qdone")

    QF16, QF8, QG16, QG8 = 4, 8, 10, 14
    SF, SG = 16, 32
    P = 48
    OF, OG = 56, 72
    K16, K8, V0, V1 = 88, 92, 96, 100
    AK16, AK8, AV, AK16N, AK8N, AVN = 104, 105, 106, 107, 108, 109
    V_L16, V_ONE, V_CF, V_CD, V_KW, V_CT = 110, 111, 112, 113, 114, 115
    KVST = 116
    KVST2 = 128
    a.nop(16)
    a(f"s_mov_b32 s28, {hex(f32bits(QSCALE))}")
    for r in range(12): a(f"v_mul_f32 v{QACC+r}, s28, v{QACC+r}")
    for r in range(4): a(f"v_cvt_pk_bf16_f32 v{QF16+r}, v{QACC+2*r}, v{QACC+2*r+1}")
    for r in range(2): a(f"v_cvt_pk_bf16_f32 v{QF8+r}, v{QACC+8+2*r}, v{QACC+8+2*r+1}")
    a(f"v_cmp_gt_u32 vcc, 32, v1")
    a.nop(2)
    for r in range(2): a(f"v_cndmask_b32 v{QF8+r}, 0, v{QF8+r}, vcc")
    a("s_barrier")
    a(f"s_lshl_b32 s28, s{S_W}, 11")
    a(f"v_lshlrev_b32 v{T0}, 5, v1")
    a(f"v_add_u32 v{T0}, s28, v{T0}")
    a(f"v_xor_b32 v{V_CT}, {4<<11}, v{T0}")
    a(f"v_add_u32 v{T0}, {QX}, v{T0}")
    a(f"v_add_u32 v{V_CT}, {QX}, v{V_CT}")
    a(f"ds_write_b128 v{T0}, {v(QF16,4)}")
    a(f"ds_write_b64 v{T0}, {v(QF8,2)} offset:16")
    a(f"s_lshl_b32 s28, s{S_W}, 7")
    a(f"s_add_u32 s28, s28, {GP}")
    a(f"v_lshlrev_b32 v{T0}, 2, v1")
    a(f"v_add_u32 v{T0}, s28, v{T0}")
    a(f"s_mov_b64 exec, 0xffffffff")
    a(f"ds_write_b32 v{T0}, v{GACC}")
    a(f"s_mov_b64 exec, -1")
    a("s_waitcnt lgkmcnt(0) vmcnt(0)")
    a("s_barrier")
    a(f"ds_read_b128 {v(QG16,4)}, v{V_CT}")
    a(f"ds_read_b64 {v(QG8,2)}, v{V_CT} offset:16")
    def gate_fin():
        a(f"v_lshrrev_b32 v{T0}, 5, v1")
        a(f"v_lshlrev_b32 v{T0}, 9, v{T0}")
        a(f"v_and_b32 v{T1}, 31, v1")
        a(f"v_lshlrev_b32 v{T1}, 2, v{T1}")
        a(f"v_add_u32 v{T0}, v{T0}, v{T1}")
        a(f"v_add_u32 v{T0}, {GP}, v{T0}")
        for k in range(4): a(f"ds_read_b32 v{96+k}, v{T0} offset:{128*k}")
        a("s_waitcnt lgkmcnt(0)")
        a(f"v_add_f32 v96, v96, v97")
        a(f"v_add_f32 v98, v98, v99")
        a(f"v_add_f32 v96, v96, v98")
        a(f"v_mul_f32 v96, {hex(f32bits(-1.4426950408889634))}, v96")
        a(f"v_exp_f32 v96, v96")
        a.nop(1)
        a(f"v_add_f32 v96, 1.0, v96")
        a(f"v_rcp_f32 v96, v96")
        a(f"v_lshlrev_b32 v{T0}, 2, v1")
        a(f"v_add_u32 v{T0}, {G_L}, v{T0}")
        a.nop(1)
        a(f"ds_write_b32 v{T0}, v96")
    if_wave(a, "eq", 7, gate_fin)
    KA_, KB_, WA_, WB_, UA, UB, UT = 44, 56, 68, 72, 76, 84, 92
    a(f"v_lshrrev_b32 v{T0}, 3, v1")
    a(f"s_mul_i32 s28, s{S_W}, 5")
    a(f"v_add_u32 v{T0}, s28, v{T0}")
    a(f"v_and_b32 v{T1}, 7, v1")
    a(f"v_lshrrev_b32 v{T2}, 2, v{T0}")
    a(f"v_add_u32 v{T2}, v{T2}, v{T1}")
    a(f"v_and_b32 v{T0}, 3, v{T0}")
    a(f"v_lshlrev_b32 v{T0}, 2, v{T0}")
    a(f"v_mul_u32_u24 v{T1}, 1280, v{T1}")
    a(f"v_add_u32 v{T0}, v{T0}, v{T1}")
    a(f"v_add_u32 v{T0}, {UT_K}, v{T0}")
    for (dst, add) in ((40, 0), (41, 1)):
        a(f"v_add_u32 v{T3}, {add}, v{T2}")
        a(f"v_subrev_u32 v{T1}, 10, v{T3}")
        a(f"v_min_u32 v{T3}, v{T3}, v{T1}")
        a(f"v_lshlrev_b32 v{T3}, 4, v{T3}")
        a(f"v_add_u32 v{dst}, v{T0}, v{T3}")
    for r in range(8): a(f"ds_read_b32 v{KD+r}, v40 offset:{160*r}")
    for r in range(8, 11): a(f"ds_read_b32 v{KD+r}, v41 offset:{160*r}")
    a("s_waitcnt lgkmcnt(4)")
    for r in range(8): a(f"ds_read_b32 v{VD+r}, v40 offset:{10720 + 160*r}")
    a("s_waitcnt lgkmcnt(0)")
    a("s_barrier")
    for r in range(11):
        a(f"v_lshlrev_b32 v{KA_+r}, 16, v{KD+r}")
        a(f"v_and_b32 v{KB_+r}, 0xffff0000, v{KD+r}")
    for (W, base) in ((WA_, SH), (WB_, SH + 2)):
        a(f"v_lshlrev_b32 v{W}, 16, v{base}")
        a(f"v_and_b32 v{W+1}, 0xffff0000, v{base}")
        a(f"v_lshlrev_b32 v{W+2}, 16, v{base+1}")
        a(f"v_and_b32 v{W+3}, 0xffff0000, v{base+1}")
    for e_ in range(8):
        for (U, Kf, W, lo) in ((UA, KA_, WA_, True), (UB, KB_, WB_, False)):
            a(f"v_mul_f32 v{U+e_}, v{Kf+e_+3}, v{W}")
            for jx in range(1, 4):
                a(f"v_fmac_f32 v{U+e_}, v{Kf+e_+3-jx}, v{W+jx}")
            if lo: a(f"v_lshlrev_b32 v{UT}, 16, v{VD+e_}")
            else: a(f"v_and_b32 v{UT}, 0xffff0000, v{VD+e_}")
            a(f"v_mul_f32 v{U+e_}, v{U+e_}, v{UT}")
    a(f"s_mov_b32 exec_hi, 0xff")
    for (U, O_, off) in ((UA, KD, 0), (UB, KD + 4, 4096)):
        for i in range(4):
            a(f"v_cvt_pk_bf16_f32 v{O_+i}, v{U+7-2*i}, v{U+6-2*i}")
        if off: a(f"v_add_u32 v{V_UST}, {off}, v{V_UST}")
        a(f"buffer_store_dwordx4 {v(O_,4)}, v{V_UST}, {R(SRD_WS)}, 0 offen sc1")
    a(f"s_mov_b64 exec, -1")
    stamp(a, "udone")

    S_T, S_BLK, S_SLOT, S_NXT, S_FT, S_DT = 34, 35, 36, 37, 38, 39
    S_RB, S_M2, S_P1, S_DL, S_WB = 78, 79, 80, 81, 82
    a(f"s_mul_i32 s{S_RB}, s{S_G}, {RING_STRIDE}")
    a(f"v_lshlrev_b32 v{V_L16}, 4, v1")
    a(f"v_mov_b32 v{V_ONE}, 1")
    S_CFB, S_CA, S_CBB = 89, 90, 91
    a(f"s_lshl_b32 s28, s{S_G}, 4")
    a(f"s_add_u32 s{S_CFB}, s28, {C_FULL}")
    a(f"v_mov_b32 v{V_CF}, s{S_CFB}")
    def blk_off(t):
        a(f"s_add_u32 s28, s{S_ROT}, {t}")
        a(f"s_and_b32 s28, s28, 7")
        a(f"s_lshl_b32 s28, s28, 2")
        a(f"s_lshl_b32 s29, s{S_G}, 5")
        a(f"s_add_u32 s28, s28, s29")
        a(f"s_add_u32 s28, s28, s{S_HH}")
        a(f"s_mul_i32 s{S_BLK}, s28, 3072")
    def kv_load(dst=KVST):
        for q in range(3):
            a(f"buffer_load_dwordx4 {v(dst+4*q,4)}, v{V_L16}, {R(SRD_WS)}, s{S_BLK} offen offset:{1024*q} sc1")
    def kv_write(src=KVST):
        a(f"ds_write_b128 v{V_KW}, {v(src,4)}")
        a(f"ds_write_b128 v{V_KW}, {v(src+4,4)} offset:1024")
        a(f"s_mov_b32 exec_hi, 0")
        a(f"s_mov_b32 exec_lo, -1")
        a(f"s_mov_b32 exec_hi, 0xff")
        a(f"ds_write_b128 v{V_KW}, {v(src+8,4)} offset:2048")
        a(f"s_mov_b64 exec, -1")
    a(f"s_mul_i32 s29, s{S_HH}, {BLK}")
    a(f"s_add_u32 s{S_WB}, s{S_RB}, s29")
    a(f"v_add_u32 v{AK16}, s{S_RB}, v{V_L16}")
    a(f"v_and_b32 v{T0}, 31, v1")
    a(f"v_lshlrev_b32 v{T1}, 3, v{T0}")
    a(f"v_add_u32 v{T1}, 1024, v{T1}")
    a(f"v_mov_b32 v{AK8}, 1280")
    a(f"v_cmp_gt_u32 vcc, 32, v1")
    a.nop(2)
    a(f"v_cndmask_b32 v{AK8}, v{AK8}, v{T1}, vcc")
    a(f"v_add_u32 v{AK8}, s{S_RB}, v{AK8}")
    a(f"v_min_u32 v{T1}, 20, v{T0}")
    a(f"v_subrev_u32 v{AV}, 16, v{T0}")
    a(f"v_cmp_lt_u32 vcc, 27, v{T0}")
    a.nop(2)
    a(f"v_cndmask_b32 v{T1}, v{T1}, v{AV}, vcc")
    a(f"v_lshlrev_b32 v{T1}, 4, v{T1}")
    a(f"v_lshrrev_b32 v{AV}, 5, v1")
    a(f"v_mul_u32_u24 v{AV}, 336, v{AV}")
    a(f"v_add_u32 v{AV}, v{AV}, v{T1}")
    a(f"v_add_u32 v{AV}, 1296, v{AV}")
    a(f"v_add_u32 v{AV}, s{S_RB}, v{AV}")
    for cur, nxt in ((AK16, AK16N), (AK8, AK8N), (AV, AVN)):
        a(f"v_add_u32 v{nxt}, {KVSLOT}, v{cur}")
    if_wave(a, "lt", 4, lambda: conv_pre(a))
    lds_wait_imm(a, C_KVOK, 1, T1, T0, sleep=1)
    stamp(a, "kvok")
    blk_off(0); kv_load(KVST)
    blk_off(1); kv_load(KVST2)
    a(f"v_add_u32 v{V_KW}, s{S_WB}, v{V_L16}")
    a("s_waitcnt vmcnt(3)")
    kv_write(KVST)
    lds_add1(a, V_CF, V_ONE)
    a(f"v_add_u32 v{V_KW}, {KVSLOT}, v{V_KW}")
    a(f"v_add_u32 v{V_CD}, 4, v{V_CF}")
    a("s_waitcnt vmcnt(0)")
    kv_write(KVST2)
    lds_add1(a, V_CD, V_ONE)
    lds_add1_imm(a, C_UCNT, T0, T1)
    def a_conv():
        stamp(a, "conv0")
        gen_conv(a)
        a("s_waitcnt vmcnt(0)")
        lds_add1_imm(a, C_CVD, T0, T1)
        stamp(a, "conv1")
    if_wave(a, "lt", 4, a_conv)
    for r in range(16):
        a(f"v_mov_b32 v{OF+r}, 0"); a(f"v_mov_b32 v{OG+r}, 0")
    for r in range(8): a(f"v_mov_b32 v{P+r}, 0")
    for r in range(4): a(f"v_mov_b32 v{V1+r}, 0")
    for r in range(12, 16): a(f"v_mov_b32 v{SG+r}, 0")
    blk_off(2); kv_load(KVST)
    lds_wait_ge(a, 4, V_CT, V_CF, sleep=0)
    a(f"ds_read_b128 {v(K16,4)}, v{AK16}")
    a(f"ds_read_b64 {v(K8,2)}, v{AK8}")
    a(f"ds_read_b128 {v(V0,4)}, v{AV}")
    a("s_waitcnt lgkmcnt(0)")
    a(f"v_mfma_f32_32x32x16_bf16 {v(SF,16)}, {v(K16,4)}, {v(QF16,4)}, 0")
    a(f"v_mfma_f32_32x32x8_bf16 {v(SF,16)}, {v(K8,2)}, {v(QF8,2)}, {v(SF,16)}")
    a.nop(16)
    a(f"s_mov_b32 s{S_T}, 0")
    a(f"s_mov_b32 s{S_SLOT}, {2*KVSLOT}")
    a(f"s_mov_b32 s{S_NXT}, {KVSLOT}")
    a(f"s_mov_b32 s{S_M2}, {(-2*KVSLOT) & 0xffffffff}")
    a(f"s_mov_b32 s{S_P1}, {KVSLOT}")
    a(f"s_mov_b32 s{S_FT}, 4")
    a(f"s_mov_b32 s{S_DT}, 0")
    a(f"s_mov_b32 s{S_CA}, 8")
    a(f"s_mov_b32 s{S_CBB}, 4")
    V_CFW, V_CFR = 112, 164
    def cnt_addrs():
        a(f"s_add_u32 s28, s{S_CFB}, s{S_CA}")
        a(f"v_mov_b32 v{V_CFW}, s28")
        a(f"s_add_u32 s28, s28, 32")
        a(f"v_mov_b32 v{V_CD}, s28")
        a(f"s_add_u32 s28, s{S_CFB}, s{S_CBB}")
        a(f"v_mov_b32 v{V_CFR}, s28")
    cnt_addrs()
    if "noprio" not in OPT: if_wave(a, "ge", 4, lambda: a("s_setprio 1"))
    stamp(a, "loop0")
    LOOP = "f_attn"
    if "align" in OPT: a(".p2align 6")
    a.label(LOOP)
    e = lambda S, i: a(f"v_exp_f32 v{S+i}, v{S+i}")
    c = lambda S, i: a(f"v_cvt_pk_bf16_f32 v{P+i}, v{S+2*i}, v{S+2*i+1}")
    def check_cnt(target, retry_addr):
        ok = a.newlabel("ok")
        a(f"v_readfirstlane_b32 s42, v{V_CT}")
        a("s_nop 3")
        a(f"s_cmp_ge_u32 s42, {target}")
        a(f"s_cbranch_scc1 {ok}")
        lds_wait_ge(a, target, V_CT, retry_addr, sleep=1)
        a.label(ok)
    for b in range(4):
        last = (b == 3)
        kA16, kA8, kAV, koff = (AK16N, AK8N, AVN, 0) if last else (AK16, AK8, AV, (b+1)*BLK)
        extra = b in (1, 2)
        c(SG, 6); c(SG, 7)
        a(f"v_mfma_f32_32x32x16_bf16 {v(SG,16)}, {v(K16,4)}, {v(QG16,4)}, 0")
        a(f"ds_read_b128 {v(K16,4)}, v{kA16} offset:{koff}")
        if b == 1: a(f"ds_read_b32 v{V_CT}, v{V_CD}")
        if b == 2: a(f"ds_read_b32 v{V_CT}, v{V_CFR}")
        for i in range(0, 4): e(SF, i)
        c(SF, 0); c(SF, 1)
        a(f"v_mfma_f32_32x32x16_bf16 {v(OG,16)}, {v(V1,4)}, {v(P+4,4)}, {v(OG,16)}")
        a(f"ds_read_b128 {v(V1,4)}, v{AV} offset:{b*BLK + 672}")
        for i in range(4, 8): e(SF, i)
        c(SF, 2); c(SF, 3)
        a(f"v_mfma_f32_32x32x8_bf16 {v(SG,16)}, {v(K8,2)}, {v(QG8,2)}, {v(SG,16)}")
        a(f"ds_read_b64 {v(K8,2)}, v{kA8} offset:{koff}")
        for i in range(8, 12): e(SF, i)
        c(SF, 4); c(SF, 5)
        a(f"s_waitcnt lgkmcnt({4 if extra else 3})")
        a(f"v_mfma_f32_32x32x16_bf16 {v(OF,16)}, {v(V0,4)}, {v(P,4)}, {v(OF,16)}")
        for i in range(12, 16): e(SF, i)
        c(SF, 6); c(SF, 7)
        a("s_waitcnt lgkmcnt(0)")
        a(f"v_mfma_f32_32x32x16_bf16 {v(SF,16)}, {v(K16,4)}, {v(QF16,4)}, 0")
        if b == 0:
            if_wave(a, "lg", 0, lambda: lds_add1(a, V_CD, V_ONE), sreg=S_T)
        if b == 1:
            lb = a.newlabel("nw")
            a(f"s_cmp_ge_u32 s{S_T}, 6")
            a(f"s_cbranch_scc1 {lb}")
            check_cnt(f"s{S_DT}", V_CD)
            a(f"s_add_u32 s29, s{S_WB}, s{S_SLOT}")
            a(f"v_add_u32 v{V_KW}, s29, v{V_L16}")
            a("s_waitcnt vmcnt(0)")
            kv_write()
            lds_add1(a, V_CFW, V_ONE)
            a(f"s_cmp_ge_u32 s{S_T}, 5")
            a(f"s_cbranch_scc1 {lb}")
            a(f"s_add_u32 s30, s{S_T}, 3")
            blk_off("s30")
            kv_load()
            a.label(lb)
        if b == 2:
            lb = a.newlabel("nf")
            a(f"s_cmp_ge_u32 s{S_T}, 7")
            a(f"s_cbranch_scc1 {lb}")
            check_cnt(f"s{S_FT}", V_CFR)
            a.label(lb)
        for i in range(0, 4): e(SG, i)
        c(SG, 0); c(SG, 1)
        a(f"v_mfma_f32_32x32x16_bf16 {v(OF,16)}, {v(V1,4)}, {v(P+4,4)}, {v(OF,16)}")
        for i in range(4, 8): e(SG, i)
        c(SG, 2); c(SG, 3)
        a(f"v_mfma_f32_32x32x8_bf16 {v(SF,16)}, {v(K8,2)}, {v(QF8,2)}, {v(SF,16)}")
        for i in range(8, 12): e(SG, i)
        c(SG, 4); c(SG, 5)
        a(f"v_mfma_f32_32x32x16_bf16 {v(OG,16)}, {v(V0,4)}, {v(P,4)}, {v(OG,16)}")
        a(f"ds_read_b128 {v(V0,4)}, v{kAV} offset:{koff}")
        for i in range(12, 16): e(SG, i)
    a(f"s_add_u32 s{S_T}, s{S_T}, 1")
    a(f"s_add_u32 s{S_CA}, s{S_CA}, 4")
    a(f"s_cmp_ge_u32 s{S_CA}, 12")
    a(f"s_cselect_b32 s{S_CA}, 0, s{S_CA}")
    a(f"s_cselect_b32 s28, 4, 0")
    a(f"s_add_u32 s{S_DT}, s{S_DT}, s28")
    a(f"s_add_u32 s{S_CBB}, s{S_CBB}, 4")
    a(f"s_cmp_ge_u32 s{S_CBB}, 12")
    a(f"s_cselect_b32 s{S_CBB}, 0, s{S_CBB}")
    a(f"s_cselect_b32 s28, 4, 0")
    a(f"s_add_u32 s{S_FT}, s{S_FT}, s28")
    cnt_addrs()
    a(f"s_add_u32 s{S_SLOT}, s{S_SLOT}, {KVSLOT}")
    a(f"s_cmp_ge_u32 s{S_SLOT}, {3*KVSLOT}")
    a(f"s_cselect_b32 s{S_SLOT}, 0, s{S_SLOT}")
    a(f"s_add_u32 s{S_NXT}, s{S_NXT}, {KVSLOT}")
    a(f"s_cmp_ge_u32 s{S_NXT}, {3*KVSLOT}")
    a(f"s_cselect_b32 s{S_DL}, s{S_M2}, s{S_P1}")
    a(f"s_cselect_b32 s{S_NXT}, 0, s{S_NXT}")
    for cur, nxt in ((AK16, AK16N), (AK8, AK8N), (AV, AVN)):
        a(f"v_mov_b32 v{cur}, v{nxt}")
        a(f"v_add_u32 v{nxt}, s{S_DL}, v{nxt}")
    if "stampc" in OPT:
        for k in range(8):
            nm = f"c{k}"
            if nm not in STAMPS: STAMPS.append(nm)
        base = STAMPS.index("c0")
        a(f"s_memtime s[98:99]")
        a(f"s_add_u32 m0, s{S_T}, {base - 1}")
        a(f"s_waitcnt lgkmcnt(0)")
        a(f"v_writelane_b32 v{V_ST}, s98, m0")
    a(f"s_cmp_lt_u32 s{S_T}, 8")
    a(f"s_cbranch_scc1 {LOOP}")
    stamp(a, "loopE")
    c(SG, 6); c(SG, 7)
    a.nop(2)
    a(f"v_mfma_f32_32x32x16_bf16 {v(OG,16)}, {v(V1,4)}, {v(P+4,4)}, {v(OG,16)}")
    a("s_waitcnt lgkmcnt(0) vmcnt(0)")
    a.nop(12)

    WD, YS, QT, V_OUT, V_WT, GV = 128, 136, 148, 158, 160, 161
    OAD = 118
    TAILA = "f_taila"; TAILJ = "f_tailj"
    a(f"s_mul_i32 s28, s{S_HH}, 6144")
    a(f"s_add_u32 s28, s28, {OXB}")
    a(f"v_add_u32 v{T0}, s28, v{V_L16}")
    a(f"s_cmp_lt_u32 s{S_W}, 4")
    a(f"s_cbranch_scc1 {TAILA}")
    for q in range(3):
        a(f"ds_write_b128 v{T0}, {v(OF+4*q,4)} offset:{1024*q}")
        a(f"ds_write_b128 v{T0}, {v(OG+4*q,4)} offset:{3072 + 1024*q}")
    lds_add1_imm(a, C_BDONE, T2, T3)
    a("s_setprio 0")
    lds_wait_imm(a, C_CVD, 4, T1, T0)
    lds_wait_imm(a, C_BDONE, 4, T1, T0)
    a(f"v_lshlrev_b32 v{V_L16}, 4, v1")
    a(f"s_mul_i32 s29, s{S_J}, 160")
    a(f"s_lshl_b32 s28, s{S_HH}, 6")
    for t in range(5):
        a(f"v_add_u32 v{T0}, s28, v1")
        if t: a(f"v_add_u32 v{T0}, {256*t}, v{T0}")
        a(f"v_mul_u32_u24 v{T1}, 6554, v{T0}")
        a(f"v_lshrrev_b32 v{T1}, 16, v{T1}")
        a(f"v_mul_u32_u24 v{T2}, 10, v{T1}")
        a(f"v_sub_u32 v{T0}, v{T0}, v{T2}")
        a(f"v_lshlrev_b32 v{T0}, 4, v{T0}")
        a(f"v_and_b32 v{T2}, 0xfff3, v{T1}")
        a(f"v_bfe_u32 v{T3}, v{T1}, 2, 1")
        a(f"v_lshlrev_b32 v{T3}, 3, v{T3}")
        a(f"v_or_b32 v{T2}, v{T2}, v{T3}")
        a(f"v_bfe_u32 v{T3}, v{T1}, 3, 1")
        a(f"v_lshlrev_b32 v{T3}, 2, v{T3}")
        a(f"v_or_b32 v{T2}, v{T2}, v{T3}")
        a(f"v_mul_lo_u32 v{T2}, v{T2}, s{S_1280}")
        a(f"v_add_u32 v{T2}, v{T2}, v{T0}")
        a(f"v_add_u32 v{WD+t}, s29, v{T2}")
    a(f"s_lshl_b32 s28, s{S_HH}, 10")
    for t in range(25):
        a(f"s_add_u32 m0, s28, {WOL + 4096*t}")
        a(f"s_mov_b32 s29, {(t//5)*128*1280}")
        a(f"buffer_load_dwordx4 v{WD+t%5}, {R(SRD_WO)}, s29 offen lds")
    lds_wait_imm(a, C_YOK, 1, T1, T0, sleep=2)
    a(f"v_lshrrev_b32 v{T0}, 3, v1")
    a(f"v_lshlrev_b32 v{T0}, 12, v{T0}")
    a(f"v_and_b32 v{T1}, 7, v1")
    a(f"v_lshlrev_b32 v{T1}, 4, v{T1}")
    a(f"v_add_u32 v{T0}, v{T0}, v{T1}")
    a(f"s_mul_i32 s28, s{S_J}, {80*4096}")
    a(f"s_lshl_b32 s29, s{S_I}, 7")
    a(f"s_add_u32 s28, s28, s29")
    a(f"s_add_u32 s28, s28, {YT_OFF}")
    a(f"s_lshl_b32 s29, s{S_HH}, 15")
    a(f"s_add_u32 s28, s28, s29")
    for t in range(3):
        def yl(t=t):
            a(f"s_add_u32 s29, s28, {t*32*4096}")
            a(f"buffer_load_dwordx4 {v(YS+4*t,4)}, v{T0}, {R(SRD_WS)}, s29 offen sc1")
        if t < 2: yl()
        else: if_wave(a, "lt", 2, yl, sreg=S_HH)
    a("s_waitcnt vmcnt(0)")
    stamp(a, "bready")
    a(f"s_branch {TAILJ}")
    a.label(TAILA)
    lds_wait_imm(a, C_BDONE, 4, T1, T2)
    PB = 16
    for q in range(3):
        a(f"ds_read_b128 {v(PB+4*q,4)}, v{T0} offset:{1024*q}")
        a(f"ds_read_b128 {v(PB+12+4*q,4)}, v{T0} offset:{3072 + 1024*q}")
    a("s_waitcnt lgkmcnt(0)")
    for r in range(12):
        a(f"v_add_f32 v{OF+r}, v{OF+r}, v{PB+12+r}")
        a(f"v_add_f32 v{OG+r}, v{OG+r}, v{PB+r}")
    for (O_, PK) in ((OF, 104), (OG, 110)):
        a(f"v_mov_b32 v{T0}, v{O_+8}")
        a(f"v_mov_b32 v{T1}, v{O_+8}")
        a.nop(2)
        a(f"v_permlane32_swap_b32 v{T0}, v{T1}")
        a.nop(2)
        a(f"v_rcp_f32 v{T1}, v{T1}")
        a.nop(1)
        for r in range(12): a(f"v_mul_f32 v{O_+r}, v{O_+r}, v{T1}")
        for r in range(6): a(f"v_cvt_pk_bf16_f32 v{PK+r}, v{O_+2*r}, v{O_+2*r+1}")
    a(f"v_lshlrev_b32 v{V_L16 if False else 40}, 4, v1")
    a.label(TAILJ)
    a(f"v_lshlrev_b32 v40, 4, v1")
    a(f"v_and_b32 v{T0}, 15, v1")
    a(f"s_lshl_b32 s29, s{S_HH}, 4")
    a(f"v_add_u32 v{T0}, s29, v{T0}")
    a(f"s_lshl_b32 s28, s{S_I}, 6")
    a(f"v_add_u32 v{T1}, s28, v{T0}")
    a(f"v_mul_lo_u32 v{T1}, v{T1}, s{S_1280}")
    a(f"v_lshrrev_b32 v{T2}, 4, v1")
    a(f"v_lshlrev_b32 v{T3}, 3, v{T2}")
    a(f"v_add_u32 v{T1}, v{T1}, v{T3}")
    a(f"s_mul_i32 s28, s{S_J}, 160")
    a(f"v_add_u32 v{V_OUT}, s28, v{T1}")
    def qld():
        for mt in range(5):
            a(f"buffer_load_dwordx2 {v(QT+2*mt,2)}, v{V_OUT}, {R(SRD_X)}, 0 offen offset:{32*mt}")
    if_wave(a, "lt", 4, qld)
    a("s_waitcnt lgkmcnt(0)")
    a("s_barrier")
    stamp(a, "J1")
    def a_stage():
        a(f"v_and_b32 v{T0}, 31, v1")
        a(f"v_mul_u32_u24 v{T0}, 160, v{T0}")
        a(f"v_lshrrev_b32 v{T1}, 5, v1")
        a(f"v_lshlrev_b32 v{T1}, 3, v{T1}")
        a(f"v_add_u32 v{T0}, v{T0}, v{T1}")
        a(f"s_mul_i32 s28, s{S_HH}, 40")
        a(f"s_add_u32 s28, s28, {OST}")
        a(f"v_add_u32 v{T0}, s28, v{T0}")
        for (PK, o_) in ((104, 0), (110, 5120)):
            a(f"ds_write_b64 v{T0}, {v(PK,2)} offset:{o_}")
            a(f"ds_write_b64 v{T0}, {v(PK+2,2)} offset:{o_+16}")
        a(f"s_mov_b64 exec, 0xffffffff")
        for (PK, o_) in ((104, 0), (110, 5120)):
            a(f"ds_write_b64 v{T0}, {v(PK+4,2)} offset:{o_+32}")
        a(f"s_mov_b64 exec, -1")
    if_wave(a, "lt", 4, a_stage)
    def b_stage():
        a(f"s_lshl_b32 s28, s{S_HH}, 10")
        a(f"s_add_u32 s28, s28, {YL}")
        a(f"v_add_u32 v{T1}, s28, v40")
        for t in range(3):
            def yw(t=t): a(f"ds_write_b128 v{T1}, {v(YS+4*t,4)} offset:{4096*t}")
            if t < 2: yw()
            else: if_wave(a, "lt", 2, yw, sreg=S_HH)
    if_wave(a, "ge", 4, b_stage)
    a("s_waitcnt lgkmcnt(0)")
    a("s_barrier")
    def ostore(t, dst):
        a(f"s_add_u32 s28, s{S_W}, {8*t}")
        a(f"s_lshl_b32 s28, s28, 2")
        a(f"v_lshrrev_b32 v{T0}, 4, v1")
        a(f"v_add_u32 v{T0}, s28, v{T0}")
        a(f"v_mul_u32_u24 v{T1}, 6554, v{T0}")
        a(f"v_lshrrev_b32 v{T1}, 16, v{T1}")
        a(f"v_mul_u32_u24 v{T2}, 10, v{T1}")
        a(f"v_sub_u32 v{T0}, v{T0}, v{T2}")
        a(f"v_and_b32 v{T2}, 15, v1")
        a(f"v_lshl_add_u32 v{T3}, v{T1}, 4, v{T2}")
        a(f"v_mul_u32_u24 v{T3}, 160, v{T3}")
        a(f"v_lshl_add_u32 v{T3}, v{T0}, 4, v{T3}")
        a(f"ds_read_b128 {v(dst,4)}, v{T3} offset:{OST}")
        a(f"v_mul_u32_u24 v{T1}, 20480, v{T1}")
        a(f"v_lshl_add_u32 v{T1}, v{T0}, 8, v{T1}")
        a(f"v_lshl_add_u32 v{dst+4}, v{T2}, 4, v{T1}")
    ostore(0, 44)
    if_wave(a, "lt", 2, lambda: ostore(1, 50))
    a(f"s_mul_i32 s29, s{S_I}, 81920")
    a(f"s_mul_i32 s30, s{S_J}, 2560")
    a(f"s_add_u32 s29, s29, s30")
    a(f"s_add_u32 s29, s29, {O_OFF}")
    a("s_waitcnt lgkmcnt(0)")
    a(f"buffer_store_dwordx4 v[44:47], v48, {R(SRD_WS)}, s29 offen sc1")
    if_wave(a, "lt", 2, lambda: a(f"buffer_store_dwordx4 v[50:53], v54, {R(SRD_WS)}, s29 offen sc1"))
    a(f"v_lshrrev_b32 v{T0}, 5, v1")
    a(f"v_lshlrev_b32 v{T0}, 4, v{T0}")
    a(f"v_bfe_u32 v{T1}, v1, 4, 1")
    a(f"v_lshlrev_b32 v{T1}, 2, v{T1}")
    a(f"v_add_u32 v{T0}, v{T0}, v{T1}")
    a(f"v_bfe_u32 v{T1}, v1, 2, 2")
    a(f"v_add_u32 v{T0}, v{T0}, v{T1}")
    a(f"v_mul_u32_u24 v{T0}, 160, v{T0}")
    a(f"v_and_b32 v{T1}, 3, v1")
    a(f"v_lshlrev_b32 v{T1}, 3, v{T1}")
    a(f"v_add_u32 v{T0}, v{T0}, v{T1}")
    a(f"s_mul_i32 s28, s{S_G}, 51200")
    a(f"s_add_u32 s28, s28, {WOL}")
    a(f"v_add_u32 v{V_WT}, s28, v{T0}")
    OFR, ACC, AF = 16, 56, 76
    def ldsA(s_):
        b = s_ & 1
        for mt in range(5):
            a(f"ds_read_b64_tr_b16 {v(AF+20*b+4*mt,2)}, v{V_WT} offset:{s_*5120 + 32*mt}")
            a(f"ds_read_b64_tr_b16 {v(AF+20*b+4*mt+2,2)}, v{V_WT} offset:{s_*5120 + 1280 + 32*mt}")
    ldsA(0)
    for r in range(20): a(f"v_mov_b32 v{ACC+r}, 0")
    stamp(a, "ost")
    a("s_waitcnt vmcnt(0)")
    stamp(a, "ostd")
    lds_add1_imm(a, C_OCNT, T0, T1)
    lds_wait_imm(a, C_OOK, 1, T1, T0, sleep=1)
    stamp(a, "h4ok")
    a(f"v_lshlrev_b32 v159, 4, v1")
    a(f"s_mul_i32 s28, s{S_I}, 81920")
    a(f"s_mul_i32 s29, s{S_HH}, 20480")
    a(f"s_add_u32 s28, s28, s29")
    a(f"s_mul_i32 s29, s{S_G}, 10240")
    a(f"s_add_u32 s28, s28, s29")
    a(f"s_add_u32 s28, s28, {O_OFF}")
    for s_ in range(10):
        a(f"buffer_load_dwordx4 {v(OFR+4*s_,4)}, v159, {R(SRD_WS)}, s28 offen offset:{1024*(s_%4)} sc1")
        if s_ % 4 == 3: a(f"s_add_u32 s28, s28, 4096")
    for s_ in range(10):
        if s_ < 9:
            ldsA(s_ + 1); a(f"s_waitcnt lgkmcnt(10) vmcnt({9 - s_})")
        else:
            a("s_waitcnt lgkmcnt(0) vmcnt(0)")
        b = s_ & 1
        for mt in range(5):
            a(f"v_mfma_f32_16x16x32_bf16 {v(ACC+4*mt,4)}, {v(AF+20*b+4*mt,4)}, {v(OFR+4*s_,4)}, {v(ACC+4*mt,4)}")
    a.nop(8)
    stamp(a, "oproj")
    a(f"s_mul_i32 s28, s{S_HH}, 5120")
    a(f"s_add_u32 s28, s28, {PX}")
    a(f"v_lshlrev_b32 v{T0}, 4, v1")
    a(f"v_add_u32 v{T0}, s28, v{T0}")
    def pxw():
        for mt in range(5): a(f"ds_write_b128 v{T0}, {v(ACC+4*mt,4)} offset:{1024*mt}")
        a("s_waitcnt lgkmcnt(0)")
    if_wave(a, "ge", 4, pxw)
    a("s_barrier")
    a(f"s_cmp_ge_u32 s{S_W}, 4")
    a(f"s_cbranch_scc1 f_fin")
    for mt in range(5): a(f"ds_read_b128 {v(AF+4*mt,4)}, v{T0} offset:{1024*mt}")
    a(f"v_bfe_u32 v{T0}, v1, 2, 4")
    a(f"v_lshlrev_b32 v{T0}, 7, v{T0}")
    a(f"v_and_b32 v{T1}, 3, v1")
    a(f"v_lshlrev_b32 v{T1}, 3, v{T1}")
    a(f"v_add_u32 v{T0}, v{T0}, v{T1}")
    a(f"s_lshl_b32 s28, s{S_HH}, 5")
    a(f"s_add_u32 s28, s28, {YL}")
    a(f"v_add_u32 v{T0}, s28, v{T0}")
    YF = 16
    for mt in range(5): a(f"ds_read_b64_tr_b16 {v(YF+2*mt,2)}, v{T0} offset:{2048*mt}")
    a(f"v_and_b32 v{T1}, 15, v1")
    a(f"v_lshlrev_b32 v{T1}, 2, v{T1}")
    a(f"s_lshl_b32 s28, s{S_HH}, 6")
    a(f"s_add_u32 s28, s28, {G_L}")
    a(f"v_add_u32 v{T1}, s28, v{T1}")
    a(f"ds_read_b32 v{GV}, v{T1}")
    a("s_waitcnt lgkmcnt(0)")
    a(f"v_sub_f32 v{T1}, 1.0, v{GV}")
    for mt in range(5):
        for r in range(4): a(f"v_add_f32 v{ACC+4*mt+r}, v{ACC+4*mt+r}, v{AF+4*mt+r}")
    for mt in range(5):
        for hlf in range(2):
            yq = YF + 2*mt + hlf; qq = QT + 2*mt + hlf
            a(f"v_lshlrev_b32 v30, 16, v{yq}")
            a(f"v_and_b32 v31, 0xffff0000, v{yq}")
            a(f"v_lshlrev_b32 v32, 16, v{qq}")
            a(f"v_and_b32 v33, 0xffff0000, v{qq}")
            a(f"v_mul_f32 v30, v30, v32")
            a(f"v_mul_f32 v31, v31, v33")
            a(f"v_mul_f32 v30, v30, v{GV}")
            a(f"v_mul_f32 v31, v31, v{GV}")
            a(f"v_fmac_f32 v30, v{ACC+4*mt+2*hlf}, v{T1}")
            a(f"v_fmac_f32 v31, v{ACC+4*mt+2*hlf+1}, v{T1}")
            a(f"v_cvt_pk_bf16_f32 v{40+2*mt+hlf}, v30, v31")
        a(f"buffer_store_dwordx2 {v(40+2*mt,2)}, v{V_OUT}, {R(SRD_OUT)}, 0 offen offset:{32*mt}")
    a(f"s_branch f_fin")

    a.label(PSTART)
    a("s_setprio 3")
    a(f"v_mov_b32 v4, 0")
    a(f"v_lshlrev_b32 v5, 2, v1")
    a(f"v_add_u32 v5, {CNT}, v5")
    a(f"s_mov_b64 exec, 0xffffffff")
    a(f"ds_write_b32 v5, v4")
    a(f"s_mov_b64 exec, -1")
    lead = a.newlabel("lead"); havn = a.newlabel("havn")
    a(f"s_cmp_lg_u32 s2, 0")
    a(f"s_cbranch_scc1 {lead}")
    a(f"s_memrealtime s[28:29]")
    a("s_waitcnt lgkmcnt(0)")
    a(f"s_or_b32 s{S_NONCE}, s28, 1")
    a(f"v_mov_b32 v5, s{S_NONCE}")
    a(f"s_mov_b64 exec, 1")
    a(f"buffer_store_dword v5, v4, {R(SRD_DBG)}, 0 offen sc1")
    a(f"s_mov_b64 exec, -1")
    a(f"s_branch {havn}")
    a.label(lead)
    def ld(): a(f"buffer_load_dword v5, v4, {R(SRD_DBG)}, 0 offen sc1")
    def ck():
        a(f"v_readfirstlane_b32 s{S_NONCE}, v5")
        a("s_nop 3")
        a(f"s_cmp_lg_u32 s{S_NONCE}, 0")
    poll_global(a, ld, ck)
    a.label(havn)
    a(f"v_mov_b32 v4, {C_NONCE}")
    a(f"v_mov_b32 v5, s{S_NONCE}")
    a(f"ds_write_b32 v4, v5")
    a("s_waitcnt lgkmcnt(0)")
    stamp(a, "pnonce")
    a("s_barrier")
    PXF, PWF = 16, 48
    a(f"v_lshlrev_b32 v{T0}, 4, v1")
    a(f"v_add_u32 v{T1}, {UNIT_R}, v{T0}")
    for p_ in range(4):
        a(f"ds_read_b128 {v(PXF+8*p_,4)}, v{T1} offset:{2048*p_}")
        a(f"ds_read_b128 {v(PXF+8*p_+4,4)}, v{T1} offset:{2048*p_+1024}")
    a(f"s_lshl_b32 s28, s{S_I}, 1")
    a(f"s_bfe_u32 s29, s{S_J}, 0x10001")
    a(f"s_add_u32 s28, s28, s29")
    a(f"s_mul_i32 s29, s28, 3072")
    a(f"s_and_b32 s30, s{S_J}, 1")
    a("s_waitcnt lgkmcnt(0)")
    for p_ in range(1, 4):
        for r in range(8): a(f"v_add_f32 v{PXF+r}, v{PXF+r}, v{PXF+8*p_+r}")
    for r in range(4): a(f"v_cvt_pk_bf16_f32 v{PWF+2*0+r if r<2 else PWF+4+(r-2)}, v{PXF+2*r}, v{PXF+2*r+1}")
    a(f"v_mov_b32 v{PWF+6}, v{PWF}")
    a(f"v_mov_b32 v{PWF+7}, v{PWF+1}")
    a.nop(2)
    a(f"v_permlane32_swap_b32 v{PWF+6}, v{PWF+2}")
    a(f"v_permlane32_swap_b32 v{PWF+7}, v{PWF+3}")
    a(f"v_and_b32 v{T0}, 15, v1")
    a(f"v_bfe_u32 v{T1}, v1, 4, 1")
    labV2 = a.newlabel("stV"); labP = a.newlabel("pub")
    a(f"s_cmp_ge_u32 s{S_J}, 4")
    a(f"s_cbranch_scc1 {labV2}")
    a(f"s_lshl_b32 s31, s30, 4")
    a(f"v_add_u32 v{T0}, s31, v{T0}")
    a(f"v_lshlrev_b32 v{T1}, 5, v{T1}")
    a(f"v_add_u32 v{T1}, v{T1}, v{T0}")
    a(f"v_lshlrev_b32 v{T1}, 4, v{T1}")
    a(f"s_mov_b64 exec, 0xffffffff")
    a(f"buffer_store_dwordx4 {v(PWF,4)}, v{T1}, {R(SRD_WS)}, s29 offen sc1")
    a(f"s_mov_b64 exec, -1")
    a(f"v_lshlrev_b32 v{T0}, 3, v{T0}")
    a(f"v_add_u32 v{T0}, 1024, v{T0}")
    a(f"v_mov_b32 v{T1}, 1280")
    a(f"v_mov_b32 v{T2}, 0x3f803f80")
    a(f"v_mov_b32 v{T3}, 0x3f80")
    a(f"v_cmp_eq_u32 vcc, 16, v1")
    a.nop(2)
    a(f"v_cndmask_b32 v{T0}, v{T0}, v{T1}, vcc")
    a(f"v_cndmask_b32 v{PWF+4}, v{PWF+4}, v{T2}, vcc")
    a(f"v_cndmask_b32 v{PWF+5}, v{PWF+5}, v{T3}, vcc")
    a(f"s_mov_b32 s41, 0xffff")
    a(f"s_cmp_eq_u32 s30, 0")
    a(f"s_cselect_b32 s40, 0x1ffff, s41")
    a(f"s_mov_b32 s41, 0")
    a(f"s_mov_b64 exec, s[40:41]")
    a(f"buffer_store_dwordx2 {v(PWF+4,2)}, v{T0}, {R(SRD_WS)}, s29 offen sc1")
    a(f"s_mov_b64 exec, -1")
    a(f"s_branch {labP}")
    a.label(labV2)
    a(f"s_mul_i32 s31, s30, 672")
    a(f"s_add_u32 s31, s31, 1296")
    a(f"v_mul_u32_u24 v{T1}, 336, v{T1}")
    a(f"v_lshlrev_b32 v{T2}, 4, v{T0}")
    a(f"v_add_u32 v{T1}, v{T1}, v{T2}")
    a(f"v_add_u32 v{T1}, s31, v{T1}")
    a(f"s_mov_b64 exec, 0xffffffff")
    a(f"buffer_store_dwordx4 {v(PWF,4)}, v{T1}, {R(SRD_WS)}, s29 offen sc1")
    a(f"s_mov_b64 exec, -1")
    a(f"v_mov_b32 v{T2}, 0x3f803f80")
    a(f"v_cmp_eq_u32 vcc, 4, v{T0}")
    a.nop(2)
    a(f"v_cndmask_b32 v{PWF+4}, v{PWF+4}, v{T2}, vcc")
    a(f"v_cndmask_b32 v{PWF+5}, v{PWF+5}, v{T2}, vcc")
    a(f"v_mov_b32 v{PWF}, v{PWF+4}")
    a(f"v_mov_b32 v{PWF+1}, v{PWF+5}")
    a.nop(2)
    a(f"v_permlane32_swap_b32 v{PWF}, v{PWF+6}")
    a(f"v_permlane32_swap_b32 v{PWF+1}, v{PWF+7}")
    a(f"s_mov_b32 s40, 0x001f001f")
    a(f"s_mov_b32 s41, 0")
    a(f"s_mov_b64 exec, s[40:41]")
    a.nop(2)
    a(f"buffer_store_dwordx4 {v(PWF+4,4)}, v{T1}, {R(SRD_WS)}, s29 offen offset:256 sc1")
    a(f"s_mov_b64 exec, -1")
    a.label(labP)
    a(f"s_lshr_b32 s29, s28, 2")
    a(f"s_lshl_b32 s29, s29, 7")
    a(f"s_and_b32 s31, s28, 3")
    a(f"s_lshl_b32 s31, s31, 2")
    a(f"s_lshl_b32 s30, s30, 1")
    a(f"s_add_u32 s31, s31, s30")
    a(f"s_lshr_b32 s30, s{S_J}, 2")
    a(f"s_add_u32 s31, s31, s30")
    a(f"s_lshl_b32 s31, s31, 2")
    a(f"s_add_u32 s34, s29, s31")
    a(f"s_add_u32 s34, s34, {H1}")
    def push(nl, stride_sh, sbase):
        a(f"v_lshlrev_b32 v{T0}, {stride_sh}, v1")
        a(f"v_mov_b32 v{T1}, s{S_NONCE}")
        a(f"s_mov_b64 exec, {hex((1 << nl) - 1)}")
        a(f"buffer_store_dword v{T1}, v{T0}, {R(SRD_WS)}, s{sbase} offen sc1")
        a(f"s_mov_b64 exec, -1")
    def setw(addr):
        a(f"v_mov_b32 v4, {addr}")
        a(f"v_mov_b32 v5, 1")
        a(f"ds_write_b32 v4, v5")
    a("s_barrier")
    a("s_barrier")
    a("s_waitcnt vmcnt(0)")
    push(8, 11, 34)
    stamp(a, "pflag")
    VKF = 6
    a(f"v_lshrrev_b32 v{VKF}, 2, v1")
    a(f"v_lshlrev_b32 v{VKF}, 7, v{VKF}")
    a(f"v_and_b32 v{T1}, 3, v1")
    a(f"v_lshlrev_b32 v{T1}, 4, v{T1}")
    a(f"v_add_u32 v{VKF}, v{VKF}, v{T1}")
    a(f"s_and_b32 s36, s2, 7")
    a(f"s_lshl_b32 s36, s36, 11")
    a(f"s_add_u32 s36, s36, {H1}")
    a(f"s_mov_b32 s35, 0")
    for k in range(4, 10):
        l1 = a.newlabel("pk"); l2 = a.newlabel("pk")
        a(f"s_cmp_lg_u32 s35, 0")
        a(f"s_cbranch_scc1 {l1}")
        a(f"buffer_load_dwordx4 v[8:11], v{VKF}, {R(SRD_WS)}, s36 offen sc1")
        a.label(l1)
        a("s_barrier")
        a(f"s_cmp_lg_u32 s35, 0")
        a(f"s_cbranch_scc1 {l2}")
        a("s_waitcnt vmcnt(0)")
        for q in range(4): a(f"v_xor_b32 v{8+q}, s{S_NONCE}, v{8+q}")
        a(f"v_or_b32 v8, v8, v9")
        a(f"v_or_b32 v10, v10, v11")
        a(f"v_or_b32 v8, v8, v10")
        a(f"v_cmp_ne_u32 vcc, 0, v8")
        a("s_nop 1")
        a(f"s_cmp_lg_u64 vcc, 0")
        a(f"s_cbranch_scc1 {l2}")
        setw(C_KVOK)
        a(f"s_mov_b32 s35, 1")
        a.label(l2)
    lk = a.newlabel("pkd")
    a(f"s_cmp_lg_u32 s35, 0")
    a(f"s_cbranch_scc1 {lk}")
    poll_flags(a, VKF, "s36", 0xffffffffffffffff, 8, n=4)
    setw(C_KVOK)
    a.label(lk)
    stamp(a, "pkvok")
    a(f"s_lshl_b32 s37, s{S_I}, 3")
    a(f"s_add_u32 s37, s37, s{S_J}")
    a(f"s_lshl_b32 s37, s37, 7")
    a(f"s_lshl_b32 s38, s{S_J}, 7")
    a(f"s_lshl_b32 s39, s{S_I}, 2")
    a(f"s_add_u32 s38, s38, s39")
    a(f"v_lshlrev_b32 v7, 2, v1")
    lds_wait_imm(a, C_UCNT, 8, T1, T0, sleep=2)
    a(f"s_add_u32 s29, s38, {H2}")
    push(32, 10, 29)
    a(f"s_add_u32 s29, s37, {H2}")
    poll_flags(a, 7, "s29", 0xffffffff, 8)
    setw(C_UOK)
    stamp(a, "puok")
    lds_wait_imm(a, C_CVD, 4, T1, T0, sleep=8)
    a(f"s_add_u32 s29, s38, {H3}")
    push(32, 10, 29)
    stamp(a, "pyflag")
    a(f"s_add_u32 s29, s37, {H3}")
    poll_flags(a, 7, "s29", 0xffffffff, 8)
    setw(C_YOK)
    stamp(a, "pyok")
    a("s_waitcnt lgkmcnt(0)")
    a("s_barrier")
    a("s_barrier")
    lds_wait_imm(a, C_OCNT, 8, T1, T0, sleep=0)
    a(f"s_lshl_b32 s29, s{S_I}, 10")
    a(f"s_lshl_b32 s30, s{S_J}, 2")
    a(f"s_add_u32 s29, s29, s30")
    a(f"s_add_u32 s29, s29, {H4}")
    push(8, 7, 29)
    a(f"s_add_u32 s29, s37, {H4}")
    poll_flags(a, 7, "s29", 0xff, 8)
    setw(C_OOK)
    a("s_waitcnt lgkmcnt(0)")
    a("s_barrier")
    a.label("f_fin")
    if "stamp" in OPT:
        a("s_waitcnt vmcnt(0)")
        stamp(a, "end"); stamp(a, "rt1", True)
        stamp_flush(a)
    a.label(END)
    a("s_endpgm")
    a.L.append(kernel_desc(name, NVGPR))

CONV_R = dict(CA=16, FA=48, FB=128, AD=160, VA=96, VB=97, T2=98, T3=99, VL16=100)
S_CH, S_NCH, S_CB = 83, 84, 85
def conv_chan(a):
    a(f"s_mul_i32 s{S_CH}, s{S_I}, 3")
    a(f"s_lshl_b32 s28, s{S_I}, 1")
    a(f"s_add_u32 s28, s28, 16")
    a(f"s_cmp_lt_u32 s{S_I}, 16")
    a(f"s_cselect_b32 s{S_CH}, s{S_CH}, s28")
    a(f"s_cselect_b32 s{S_NCH}, 3, 2")
    a(f"s_mul_i32 s28, s{S_J}, 80")
    a(f"s_add_u32 s{S_CH}, s{S_CH}, s28")
    a(f"s_add_u32 s{S_CH}, s{S_CH}, s{S_HH}")
    a(f"s_mul_i32 s{S_CB}, s{S_HH}, {CHB}")
    a(f"s_add_u32 s{S_CB}, s{S_CB}, {CONVB}")
def conv_pre(a):
    FA, VL16 = CONV_R["FA"], CONV_R["VL16"]
    DONE = a.newlabel("cpre")
    conv_chan(a)
    a(f"v_lshlrev_b32 v{VL16}, 4, v1")
    a(f"s_cmp_ge_u32 s{S_HH}, s{S_NCH}")
    a(f"s_cbranch_scc1 {DONE}")
    a(f"s_lshl_b32 s28, s{S_CH}, 12")
    for q in range(4):
        a(f"s_add_u32 s29, s28, {1024*q}")
        for k in range(3):
            a(f"buffer_load_dwordx4 {v(FA+12*q+4*k,4)}, v{VL16}, {R(SRD_H)}, s29 offen offset:{4*k}")
    a(f"s_lshr_b32 s30, s{S_CH}, 1")
    a(f"s_lshl_b32 s30, s30, 2")
    a(f"s_load_dword s88, s[{S_DPTR}:{S_DPTR+1}], s30")
    a.label(DONE)
def gen_conv(a):
    URL = 16640
    T0, T1 = 2, 3
    CA, FA, FB, AD = CONV_R["CA"], CONV_R["FA"], CONV_R["FB"], CONV_R["AD"]
    VA, VB, T2, T3, VL16 = CONV_R["VA"], CONV_R["VB"], CONV_R["T2"], CONV_R["T3"], CONV_R["VL16"]
    DONE = a.newlabel("convdone")
    a(f"s_cmp_ge_u32 s{S_HH}, s{S_NCH}")
    a(f"s_cbranch_scc1 {DONE}")
    a(f"v_add_u32 v{T2}, s{S_CB}, v{VL16}")
    for q in range(4):
        X0, X1, X2 = FA+12*q, FA+12*q+4, FA+12*q+8
        C1, C3 = CA + 8*(q & 1), CA + 8*(q & 1) + 4
        for k in range(4):
            a(f"v_alignbit_b32 v{C1+k}, v{X1+k}, v{X0+k}, 16")
            a(f"v_alignbit_b32 v{C3+k}, v{X2+k}, v{X1+k}, 16")
        o = 1024 * q + 32
        a(f"ds_write_b128 v{T2}, {v(X0,4)} offset:{o}")
        a(f"ds_write_b128 v{T2}, {v(C1,4)} offset:{4160+o}")
        a(f"ds_write_b128 v{T2}, {v(X1,4)} offset:{8320+o}")
        a(f"ds_write_b128 v{T2}, {v(C3,4)} offset:{12480+o}")
    Z = CA + 16
    for k in range(4): a(f"v_mov_b32 v{Z+k}, 0")
    a(f"v_alignbit_b32 v{Z+4}, v{FA+4}, v{FA}, 16")
    a(f"v_lshlrev_b32 v{Z+5}, 16, v{FA}")
    a(f"v_lshrrev_b32 v{T0}, 1, v1")
    a(f"v_mul_u32_u24 v{T0}, 4160, v{T0}")
    a(f"v_and_b32 v{T1}, 1, v1")
    a(f"v_lshlrev_b32 v{T1}, 4, v{T1}")
    a(f"v_add_u32 v{T0}, v{T0}, v{T1}")
    a(f"v_add_u32 v{T0}, s{S_CB}, v{T0}")
    a(f"s_mov_b64 exec, 0xff")
    a(f"ds_write_b128 v{T0}, {v(Z,4)}")
    a(f"s_mov_b64 exec, 0xffffffff")
    a(f"ds_write_b128 v{T2}, {v(Z,4)} offset:{URL+4096}")
    a(f"s_mov_b64 exec, 1")
    a(f"ds_write_b32 v{T2}, v{Z+5} offset:{4160+28}")
    a(f"ds_write_b32 v{T2}, v{FA} offset:{8320+28}")
    a(f"ds_write_b32 v{T2}, v{Z+5} offset:{12480+24}")
    a(f"ds_write_b32 v{T2}, v{Z+4} offset:{12480+28}")
    a(f"s_mov_b64 exec, -1")
    lds_wait_imm(a, C_UOK, 1, T1, T0, sleep=2)
    a(f"s_lshl_b32 s28, s{S_CH}, 12")
    a(f"s_add_u32 s28, s28, {UR_OFF}")
    for q in range(4):
        a(f"s_add_u32 s29, s28, {1024*q}")
        a(f"buffer_load_dwordx4 {v(FB+4*q,4)}, v{VL16}, {R(SRD_WS)}, s29 offen sc1")
    a("s_waitcnt vmcnt(0)")
    for q in range(4):
        a(f"ds_write_b128 v{T2}, {v(FB+4*q,4)} offset:{URL + 1024*q}")
    a(f"v_and_b32 v{T0}, 15, v1")
    a(f"v_lshrrev_b32 v{T1}, 4, v1")
    a(f"v_add_u32 v{T2}, 1, v{T0}")
    a(f"v_and_b32 v{T3}, 3, v{T2}")
    a(f"v_mul_u32_u24 v{VA}, 4160, v{T3}")
    a(f"v_lshrrev_b32 v{T2}, 2, v{T2}")
    a(f"v_lshlrev_b32 v{T2}, 3, v{T2}")
    a(f"v_lshlrev_b32 v{T3}, 4, v{T1}")
    a(f"v_add_u32 v{VA}, v{VA}, v{T2}")
    a(f"v_add_u32 v{VA}, v{VA}, v{T3}")
    a(f"v_add_u32 v{VA}, s{S_CB}, v{VA}")
    a(f"v_lshlrev_b32 v{T2}, 5, v{T0}")
    a(f"v_sub_u32 v{VB}, v{T3}, v{T2}")
    a(f"s_add_u32 s28, s{S_CB}, {URL + 480}")
    a(f"v_add_u32 v{VB}, s28, v{VB}")
    a("s_waitcnt lgkmcnt(0)")
    a(f"s_and_b32 s30, s{S_CH}, 1")
    a(f"s_lshl_b32 s30, s30, 4")
    a(f"s_lshr_b32 s88, s88, s30")
    a(f"s_and_b32 s88, s88, 0xffff")
    a(f"v_lshlrev_b32 v{T1}, 3, v{T1}")
    a(f"v_add_u32 v{T0}, v{T0}, v{T1}")
    a(f"v_sub_u32 v{T0}, 15, v{T0}")
    a(f"v_and_b32 v{T1}, 1, v{T0}")
    a(f"v_lshlrev_b32 v{T1}, 4, v{T1}")
    a(f"v_mov_b32 v{T2}, s88")
    a(f"v_lshlrev_b32 v{T2}, v{T1}, v{T2}")
    a(f"v_lshrrev_b32 v{T0}, 1, v{T0}")
    for k in range(4):
        a(f"v_cmp_eq_u32 vcc, {k}, v{T0}")
        a.nop(2)
        a(f"v_cndmask_b32 v{AD+k}, 0, v{T2}, vcc")
    for r in range(32): a(f"v_mov_b32 v{CA+r}, 0")
    a(f"s_mov_b32 s86, 0")
    PL = a.newlabel("convph")
    a.label(PL)
    a(f"ds_read_b64 {v(FA,2)}, v{VA}")
    a(f"ds_read_b64 {v(FA+2,2)}, v{VA} offset:8")
    for vv in range(8):
        a(f"ds_read_b128 {v(FB+4*vv,4)}, v{VB} offset:{512*(7-vv)}")
    for i in range(1, 3):
        a(f"ds_read_b64 {v(FA+4*i,2)}, v{VA} offset:{512*i}")
        a(f"ds_read_b64 {v(FA+4*i+2,2)}, v{VA} offset:{512*i+8}")
    a("s_waitcnt lgkmcnt(4)")
    for i in range(3, 8):
        a(f"ds_read_b64 {v(FA+4*i,2)}, v{VA} offset:{512*i}")
        a(f"ds_read_b64 {v(FA+4*i+2,2)}, v{VA} offset:{512*i+8}")
    for vv in range(8):
        a(f"v_mfma_f32_16x16x32_bf16 {v(CA+4*vv,4)}, {v(FA,4)}, {v(FB+4*vv,4)}, {v(CA+4*vv,4)}")
    lab = a.newlabel("noD")
    a(f"s_cmp_lg_u32 s86, 0")
    a(f"s_cbranch_scc1 {lab}")
    for vv in range(8):
        a(f"v_mfma_f32_16x16x32_bf16 {v(CA+4*vv,4)}, {v(AD,4)}, {v(FB+4*vv,4)}, {v(CA+4*vv,4)}")
    a.label(lab)
    a("s_waitcnt lgkmcnt(0)")
    for i in range(1, 8):
        for vv in range(8 - i):
            t = i + vv
            a(f"v_mfma_f32_16x16x32_bf16 {v(CA+4*t,4)}, {v(FA+4*i,4)}, {v(FB+4*vv,4)}, {v(CA+4*t,4)}")
    a(f"v_add_u32 v{VA}, 64, v{VA}")
    a(f"v_add_u32 v{VB}, 64, v{VB}")
    a(f"s_add_u32 s86, s86, 1")
    a(f"s_cmp_lt_u32 s86, 8")
    a(f"s_cbranch_scc1 {PL}")
    a.nop(8)
    a(f"s_lshl_b32 s28, s{S_CH}, 12")
    a(f"s_add_u32 s28, s28, {YT_OFF}")
    a(f"v_and_b32 v{T2}, 15, v1")
    a(f"v_lshlrev_b32 v{T2}, 5, v{T2}")
    a(f"v_lshrrev_b32 v{T3}, 4, v1")
    a(f"v_lshlrev_b32 v{T3}, 3, v{T3}")
    a(f"v_add_u32 v{T2}, v{T2}, v{T3}")
    for t in range(8):
        a(f"v_cvt_pk_bf16_f32 v{FB+2*t}, v{CA+4*t}, v{CA+4*t+1}")
        a(f"v_cvt_pk_bf16_f32 v{FB+2*t+1}, v{CA+4*t+2}, v{CA+4*t+3}")
        a(f"buffer_store_dwordx2 {v(FB+2*t,2)}, v{T2}, {R(SRD_WS)}, s28 offen offset:{512*t} sc1")
    a.label(DONE)

HEADER = """; gated_mix: fused single kernel (generated by dev/gen4.py)
; @launch grid=(256,1,1) block=(576,1,1) lds=163840
.amdgcn_target "amdgcn-amd-amdhsa--gfx950"
.text
"""
if __name__ == "__main__":
    if len(sys.argv) > 2: OPT.update(sys.argv[2].split(","))
    a = Asm()
    gen(a)
    h = HEADER
    if STAMPS: h = h.replace(".amdgcn", "; STAMPS " + ",".join(STAMPS) + "\n.amdgcn")
    open(sys.argv[1], "w").write(h + a.text())
```

```python
import sys, struct
from asmlib import *

NAME = "gated_mix__ssm_conv_h3__grouped_kv_mqa__prompt"
KVF_OFF = 0
UR_OFF = 0x40000
YT_OFF = 0x2C0000
O_OFF = 0x540000
FL_OFF = 0x7C0000
H1 = FL_OFF
H2 = FL_OFF + 0x4000
H3 = FL_OFF + 0xC000
H4 = FL_OFF + 0x14000
ST_OFF = 0x800000
WS_USED = 0x900000
XB = 2048 * 640 * 2
QSCALE = (20 ** -0.5) * 1.4426950408889634
def f32bits(x): return struct.unpack("<I", struct.pack("<f", x))[0]
OPT = set()
POLL_MAX = 40000

SRD_X, SRD_WQ, SRD_WS, SRD_H = 4, 8, 12, 16
S_I, S_J, S_W, S_HH, S_G, S_NONCE, S_1280, S_ROT = 20, 21, 22, 23, 24, 25, 26, 27
SRD_K, SRD_V, SRD_SH, SRD_W, SRD_GW, SRD_WO, SRD_OUT, SRD_DBG = 44, 48, 52, 56, 60, 64, 68, 72
S_DPTR = 76
S_CH, S_NCH, S_CB = 83, 84, 85
SLOT = 36864
UT_K = 3 * SLOT
UT_V = UT_K + 10720
UNIT_W = 131552
UNIT_S = 6656
QXA = 110592
QXB = 118784
GWL = 159744
GP = GWL + 1280
G_L = 162048
CNT = G_L + 256
C_FULL, C_DONE = CNT, CNT + 32
C_KVOK, C_UCNT, C_CVD = CNT + 68, CNT + 72, CNT + 80
C_UOK, C_YOK, C_OCNT, C_OOK = CNT + 84, CNT + 88, CNT + 92, CNT + 96
C_UTL, C_UTC, C_UP, C_C0C, C_C1C, C_QG, C_WOK = CNT + 100, CNT + 104, CNT + 108, CNT + 112, CNT + 116, CNT + 120, CNT + 124
C_CL = CNT + 128
C_QXF = CNT + 160
C_PROG = CNT + 192
BLK = 2688
KVSLOT = 4 * BLK
RING_STRIDE = 2 * KVSLOT
CONVB = 43008
CHB = 21248
WOL = 43008
YL = 145408
OX = 0
OST = 24576
PX = 0
V_ST = 167
NVGPR = 168
T0, T1, T2, T3 = 2, 3, 164, 165

STAMPS = []
def stamp(a, name, real=False):
    if "stamp" not in OPT: return
    if name in STAMPS: idx = STAMPS.index(name)
    else:
        STAMPS.append(name); idx = len(STAMPS) - 1
    a(f"s_waitcnt lgkmcnt(0)")
    a(f"{'s_memrealtime' if real else 's_memtime'} s[98:99]")
    a(f"s_waitcnt lgkmcnt(0)")
    a(f"v_writelane_b32 v{V_ST}, s98, {idx}")
def stamp_flush(a):
    if "stamp" not in OPT: return
    a(f"s_mov_b64 exec, -1")
    a(f"s_mul_i32 s98, s2, 12")
    a(f"s_add_u32 s98, s98, s{S_W}")
    a(f"s_lshl_b32 s98, s98, 8")
    a(f"s_add_u32 s98, s98, {ST_OFF}")
    a(f"v_lshlrev_b32 v166, 2, v1")
    a(f"buffer_store_dword v{V_ST}, v166, s[{SRD_WS}:{SRD_WS+3}], s98 offen")
    a("s_waitcnt vmcnt(0)")

def R(b): return f"s[{b}:{b+3}]"

def poll_global(a, nload, check, sleep=1):
    lp = a.newlabel("poll"); dn = a.newlabel("pdone")
    a(f"s_mov_b32 s43, 0")
    a.label(lp)
    nload()
    a("s_waitcnt vmcnt(0)")
    check()
    a(f"s_cbranch_scc1 {dn}")
    a(f"s_add_u32 s43, s43, 1")
    a(f"s_cmp_lt_u32 s43, {POLL_MAX}")
    a(f"s_cbranch_scc0 {dn}")
    if sleep: a(f"s_sleep {sleep}")
    a(f"s_branch {lp}")
    a.label(dn)

def flags_check(a, vt, n):
    if n == 4:
        for k in range(4): a(f"v_xor_b32 v{vt+k}, s{S_NONCE}, v{vt+k}")
        a(f"v_or_b32 v{vt}, v{vt}, v{vt+1}")
        a(f"v_or_b32 v{vt+2}, v{vt+2}, v{vt+3}")
        a(f"v_or_b32 v{vt}, v{vt}, v{vt+2}")
        a(f"v_cmp_ne_u32 vcc, 0, v{vt}")
    else:
        a(f"v_cmp_ne_u32 vcc, s{S_NONCE}, v{vt}")
    a(f"s_nop 1")
    a(f"s_and_b64 vcc, vcc, s[40:41]")
    a(f"s_cmp_eq_u64 vcc, 0")
def poll_flags(a, vaddr, soff, lanes_mask, vt, n=1, sleep=1):
    def ld():
        if n == 1: a(f"buffer_load_dword v{vt}, v{vaddr}, {R(SRD_WS)}, {soff} offen sc1")
        else: a(f"buffer_load_dwordx4 {v(vt,4)}, v{vaddr}, {R(SRD_WS)}, {soff} offen sc1")
    a(f"s_mov_b32 s40, {lanes_mask & 0xffffffff}")
    a(f"s_mov_b32 s41, {(lanes_mask >> 32) & 0xffffffff}")
    poll_global(a, ld, lambda: flags_check(a, vt, n), sleep)

def lds_wait_ge(a, target, vt, vaddr, sleep=1):
    lp = a.newlabel("lw"); dn = a.newlabel("lwd")
    a(f"s_mov_b32 s43, 0")
    a.label(lp)
    a(f"ds_read_b32 v{vt}, v{vaddr}")
    a("s_waitcnt lgkmcnt(0)")
    a(f"v_readfirstlane_b32 s42, v{vt}")
    a("s_nop 3")
    a(f"s_cmp_ge_u32 s42, {target}")
    a(f"s_cbranch_scc1 {dn}")
    a(f"s_add_u32 s43, s43, 1")
    a(f"s_cmp_lt_u32 s43, {POLL_MAX * 8}")
    a(f"s_cbranch_scc0 {dn}")
    if sleep: a(f"s_sleep {sleep}")
    a(f"s_branch {lp}")
    a.label(dn)
def lds_wait_imm(a, addr, target, vt=T1, va=T0, sleep=1):
    a(f"v_mov_b32 v{va}, {addr}")
    lds_wait_ge(a, target, vt, va, sleep)
def lds_add1(a, vaddr, vone):
    a("s_mov_b64 exec, 1")
    a(f"ds_add_u32 v{vaddr}, v{vone}")
    a("s_mov_b64 exec, -1")
def lds_add1_imm(a, addr, va=T0, vo=T1):
    a(f"v_mov_b32 v{va}, {addr}")
    a(f"v_mov_b32 v{vo}, 1")
    lds_add1(a, va, vo)
def if_s(a, sreg, cmp, val, fn):
    lb = a.newlabel("ifw")
    inv = {"eq": "lg", "lt": "ge", "ge": "lt", "lg": "eq"}[cmp]
    a(f"s_cmp_{inv}_u32 s{sreg}, {val}")
    a(f"s_cbranch_scc1 {lb}")
    fn()
    a.label(lb)
def if_wave(a, cmp, val, fn): if_s(a, S_W, cmp, val, fn)

def div10(a, p, q, r, t):
    a(f"v_mul_u32_u24 v{q}, 6554, v{p}")
    a(f"v_lshrrev_b32 v{q}, 16, v{q}")
    a(f"v_mul_u32_u24 v{t}, 10, v{q}")
    a(f"v_sub_u32 v{r}, v{p}, v{t}")

def gen(a):
    name = NAME + "_kernel"
    a.L.append(kernel_header(name))
    END = "f_end"
    a(f"s_cmp_ge_u32 s2, 256")
    a(f"s_cbranch_scc1 {END}")
    a(f"s_load_dwordx16 s[76:91], s[0:1], 0")
    a(f"s_load_dwordx8 s[92:99], s[0:1], 64")
    a(f"s_load_dwordx4 s[28:31], s[0:1], 96")
    a(f"s_load_dwordx2 s[32:33], s[0:1], 112")
    a(f"v_lshrrev_b32 v1, 6, v0")
    a(f"s_and_b32 s{S_I}, s2, 7")
    a(f"s_lshl_b32 s{S_I}, s{S_I}, 2")
    a(f"s_lshr_b32 s{S_J}, s2, 6")
    a(f"s_add_u32 s{S_I}, s{S_I}, s{S_J}")
    a(f"s_lshr_b32 s{S_J}, s2, 3")
    a(f"s_and_b32 s{S_J}, s{S_J}, 7")
    a(f"v_readfirstlane_b32 s{S_W}, v1")
    a(f"v_and_b32 v1, 63, v0")
    a(f"s_movk_i32 s{S_1280}, 1280")
    a(f"s_add_u32 s{S_ROT}, s{S_I}, s{S_J}")
    a(f"s_and_b32 s{S_ROT}, s{S_ROT}, 7")
    a(f"s_and_b32 s{S_HH}, s{S_W}, 3")
    a(f"s_lshr_b32 s{S_G}, s{S_W}, 2")
    V_XD, V_WD, V_UST = 112, 113, 111
    HR = 116
    a(f"s_mul_i32 s37, s{S_I}, 3")
    a(f"s_lshl_b32 s34, s{S_I}, 1")
    a(f"s_add_u32 s34, s34, 16")
    a(f"s_cmp_lt_u32 s{S_I}, 16")
    a(f"s_cselect_b32 s35, s37, s34")
    a(f"s_cselect_b32 s36, 3, 2")
    a(f"s_mul_i32 s34, s{S_J}, 80")
    a(f"s_add_u32 s35, s35, s34")
    a(f"s_sub_u32 s38, s{S_W}, 9")
    a(f"s_add_u32 s35, s35, s38")
    a("s_waitcnt lgkmcnt(0)")
    srd(a, SRD_X, 76, XB)
    a(f"s_cmp_ge_u32 s{S_J}, 4")
    a(f"s_cselect_b32 s{SRD_W}, s94, s92")
    a(f"s_cselect_b32 s{SRD_W+1}, s95, s93")
    a(f"s_mov_b32 s{SRD_W+2}, 25600")
    a(f"s_mov_b32 s{SRD_W+3}, 0x00020000")
    srd(a, SRD_K, 78, XB)
    srd(a, SRD_V, 80, XB)
    srd(a, SRD_SH, 82, 640 * 4 * 2)
    srd(a, SRD_WS, 32, WS_USED)
    srd(a, SRD_DBG, 30, 256)
    srd(a, SRD_WQ, 90, 640 * 640 * 2)
    srd(a, SRD_GW, 98, 1280)
    srd(a, SRD_H, 84, XB)
    srd(a, SRD_WO, 96, 640 * 640 * 2)
    srd(a, SRD_OUT, 28, XB)
    a(f"s_mov_b32 s{S_DPTR}, s86")
    a(f"s_mov_b32 s{S_DPTR+1}, s87")
    a(f"s_mov_b32 s{S_CH}, s35")
    a(f"s_mov_b32 s{S_NCH}, s36")
    a(f"s_mul_i32 s{S_CB}, s38, {CHB}")
    a(f"s_add_u32 s{S_CB}, s{S_CB}, {CONVB}")
    if "stamp" in OPT: a(f"v_mov_b32 v{V_ST}, 0")
    stamp(a, "rt0", True); stamp(a, "t0")
    PSTART = "f_pstart"
    a(f"s_cmp_eq_u32 s{S_W}, 8")
    a(f"s_cbranch_scc1 {PSTART}")
    a(f"s_cmp_gt_u32 s{S_W}, 8")
    a(f"s_cbranch_scc1 f_lstart")

    XF, UACC, WFA, SH = 16, 4, 44, 36
    def unit_loads():
        a("s_setprio 2")
        a(f"s_and_b32 s28, s{S_J}, 3")
        a(f"s_lshl_b32 s28, s28, 4")
        a(f"s_lshl_b32 s29, s{S_I}, 6")
        a(f"s_add_u32 s28, s28, s29")
        a(f"v_and_b32 v{T0}, 15, v1")
        a(f"v_add_u32 v{T0}, s28, v{T0}")
        a(f"v_mul_lo_u32 v{T0}, v{T0}, s{S_1280}")
        a(f"v_lshrrev_b32 v{T1}, 4, v1")
        a(f"v_lshlrev_b32 v{T2}, 4, v{T1}")
        a(f"v_add_u32 v{T0}, v{T0}, v{T2}")
        a(f"s_mul_i32 s29, s{S_W}, 320")
        for s_ in range(5):
            a(f"buffer_load_dwordx4 {v(XF+4*s_,4)}, v{T0}, {R(SRD_X)}, s29 offen offset:{64*s_}")
        a(f"v_lshlrev_b32 v{T2}, 4, v1")
        a(f"s_mul_i32 s29, s{S_W}, 6400")
        a(f"s_mul_i32 s30, s{S_W}, {UNIT_S}")
        for q in range(7):
            a(f"s_add_u32 m0, s30, {UNIT_W + 1024*q}")
            a(f"s_add_u32 s31, s29, {1024*q}")
            if q == 6: a(f"s_mov_b64 exec, 0xffffffff")
            a(f"buffer_load_dwordx4 v{T2}, {R(SRD_W)}, s31 offen lds")
        a(f"s_mov_b64 exec, -1")
        a("s_setprio 0")
    if_wave(a, "lt", 4, unit_loads)
    a(f"v_lshrrev_b32 v{T0}, 3, v1")
    a(f"s_mul_i32 s28, s{S_W}, 5")
    a(f"v_add_u32 v{T0}, s28, v{T0}")
    a(f"s_mul_i32 s28, s{S_J}, 160")
    a(f"v_lshlrev_b32 v{T1}, 2, v{T0}")
    a(f"v_add_u32 v{T1}, s28, v{T1}")
    a(f"v_lshlrev_b32 v{T2}, 2, v{T1}")
    a(f"buffer_load_dwordx4 {v(SH,4)}, v{T2}, {R(SRD_SH)}, 0 offen")
    a(f"v_lshlrev_b32 v{V_UST}, 11, v{T1}")
    a(f"v_and_b32 v{T2}, 7, v1")
    a(f"v_lshlrev_b32 v{T2}, 3, v{T2}")
    a(f"s_lshl_b32 s28, s{S_I}, 6")
    a(f"v_add_u32 v{T2}, s28, v{T2}")
    a(f"v_lshlrev_b32 v{T2}, 1, v{T2}")
    a(f"v_sub_u32 v{V_UST}, v{V_UST}, v{T2}")
    a(f"v_add_u32 v{V_UST}, {UR_OFF + 4080}, v{V_UST}")
    a(f"v_lshrrev_b32 v{T0}, 4, v1")
    a(f"s_lshl_b32 s28, s{S_W}, 2")
    a(f"v_add_u32 v{T0}, s28, v{T0}")
    a(f"v_xor_b32 v{T1}, v1, v{T0}")
    a(f"v_and_b32 v{T1}, 15, v{T1}")
    a(f"v_lshlrev_b32 v{T1}, 4, v{T1}")
    a(f"s_lshl_b32 s28, s{S_I}, 6")
    a(f"v_add_u32 v{T0}, s28, v{T0}")
    a(f"v_mul_lo_u32 v{T0}, v{T0}, s{S_1280}")
    a(f"v_add_u32 v{V_XD}, v{T0}, v{T1}")
    a(f"s_mul_i32 s29, s{S_J}, 160")
    a(f"s_lshl_b32 s28, s{S_W}, 6")
    for t in range(3):
        a(f"v_add_u32 v{T0}, s28, v1")
        if t: a(f"v_add_u32 v{T0}, {512*t}, v{T0}")
        div10(a, T0, T1, T0, T2)
        a(f"v_lshlrev_b32 v{T0}, 4, v{T0}")
        a(f"v_and_b32 v{T2}, 0xfff8, v{T1}")
        a(f"v_bfe_u32 v{T3}, v{T1}, 1, 2")
        a(f"v_or_b32 v{T2}, v{T2}, v{T3}")
        a(f"v_and_b32 v{T1}, 1, v{T1}")
        a(f"v_lshlrev_b32 v{T1}, 2, v{T1}")
        a(f"v_or_b32 v{T2}, v{T2}, v{T1}")
        a(f"v_mul_lo_u32 v{T2}, v{T2}, s{S_1280}")
        a(f"v_add_u32 v{T2}, v{T2}, v{T0}")
        a(f"v_add_u32 v{V_WD+t}, s29, v{T2}")
    def dma_chunk(ch, slot):
        base = slot * SLOT
        a(f"s_lshl_b32 s28, s{S_W}, 10")
        for t in range(2):
            a(f"s_add_u32 m0, s28, {base + 8192*t}")
            a(f"s_mov_b32 s29, {256*ch + 32*1280*t}")
            a(f"buffer_load_dwordx4 v{V_XD}, {R(SRD_X)}, s29 offen lds")
        a(f"s_mov_b32 s29, {163840*ch}")
        for t in range(3):
            def one(t=t):
                a(f"s_add_u32 m0, s28, {base + 16384 + 8192*t}")
                a(f"s_nop 0")
                a(f"buffer_load_dwordx4 v{V_WD+t}, {R(SRD_WQ)}, s29 offen lds")
            if t < 2: one()
            else: if_wave(a, "lt", 4, one)
    def wait_vm(nA, nB):
        la = a.newlabel("wa"); lb = a.newlabel("wb")
        a(f"s_cmp_lt_u32 s{S_W}, 4")
        a(f"s_cbranch_scc1 {la}")
        a(f"s_waitcnt vmcnt({nB})")
        a(f"s_branch {lb}")
        a.label(la)
        a(f"s_waitcnt vmcnt({nA})")
        a.label(lb)
    NA, NB = 5, 4
    def gw():
        a(f"s_mul_i32 s28, s{S_HH}, 320")
        a(f"s_add_u32 m0, s28, {GWL}")
        a(f"v_lshlrev_b32 v{T0}, 4, v1")
        a(f"s_mov_b64 exec, 0xfffff")
        a(f"buffer_load_dwordx4 v{T0}, {R(SRD_GW)}, s28 offen lds")
        a(f"s_mov_b64 exec, -1")
    if_wave(a, "ge", 4, gw)
    dma_chunk(0, 0); dma_chunk(1, 1)
    a("s_barrier")
    def unit_compute():
        a(f"v_lshrrev_b32 v{T1}, 4, v1")
        a(f"v_bfe_u32 v{T2}, v1, 2, 2")
        a(f"v_lshlrev_b32 v{T1}, 3, v{T1}")
        a(f"v_add_u32 v{T2}, v{T2}, v{T1}")
        a(f"v_mul_u32_u24 v{T2}, 40, v{T2}")
        a(f"v_and_b32 v{T3}, 3, v1")
        a(f"v_lshlrev_b32 v{T3}, 3, v{T3}")
        a(f"v_add_u32 v{T2}, v{T2}, v{T3}")
        a(f"s_mul_i32 s30, s{S_W}, {UNIT_S}")
        a(f"s_add_u32 s30, s30, {UNIT_W}")
        a(f"v_add_u32 v{T2}, s30, v{T2}")
        for r in range(8): a(f"v_mov_b32 v{UACC+r}, 0")
        a(f"s_waitcnt vmcnt({1 + 2*NA})")
        stamp(a, "unitld")
        for s_ in range(5):
            for dt in range(2):
                for jj in range(2):
                    a(f"ds_read_b64_tr_b16 {v(WFA+8*s_+4*dt+2*jj,2)}, v{T2} offset:{1280*s_ + 160*jj + 32*dt}")
            if s_ == 2: a("s_waitcnt lgkmcnt(4)")
        labV = a.newlabel("kindV"); labD = a.newlabel("kindD")
        a("s_waitcnt lgkmcnt(0)")
        a(f"s_cmp_ge_u32 s{S_J}, 4")
        a(f"s_cbranch_scc1 {labV}")
        for kind in range(2):
            for s_ in range(5):
                for dt in range(2):
                    w_ = v(WFA+8*s_+4*dt, 4); x_ = v(XF+4*s_, 4)
                    A_, B_ = (w_, x_) if kind == 0 else (x_, w_)
                    a(f"v_mfma_f32_16x16x32_bf16 {v(UACC+4*dt,4)}, {A_}, {B_}, {v(UACC+4*dt,4)}")
            if kind == 0:
                a(f"s_branch {labD}")
                a.label(labV)
        a.label(labD)
        a.nop(8)
        a(f"s_mul_i32 s29, s{S_W}, {UNIT_S}")
        a(f"s_add_u32 s29, s29, {UNIT_W}")
        a(f"v_lshlrev_b32 v{T0}, 4, v1")
        a(f"v_add_u32 v{T1}, s29, v{T0}")
        a(f"ds_write_b128 v{T1}, {v(UACC,4)}")
        a(f"ds_write_b128 v{T1}, {v(UACC+4,4)} offset:1024")
        lds_add1_imm(a, C_UP)
    if_wave(a, "lt", 4, unit_compute)
    V_XA, V_WA, V_GWA, V_QXP = 24, 32, 33, 34
    QACC, GACC, GW, QXF, QWF = 44, 60, 76, 84, 96
    a(f"v_and_b32 v{T0}, 31, v1")
    a(f"s_lshl_b32 s28, s{S_G}, 5")
    a(f"v_add_u32 v{T0}, s28, v{T0}")
    a(f"v_lshrrev_b32 v{T1}, 5, v1")
    a(f"v_and_b32 v{T2}, 15, v{T0}")
    a(f"v_xor_b32 v{T2}, v{T2}, v{T1}")
    a(f"v_lshlrev_b32 v{T2}, 4, v{T2}")
    a(f"v_lshlrev_b32 v{T0}, 8, v{T0}")
    a(f"v_add_u32 v{V_XA}, v{T0}, v{T2}")
    for s_ in range(1, 8): a(f"v_xor_b32 v{V_XA+s_}, {32*s_}, v{V_XA}")
    a(f"v_bfe_u32 v{T0}, v1, 2, 2")
    a(f"v_lshlrev_b32 v{T0}, 1, v{T0}")
    a(f"v_lshlrev_b32 v{T2}, 3, v{T1}")
    a(f"v_add_u32 v{T0}, v{T0}, v{T2}")
    a(f"v_mul_u32_u24 v{T0}, 160, v{T0}")
    a(f"v_and_b32 v{T2}, 3, v1")
    a(f"v_lshlrev_b32 v{T2}, 3, v{T2}")
    a(f"v_and_b32 v{T3}, 16, v1")
    a(f"v_cmp_ne_u32 vcc, 0, v{T3}")
    a(f"s_mul_i32 s28, s{S_HH}, 40")
    a(f"s_add_u32 s28, s28, 16384")
    a(f"v_mov_b32 v{T3}, 32")
    a(f"v_cndmask_b32 v{T2}, v{T2}, v{T3}, vcc")
    a(f"v_add_u32 v{T0}, v{T0}, v{T2}")
    a(f"v_add_u32 v{V_WA}, s28, v{T0}")
    for r in range(16):
        a(f"v_mov_b32 v{QACC+r}, 0"); a(f"v_mov_b32 v{GACC+r}, 0")
    a(f"v_lshlrev_b32 v{T1}, 4, v{T1}")
    a(f"s_lshl_b32 s28, s{S_HH}, 5")
    a(f"s_add_u32 s28, s28, {GWL}")
    a(f"v_add_u32 v{V_GWA}, s28, v{T1}")
    def q_chunk(ch, slot):
        off = (slot & 1) * SLOT
        def loads(s_):
            b = s_ % 3
            a(f"ds_read_b128 {v(QXF+4*b,4)}, v{V_XA+s_} offset:{off}")
            a(f"ds_read_b64_tr_b16 {v(QWF+4*b,2)}, v{V_WA} offset:{off + 2560*s_}")
            a(f"ds_read_b64_tr_b16 {v(QWF+4*b+2,2)}, v{V_WA} offset:{off + 2560*s_ + 160}")
        a(f"ds_read_b128 {v(GW,4)}, v{V_GWA} offset:{128*(2*ch)}")
        a(f"ds_read_b128 {v(GW+4,4)}, v{V_GWA} offset:{128*(2*ch+1)}")
        loads(0); loads(1)
        for s_ in range(8):
            if s_ < 6:
                loads(s_+2); a("s_waitcnt lgkmcnt(6)")
            elif s_ == 6: a("s_waitcnt lgkmcnt(3)")
            else: a("s_waitcnt lgkmcnt(0)")
            b = s_ % 3
            a(f"v_mfma_f32_32x32x16_bf16 {v(QACC,16)}, {v(QWF+4*b,4)}, {v(QXF+4*b,4)}, {v(QACC,16)}")
            lg = a.newlabel("ng")
            a(f"s_cmp_lg_u32 s{S_HH}, {s_ & 3}")
            a(f"s_cbranch_scc1 {lg}")
            a(f"v_mfma_f32_32x32x16_bf16 {v(GACC,16)}, {v(GW+4*(s_>>2),4)}, {v(QXF+4*b,4)}, {v(GACC,16)}")
            a.label(lg)
    def bump(delta):
        op = "v_add_u32" if delta > 0 else "v_subrev_u32"
        for s_ in range(8): a(f"{op} v{V_XA+s_}, {abs(delta)}, v{V_XA+s_}")
        a(f"{op} v{V_WA}, {abs(delta)}, v{V_WA}")
    def uprep():
        KD, VD = 116, 128
        a(f"v_lshrrev_b32 v{T0}, 3, v1")
        a(f"s_mul_i32 s28, s{S_W}, 5")
        a(f"v_add_u32 v{T0}, s28, v{T0}")
        a(f"v_and_b32 v{T1}, 7, v1")
        a(f"v_lshrrev_b32 v{T2}, 2, v{T0}")
        a(f"v_add_u32 v{T2}, v{T2}, v{T1}")
        a(f"v_and_b32 v{T0}, 3, v{T0}")
        a(f"v_lshlrev_b32 v{T0}, 2, v{T0}")
        a(f"v_mul_u32_u24 v{T1}, 1280, v{T1}")
        a(f"v_add_u32 v{T0}, v{T0}, v{T1}")
        a(f"v_add_u32 v{T0}, {UT_K}, v{T0}")
        for (dst, add) in ((108, 0), (109, 1)):
            a(f"v_add_u32 v{T3}, {add}, v{T2}")
            a(f"v_subrev_u32 v{T1}, 10, v{T3}")
            a(f"v_min_u32 v{T3}, v{T3}, v{T1}")
            a(f"v_lshlrev_b32 v{T3}, 4, v{T3}")
            a(f"v_add_u32 v{dst}, v{T0}, v{T3}")
        lds_wait_imm(a, C_UTL, 3, sleep=1)
        stamp(a, "utl")
        for r in range(8): a(f"ds_read_b32 v{KD+r}, v108 offset:{160*r}")
        for r in range(8, 11): a(f"ds_read_b32 v{KD+r}, v109 offset:{160*r}")
        a("s_waitcnt lgkmcnt(4)")
        for r in range(8): a(f"ds_read_b32 v{VD+r}, v108 offset:{10720 + 160*r}")
        a("s_waitcnt lgkmcnt(0)")
        lds_add1_imm(a, C_UTC)
        KA_, KB_, WA_, WB_, UA, UB, UT = 136, 4, 16, 20, 148, 156, 40
        for r in range(11):
            a(f"v_lshlrev_b32 v{KA_+r}, 16, v{KD+r}")
            a(f"v_and_b32 v{KB_+r}, 0xffff0000, v{KD+r}")
        for (W, base) in ((WA_, SH), (WB_, SH + 2)):
            a(f"v_lshlrev_b32 v{W}, 16, v{base}")
            a(f"v_and_b32 v{W+1}, 0xffff0000, v{base}")
            a(f"v_lshlrev_b32 v{W+2}, 16, v{base+1}")
            a(f"v_and_b32 v{W+3}, 0xffff0000, v{base+1}")
        for e_ in range(8):
            for (U, Kf, W, lo) in ((UA, KA_, WA_, True), (UB, KB_, WB_, False)):
                a(f"v_mul_f32 v{U+e_}, v{Kf+e_+3}, v{W}")
                for jx in range(1, 4):
                    a(f"v_fmac_f32 v{U+e_}, v{Kf+e_+3-jx}, v{W+jx}")
                if lo: a(f"v_lshlrev_b32 v{UT}, 16, v{VD+e_}")
                else: a(f"v_and_b32 v{UT}, 0xffff0000, v{VD+e_}")
                a(f"v_mul_f32 v{U+e_}, v{U+e_}, v{UT}")
        for (U, O_, off) in ((UA, KD, 0), (UB, KD + 4, 4096)):
            for i in range(4):
                a(f"v_cvt_pk_bf16_f32 v{O_+i}, v{U+7-2*i}, v{U+6-2*i}")
        a(f"s_mov_b32 exec_hi, 0xff")
        a(f"buffer_store_dwordx4 {v(KD,4)}, v{V_UST}, {R(SRD_WS)}, 0 offen sc1")
        a(f"v_add_u32 v{V_UST}, 4096, v{V_UST}")
        a(f"buffer_store_dwordx4 {v(KD+4,4)}, v{V_UST}, {R(SRD_WS)}, 0 offen sc1")
        a(f"s_mov_b64 exec, -1")
        stamp(a, "udone")
    def wait_chunk(ch):
        if ch < 2:
            if ch == 0: wait_vm(NA, NB)
            else: a("s_waitcnt vmcnt(0)")
            lds_add1_imm(a, C_CL + 4*ch)
            lds_wait_imm(a, C_CL + 4*ch, 8, sleep=0)
        else:
            lds_wait_imm(a, C_CL + 4*ch, 3, sleep=1)
        stamp(a, f"cl{ch}")
    wait_chunk(0)
    q_chunk(0, 0)
    lds_add1_imm(a, C_C0C)
    wait_chunk(1)
    q_chunk(1, 1)
    lds_add1_imm(a, C_C1C)
    uprep()
    bump(2 * SLOT)
    wait_chunk(2)
    q_chunk(2, 2)
    bump(-2 * SLOT)
    wait_chunk(3)
    q_chunk(3, 0)
    wait_chunk(4)
    q_chunk(4, 1)
    a("s_waitcnt vmcnt(0)")
    lds_add1_imm(a, C_UCNT)
    stamp(a, "qdone")

    QF16, QF8, QG16, QG8 = 4, 8, 10, 14
    a.nop(16)
    a(f"s_mov_b32 s28, {hex(f32bits(QSCALE))}")
    for r in range(12): a(f"v_mul_f32 v{QACC+r}, s28, v{QACC+r}")
    for r in range(4): a(f"v_cvt_pk_bf16_f32 v{QF16+r}, v{QACC+2*r}, v{QACC+2*r+1}")
    for r in range(2): a(f"v_cvt_pk_bf16_f32 v{QF8+r}, v{QACC+8+2*r}, v{QACC+8+2*r+1}")
    a(f"v_cmp_gt_u32 vcc, 32, v1")
    a(f"s_lshl_b32 s28, s{S_W}, 10")
    a(f"v_lshlrev_b32 v{T2}, 4, v1")
    for r in range(2): a(f"v_cndmask_b32 v{QF8+r}, 0, v{QF8+r}, vcc")
    a(f"v_add_u32 v{T2}, s28, v{T2}")
    a(f"v_lshrrev_b32 v{T3}, 1, v{T2}")
    a(f"v_xor_b32 v{V_QXP}, 4096, v{T2}")
    a(f"v_xor_b32 v{V_QXP+1}, 2048, v{T3}")
    lds_wait_imm(a, C_UTC, 8, sleep=1)
    a(f"ds_write_b128 v{T2}, {v(QF16,4)} offset:{QXA & 0xffff}" if False else f"v_add_u32 v{T2}, {QXA}, v{T2}")
    a(f"v_add_u32 v{T3}, {QXB}, v{T3}")
    a(f"v_add_u32 v{V_QXP}, {QXA}, v{V_QXP}")
    a(f"v_add_u32 v{V_QXP+1}, {QXB}, v{V_QXP+1}")
    a(f"ds_write_b128 v{T2}, {v(QF16,4)}")
    a(f"ds_write_b64 v{T3}, {v(QF8,2)}")
    a(f"s_lshl_b32 s28, s{S_W}, 7")
    a(f"s_add_u32 s28, s28, {GP}")
    a(f"v_lshlrev_b32 v{T1}, 2, v1")
    a(f"v_add_u32 v{T1}, s28, v{T1}")
    a(f"s_mov_b64 exec, 0xffffffff")
    a(f"ds_write_b32 v{T1}, v{GACC}")
    a(f"s_mov_b64 exec, -1")
    a(f"s_lshl_b32 s28, s{S_W}, 2")
    a(f"s_add_u32 s29, s28, {C_QXF}")
    a(f"v_mov_b32 v{T0}, s29")
    a(f"v_mov_b32 v{T1}, 1")
    lds_add1(a, T0, T1)
    a(f"s_xor_b32 s28, s28, 16")
    a(f"s_add_u32 s28, s28, {C_QXF}")
    a(f"v_mov_b32 v{T0}, s28")
    lds_wait_ge(a, 1, T1, T0, sleep=1)
    a(f"ds_read_b128 {v(QG16,4)}, v{V_QXP}")
    a(f"ds_read_b64 {v(QG8,2)}, v{V_QXP+1}")
    a("s_waitcnt lgkmcnt(0)")
    lds_add1_imm(a, C_QG)
    def gate_fin():
        lds_wait_imm(a, C_QG, 8, sleep=1)
        a(f"v_lshrrev_b32 v{T0}, 5, v1")
        a(f"v_lshlrev_b32 v{T0}, 9, v{T0}")
        a(f"v_and_b32 v{T1}, 31, v1")
        a(f"v_lshlrev_b32 v{T1}, 2, v{T1}")
        a(f"v_add_u32 v{T0}, v{T0}, v{T1}")
        a(f"v_add_u32 v{T0}, {GP}, v{T0}")
        for k in range(4): a(f"ds_read_b32 v{96+k}, v{T0} offset:{128*k}")
        a("s_waitcnt lgkmcnt(0)")
        a(f"v_add_f32 v96, v96, v97")
        a(f"v_add_f32 v98, v98, v99")
        a(f"v_add_f32 v96, v96, v98")
        a(f"v_mul_f32 v96, {hex(f32bits(-1.4426950408889634))}, v96")
        a(f"v_exp_f32 v96, v96")
        a.nop(1)
        a(f"v_add_f32 v96, 1.0, v96")
        a(f"v_rcp_f32 v96, v96")
        a(f"v_lshlrev_b32 v{T0}, 2, v1")
        a(f"v_add_u32 v{T0}, {G_L}, v{T0}")
        a.nop(1)
        a(f"ds_write_b32 v{T0}, v96")
    if_wave(a, "eq", 7, gate_fin)
    stamp(a, "qg")

    SF, SG = 16, 32
    P = 48
    OF, OG = 56, 72
    K16, K8, V0, V1 = 88, 92, 96, 100
    AK16, AK8, AV, AK16N, AK8N, AVN = 104, 105, 106, 107, 108, 109
    V_L16, V_ONE, V_CFW, V_CD, V_KW, V_CT = 110, 111, 112, 113, 114, 115
    KVST, KVST2 = 116, 16
    V_CFR = 128
    V_STG, V_OL0, V_OG0, V_OL1, V_OG1, V_OUT, V_WT, V_YT, V_GA, V_PX, V_TL16 = range(129, 140)
    QT, YS = 140, 150
    S_T, S_BLK, S_SLOT, S_NXT, S_FT, S_DT = 34, 35, 36, 37, 38, 39
    S_RB, S_M2, S_P1, S_DL, S_WB = 78, 79, 80, 81, 82
    S_CFB, S_CA, S_CBB = 89, 90, 91
    def tail_addrs():
        a(f"v_lshlrev_b32 v{V_TL16}, 4, v1")
        a(f"v_and_b32 v{T0}, 31, v1")
        a(f"v_mul_u32_u24 v{T0}, 160, v{T0}")
        a(f"v_lshrrev_b32 v{T1}, 5, v1")
        a(f"v_lshlrev_b32 v{T1}, 3, v{T1}")
        a(f"v_add_u32 v{T0}, v{T0}, v{T1}")
        a(f"s_mul_i32 s28, s{S_HH}, 40")
        a(f"s_mul_i32 s29, s{S_G}, 5120")
        a(f"s_add_u32 s28, s28, s29")
        a(f"s_add_u32 s28, s28, {OST}")
        a(f"v_add_u32 v{V_STG}, s28, v{T0}")
        for t, (vl, vg) in enumerate(((V_OL0, V_OG0), (V_OL1, V_OG1))):
            a(f"s_add_u32 s28, s{S_W}, {8*t}")
            a(f"s_lshl_b32 s28, s28, 2")
            a(f"v_lshrrev_b32 v{T0}, 4, v1")
            a(f"v_add_u32 v{T0}, s28, v{T0}")
            div10(a, T0, T1, T0, T2)
            a(f"v_and_b32 v{T2}, 15, v1")
            a(f"v_lshl_add_u32 v{T3}, v{T1}, 4, v{T2}")
            a(f"v_mul_u32_u24 v{T3}, 160, v{T3}")
            a(f"v_lshl_add_u32 v{vl}, v{T0}, 4, v{T3}")
            a(f"v_mul_u32_u24 v{T1}, 20480, v{T1}")
            a(f"v_lshl_add_u32 v{T1}, v{T0}, 8, v{T1}")
            a(f"v_lshl_add_u32 v{vg}, v{T2}, 4, v{T1}")
        a(f"v_and_b32 v{T0}, 15, v1")
        a(f"s_lshl_b32 s29, s{S_HH}, 4")
        a(f"s_lshl_b32 s28, s{S_I}, 6")
        a(f"s_add_u32 s28, s28, s29")
        a(f"v_add_u32 v{T1}, s28, v{T0}")
        a(f"v_mul_lo_u32 v{T1}, v{T1}, s{S_1280}")
        a(f"v_lshrrev_b32 v{T2}, 4, v1")
        a(f"v_lshlrev_b32 v{T3}, 3, v{T2}")
        a(f"v_add_u32 v{T1}, v{T1}, v{T3}")
        a(f"s_mul_i32 s28, s{S_J}, 160")
        a(f"v_add_u32 v{V_OUT}, s28, v{T1}")
        a(f"v_lshlrev_b32 v{T0}, 2, v{T0}")
        a(f"s_lshl_b32 s28, s{S_HH}, 6")
        a(f"s_add_u32 s28, s28, {G_L}")
        a(f"v_add_u32 v{V_GA}, s28, v{T0}")
        a(f"v_lshrrev_b32 v{T0}, 5, v1")
        a(f"v_lshlrev_b32 v{T0}, 4, v{T0}")
        a(f"v_bfe_u32 v{T1}, v1, 4, 1")
        a(f"v_lshlrev_b32 v{T1}, 2, v{T1}")
        a(f"v_add_u32 v{T0}, v{T0}, v{T1}")
        a(f"v_bfe_u32 v{T1}, v1, 2, 2")
        a(f"v_add_u32 v{T0}, v{T0}, v{T1}")
        a(f"v_mul_u32_u24 v{T0}, 160, v{T0}")
        a(f"v_and_b32 v{T1}, 3, v1")
        a(f"v_lshlrev_b32 v{T1}, 3, v{T1}")
        a(f"v_add_u32 v{T0}, v{T0}, v{T1}")
        a(f"s_mul_i32 s28, s{S_G}, 51200")
        a(f"s_add_u32 s28, s28, {WOL}")
        a(f"v_add_u32 v{V_WT}, s28, v{T0}")
        a(f"v_bfe_u32 v{T0}, v1, 2, 4")
        a(f"v_lshlrev_b32 v{T0}, 7, v{T0}")
        a(f"v_add_u32 v{T0}, v{T0}, v{T1}")
        a(f"s_lshl_b32 s28, s{S_HH}, 5")
        a(f"s_add_u32 s28, s28, {YL}")
        a(f"v_add_u32 v{V_YT}, s28, v{T0}")
        a(f"s_mul_i32 s28, s{S_HH}, 5120")
        a(f"s_add_u32 s28, s28, {PX}")
        a(f"v_add_u32 v{V_PX}, s28, v{V_TL16}")
        def qld():
            for mt in range(5):
                a(f"buffer_load_dwordx2 {v(QT+2*mt,2)}, v{V_OUT}, {R(SRD_X)}, 0 offen offset:{32*mt}")
        if_wave(a, "lt", 4, qld)
    def ring_addrs():
        a(f"s_mul_i32 s{S_RB}, s{S_G}, {RING_STRIDE}")
        a(f"v_lshlrev_b32 v{V_L16}, 4, v1")
        a(f"v_mov_b32 v{V_ONE}, 1")
        a(f"s_lshl_b32 s28, s{S_G}, 4")
        a(f"s_add_u32 s{S_CFB}, s28, {C_FULL}")
        a(f"s_mul_i32 s29, s{S_HH}, {BLK}")
        a(f"s_add_u32 s{S_WB}, s{S_RB}, s29")
        a(f"v_add_u32 v{AK16}, s{S_RB}, v{V_L16}")
        a(f"v_and_b32 v{T0}, 31, v1")
        a(f"v_lshlrev_b32 v{T1}, 3, v{T0}")
        a(f"v_add_u32 v{T1}, 1024, v{T1}")
        a(f"v_mov_b32 v{AK8}, 1280")
        a(f"v_cmp_gt_u32 vcc, 32, v1")
        a(f"v_min_u32 v{T2}, 20, v{T0}")
        a(f"v_subrev_u32 v{AV}, 16, v{T0}")
        a(f"v_cndmask_b32 v{AK8}, v{AK8}, v{T1}, vcc")
        a(f"v_add_u32 v{AK8}, s{S_RB}, v{AK8}")
        a(f"v_cmp_lt_u32 vcc, 27, v{T0}")
        a.nop(2)
        a(f"v_cndmask_b32 v{T2}, v{T2}, v{AV}, vcc")
        a(f"v_lshlrev_b32 v{T2}, 4, v{T2}")
        a(f"v_lshrrev_b32 v{AV}, 5, v1")
        a(f"v_mul_u32_u24 v{AV}, 336, v{AV}")
        a(f"v_add_u32 v{AV}, v{AV}, v{T2}")
        a(f"v_add_u32 v{AV}, 1296, v{AV}")
        a(f"v_add_u32 v{AV}, s{S_RB}, v{AV}")
        for cur, nxt in ((AK16, AK16N), (AK8, AK8N), (AV, AVN)):
            a(f"v_add_u32 v{nxt}, {KVSLOT}, v{cur}")
    def blk_off(t, g=None):
        a(f"s_add_u32 s28, s{S_ROT}, {t}")
        a(f"s_and_b32 s28, s28, 7")
        a(f"s_lshl_b32 s28, s28, 2")
        if g is None:
            a(f"s_lshl_b32 s29, s{S_G}, 5")
            a(f"s_add_u32 s28, s28, s29")
        elif g: a(f"s_add_u32 s28, s28, {32*g}")
        a(f"s_add_u32 s28, s28, s{S_HH}")
        a(f"s_mul_i32 s{S_BLK}, s28, 3072")
    def kv_load(dst):
        for q in range(3):
            a(f"buffer_load_dwordx4 {v(dst+4*q,4)}, v{V_L16}, {R(SRD_WS)}, s{S_BLK} offen offset:{1024*q} sc1")
    def kv_write(src):
        a(f"ds_write_b128 v{V_KW}, {v(src,4)}")
        a(f"ds_write_b128 v{V_KW}, {v(src+4,4)} offset:1024")
        a(f"s_mov_b32 exec_hi, 0xff")
        a(f"ds_write_b128 v{V_KW}, {v(src+8,4)} offset:2048")
        a(f"s_mov_b64 exec, -1")
    tail_addrs()
    ring_addrs()
    lds_wait_imm(a, C_KVOK, 1, sleep=1)
    stamp(a, "kvok")
    blk_off(1); kv_load(KVST)
    a(f"v_mov_b32 v{V_CFW}, s{S_CFB}")
    for r in range(16):
        a(f"v_mov_b32 v{OF+r}, 0"); a(f"v_mov_b32 v{OG+r}, 0")
    for r in range(8): a(f"v_mov_b32 v{P+r}, 0")
    for r in range(4): a(f"v_mov_b32 v{V1+r}, 0")
    for r in range(12, 16): a(f"v_mov_b32 v{SG+r}, 0")
    lds_wait_ge(a, 4, V_CT, V_CFW, sleep=1)
    stamp(a, "full0")
    a(f"ds_read_b128 {v(K16,4)}, v{AK16}")
    a(f"ds_read_b64 {v(K8,2)}, v{AK8}")
    a(f"ds_read_b128 {v(V0,4)}, v{AV}")
    a("s_waitcnt lgkmcnt(0)")
    a(f"v_mfma_f32_32x32x16_bf16 {v(SF,16)}, {v(K16,4)}, {v(QF16,4)}, 0")
    a(f"v_mfma_f32_32x32x8_bf16 {v(SF,16)}, {v(K8,2)}, {v(QF8,2)}, {v(SF,16)}")
    a(f"s_mov_b32 s{S_T}, 0")
    a(f"s_mov_b32 s{S_SLOT}, {KVSLOT}")
    a(f"s_mov_b32 s{S_FT}, 4")
    a(f"s_mov_b32 s{S_DT}, 0")
    a(f"s_mov_b32 s{S_CA}, 4")
    a(f"s_mov_b32 s{S_DL}, {(-KVSLOT) & 0xffffffff}")
    def cnt_addrs():
        a(f"s_add_u32 s28, s{S_CFB}, s{S_CA}")
        a(f"v_mov_b32 v{V_CFW}, s28")
        a(f"v_add_u32 v{V_CD}, 32, v{V_CFW}")
    cnt_addrs()
    a.nop(8)
    V_PG, V_PGP, V_PT = 150, 151, 152
    a(f"s_lshl_b32 s28, s{S_W}, 2")
    a(f"s_add_u32 s29, s28, {C_PROG}")
    a(f"v_mov_b32 v{V_PG}, s29")
    a(f"s_xor_b32 s28, s28, 16")
    a(f"s_add_u32 s28, s28, {C_PROG}")
    a(f"v_mov_b32 v{V_PGP}, s28")
    a("s_setprio 1")
    stamp(a, "loop0")
    LOOP = "f_attn"
    if "align" in OPT: a(".p2align 6")
    a.label(LOOP)
    e = lambda S, i: a(f"v_exp_f32 v{S+i}, v{S+i}")
    c = lambda S, i: a(f"v_cvt_pk_bf16_f32 v{P+i}, v{S+2*i}, v{S+2*i+1}")
    def check_cnt(target, retry_addr):
        ok = a.newlabel("ok")
        a(f"v_readfirstlane_b32 s42, v{V_CT}")
        a("s_nop 3")
        a(f"s_cmp_ge_u32 s42, {target}")
        a(f"s_cbranch_scc1 {ok}")
        lds_wait_ge(a, target, V_CT, retry_addr, sleep=1)
        a.label(ok)
    for b in range(4):
        last = (b == 3)
        kA16, kA8, kAV, koff = (AK16N, AK8N, AVN, 0) if last else (AK16, AK8, AV, (b+1)*BLK)
        extra = b in (1, 2) or (b == 3 and "nolag" not in OPT)
        c(SG, 6); c(SG, 7)
        a(f"v_mfma_f32_32x32x16_bf16 {v(SG,16)}, {v(K16,4)}, {v(QG16,4)}, 0")
        a(f"ds_read_b128 {v(K16,4)}, v{kA16} offset:{koff}")
        if b == 1: a(f"ds_read_b32 v{V_CT}, v{V_CD}")
        if b == 2: a(f"ds_read_b32 v{V_CT}, v{V_CFW}")
        if b == 3 and "nolag" not in OPT: a(f"ds_read_b32 v{V_PT}, v{V_PGP}")
        for i in range(0, 4): e(SF, i)
        c(SF, 0); c(SF, 1)
        a(f"v_mfma_f32_32x32x16_bf16 {v(OG,16)}, {v(V1,4)}, {v(P+4,4)}, {v(OG,16)}")
        a(f"ds_read_b128 {v(V1,4)}, v{AV} offset:{b*BLK + 672}")
        for i in range(4, 8): e(SF, i)
        c(SF, 2); c(SF, 3)
        a(f"v_mfma_f32_32x32x8_bf16 {v(SG,16)}, {v(K8,2)}, {v(QG8,2)}, {v(SG,16)}")
        a(f"ds_read_b64 {v(K8,2)}, v{kA8} offset:{koff}")
        for i in range(8, 12): e(SF, i)
        c(SF, 4); c(SF, 5)
        a(f"s_waitcnt lgkmcnt({4 if extra else 3})")
        a(f"v_mfma_f32_32x32x16_bf16 {v(OF,16)}, {v(V0,4)}, {v(P,4)}, {v(OF,16)}")
        for i in range(12, 16): e(SF, i)
        c(SF, 6); c(SF, 7)
        a("s_waitcnt lgkmcnt(0)")
        a(f"v_mfma_f32_32x32x16_bf16 {v(SF,16)}, {v(K16,4)}, {v(QF16,4)}, 0")
        if b == 0:
            if_s(a, S_T, "lg", 0, lambda: lds_add1(a, V_CD, V_ONE))
        if b == 1:
            lb = a.newlabel("nw")
            a(f"s_cmp_ge_u32 s{S_T}, 7")
            a(f"s_cbranch_scc1 {lb}")
            check_cnt(f"s{S_DT}", V_CD)
            a(f"s_add_u32 s29, s{S_WB}, s{S_SLOT}")
            a(f"v_add_u32 v{V_KW}, s29, v{V_L16}")
            a("s_waitcnt vmcnt(0)")
            kv_write(KVST)
            lds_add1(a, V_CFW, V_ONE)
            a(f"s_cmp_ge_u32 s{S_T}, 6")
            a(f"s_cbranch_scc1 {lb}")
            a(f"s_add_u32 s30, s{S_T}, 2")
            blk_off("s30")
            kv_load(KVST)
            a.label(lb)
        if b == 2:
            lb = a.newlabel("nf")
            a(f"s_cmp_ge_u32 s{S_T}, 7")
            a(f"s_cbranch_scc1 {lb}")
            check_cnt(f"s{S_FT}", V_CFW)
            a.label(lb)
        for i in range(0, 4): e(SG, i)
        c(SG, 0); c(SG, 1)
        a(f"v_mfma_f32_32x32x16_bf16 {v(OF,16)}, {v(V1,4)}, {v(P+4,4)}, {v(OF,16)}")
        for i in range(4, 8): e(SG, i)
        c(SG, 2); c(SG, 3)
        a(f"v_mfma_f32_32x32x8_bf16 {v(SF,16)}, {v(K8,2)}, {v(QF8,2)}, {v(SF,16)}")
        for i in range(8, 12): e(SG, i)
        c(SG, 4); c(SG, 5)
        a(f"v_mfma_f32_32x32x16_bf16 {v(OG,16)}, {v(V0,4)}, {v(P,4)}, {v(OG,16)}")
        a(f"ds_read_b128 {v(V0,4)}, v{kAV} offset:{koff}")
        for i in range(12, 16): e(SG, i)
    a(f"s_add_u32 s{S_T}, s{S_T}, 1")
    if "nolag" not in OPT:
        a(f"v_mov_b32 v{V_CT}, s{S_T}")
        a(f"v_readfirstlane_b32 s42, v{V_PT}")
        a("s_mov_b64 exec, 1")
        a(f"ds_write_b32 v{V_PG}, v{V_CT}")
        a("s_mov_b64 exec, -1")
        lpa = a.newlabel("pa"); lpb = a.newlabel("pb")
        a(f"s_cmp_gt_u32 s{S_T}, s42")
        a(f"s_cbranch_scc1 {lpa}")
        a("s_setprio 2")
        a(f"s_branch {lpb}")
        a.label(lpa)
        a("s_setprio 1")
        a.label(lpb)
    a(f"s_xor_b32 s{S_CA}, s{S_CA}, 4")
    a(f"s_xor_b32 s{S_SLOT}, s{S_SLOT}, {KVSLOT}")
    a(f"s_cmp_eq_u32 s{S_CA}, 0")
    a(f"s_cselect_b32 s28, 4, 0")
    a(f"s_add_u32 s{S_FT}, s{S_FT}, s28")
    a(f"s_add_u32 s{S_DT}, s{S_DT}, s28")
    cnt_addrs()
    for cur, nxt in ((AK16, AK16N), (AK8, AK8N), (AV, AVN)):
        a(f"v_mov_b32 v{cur}, v{nxt}")
        a(f"v_add_u32 v{nxt}, s{S_DL}, v{nxt}")
    a(f"s_sub_u32 s{S_DL}, 0, s{S_DL}")
    if "stampc" in OPT:
        for k in range(8):
            nm = f"c{k}"
            if nm not in STAMPS: STAMPS.append(nm)
        base = STAMPS.index("c0")
        a(f"s_memtime s[98:99]")
        a(f"s_add_u32 m0, s{S_T}, {base - 1}")
        a(f"s_waitcnt lgkmcnt(0)")
        a(f"v_writelane_b32 v{V_ST}, s98, m0")
    a(f"s_cmp_lt_u32 s{S_T}, 8")
    a(f"s_cbranch_scc1 {LOOP}")
    stamp(a, "loopE")
    c(SG, 6); c(SG, 7)
    a(f"s_mul_i32 s28, s{S_W}, 3072")
    a(f"s_add_u32 s28, s28, {OX}")
    a(f"v_add_u32 v{T0}, s28, v{V_L16}")
    a(f"s_xor_b32 s29, s{S_W}, 4")
    a(f"s_mul_i32 s29, s29, 3072")
    a(f"s_add_u32 s29, s29, {OX}")
    a(f"v_add_u32 v{T1}, s29, v{V_L16}")
    a(f"v_mfma_f32_32x32x16_bf16 {v(OG,16)}, {v(V1,4)}, {v(P+4,4)}, {v(OG,16)}")
    a("s_setprio 2")
    a("s_waitcnt lgkmcnt(0)")
    a("s_barrier")
    a.nop(12)
    for q in range(3): a(f"ds_write_b128 v{T0}, {v(OG+4*q,4)} offset:{1024*q}")
    a("s_waitcnt lgkmcnt(0)")
    a("s_barrier")
    stamp(a, "J1")
    PB = 16
    for q in range(3): a(f"ds_read_b128 {v(PB+4*q,4)}, v{T1} offset:{1024*q}")
    a("s_waitcnt lgkmcnt(0)")
    for r in range(12): a(f"v_add_f32 v{OF+r}, v{OF+r}, v{PB+r}")
    a(f"v_mov_b32 v40, v{OF+8}")
    a(f"v_mov_b32 v41, v{OF+8}")
    a.nop(2)
    a(f"v_permlane32_swap_b32 v40, v41")
    a.nop(2)
    a(f"v_rcp_f32 v41, v41")
    a.nop(1)
    for r in range(12): a(f"v_mul_f32 v{OF+r}, v{OF+r}, v41")
    for r in range(6): a(f"v_cvt_pk_bf16_f32 v{104+r}, v{OF+2*r}, v{OF+2*r+1}")
    a(f"ds_write_b64 v{V_STG}, v[104:105]")
    a(f"ds_write_b64 v{V_STG}, v[106:107] offset:16")
    a(f"s_mov_b64 exec, 0xffffffff")
    a(f"ds_write_b64 v{V_STG}, v[108:109] offset:32")
    a(f"s_mov_b64 exec, -1")
    TAILJ = "f_tailj"
    a.label(TAILJ)
    a(f"s_mul_i32 s29, s{S_I}, 81920")
    a(f"s_mul_i32 s30, s{S_J}, 2560")
    a(f"s_add_u32 s29, s29, s30")
    a(f"s_add_u32 s29, s29, {O_OFF}")
    a("s_waitcnt lgkmcnt(0)")
    a("s_barrier")
    a(f"ds_read_b128 v[44:47], v{V_OL0} offset:{OST}")
    if_wave(a, "lt", 2, lambda: a(f"ds_read_b128 v[48:51], v{V_OL1} offset:{OST}"))
    a("s_waitcnt lgkmcnt(0)")
    a(f"buffer_store_dwordx4 v[44:47], v{V_OG0}, {R(SRD_WS)}, s29 offen sc1")
    if_wave(a, "lt", 2, lambda: a(f"buffer_store_dwordx4 v[48:51], v{V_OG1}, {R(SRD_WS)}, s29 offen sc1"))
    OFR, ACC, AF = 16, 56, 76
    def ldsA(s_):
        b = s_ & 1
        for mt in range(5):
            a(f"ds_read_b64_tr_b16 {v(AF+20*b+4*mt,2)}, v{V_WT} offset:{s_*5120 + 32*mt}")
            a(f"ds_read_b64_tr_b16 {v(AF+20*b+4*mt+2,2)}, v{V_WT} offset:{s_*5120 + 1280 + 32*mt}")
    lds_wait_imm(a, C_WOK, 3, sleep=0)
    ldsA(0)
    for r in range(20): a(f"v_mov_b32 v{ACC+r}, 0")
    a(f"s_mul_i32 s28, s{S_I}, 81920")
    a(f"s_mul_i32 s29, s{S_HH}, 20480")
    a(f"s_add_u32 s28, s28, s29")
    a(f"s_mul_i32 s29, s{S_G}, 10240")
    a(f"s_add_u32 s28, s28, s29")
    a(f"s_add_u32 s28, s28, {O_OFF}")
    a("s_waitcnt vmcnt(0)")
    stamp(a, "ostd")
    lds_add1_imm(a, C_OCNT)
    lds_wait_imm(a, C_OOK, 1, sleep=0)
    stamp(a, "h4ok")
    for s_ in range(10):
        a(f"buffer_load_dwordx4 {v(OFR+4*s_,4)}, v{V_TL16}, {R(SRD_WS)}, s28 offen offset:{1024*(s_%4)} sc1")
        if s_ % 4 == 3: a(f"s_add_u32 s28, s28, 4096")
    for s_ in range(10):
        if s_ < 9:
            ldsA(s_ + 1); a(f"s_waitcnt lgkmcnt(10) vmcnt({9 - s_})")
        else:
            a("s_waitcnt lgkmcnt(0) vmcnt(0)")
        b = s_ & 1
        for mt in range(5):
            a(f"v_mfma_f32_16x16x32_bf16 {v(ACC+4*mt,4)}, {v(AF+20*b+4*mt,4)}, {v(OFR+4*s_,4)}, {v(ACC+4*mt,4)}")
    stamp(a, "oproj")
    YF, GV = 16, 30
    def pxw():
        a.nop(8)
        for mt in range(5): a(f"ds_write_b128 v{V_PX}, {v(ACC+4*mt,4)} offset:{1024*mt}")
        a("s_waitcnt lgkmcnt(0)")
    if_wave(a, "ge", 4, pxw)
    def ypre():
        for mt in range(5): a(f"ds_read_b64_tr_b16 {v(YF+2*mt,2)}, v{V_YT} offset:{2048*mt}")
        a(f"ds_read_b32 v{GV}, v{V_GA}")
        a("s_waitcnt lgkmcnt(0)")
        for mt in range(5):
            for hlf in range(2):
                yq = YF + 2*mt + hlf; qq = QT + 2*mt + hlf; d = 32 + 4*mt + 2*hlf
                a(f"v_lshlrev_b32 v{d}, 16, v{yq}")
                a(f"v_and_b32 v{d+1}, 0xffff0000, v{yq}")
                a(f"v_lshlrev_b32 v52, 16, v{qq}")
                a(f"v_and_b32 v53, 0xffff0000, v{qq}")
                a(f"v_mul_f32 v52, v52, v{GV}")
                a(f"v_mul_f32 v53, v53, v{GV}")
                a(f"v_mul_f32 v{d}, v{d}, v52")
                a(f"v_mul_f32 v{d+1}, v{d+1}, v53")
        a(f"v_sub_f32 v{GV+1}, 1.0, v{GV}")
    if_wave(a, "lt", 4, ypre)
    a("s_barrier")
    a(f"s_cmp_ge_u32 s{S_W}, 4")
    a(f"s_cbranch_scc1 f_fin")
    for mt in range(5): a(f"ds_read_b128 {v(AF+4*mt,4)}, v{V_PX} offset:{1024*mt}")
    for mt in range(5):
        a(f"s_waitcnt lgkmcnt({4-mt})")
        for r in range(4):
            a(f"v_add_f32 v{ACC+4*mt+r}, v{ACC+4*mt+r}, v{AF+4*mt+r}")
        for r in range(4):
            a(f"v_fmac_f32 v{32+4*mt+r}, v{ACC+4*mt+r}, v{GV+1}")
        a(f"v_cvt_pk_bf16_f32 v{100+2*mt}, v{32+4*mt}, v{32+4*mt+1}")
        a(f"v_cvt_pk_bf16_f32 v{100+2*mt+1}, v{32+4*mt+2}, v{32+4*mt+3}")
        a(f"buffer_store_dwordx2 {v(100+2*mt,2)}, v{V_OUT}, {R(SRD_OUT)}, 0 offen offset:{32*mt}")
    a(f"s_branch f_fin")

    a.label(PSTART)
    a("s_setprio 3")
    a(f"v_mov_b32 v4, 0")
    lead = a.newlabel("lead")
    def lead_fn():
        a(f"s_memrealtime s[28:29]")
        a("s_waitcnt lgkmcnt(0)")
        a(f"s_or_b32 s28, s28, 1")
        a(f"v_mov_b32 v5, s28")
        a(f"s_mov_b64 exec, 1")
        a(f"buffer_store_dword v5, v4, {R(SRD_DBG)}, 0 offen sc1")
        a(f"s_mov_b64 exec, -1")
    if_s(a, 2, "eq", 0, lead_fn)
    a(f"buffer_load_dword v20, v4, {R(SRD_DBG)}, 0 offen sc1")
    a(f"v_lshlrev_b32 v6, 21, v1")
    a(f"s_mov_b64 exec, 0xf")
    a(f"buffer_load_dword v8, v6, {R(SRD_WS)}, 0 offen offset:2048")
    a(f"s_mov_b64 exec, 0x3")
    a(f"buffer_load_dword v9, v6, {R(SRD_H)}, 0 offen")
    a(f"buffer_load_dword v10, v6, {R(SRD_OUT)}, 0 offen")
    a(f"s_mov_b64 exec, 0x1")
    a(f"buffer_load_dword v11, v6, {R(SRD_WO)}, 0 offen")
    a(f"s_mov_b64 exec, -1")
    a(f"v_lshlrev_b32 v5, 2, v1")
    a(f"v_add_u32 v7, {CNT}, v5")
    a(f"ds_write_b32 v7, v4")
    a(f"s_mov_b64 exec, -1")
    a("s_waitcnt lgkmcnt(0)")
    a("s_barrier")
    lds_wait_imm(a, C_UP, 4, sleep=0)
    PXF, PWF = 16, 48
    a(f"v_lshlrev_b32 v{T0}, 4, v1")
    a(f"v_add_u32 v{T1}, {UNIT_W}, v{T0}")
    for p_ in range(4):
        a(f"ds_read_b128 {v(PXF+8*p_,4)}, v{T1} offset:{UNIT_S*p_}")
        a(f"ds_read_b128 {v(PXF+8*p_+4,4)}, v{T1} offset:{UNIT_S*p_+1024}")
    a(f"s_lshl_b32 s28, s{S_I}, 1")
    a(f"s_bfe_u32 s29, s{S_J}, 0x10001")
    a(f"s_add_u32 s28, s28, s29")
    a(f"s_mul_i32 s29, s28, 3072")
    a(f"s_and_b32 s30, s{S_J}, 1")
    a("s_waitcnt lgkmcnt(0)")
    for p_ in range(1, 4):
        for r in range(8): a(f"v_add_f32 v{PXF+r}, v{PXF+r}, v{PXF+8*p_+r}")
    for r in range(4): a(f"v_cvt_pk_bf16_f32 v{PWF+r if r<2 else PWF+4+(r-2)}, v{PXF+2*r}, v{PXF+2*r+1}")
    a(f"v_mov_b32 v{PWF+6}, v{PWF}")
    a(f"v_mov_b32 v{PWF+7}, v{PWF+1}")
    a.nop(2)
    a(f"v_permlane32_swap_b32 v{PWF+6}, v{PWF+2}")
    a(f"v_permlane32_swap_b32 v{PWF+7}, v{PWF+3}")
    a(f"v_and_b32 v{T0}, 15, v1")
    a(f"v_bfe_u32 v{T1}, v1, 4, 1")
    labV2 = a.newlabel("stV"); labP = a.newlabel("pub")
    a(f"s_cmp_ge_u32 s{S_J}, 4")
    a(f"s_cbranch_scc1 {labV2}")
    a(f"s_lshl_b32 s31, s30, 4")
    a(f"v_add_u32 v{T0}, s31, v{T0}")
    a(f"v_lshlrev_b32 v{T1}, 5, v{T1}")
    a(f"v_add_u32 v{T1}, v{T1}, v{T0}")
    a(f"v_lshlrev_b32 v{T1}, 4, v{T1}")
    a(f"s_mov_b64 exec, 0xffffffff")
    a(f"buffer_store_dwordx4 {v(PWF,4)}, v{T1}, {R(SRD_WS)}, s29 offen sc1")
    a(f"s_mov_b64 exec, -1")
    a(f"v_lshlrev_b32 v{T0}, 3, v{T0}")
    a(f"v_add_u32 v{T0}, 1024, v{T0}")
    a(f"v_mov_b32 v{T1}, 1280")
    a(f"v_mov_b32 v{T2}, 0x3f803f80")
    a(f"v_mov_b32 v{T3}, 0x3f80")
    a(f"v_cmp_eq_u32 vcc, 16, v1")
    a.nop(2)
    a(f"v_cndmask_b32 v{T0}, v{T0}, v{T1}, vcc")
    a(f"v_cndmask_b32 v{PWF+4}, v{PWF+4}, v{T2}, vcc")
    a(f"v_cndmask_b32 v{PWF+5}, v{PWF+5}, v{T3}, vcc")
    a(f"s_mov_b32 s41, 0xffff")
    a(f"s_cmp_eq_u32 s30, 0")
    a(f"s_cselect_b32 s40, 0x1ffff, s41")
    a(f"s_mov_b32 s41, 0")
    a(f"s_mov_b64 exec, s[40:41]")
    a(f"buffer_store_dwordx2 {v(PWF+4,2)}, v{T0}, {R(SRD_WS)}, s29 offen sc1")
    a(f"s_mov_b64 exec, -1")
    a(f"s_branch {labP}")
    a.label(labV2)
    a(f"s_mul_i32 s31, s30, 672")
    a(f"s_add_u32 s31, s31, 1296")
    a(f"v_mul_u32_u24 v{T1}, 336, v{T1}")
    a(f"v_lshlrev_b32 v{T2}, 4, v{T0}")
    a(f"v_add_u32 v{T1}, v{T1}, v{T2}")
    a(f"v_add_u32 v{T1}, s31, v{T1}")
    a(f"s_mov_b64 exec, 0xffffffff")
    a(f"buffer_store_dwordx4 {v(PWF,4)}, v{T1}, {R(SRD_WS)}, s29 offen sc1")
    a(f"s_mov_b64 exec, -1")
    a(f"v_mov_b32 v{T2}, 0x3f803f80")
    a(f"v_cmp_eq_u32 vcc, 4, v{T0}")
    a.nop(2)
    a(f"v_cndmask_b32 v{PWF+4}, v{PWF+4}, v{T2}, vcc")
    a(f"v_cndmask_b32 v{PWF+5}, v{PWF+5}, v{T2}, vcc")
    a(f"v_mov_b32 v{PWF}, v{PWF+4}")
    a(f"v_mov_b32 v{PWF+1}, v{PWF+5}")
    a.nop(2)
    a(f"v_permlane32_swap_b32 v{PWF}, v{PWF+6}")
    a(f"v_permlane32_swap_b32 v{PWF+1}, v{PWF+7}")
    a(f"s_mov_b32 s40, 0x001f001f")
    a(f"s_mov_b32 s41, 0")
    a(f"s_mov_b64 exec, s[40:41]")
    a.nop(2)
    a(f"buffer_store_dwordx4 {v(PWF+4,4)}, v{T1}, {R(SRD_WS)}, s29 offen offset:256 sc1")
    a(f"s_mov_b64 exec, -1")
    a.label(labP)
    a(f"s_lshr_b32 s29, s28, 2")
    a(f"s_lshl_b32 s29, s29, 7")
    a(f"s_and_b32 s31, s28, 3")
    a(f"s_lshl_b32 s31, s31, 2")
    a(f"s_lshl_b32 s30, s30, 1")
    a(f"s_add_u32 s31, s31, s30")
    a(f"s_lshr_b32 s30, s{S_J}, 2")
    a(f"s_add_u32 s31, s31, s30")
    a(f"s_lshl_b32 s31, s31, 2")
    a(f"s_add_u32 s34, s29, s31")
    a(f"s_add_u32 s34, s34, {H1}")
    def push(nl, stride_sh, sbase):
        a(f"v_lshlrev_b32 v{T0}, {stride_sh}, v1")
        a(f"v_mov_b32 v{T1}, s{S_NONCE}")
        a(f"s_mov_b64 exec, {hex((1 << nl) - 1)}")
        a(f"buffer_store_dword v{T1}, v{T0}, {R(SRD_WS)}, s{sbase} offen sc1")
        a(f"s_mov_b64 exec, -1")
    def setw(addr):
        a(f"v_mov_b32 v12, {addr}")
        a(f"v_mov_b32 v13, 1")
        a(f"ds_write_b32 v12, v13")
    def ld(): a(f"buffer_load_dword v5, v4, {R(SRD_DBG)}, 0 offen sc1")
    def ck():
        a(f"v_readfirstlane_b32 s{S_NONCE}, v5")
        a("s_nop 3")
        a(f"s_cmp_lg_u32 s{S_NONCE}, 0")
    poll_global(a, ld, ck, sleep=0)
    push(8, 11, 34)
    stamp(a, "pflag")
    VKF = 6
    a(f"v_lshrrev_b32 v{VKF}, 2, v1")
    a(f"v_lshlrev_b32 v{VKF}, 7, v{VKF}")
    a(f"v_and_b32 v{T1}, 3, v1")
    a(f"v_lshlrev_b32 v{T1}, 4, v{T1}")
    a(f"v_add_u32 v{VKF}, v{VKF}, v{T1}")
    a(f"s_and_b32 s36, s2, 7")
    a(f"s_lshl_b32 s36, s36, 11")
    a(f"s_add_u32 s36, s36, {H1}")
    a(f"s_lshl_b32 s37, s{S_I}, 3")
    a(f"s_add_u32 s37, s37, s{S_J}")
    a(f"s_lshl_b32 s37, s37, 7")
    a(f"s_lshl_b32 s38, s{S_J}, 7")
    a(f"s_lshl_b32 s39, s{S_I}, 2")
    a(f"s_add_u32 s38, s38, s39")
    a(f"v_lshlrev_b32 v7, 2, v1")
    a(f"v_mov_b32 v14, {C_UCNT}")
    a(f"s_mov_b32 s35, 0")
    def service_step(with_barrier):
        l1 = a.newlabel("sv"); l2 = a.newlabel("sv"); l3 = a.newlabel("sv"); l4 = a.newlabel("sv")
        a(f"s_bitcmp1_b32 s35, 0")
        a(f"s_cbranch_scc1 {l1}")
        a(f"buffer_load_dwordx4 v[8:11], v{VKF}, {R(SRD_WS)}, s36 offen sc1")
        a.label(l1)
        a(f"ds_read_b32 v15, v14")
        a(f"s_add_u32 s29, s37, {H2}")
        a(f"buffer_load_dword v16, v7, {R(SRD_WS)}, s29 offen sc1")
        if with_barrier: a("s_barrier")
        a("s_waitcnt vmcnt(0) lgkmcnt(0)")
        a(f"s_bitcmp1_b32 s35, 0")
        a(f"s_cbranch_scc1 {l2}")
        a(f"s_mov_b64 s[40:41], -1")
        flags_check(a, 8, 4)
        a(f"s_cbranch_scc0 {l2}")
        setw(C_KVOK)
        stamp(a, "pkvok")
        a(f"s_or_b32 s35, s35, 1")
        a.label(l2)
        a(f"s_bitcmp1_b32 s35, 1")
        a(f"s_cbranch_scc1 {l3}")
        a(f"v_readfirstlane_b32 s42, v15")
        a("s_nop 3")
        a(f"s_cmp_lt_u32 s42, 8")
        a(f"s_cbranch_scc1 {l3}")
        a(f"s_add_u32 s29, s38, {H2}")
        push(32, 10, 29)
        a(f"s_or_b32 s35, s35, 2")
        a.label(l3)
        a(f"s_bitcmp1_b32 s35, 2")
        a(f"s_cbranch_scc1 {l4}")
        a(f"s_mov_b32 s40, -1")
        a(f"s_mov_b32 s41, 0")
        flags_check(a, 16, 1)
        a(f"s_cbranch_scc0 {l4}")
        setw(C_UOK)
        a(f"s_or_b32 s35, s35, 4")
        a.label(l4)
    lp = a.newlabel("svl"); dn = a.newlabel("svd")
    a(f"s_mov_b32 s33, 0")
    a.label(lp)
    a(f"s_cmp_eq_u32 s35, 7")
    a(f"s_cbranch_scc1 {dn}")
    service_step(False)
    a(f"s_add_u32 s33, s33, 1")
    a(f"s_cmp_lt_u32 s33, {POLL_MAX}")
    a(f"s_cbranch_scc1 {lp}")
    a.label(dn)
    stamp(a, "psvc")
    lds_wait_imm(a, C_CVD, 3, sleep=8)
    a(f"s_add_u32 s29, s38, {H3}")
    push(32, 10, 29)
    stamp(a, "pyflag")
    a(f"s_add_u32 s29, s37, {H3}")
    poll_flags(a, 7, "s29", 0xffffffff, 8, sleep=8)
    setw(C_YOK)
    stamp(a, "pyok")
    a("s_waitcnt lgkmcnt(0)")
    a("s_barrier")
    a("s_barrier")
    a("s_barrier")
    lds_wait_imm(a, C_OCNT, 8, sleep=0)
    a(f"s_lshl_b32 s29, s{S_I}, 10")
    a(f"s_lshl_b32 s30, s{S_J}, 2")
    a(f"s_add_u32 s29, s29, s30")
    a(f"s_add_u32 s29, s29, {H4}")
    push(8, 7, 29)
    a(f"s_add_u32 s29, s37, {H4}")
    poll_flags(a, 7, "s29", 0xff, 8, sleep=0)
    setw(C_OOK)
    a("s_waitcnt lgkmcnt(0)")
    a("s_barrier")
    a(f"s_branch f_fin")
    gen_loader(a)
    a.label("f_fin")
    if "stamp" in OPT:
        a("s_waitcnt vmcnt(0)")
        stamp(a, "end"); stamp(a, "rt1", True)
        stamp_flush(a)
    a.label(END)
    a("s_endpgm")
    a.L.append(kernel_desc(name, NVGPR))


def gen_loader(a):
    S_LI = 34
    a.label("f_lstart")
    a("s_setprio 3")
    a(f"s_sub_u32 s{S_LI}, s{S_W}, 9")
    VX, VW, VL16 = 112, 116, 121
    RB3, RB4, HR = 16, 64, 112
    a(f"v_lshlrev_b32 v{T3}, 4, v1")
    for t in range(7):
        a(f"s_add_u32 s28, s{S_LI}, {3*t}")
        a(f"s_cmp_lt_u32 s28, 11")
        a(f"s_cselect_b32 s30, 0, 11")
        a(f"s_cselect_b32 s31, 3, 0")
        a(f"s_sub_u32 s29, s28, s30")
        a(f"s_lshl_b32 s30, s29, 6")
        a(f"v_add_u32 v{T0}, s30, v1")
        div10(a, T0, T1, T0, T2)
        a(f"v_lshrrev_b32 v{T2}, 3, v{T1}")
        a(f"v_sub_u32 v{T0}, v{T0}, v{T2}")
        a(f"v_add_u32 v{T2}, 10, v{T0}")
        a(f"v_min_u32 v{T0}, v{T0}, v{T2}")
        a(f"v_lshlrev_b32 v{T0}, 4, v{T0}")
        a(f"s_lshl_b32 s30, s{S_I}, 6")
        a(f"s_sub_u32 s30, s30, s31")
        a(f"v_add_u32 v{T1}, s30, v{T1}")
        a(f"v_mul_lo_u32 v{T1}, v{T1}, s{S_1280}")
        a(f"v_add_u32 v{T0}, v{T0}, v{T1}")
        a(f"s_mul_i32 s30, s{S_J}, 160")
        a(f"v_add_u32 v{T0}, s30, v{T0}")
        a(f"s_lshl_b32 s29, s29, 10")
        lv = a.newlabel("uv"); ld_ = a.newlabel("ud")
        a(f"s_cmp_eq_u32 s31, 0")
        a(f"s_cbranch_scc1 {lv}")
        a(f"s_add_u32 m0, s29, {UT_K}")
        a(f"s_cmp_eq_u32 s28, 10")
        a(f"s_cselect_b32 s40, 0x3fffffff, -1")
        a(f"s_cselect_b32 s41, 0, -1")
        a(f"s_mov_b64 exec, s[40:41]")
        a(f"buffer_load_dwordx4 v{T0}, {R(SRD_K)}, 0 offen lds")
        a(f"s_mov_b64 exec, -1")
        a(f"s_branch {ld_}")
        a.label(lv)
        a(f"s_add_u32 m0, s29, {UT_V}")
        a(f"s_nop 0")
        a(f"buffer_load_dwordx4 v{T0}, {R(SRD_V)}, 0 offen lds")
        a.label(ld_)
    a("s_barrier")
    for k in range(4):
        a(f"v_lshrrev_b32 v{T0}, 4, v1")
        a(f"v_add_u32 v{T0}, {4*k}, v{T0}")
        a(f"v_xor_b32 v{T1}, v1, v{T0}")
        a(f"v_and_b32 v{T1}, 15, v{T1}")
        a(f"v_lshlrev_b32 v{T1}, 4, v{T1}")
        a(f"s_lshl_b32 s28, s{S_I}, 6")
        a(f"v_add_u32 v{T0}, s28, v{T0}")
        a(f"v_mul_lo_u32 v{T0}, v{T0}, s{S_1280}")
        a(f"v_add_u32 v{VX+k}, v{T0}, v{T1}")
    a(f"s_mul_i32 s29, s{S_J}, 160")
    for t in range(5):
        a(f"v_add_u32 v{T0}, {64*t}, v1")
        div10(a, T0, T1, T0, T2)
        a(f"v_lshlrev_b32 v{T0}, 4, v{T0}")
        a(f"v_and_b32 v{T2}, 0xfff8, v{T1}")
        a(f"v_bfe_u32 v{VL16}, v{T1}, 1, 2")
        a(f"v_or_b32 v{T2}, v{T2}, v{VL16}")
        a(f"v_and_b32 v{T1}, 1, v{T1}")
        a(f"v_lshlrev_b32 v{T1}, 2, v{T1}")
        a(f"v_or_b32 v{T2}, v{T2}, v{T1}")
        a(f"v_mul_lo_u32 v{T2}, v{T2}, s{S_1280}")
        a(f"v_add_u32 v{T2}, v{T2}, v{T0}")
        a(f"v_add_u32 v{VW+t}, s29, v{T2}")
    lists = [[("x", q) for q in range(12)],
             [("x", q) for q in range(12, 16)] + [("w", q) for q in range(8)],
             [("w", q) for q in range(8, 20)]]
    def ldoff(kind, q): return 1024*q if kind == "x" else 16384 + 1024*q
    def issue(lst, ch, dma_slot=None, regs=None):
        for n, (kind, q) in enumerate(lst):
            if kind == "x": srd_, vr, so = SRD_X, VX+(q&3), 256*ch + (q >> 2)*16*1280
            else: srd_, vr, so = SRD_WQ, VW+(q%5), 163840*ch + (q // 5)*40960
            a(f"s_mov_b32 s28, {so}")
            if dma_slot is not None:
                a(f"s_mov_b32 m0, {dma_slot*SLOT + ldoff(kind, q)}")
                a(f"s_nop 0")
                a(f"buffer_load_dwordx4 v{vr}, {R(srd_)}, s28 offen lds")
            else:
                a(f"buffer_load_dwordx4 {v(regs+4*n,4)}, v{vr}, {R(srd_)}, s28 offen")
    def signal(addr): lds_add1_imm(a, addr)
    LD_JOIN = a.newlabel("ldj")
    for li in range(3):
        nxt = a.newlabel("ldv")
        a(f"s_cmp_lg_u32 s{S_LI}, {li}")
        a(f"s_cbranch_scc1 {nxt}")
        L = lists[li]
        issue(L, 2, dma_slot=2)
        issue(L, 3, regs=RB3)
        issue(L, 4, regs=RB4)
        a("s_waitcnt vmcnt(36)"); signal(C_UTL)
        a("s_waitcnt vmcnt(24)"); signal(C_CL + 8)
        for (RBx, gate, cl, n_after, slot) in ((RB3, C_C0C, 12, 12, 0), (RB4, C_C1C, 16, 0, 1)):
            lds_wait_imm(a, gate, 8, sleep=1)
            a(f"v_add_u32 v{T2}, {slot*SLOT}, v{T3}")
            a(f"s_waitcnt vmcnt({n_after})")
            for n, (kind, q) in enumerate(L):
                a(f"ds_write_b128 v{T2}, {v(RBx+4*n,4)} offset:{ldoff(kind, q)}")
            signal(C_CL + cl)
        a(f"s_branch {LD_JOIN}")
        a.label(nxt)
    a.label(LD_JOIN)
    stamp(a, "ldone")
    def kv0():
        lds_wait_imm(a, C_KVOK, 1, sleep=1)
        a(f"s_and_b32 s28, s{S_ROT}, 7")
        a(f"s_lshl_b32 s28, s28, 2")
        a(f"s_lshl_b32 s29, s{S_LI}, 5")
        a(f"s_add_u32 s28, s28, s29")
        a(f"s_mul_i32 s28, s28, 3072")
        for k in range(12):
            a(f"buffer_load_dwordx4 {v(16+4*k,4)}, v{T3}, {R(SRD_WS)}, s28 offen offset:{1024*(k%4)} sc1")
            if k % 4 == 3: a(f"s_add_u32 s28, s28, 4096")
        a(f"s_mul_i32 s28, s{S_LI}, {RING_STRIDE}")
        a(f"v_add_u32 v{T2}, s28, v{T3}")
        lds_wait_imm(a, C_QG, 8, sleep=1)
        a("s_waitcnt vmcnt(0)")
        for b in range(4):
            a(f"ds_write_b128 v{T2}, {v(16+12*b,4)} offset:{b*BLK}")
            a(f"ds_write_b128 v{T2}, {v(16+12*b+4,4)} offset:{b*BLK+1024}")
        a(f"s_mov_b32 exec_hi, 0xff")
        for b in range(4):
            a(f"ds_write_b128 v{T2}, {v(16+12*b+8,4)} offset:{b*BLK+2048}")
        a(f"s_mov_b64 exec, -1")
        a(f"s_lshl_b32 s28, s{S_LI}, 4")
        a(f"s_add_u32 s28, s28, {C_FULL}")
        a(f"v_mov_b32 v{T0}, s28")
        a(f"v_mov_b32 v{T1}, 4")
        lds_add1(a, T0, T1)
        stamp(a, "kv0")
    if_s(a, S_LI, "lt", 2, kv0)
    a("s_setprio 0")
    def h_loads():
        a(f"s_lshl_b32 s28, s{S_CH}, 12")
        for q in range(4):
            a(f"s_add_u32 s29, s28, {1024*q}")
            for k in range(3):
                a(f"buffer_load_dwordx4 {v(HR+12*q+4*k,4)}, v{T3}, {R(SRD_H)}, s29 offen offset:{4*k}")
        a(f"s_lshr_b32 s30, s{S_CH}, 1")
        a(f"s_lshl_b32 s30, s30, 2")
        a(f"s_load_dword s88, s[{S_DPTR}:{S_DPTR+1}], s30")
    NOC = a.newlabel("noconv")
    a(f"s_cmp_ge_u32 s{S_LI}, s{S_NCH}")
    a(f"s_cbranch_scc1 {NOC}")
    h_loads()
    lds_wait_imm(a, C_QG, 8, sleep=2)
    stamp(a, "conv0")
    gen_conv(a, HR)
    a("s_waitcnt vmcnt(0)")
    a.label(NOC)
    signal(C_CVD)
    stamp(a, "conv1")
    WD = 16
    VL = 21
    a(f"v_lshlrev_b32 v{VL}, 4, v1")
    a(f"s_mul_i32 s29, s{S_J}, 160")
    for t in range(5):
        a(f"v_add_u32 v{T0}, {64*t}, v1")
        div10(a, T0, T1, T0, T2)
        a(f"v_lshlrev_b32 v{T0}, 4, v{T0}")
        a(f"v_and_b32 v{T2}, 0xfff3, v{T1}")
        a(f"v_bfe_u32 v{T3}, v{T1}, 2, 1")
        a(f"v_lshlrev_b32 v{T3}, 3, v{T3}")
        a(f"v_or_b32 v{T2}, v{T2}, v{T3}")
        a(f"v_bfe_u32 v{T3}, v{T1}, 3, 1")
        a(f"v_lshlrev_b32 v{T3}, 2, v{T3}")
        a(f"v_or_b32 v{T2}, v{T2}, v{T3}")
        a(f"v_mul_lo_u32 v{T2}, v{T2}, s{S_1280}")
        a(f"v_add_u32 v{T2}, v{T2}, v{T0}")
        a(f"v_add_u32 v{WD+t}, s29, v{T2}")
    lds_wait_imm(a, C_CVD, 3, sleep=8)
    lds_wait_imm(a, C_QG, 8, sleep=8)
    a(f"s_mul_i32 s28, s{S_LI}, {35*1024}")
    a(f"s_add_u32 s28, s28, {WOL}")
    a(f"s_mul_i32 s30, s{S_LI}, {7*32*1280}")
    a(f"s_cmp_eq_u32 s{S_LI}, 2")
    a(f"s_cselect_b32 s33, 6, 7")
    WL = a.newlabel("wol")
    a(f"s_mov_b32 s31, 0")
    a.label(WL)
    for t in range(5):
        a(f"s_add_u32 m0, s28, {1024*t}")
        a(f"s_nop 0")
        a(f"buffer_load_dwordx4 v{WD+t}, {R(SRD_WO)}, s30 offen lds")
    a(f"s_add_u32 s28, s28, 5120")
    a(f"s_add_u32 s30, s30, {32*1280}")
    a(f"s_add_u32 s31, s31, 1")
    a(f"s_cmp_lt_u32 s31, s33")
    a(f"s_cbranch_scc1 {WL}")
    a("s_waitcnt vmcnt(0)")
    signal(C_WOK)
    stamp(a, "woready")
    for k in range(3): a("s_barrier")
    YS = 32
    def ytile():
        a(f"v_lshrrev_b32 v{T2}, 3, v1")
        a(f"v_lshlrev_b32 v{T2}, 12, v{T2}")
        a(f"v_and_b32 v{T3}, 7, v1")
        a(f"v_lshlrev_b32 v{T3}, 4, v{T3}")
        a(f"v_add_u32 v{T2}, v{T2}, v{T3}")
        lds_wait_imm(a, C_YOK, 1, sleep=1)
        a(f"s_mul_i32 s28, s{S_J}, {80*4096}")
        a(f"s_lshl_b32 s29, s{S_I}, 7")
        a(f"s_add_u32 s28, s28, s29")
        a(f"s_add_u32 s28, s28, {YT_OFF}")
        a(f"s_mul_i32 s29, s{S_LI}, {5*8*4096}")
        a(f"s_add_u32 s28, s28, s29")
        for t in range(5):
            a(f"buffer_load_dwordx4 {v(YS+4*t,4)}, v{T2}, {R(SRD_WS)}, s28 offen sc1")
            a(f"s_add_u32 s28, s28, {8*4096}")
        a(f"s_mul_i32 s28, s{S_LI}, 5120")
        a(f"s_add_u32 s28, s28, {YL}")
        a(f"v_add_u32 v{T2}, s28, v{VL}")
        a("s_waitcnt vmcnt(0)")
        for t in range(5): a(f"ds_write_b128 v{T2}, {v(YS+4*t,4)} offset:{1024*t}")
    if_s(a, S_LI, "lt", 2, ytile)
    a("s_waitcnt vmcnt(0) lgkmcnt(0)")
    a("s_barrier")

def gen_conv(a, HR):
    URL = 16640
    CA, FA, FB, AD = 16, 48, 80, 112
    VA, VB, CT2, CT3 = 160, 161, 162, 163
    a(f"v_lshlrev_b32 v{T2}, 4, v1")
    a(f"v_add_u32 v{T3}, s{S_CB}, v{T2}")
    a("s_waitcnt vmcnt(0)")
    for q in range(4):
        X0, X1, X2 = HR+12*q, HR+12*q+4, HR+12*q+8
        C1, C3 = CA + 8*(q & 1), CA + 8*(q & 1) + 4
        for k in range(4):
            a(f"v_alignbit_b32 v{C1+k}, v{X1+k}, v{X0+k}, 16")
            a(f"v_alignbit_b32 v{C3+k}, v{X2+k}, v{X1+k}, 16")
        o = 1024 * q + 32
        a(f"ds_write_b128 v{T3}, {v(X0,4)} offset:{o}")
        a(f"ds_write_b128 v{T3}, {v(C1,4)} offset:{4160+o}")
        a(f"ds_write_b128 v{T3}, {v(X1,4)} offset:{8320+o}")
        a(f"ds_write_b128 v{T3}, {v(C3,4)} offset:{12480+o}")
    Z = CA + 16
    for k in range(4): a(f"v_mov_b32 v{Z+k}, 0")
    a(f"v_alignbit_b32 v{Z+4}, v{HR+4}, v{HR}, 16")
    a(f"v_lshlrev_b32 v{Z+5}, 16, v{HR}")
    a(f"v_mov_b32 v{Z+6}, v{HR}")
    a(f"v_lshrrev_b32 v{T0}, 1, v1")
    a(f"v_mul_u32_u24 v{T0}, 4160, v{T0}")
    a(f"v_and_b32 v{T1}, 1, v1")
    a(f"v_lshlrev_b32 v{T1}, 4, v{T1}")
    a(f"v_add_u32 v{T0}, v{T0}, v{T1}")
    a(f"v_add_u32 v{T0}, s{S_CB}, v{T0}")
    a(f"s_mov_b64 exec, 0xff")
    a(f"ds_write_b128 v{T0}, {v(Z,4)}")
    a(f"s_mov_b64 exec, 0xffffffff")
    a(f"ds_write_b128 v{T3}, {v(Z,4)} offset:{URL+4096}")
    a(f"s_mov_b64 exec, 1")
    a(f"ds_write_b32 v{T3}, v{Z+5} offset:{4160+28}")
    a(f"ds_write_b32 v{T3}, v{Z+6} offset:{8320+28}")
    a(f"ds_write_b32 v{T3}, v{Z+5} offset:{12480+24}")
    a(f"ds_write_b32 v{T3}, v{Z+4} offset:{12480+28}")
    a(f"s_mov_b64 exec, -1")
    a("s_waitcnt lgkmcnt(0)")
    a(f"v_mov_b32 v{FA}, v{T3}")
    a(f"v_mov_b32 v{FA+1}, v{T2}")
    lds_wait_imm(a, C_UOK, 1, sleep=2)
    a(f"s_lshl_b32 s28, s{S_CH}, 12")
    a(f"s_add_u32 s28, s28, {UR_OFF}")
    for q in range(4):
        a(f"s_add_u32 s29, s28, {1024*q}")
        a(f"buffer_load_dwordx4 {v(FB+4*q,4)}, v{FA+1}, {R(SRD_WS)}, s29 offen sc1")
    a(f"v_and_b32 v{T0}, 15, v1")
    a(f"v_lshrrev_b32 v{T1}, 4, v1")
    a(f"v_add_u32 v{CT2}, 1, v{T0}")
    a(f"v_and_b32 v{CT3}, 3, v{CT2}")
    a(f"v_mul_u32_u24 v{VA}, 4160, v{CT3}")
    a(f"v_lshrrev_b32 v{CT2}, 2, v{CT2}")
    a(f"v_lshlrev_b32 v{CT2}, 3, v{CT2}")
    a(f"v_lshlrev_b32 v{CT3}, 4, v{T1}")
    a(f"v_add_u32 v{VA}, v{VA}, v{CT2}")
    a(f"v_add_u32 v{VA}, v{VA}, v{CT3}")
    a(f"v_add_u32 v{VA}, s{S_CB}, v{VA}")
    a(f"v_lshlrev_b32 v{CT2}, 5, v{T0}")
    a(f"v_sub_u32 v{VB}, v{CT3}, v{CT2}")
    a(f"s_add_u32 s28, s{S_CB}, {URL + 480}")
    a(f"v_add_u32 v{VB}, s28, v{VB}")
    a(f"s_and_b32 s30, s{S_CH}, 1")
    a(f"s_lshl_b32 s30, s30, 4")
    a(f"s_lshr_b32 s88, s88, s30")
    a(f"s_and_b32 s88, s88, 0xffff")
    a(f"v_lshlrev_b32 v{T1}, 3, v{T1}")
    a(f"v_add_u32 v{T0}, v{T0}, v{T1}")
    a(f"v_sub_u32 v{T0}, 15, v{T0}")
    a(f"v_and_b32 v{T1}, 1, v{T0}")
    a(f"v_lshlrev_b32 v{T1}, 4, v{T1}")
    a(f"v_mov_b32 v{CT2}, s88")
    a(f"v_lshlrev_b32 v{CT2}, v{T1}, v{CT2}")
    a(f"v_lshrrev_b32 v{T0}, 1, v{T0}")
    for k in range(4):
        a(f"v_cmp_eq_u32 vcc, {k}, v{T0}")
        a.nop(2)
        a(f"v_cndmask_b32 v{AD+k}, 0, v{CT2}, vcc")
    for r in range(32): a(f"v_mov_b32 v{CA+r}, 0")
    a("s_waitcnt vmcnt(0)")
    for q in range(4):
        a(f"ds_write_b128 v{FA}, {v(FB+4*q,4)} offset:{URL + 1024*q}")
    a("s_waitcnt lgkmcnt(0)")
    stamp(a, "convm")
    a(f"s_mov_b32 s86, 0")
    PL = a.newlabel("convph")
    a.label(PL)
    a(f"ds_read_b64 {v(FA,2)}, v{VA}")
    a(f"ds_read_b64 {v(FA+2,2)}, v{VA} offset:8")
    for vv in range(8):
        a(f"ds_read_b128 {v(FB+4*vv,4)}, v{VB} offset:{512*(7-vv)}")
    for i in range(1, 3):
        a(f"ds_read_b64 {v(FA+4*i,2)}, v{VA} offset:{512*i}")
        a(f"ds_read_b64 {v(FA+4*i+2,2)}, v{VA} offset:{512*i+8}")
    a("s_waitcnt lgkmcnt(4)")
    for i in range(3, 8):
        a(f"ds_read_b64 {v(FA+4*i,2)}, v{VA} offset:{512*i}")
        a(f"ds_read_b64 {v(FA+4*i+2,2)}, v{VA} offset:{512*i+8}")
    for vv in range(8):
        a(f"v_mfma_f32_16x16x32_bf16 {v(CA+4*vv,4)}, {v(FA,4)}, {v(FB+4*vv,4)}, {v(CA+4*vv,4)}")
    lab = a.newlabel("noD")
    a(f"s_cmp_lg_u32 s86, 0")
    a(f"s_cbranch_scc1 {lab}")
    for vv in range(8):
        a(f"v_mfma_f32_16x16x32_bf16 {v(CA+4*vv,4)}, {v(AD,4)}, {v(FB+4*vv,4)}, {v(CA+4*vv,4)}")
    a.label(lab)
    a("s_waitcnt lgkmcnt(0)")
    for i in range(1, 8):
        for vv in range(8 - i):
            t = i + vv
            a(f"v_mfma_f32_16x16x32_bf16 {v(CA+4*t,4)}, {v(FA+4*i,4)}, {v(FB+4*vv,4)}, {v(CA+4*t,4)}")
    a(f"v_add_u32 v{VA}, 64, v{VA}")
    a(f"v_add_u32 v{VB}, 64, v{VB}")
    a(f"s_add_u32 s86, s86, 1")
    a(f"s_cmp_lt_u32 s86, 8")
    a(f"s_cbranch_scc1 {PL}")
    a(f"s_lshl_b32 s28, s{S_CH}, 12")
    a(f"s_add_u32 s28, s28, {YT_OFF}")
    a(f"v_and_b32 v{CT2}, 15, v1")
    a(f"v_lshlrev_b32 v{CT2}, 5, v{CT2}")
    a(f"v_lshrrev_b32 v{CT3}, 4, v1")
    a(f"v_lshlrev_b32 v{CT3}, 3, v{CT3}")
    a(f"v_add_u32 v{CT2}, v{CT2}, v{CT3}")
    a.nop(4)
    for t in range(8):
        a(f"v_cvt_pk_bf16_f32 v{FB+2*t}, v{CA+4*t}, v{CA+4*t+1}")
        a(f"v_cvt_pk_bf16_f32 v{FB+2*t+1}, v{CA+4*t+2}, v{CA+4*t+3}")
        a(f"buffer_store_dwordx2 {v(FB+2*t,2)}, v{CT2}, {R(SRD_WS)}, s28 offen offset:{512*t} sc1")

HEADER = """; gated_mix: fused single kernel (generated by dev/gen8.py, gen4 o-layout)
; @launch grid=(256,1,1) block=(768,1,1) lds=163840
.amdgcn_target "amdgcn-amd-amdhsa--gfx950"
.text
"""
if __name__ == "__main__":
    if len(sys.argv) > 2: OPT.update(sys.argv[2].split(","))
    a = Asm()
    gen(a)
    h = HEADER
    if STAMPS: h = h.replace(".amdgcn", "; STAMPS " + ",".join(STAMPS) + "\n.amdgcn")
    open(sys.argv[1], "w").write(h + a.text())
```

```python
import sys, struct
from asmlib import *

NAME = "gated_mix__ssm_conv_h3__grouped_kv_mqa__prompt"
KVF_OFF = 0
UR_OFF = 0x40000
YT_OFF = 0x2C0000
O_OFF = 0x540000
FL_OFF = 0x7C0000
H1 = FL_OFF
H2 = FL_OFF + 0x4000
H3 = FL_OFF + 0xC000
H4 = FL_OFF + 0x14000
ST_OFF = 0x800000
WS_USED = 0x900000
XB = 2048 * 640 * 2
QSCALE = (20 ** -0.5) * 1.4426950408889634
def f32bits(x): return struct.unpack("<I", struct.pack("<f", x))[0]
OPT = set()
POLL_MAX = 40000

SRD_X, SRD_WQ, SRD_WS, SRD_H = 4, 8, 12, 16
S_I, S_J, S_W, S_HH, S_G, S_NONCE, S_1280, S_ROT = 20, 21, 22, 23, 24, 25, 26, 27
SRD_K, SRD_V, SRD_SH, SRD_W, SRD_GW, SRD_WO, SRD_OUT, SRD_DBG = 44, 48, 52, 56, 60, 64, 68, 72
S_DPTR = 76
S_CH, S_NCH, S_CB = 83, 84, 85
SLOT = 36864
UT_K = 3 * SLOT
UT_V = UT_K + 10720
UNIT_W = 131552
UNIT_S = 6656
QXA = 131552 + 96
QXB = QXA + 8192
GWL = 159744
GP = GWL + 1280
G_L = 162048
CNT = G_L + 256
C_FULL, C_DONE = CNT, CNT + 32
C_KVOK, C_UCNT, C_CVD = CNT + 68, CNT + 72, CNT + 80
C_UOK, C_YOK, C_OCNT, C_OOK = CNT + 84, CNT + 88, CNT + 92, CNT + 96
C_UTL, C_UTC, C_UP, C_C0C, C_C1C, C_QG, C_WOK = CNT + 100, CNT + 104, CNT + 108, CNT + 112, CNT + 116, CNT + 120, CNT + 124
C_CL = CNT + 128
C_QXF = CNT + 160
C_PROG = CNT + 192
C_PD = CNT + 228
C_YW = CNT + 224
BLK = 2688
KVSLOT = 4 * BLK
RING_STRIDE = 2 * KVSLOT
CONVB = 43008
CHB = 21248
WOL = 43008
YL = 145408
OX = 0
OST = 24576
PX = 0
V_ST = 167
NVGPR = 168
T0, T1, T2, T3 = 2, 3, 164, 165

STAMPS = []
def stamp(a, name, real=False):
    if "stamp" not in OPT: return
    if name in STAMPS: idx = STAMPS.index(name)
    else:
        STAMPS.append(name); idx = len(STAMPS) - 1
    a(f"s_waitcnt lgkmcnt(0)")
    a(f"{'s_memrealtime' if real else 's_memtime'} s[98:99]")
    a(f"s_waitcnt lgkmcnt(0)")
    a(f"v_writelane_b32 v{V_ST}, s98, {idx}")
def stamp_flush(a):
    if "stamp" not in OPT: return
    a(f"s_mov_b64 exec, -1")
    a(f"s_mul_i32 s98, s2, 12")
    a(f"s_add_u32 s98, s98, s{S_W}")
    a(f"s_lshl_b32 s98, s98, 8")
    a(f"s_add_u32 s98, s98, {ST_OFF}")
    a(f"v_lshlrev_b32 v166, 2, v1")
    a(f"buffer_store_dword v{V_ST}, v166, s[{SRD_WS}:{SRD_WS+3}], s98 offen")
    a("s_waitcnt vmcnt(0)")

def R(b): return f"s[{b}:{b+3}]"

def poll_global(a, nload, check, sleep=1):
    lp = a.newlabel("poll"); dn = a.newlabel("pdone")
    a(f"s_mov_b32 s43, 0")
    a.label(lp)
    nload()
    a("s_waitcnt vmcnt(0)")
    check()
    a(f"s_cbranch_scc1 {dn}")
    a(f"s_add_u32 s43, s43, 1")
    a(f"s_cmp_lt_u32 s43, {POLL_MAX}")
    a(f"s_cbranch_scc0 {dn}")
    if sleep: a(f"s_sleep {sleep}")
    a(f"s_branch {lp}")
    a.label(dn)

def flags_check(a, vt, n):
    if n == 4:
        for k in range(4): a(f"v_xor_b32 v{vt+k}, s{S_NONCE}, v{vt+k}")
        a(f"v_or_b32 v{vt}, v{vt}, v{vt+1}")
        a(f"v_or_b32 v{vt+2}, v{vt+2}, v{vt+3}")
        a(f"v_or_b32 v{vt}, v{vt}, v{vt+2}")
        a(f"v_cmp_ne_u32 vcc, 0, v{vt}")
    else:
        a(f"v_cmp_ne_u32 vcc, s{S_NONCE}, v{vt}")
    a(f"s_nop 1")
    a(f"s_and_b64 vcc, vcc, s[40:41]")
    a(f"s_cmp_eq_u64 vcc, 0")
def poll_flags(a, vaddr, soff, lanes_mask, vt, n=1, sleep=1):
    def ld():
        if n == 1: a(f"buffer_load_dword v{vt}, v{vaddr}, {R(SRD_WS)}, {soff} offen sc1")
        else: a(f"buffer_load_dwordx4 {v(vt,4)}, v{vaddr}, {R(SRD_WS)}, {soff} offen sc1")
    a(f"s_mov_b32 s40, {lanes_mask & 0xffffffff}")
    a(f"s_mov_b32 s41, {(lanes_mask >> 32) & 0xffffffff}")
    poll_global(a, ld, lambda: flags_check(a, vt, n), sleep)

def lds_wait_ge(a, target, vt, vaddr, sleep=1):
    lp = a.newlabel("lw"); dn = a.newlabel("lwd")
    a(f"s_mov_b32 s43, 0")
    a.label(lp)
    a(f"ds_read_b32 v{vt}, v{vaddr}")
    a("s_waitcnt lgkmcnt(0)")
    a(f"v_readfirstlane_b32 s42, v{vt}")
    a("s_nop 3")
    a(f"s_cmp_ge_u32 s42, {target}")
    a(f"s_cbranch_scc1 {dn}")
    a(f"s_add_u32 s43, s43, 1")
    a(f"s_cmp_lt_u32 s43, {POLL_MAX * 8}")
    a(f"s_cbranch_scc0 {dn}")
    if sleep: a(f"s_sleep {sleep}")
    a(f"s_branch {lp}")
    a.label(dn)
def lds_wait_imm(a, addr, target, vt=T1, va=T0, sleep=1):
    a(f"v_mov_b32 v{va}, {addr}")
    lds_wait_ge(a, target, vt, va, sleep)
def lds_add1(a, vaddr, vone):
    a("s_mov_b64 exec, 1")
    a(f"ds_add_u32 v{vaddr}, v{vone}")
    a("s_mov_b64 exec, -1")
def lds_add1_imm(a, addr, va=T0, vo=T1):
    a(f"v_mov_b32 v{va}, {addr}")
    a(f"v_mov_b32 v{vo}, 1")
    lds_add1(a, va, vo)
def if_s(a, sreg, cmp, val, fn):
    lb = a.newlabel("ifw")
    inv = {"eq": "lg", "lt": "ge", "ge": "lt", "lg": "eq"}[cmp]
    a(f"s_cmp_{inv}_u32 s{sreg}, {val}")
    a(f"s_cbranch_scc1 {lb}")
    fn()
    a.label(lb)
def if_wave(a, cmp, val, fn): if_s(a, S_W, cmp, val, fn)

def div10(a, p, q, r, t):
    a(f"v_mul_u32_u24 v{q}, 6554, v{p}")
    a(f"v_lshrrev_b32 v{q}, 16, v{q}")
    a(f"v_mul_u32_u24 v{t}, 10, v{q}")
    a(f"v_sub_u32 v{r}, v{p}, v{t}")

def gen(a):
    name = NAME + "_kernel"
    a.L.append(kernel_header(name))
    END = "f_end"
    a(f"s_cmp_ge_u32 s2, 256")
    a(f"s_cbranch_scc1 {END}")
    a(f"s_load_dwordx16 s[76:91], s[0:1], 0")
    a(f"s_load_dwordx8 s[92:99], s[0:1], 64")
    a(f"s_load_dwordx4 s[28:31], s[0:1], 96")
    a(f"s_load_dwordx2 s[32:33], s[0:1], 112")
    a(f"v_lshrrev_b32 v1, 6, v0")
    a(f"s_and_b32 s{S_I}, s2, 7")
    a(f"s_lshl_b32 s{S_I}, s{S_I}, 2")
    a(f"s_lshr_b32 s{S_J}, s2, 6")
    a(f"s_add_u32 s{S_I}, s{S_I}, s{S_J}")
    a(f"s_lshr_b32 s{S_J}, s2, 3")
    a(f"s_and_b32 s{S_J}, s{S_J}, 7")
    a(f"v_readfirstlane_b32 s{S_W}, v1")
    a(f"v_and_b32 v1, 63, v0")
    a(f"s_movk_i32 s{S_1280}, 1280")
    a(f"s_add_u32 s{S_ROT}, s{S_I}, s{S_J}")
    a(f"s_and_b32 s{S_ROT}, s{S_ROT}, 7")
    a(f"s_and_b32 s{S_HH}, s{S_W}, 3")
    a(f"s_lshr_b32 s{S_G}, s{S_W}, 2")
    V_XD, V_WD, V_UST = 112, 113, 111
    HR = 116
    a(f"s_mul_i32 s37, s{S_I}, 3")
    a(f"s_lshl_b32 s34, s{S_I}, 1")
    a(f"s_add_u32 s34, s34, 16")
    a(f"s_cmp_lt_u32 s{S_I}, 16")
    a(f"s_cselect_b32 s35, s37, s34")
    a(f"s_cselect_b32 s36, 3, 2")
    a(f"s_mul_i32 s34, s{S_J}, 80")
    a(f"s_add_u32 s35, s35, s34")
    a(f"s_sub_u32 s38, s{S_W}, 9")
    a(f"s_add_u32 s35, s35, s38")
    a("s_waitcnt lgkmcnt(0)")
    srd(a, SRD_X, 76, XB)
    a(f"s_cmp_ge_u32 s{S_J}, 4")
    a(f"s_cselect_b32 s{SRD_W}, s94, s92")
    a(f"s_cselect_b32 s{SRD_W+1}, s95, s93")
    a(f"s_mov_b32 s{SRD_W+2}, 25600")
    a(f"s_mov_b32 s{SRD_W+3}, 0x00020000")
    srd(a, SRD_K, 78, XB)
    srd(a, SRD_V, 80, XB)
    srd(a, SRD_SH, 82, 640 * 4 * 2)
    srd(a, SRD_WS, 32, WS_USED)
    srd(a, SRD_DBG, 30, 256)
    srd(a, SRD_WQ, 90, 640 * 640 * 2)
    srd(a, SRD_GW, 98, 1280)
    srd(a, SRD_H, 84, XB)
    srd(a, SRD_WO, 96, 640 * 640 * 2)
    srd(a, SRD_OUT, 28, XB)
    a(f"s_mov_b32 s{S_DPTR}, s86")
    a(f"s_mov_b32 s{S_DPTR+1}, s87")
    a(f"s_mov_b32 s{S_CH}, s35")
    a(f"s_mov_b32 s{S_NCH}, s36")
    a(f"s_mul_i32 s{S_CB}, s38, {CHB}")
    a(f"s_add_u32 s{S_CB}, s{S_CB}, {CONVB}")
    if "stamp" in OPT: a(f"v_mov_b32 v{V_ST}, 0")
    stamp(a, "rt0", True); stamp(a, "t0")
    PSTART = "f_pstart"
    a(f"s_cmp_eq_u32 s{S_W}, 8")
    a(f"s_cbranch_scc1 {PSTART}")
    a(f"s_cmp_gt_u32 s{S_W}, 8")
    a(f"s_cbranch_scc1 f_lstart")

    XF, UACC, WFA, SH = 16, 4, 44, 36
    def unit_loads():
        a("s_setprio 2")
        a(f"s_and_b32 s28, s{S_J}, 3")
        a(f"s_lshl_b32 s28, s28, 4")
        a(f"s_lshl_b32 s29, s{S_I}, 6")
        a(f"s_add_u32 s28, s28, s29")
        a(f"v_and_b32 v{T0}, 15, v1")
        a(f"v_add_u32 v{T0}, s28, v{T0}")
        a(f"v_mul_lo_u32 v{T0}, v{T0}, s{S_1280}")
        a(f"v_lshrrev_b32 v{T1}, 4, v1")
        a(f"v_lshlrev_b32 v{T2}, 4, v{T1}")
        a(f"v_add_u32 v{T0}, v{T0}, v{T2}")
        a(f"s_mul_i32 s29, s{S_W}, 320")
        for s_ in range(5):
            a(f"buffer_load_dwordx4 {v(XF+4*s_,4)}, v{T0}, {R(SRD_X)}, s29 offen offset:{64*s_}")
        a(f"v_lshlrev_b32 v{T2}, 4, v1")
        a(f"s_mul_i32 s29, s{S_W}, 6400")
        a(f"s_mul_i32 s30, s{S_W}, {UNIT_S}")
        for q in range(7):
            a(f"s_add_u32 m0, s30, {UNIT_W + 1024*q}")
            a(f"s_add_u32 s31, s29, {1024*q}")
            if q == 6: a(f"s_mov_b64 exec, 0xffffffff")
            a(f"buffer_load_dwordx4 v{T2}, {R(SRD_W)}, s31 offen lds")
        a(f"s_mov_b64 exec, -1")
        a("s_setprio 0")
    if_wave(a, "lt", 4, unit_loads)
    a(f"v_lshrrev_b32 v{T0}, 3, v1")
    a(f"s_mul_i32 s28, s{S_W}, 5")
    a(f"v_add_u32 v{T0}, s28, v{T0}")
    a(f"s_mul_i32 s28, s{S_J}, 160")
    a(f"v_lshlrev_b32 v{T1}, 2, v{T0}")
    a(f"v_add_u32 v{T1}, s28, v{T1}")
    a(f"v_lshlrev_b32 v{T2}, 2, v{T1}")
    a(f"buffer_load_dwordx4 {v(SH,4)}, v{T2}, {R(SRD_SH)}, 0 offen")
    a(f"v_lshlrev_b32 v{V_UST}, 11, v{T1}")
    a(f"v_and_b32 v{T2}, 7, v1")
    a(f"v_lshlrev_b32 v{T2}, 3, v{T2}")
    a(f"s_lshl_b32 s28, s{S_I}, 6")
    a(f"v_add_u32 v{T2}, s28, v{T2}")
    a(f"v_lshlrev_b32 v{T2}, 1, v{T2}")
    a(f"v_sub_u32 v{V_UST}, v{V_UST}, v{T2}")
    a(f"v_add_u32 v{V_UST}, {UR_OFF + 4080}, v{V_UST}")
    a(f"v_lshrrev_b32 v{T0}, 4, v1")
    a(f"s_lshl_b32 s28, s{S_W}, 2")
    a(f"v_add_u32 v{T0}, s28, v{T0}")
    a(f"v_xor_b32 v{T1}, v1, v{T0}")
    a(f"v_and_b32 v{T1}, 15, v{T1}")
    a(f"v_lshlrev_b32 v{T1}, 4, v{T1}")
    a(f"s_lshl_b32 s28, s{S_I}, 6")
    a(f"v_add_u32 v{T0}, s28, v{T0}")
    a(f"v_mul_lo_u32 v{T0}, v{T0}, s{S_1280}")
    a(f"v_add_u32 v{V_XD}, v{T0}, v{T1}")
    a(f"s_mul_i32 s29, s{S_J}, 160")
    a(f"s_lshl_b32 s28, s{S_W}, 6")
    for t in range(3):
        a(f"v_add_u32 v{T0}, s28, v1")
        if t: a(f"v_add_u32 v{T0}, {512*t}, v{T0}")
        div10(a, T0, T1, T0, T2)
        a(f"v_lshlrev_b32 v{T0}, 4, v{T0}")
        a(f"v_and_b32 v{T2}, 0xfff8, v{T1}")
        a(f"v_bfe_u32 v{T3}, v{T1}, 1, 2")
        a(f"v_or_b32 v{T2}, v{T2}, v{T3}")
        a(f"v_and_b32 v{T1}, 1, v{T1}")
        a(f"v_lshlrev_b32 v{T1}, 2, v{T1}")
        a(f"v_or_b32 v{T2}, v{T2}, v{T1}")
        a(f"v_mul_lo_u32 v{T2}, v{T2}, s{S_1280}")
        a(f"v_add_u32 v{T2}, v{T2}, v{T0}")
        a(f"v_add_u32 v{V_WD+t}, s29, v{T2}")
    def dma_chunk(ch, slot):
        base = slot * SLOT
        a(f"s_lshl_b32 s28, s{S_W}, 10")
        for t in range(2):
            a(f"s_add_u32 m0, s28, {base + 8192*t}")
            a(f"s_mov_b32 s29, {256*ch + 32*1280*t}")
            a(f"buffer_load_dwordx4 v{V_XD}, {R(SRD_X)}, s29 offen lds")
        a(f"s_mov_b32 s29, {163840*ch}")
        for t in range(3):
            def one(t=t):
                a(f"s_add_u32 m0, s28, {base + 16384 + 8192*t}")
                a(f"s_nop 0")
                a(f"buffer_load_dwordx4 v{V_WD+t}, {R(SRD_WQ)}, s29 offen lds")
            if t < 2: one()
            else: if_wave(a, "lt", 4, one)
    def wait_vm(nA, nB):
        la = a.newlabel("wa"); lb = a.newlabel("wb")
        a(f"s_cmp_lt_u32 s{S_W}, 4")
        a(f"s_cbranch_scc1 {la}")
        a(f"s_waitcnt vmcnt({nB})")
        a(f"s_branch {lb}")
        a.label(la)
        a(f"s_waitcnt vmcnt({nA})")
        a.label(lb)
    NA, NB = 5, 4
    def gw():
        a(f"s_mul_i32 s28, s{S_HH}, 320")
        a(f"s_add_u32 m0, s28, {GWL}")
        a(f"v_lshlrev_b32 v{T0}, 4, v1")
        a(f"s_mov_b64 exec, 0xfffff")
        a(f"buffer_load_dwordx4 v{T0}, {R(SRD_GW)}, s28 offen lds")
        a(f"s_mov_b64 exec, -1")
    if_wave(a, "ge", 4, gw)
    dma_chunk(0, 0); dma_chunk(1, 1)
    a("s_barrier")
    def unit_compute():
        a(f"v_lshrrev_b32 v{T1}, 4, v1")
        a(f"v_bfe_u32 v{T2}, v1, 2, 2")
        a(f"v_lshlrev_b32 v{T1}, 3, v{T1}")
        a(f"v_add_u32 v{T2}, v{T2}, v{T1}")
        a(f"v_mul_u32_u24 v{T2}, 40, v{T2}")
        a(f"v_and_b32 v{T3}, 3, v1")
        a(f"v_lshlrev_b32 v{T3}, 3, v{T3}")
        a(f"v_add_u32 v{T2}, v{T2}, v{T3}")
        a(f"s_mul_i32 s30, s{S_W}, {UNIT_S}")
        a(f"s_add_u32 s30, s30, {UNIT_W}")
        a(f"v_add_u32 v{T2}, s30, v{T2}")
        for r in range(8): a(f"v_mov_b32 v{UACC+r}, 0")
        a(f"s_waitcnt vmcnt({1 + 2*NA})")
        stamp(a, "unitld")
        for s_ in range(5):
            for dt in range(2):
                for jj in range(2):
                    a(f"ds_read_b64_tr_b16 {v(WFA+8*s_+4*dt+2*jj,2)}, v{T2} offset:{1280*s_ + 160*jj + 32*dt}")
            if s_ == 2: a("s_waitcnt lgkmcnt(4)")
        labV = a.newlabel("kindV"); labD = a.newlabel("kindD")
        a("s_waitcnt lgkmcnt(0)")
        a(f"s_cmp_ge_u32 s{S_J}, 4")
        a(f"s_cbranch_scc1 {labV}")
        for kind in range(2):
            for s_ in range(5):
                for dt in range(2):
                    w_ = v(WFA+8*s_+4*dt, 4); x_ = v(XF+4*s_, 4)
                    A_, B_ = (w_, x_) if kind == 0 else (x_, w_)
                    a(f"v_mfma_f32_16x16x32_bf16 {v(UACC+4*dt,4)}, {A_}, {B_}, {v(UACC+4*dt,4)}")
            if kind == 0:
                a(f"s_branch {labD}")
                a.label(labV)
        a.label(labD)
        a.nop(8)
        a(f"s_mul_i32 s29, s{S_W}, {UNIT_S}")
        a(f"s_add_u32 s29, s29, {UNIT_W}")
        a(f"v_lshlrev_b32 v{T0}, 4, v1")
        a(f"v_add_u32 v{T1}, s29, v{T0}")
        a(f"ds_write_b128 v{T1}, {v(UACC,4)}")
        a(f"ds_write_b128 v{T1}, {v(UACC+4,4)} offset:1024")
        lds_add1_imm(a, C_UP)
    if_wave(a, "lt", 4, unit_compute)
    V_XA, V_WA, V_GWA, V_QXP = 24, 32, 33, 34
    QACC, GACC, GW, QXF, QWF = 44, 60, 76, 84, 96
    a(f"v_and_b32 v{T0}, 31, v1")
    a(f"s_lshl_b32 s28, s{S_G}, 5")
    a(f"v_add_u32 v{T0}, s28, v{T0}")
    a(f"v_lshrrev_b32 v{T1}, 5, v1")
    a(f"v_and_b32 v{T2}, 15, v{T0}")
    a(f"v_xor_b32 v{T2}, v{T2}, v{T1}")
    a(f"v_lshlrev_b32 v{T2}, 4, v{T2}")
    a(f"v_lshlrev_b32 v{T0}, 8, v{T0}")
    a(f"v_add_u32 v{V_XA}, v{T0}, v{T2}")
    for s_ in range(1, 8): a(f"v_xor_b32 v{V_XA+s_}, {32*s_}, v{V_XA}")
    a(f"v_bfe_u32 v{T0}, v1, 2, 2")
    a(f"v_lshlrev_b32 v{T0}, 1, v{T0}")
    a(f"v_lshlrev_b32 v{T2}, 3, v{T1}")
    a(f"v_add_u32 v{T0}, v{T0}, v{T2}")
    a(f"v_mul_u32_u24 v{T0}, 160, v{T0}")
    a(f"v_and_b32 v{T2}, 3, v1")
    a(f"v_lshlrev_b32 v{T2}, 3, v{T2}")
    a(f"v_and_b32 v{T3}, 16, v1")
    a(f"v_cmp_ne_u32 vcc, 0, v{T3}")
    a(f"s_mul_i32 s28, s{S_HH}, 40")
    a(f"s_add_u32 s28, s28, 16384")
    a(f"v_mov_b32 v{T3}, 32")
    a(f"v_cndmask_b32 v{T2}, v{T2}, v{T3}, vcc")
    a(f"v_add_u32 v{T0}, v{T0}, v{T2}")
    a(f"v_add_u32 v{V_WA}, s28, v{T0}")
    for r in range(16):
        a(f"v_mov_b32 v{QACC+r}, 0"); a(f"v_mov_b32 v{GACC+r}, 0")
    a(f"v_lshlrev_b32 v{T1}, 4, v{T1}")
    a(f"s_lshl_b32 s28, s{S_HH}, 5")
    a(f"s_add_u32 s28, s28, {GWL}")
    a(f"v_add_u32 v{V_GWA}, s28, v{T1}")
    def q_chunk(ch, slot):
        off = (slot & 1) * SLOT
        def loads(s_):
            b = s_ % 3
            a(f"ds_read_b128 {v(QXF+4*b,4)}, v{V_XA+s_} offset:{off}")
            a(f"ds_read_b64_tr_b16 {v(QWF+4*b,2)}, v{V_WA} offset:{off + 2560*s_}")
            a(f"ds_read_b64_tr_b16 {v(QWF+4*b+2,2)}, v{V_WA} offset:{off + 2560*s_ + 160}")
        a(f"ds_read_b128 {v(GW,4)}, v{V_GWA} offset:{128*(2*ch)}")
        a(f"ds_read_b128 {v(GW+4,4)}, v{V_GWA} offset:{128*(2*ch+1)}")
        loads(0); loads(1)
        for s_ in range(8):
            if s_ < 6:
                loads(s_+2); a("s_waitcnt lgkmcnt(6)")
            elif s_ == 6: a("s_waitcnt lgkmcnt(3)")
            else: a("s_waitcnt lgkmcnt(0)")
            b = s_ % 3
            a(f"v_mfma_f32_32x32x16_bf16 {v(QACC,16)}, {v(QWF+4*b,4)}, {v(QXF+4*b,4)}, {v(QACC,16)}")
            lg = a.newlabel("ng")
            a(f"s_cmp_lg_u32 s{S_HH}, {s_ & 3}")
            a(f"s_cbranch_scc1 {lg}")
            a(f"v_mfma_f32_32x32x16_bf16 {v(GACC,16)}, {v(GW+4*(s_>>2),4)}, {v(QXF+4*b,4)}, {v(GACC,16)}")
            a.label(lg)
    def bump(delta):
        op = "v_add_u32" if delta > 0 else "v_subrev_u32"
        for s_ in range(8): a(f"{op} v{V_XA+s_}, {abs(delta)}, v{V_XA+s_}")
        a(f"{op} v{V_WA}, {abs(delta)}, v{V_WA}")
    def uprep():
        KD, VD = 16, 28
        a(f"v_lshrrev_b32 v{T0}, 3, v1")
        a(f"s_mul_i32 s28, s{S_W}, 5")
        a(f"v_add_u32 v{T0}, s28, v{T0}")
        a(f"v_and_b32 v{T1}, 7, v1")
        a(f"v_lshrrev_b32 v{T2}, 2, v{T0}")
        a(f"v_add_u32 v{T2}, v{T2}, v{T1}")
        a(f"v_and_b32 v{T0}, 3, v{T0}")
        a(f"v_lshlrev_b32 v{T0}, 2, v{T0}")
        a(f"v_mul_u32_u24 v{T1}, 1280, v{T1}")
        a(f"v_add_u32 v{T0}, v{T0}, v{T1}")
        a(f"v_add_u32 v{T0}, {UT_K}, v{T0}")
        for (dst, add) in ((108, 0), (109, 1)):
            a(f"v_add_u32 v{T3}, {add}, v{T2}")
            a(f"v_subrev_u32 v{T1}, 10, v{T3}")
            a(f"v_min_u32 v{T3}, v{T3}, v{T1}")
            a(f"v_lshlrev_b32 v{T3}, 4, v{T3}")
            a(f"v_add_u32 v{dst}, v{T0}, v{T3}")
        lds_wait_imm(a, C_UTL, 3, sleep=1)
        stamp(a, "utl")
        for r in range(8): a(f"ds_read_b32 v{KD+r}, v108 offset:{160*r}")
        for r in range(8, 11): a(f"ds_read_b32 v{KD+r}, v109 offset:{160*r}")
        a("s_waitcnt lgkmcnt(4)")
        for r in range(8): a(f"ds_read_b32 v{VD+r}, v108 offset:{10720 + 160*r}")
        a("s_waitcnt lgkmcnt(0)")
        lds_add1_imm(a, C_UTC)
        KA_, KB_, WA_, WB_, UA, UB, UT = 44, 56, 68, 72, 76, 84, 40
        for r in range(11):
            a(f"v_lshlrev_b32 v{KA_+r}, 16, v{KD+r}")
            a(f"v_and_b32 v{KB_+r}, 0xffff0000, v{KD+r}")
        for (W, base) in ((WA_, SH), (WB_, SH + 2)):
            a(f"v_lshlrev_b32 v{W}, 16, v{base}")
            a(f"v_and_b32 v{W+1}, 0xffff0000, v{base}")
            a(f"v_lshlrev_b32 v{W+2}, 16, v{base+1}")
            a(f"v_and_b32 v{W+3}, 0xffff0000, v{base+1}")
        for e_ in range(8):
            for (U, Kf, W, lo) in ((UA, KA_, WA_, True), (UB, KB_, WB_, False)):
                a(f"v_mul_f32 v{U+e_}, v{Kf+e_+3}, v{W}")
                for jx in range(1, 4):
                    a(f"v_fmac_f32 v{U+e_}, v{Kf+e_+3-jx}, v{W+jx}")
                if lo: a(f"v_lshlrev_b32 v{UT}, 16, v{VD+e_}")
                else: a(f"v_and_b32 v{UT}, 0xffff0000, v{VD+e_}")
                a(f"v_mul_f32 v{U+e_}, v{U+e_}, v{UT}")
        for (U, O_, off) in ((UA, KD, 0), (UB, KD + 4, 4096)):
            for i in range(4):
                a(f"v_cvt_pk_bf16_f32 v{O_+i}, v{U+7-2*i}, v{U+6-2*i}")
        a(f"s_mov_b32 exec_hi, 0xff")
        a(f"buffer_store_dwordx4 {v(KD,4)}, v{V_UST}, {R(SRD_WS)}, 0 offen sc1")
        a(f"v_add_u32 v{V_UST}, 4096, v{V_UST}")
        a(f"buffer_store_dwordx4 {v(KD+4,4)}, v{V_UST}, {R(SRD_WS)}, 0 offen sc1")
        a(f"s_mov_b64 exec, -1")
        stamp(a, "udone")
    def wait_chunk(ch):
        if ch < 2:
            if ch == 0: wait_vm(NA, NB)
            else: a("s_waitcnt vmcnt(0)")
            lds_add1_imm(a, C_CL + 4*ch)
            lds_wait_imm(a, C_CL + 4*ch, 8, sleep=0)
        else:
            lds_wait_imm(a, C_CL + 4*ch, 3, sleep=1)
        stamp(a, f"cl{ch}")
    wait_chunk(0)
    q_chunk(0, 0)
    lds_add1_imm(a, C_C0C)
    wait_chunk(1)
    q_chunk(1, 1)
    lds_add1_imm(a, C_C1C)
    bump(2 * SLOT)
    wait_chunk(2)
    q_chunk(2, 2)
    bump(-2 * SLOT)
    wait_chunk(3)
    q_chunk(3, 0)
    wait_chunk(4)
    q_chunk(4, 1)
    stamp(a, "qdone")

    QF16, QF8, QG16, QG8 = 4, 8, 10, 14
    a.nop(16)
    a(f"s_mov_b32 s28, {hex(f32bits(QSCALE))}")
    for r in range(12): a(f"v_mul_f32 v{QACC+r}, s28, v{QACC+r}")
    for r in range(4): a(f"v_cvt_pk_bf16_f32 v{QF16+r}, v{QACC+2*r}, v{QACC+2*r+1}")
    for r in range(2): a(f"v_cvt_pk_bf16_f32 v{QF8+r}, v{QACC+8+2*r}, v{QACC+8+2*r+1}")
    a(f"v_cmp_gt_u32 vcc, 32, v1")
    a(f"s_lshl_b32 s28, s{S_W}, 10")
    a(f"v_lshlrev_b32 v{T2}, 4, v1")
    for r in range(2): a(f"v_cndmask_b32 v{QF8+r}, 0, v{QF8+r}, vcc")
    a(f"v_add_u32 v{T2}, s28, v{T2}")
    a(f"v_lshrrev_b32 v{T3}, 1, v{T2}")
    a(f"v_xor_b32 v{V_QXP}, 4096, v{T2}")
    a(f"v_xor_b32 v{V_QXP+1}, 2048, v{T3}")
    lds_wait_imm(a, C_PD, 1, sleep=1)
    a(f"ds_write_b128 v{T2}, {v(QF16,4)} offset:{QXA & 0xffff}" if False else f"v_add_u32 v{T2}, {QXA}, v{T2}")
    a(f"v_add_u32 v{T3}, {QXB}, v{T3}")
    a(f"v_add_u32 v{V_QXP}, {QXA}, v{V_QXP}")
    a(f"v_add_u32 v{V_QXP+1}, {QXB}, v{V_QXP+1}")
    a(f"ds_write_b128 v{T2}, {v(QF16,4)}")
    a(f"ds_write_b64 v{T3}, {v(QF8,2)}")
    a(f"s_lshl_b32 s28, s{S_W}, 7")
    a(f"s_add_u32 s28, s28, {GP}")
    a(f"v_lshlrev_b32 v{T1}, 2, v1")
    a(f"v_add_u32 v{T1}, s28, v{T1}")
    a(f"s_mov_b64 exec, 0xffffffff")
    a(f"ds_write_b32 v{T1}, v{GACC}")
    a(f"s_mov_b64 exec, -1")
    a(f"s_lshl_b32 s28, s{S_W}, 2")
    a(f"s_add_u32 s29, s28, {C_QXF}")
    a(f"v_mov_b32 v{T0}, s29")
    a(f"v_mov_b32 v{T1}, 1")
    lds_add1(a, T0, T1)
    a(f"s_xor_b32 s28, s28, 16")
    a(f"s_add_u32 s28, s28, {C_QXF}")
    a(f"v_mov_b32 v{T0}, s28")
    lds_wait_ge(a, 1, T1, T0, sleep=1)
    a(f"ds_read_b128 {v(QG16,4)}, v{V_QXP}")
    a(f"ds_read_b64 {v(QG8,2)}, v{V_QXP+1}")
    a("s_waitcnt lgkmcnt(0)")
    lds_add1_imm(a, C_QG)
    def gate_fin():
        lds_wait_imm(a, C_QG, 8, sleep=1)
        a(f"v_lshrrev_b32 v{T0}, 5, v1")
        a(f"v_lshlrev_b32 v{T0}, 9, v{T0}")
        a(f"v_and_b32 v{T1}, 31, v1")
        a(f"v_lshlrev_b32 v{T1}, 2, v{T1}")
        a(f"v_add_u32 v{T0}, v{T0}, v{T1}")
        a(f"v_add_u32 v{T0}, {GP}, v{T0}")
        for k in range(4): a(f"ds_read_b32 v{96+k}, v{T0} offset:{128*k}")
        a("s_waitcnt lgkmcnt(0)")
        a(f"v_add_f32 v96, v96, v97")
        a(f"v_add_f32 v98, v98, v99")
        a(f"v_add_f32 v96, v96, v98")
        a(f"v_mul_f32 v96, {hex(f32bits(-1.4426950408889634))}, v96")
        a(f"v_exp_f32 v96, v96")
        a.nop(1)
        a(f"v_add_f32 v96, 1.0, v96")
        a(f"v_rcp_f32 v96, v96")
        a(f"v_lshlrev_b32 v{T0}, 2, v1")
        a(f"v_add_u32 v{T0}, {G_L}, v{T0}")
        a.nop(1)
        a(f"ds_write_b32 v{T0}, v96")
    if_wave(a, "eq", 7, gate_fin)
    stamp(a, "qg")

    SF, SG = 16, 32
    P = 48
    OF, OG = 56, 72
    K16, K8, V0, V1 = 88, 92, 96, 100
    AK16, AK8, AV, AK16N, AK8N, AVN = 104, 105, 106, 107, 108, 109
    V_L16, V_ONE, V_CFW, V_CD, V_KW, V_CT = 110, 111, 112, 113, 114, 115
    KVST, KVST2 = 116, 16
    V_CFR = 128
    V_STG, V_OL0, V_OG0, V_OL1, V_OG1, V_OUT, V_WT, V_YT, V_GA, V_PX, V_TL16 = range(129, 140)
    QT, YS = 140, 150
    S_T, S_BLK, S_SLOT, S_NXT, S_FT, S_DT = 34, 35, 36, 37, 38, 39
    S_RB, S_M2, S_P1, S_DL, S_WB = 78, 79, 80, 81, 82
    S_CFB, S_CA, S_CBB = 89, 90, 91
    def tail_addrs():
        a(f"v_lshlrev_b32 v{V_TL16}, 4, v1")
        a(f"v_and_b32 v{T0}, 31, v1")
        a(f"v_mul_u32_u24 v{T0}, 160, v{T0}")
        a(f"v_lshrrev_b32 v{T1}, 5, v1")
        a(f"v_lshlrev_b32 v{T1}, 3, v{T1}")
        a(f"v_add_u32 v{T0}, v{T0}, v{T1}")
        a(f"s_mul_i32 s28, s{S_HH}, 40")
        a(f"s_mul_i32 s29, s{S_G}, 5120")
        a(f"s_add_u32 s28, s28, s29")
        a(f"s_add_u32 s28, s28, {OST}")
        a(f"v_add_u32 v{V_STG}, s28, v{T0}")
        for t, (vl, vg) in enumerate(((V_OL0, V_OG0), (V_OL1, V_OG1))):
            a(f"s_add_u32 s28, s{S_W}, {8*t}")
            a(f"s_lshl_b32 s28, s28, 2")
            a(f"v_lshrrev_b32 v{T0}, 4, v1")
            a(f"v_add_u32 v{T0}, s28, v{T0}")
            div10(a, T0, T1, T0, T2)
            a(f"v_and_b32 v{T2}, 15, v1")
            a(f"v_lshl_add_u32 v{T3}, v{T1}, 4, v{T2}")
            a(f"v_mul_u32_u24 v{T3}, 160, v{T3}")
            a(f"v_lshl_add_u32 v{vl}, v{T0}, 4, v{T3}")
            a(f"v_mul_u32_u24 v{T1}, 20480, v{T1}")
            a(f"v_lshl_add_u32 v{T1}, v{T0}, 8, v{T1}")
            a(f"v_lshl_add_u32 v{vg}, v{T2}, 4, v{T1}")
        a(f"v_and_b32 v{T0}, 15, v1")
        a(f"s_lshl_b32 s29, s{S_HH}, 4")
        a(f"s_lshl_b32 s28, s{S_I}, 6")
        a(f"s_add_u32 s28, s28, s29")
        a(f"v_add_u32 v{T1}, s28, v{T0}")
        a(f"v_mul_lo_u32 v{T1}, v{T1}, s{S_1280}")
        a(f"v_lshrrev_b32 v{T2}, 4, v1")
        a(f"v_lshlrev_b32 v{T3}, 3, v{T2}")
        a(f"v_add_u32 v{T1}, v{T1}, v{T3}")
        a(f"s_mul_i32 s28, s{S_J}, 160")
        a(f"v_add_u32 v{V_OUT}, s28, v{T1}")
        a(f"v_lshlrev_b32 v{T0}, 2, v{T0}")
        a(f"s_lshl_b32 s28, s{S_HH}, 6")
        a(f"s_add_u32 s28, s28, {G_L}")
        a(f"v_add_u32 v{V_GA}, s28, v{T0}")
        a(f"v_lshrrev_b32 v{T0}, 5, v1")
        a(f"v_lshlrev_b32 v{T0}, 4, v{T0}")
        a(f"v_bfe_u32 v{T1}, v1, 4, 1")
        a(f"v_lshlrev_b32 v{T1}, 2, v{T1}")
        a(f"v_add_u32 v{T0}, v{T0}, v{T1}")
        a(f"v_bfe_u32 v{T1}, v1, 2, 2")
        a(f"v_add_u32 v{T0}, v{T0}, v{T1}")
        a(f"v_mul_u32_u24 v{T0}, 160, v{T0}")
        a(f"v_and_b32 v{T1}, 3, v1")
        a(f"v_lshlrev_b32 v{T1}, 3, v{T1}")
        a(f"v_add_u32 v{T0}, v{T0}, v{T1}")
        a(f"s_mul_i32 s28, s{S_G}, 51200")
        a(f"s_add_u32 s28, s28, {WOL}")
        a(f"v_add_u32 v{V_WT}, s28, v{T0}")
        a(f"v_bfe_u32 v{T0}, v1, 2, 4")
        a(f"v_lshlrev_b32 v{T0}, 7, v{T0}")
        a(f"v_add_u32 v{T0}, v{T0}, v{T1}")
        a(f"s_lshl_b32 s28, s{S_HH}, 5")
        a(f"s_add_u32 s28, s28, {YL}")
        a(f"v_add_u32 v{V_YT}, s28, v{T0}")
        a(f"s_mul_i32 s28, s{S_HH}, 5120")
        a(f"s_add_u32 s28, s28, {PX}")
        a(f"v_add_u32 v{V_PX}, s28, v{V_TL16}")
        def qld():
            for mt in range(5):
                a(f"buffer_load_dwordx2 {v(QT+2*mt,2)}, v{V_OUT}, {R(SRD_X)}, 0 offen offset:{32*mt}")
        if_wave(a, "lt", 4, qld)
    def ring_addrs():
        a(f"s_mul_i32 s{S_RB}, s{S_G}, {RING_STRIDE}")
        a(f"v_lshlrev_b32 v{V_L16}, 4, v1")
        a(f"v_mov_b32 v{V_ONE}, 1")
        a(f"s_lshl_b32 s28, s{S_G}, 4")
        a(f"s_add_u32 s{S_CFB}, s28, {C_FULL}")
        a(f"s_mul_i32 s29, s{S_HH}, {BLK}")
        a(f"s_add_u32 s{S_WB}, s{S_RB}, s29")
        a(f"v_add_u32 v{AK16}, s{S_RB}, v{V_L16}")
        a(f"v_and_b32 v{T0}, 31, v1")
        a(f"v_lshlrev_b32 v{T1}, 3, v{T0}")
        a(f"v_add_u32 v{T1}, 1024, v{T1}")
        a(f"v_mov_b32 v{AK8}, 1280")
        a(f"v_cmp_gt_u32 vcc, 32, v1")
        a(f"v_min_u32 v{T2}, 20, v{T0}")
        a(f"v_subrev_u32 v{AV}, 16, v{T0}")
        a(f"v_cndmask_b32 v{AK8}, v{AK8}, v{T1}, vcc")
        a(f"v_add_u32 v{AK8}, s{S_RB}, v{AK8}")
        a(f"v_cmp_lt_u32 vcc, 27, v{T0}")
        a.nop(2)
        a(f"v_cndmask_b32 v{T2}, v{T2}, v{AV}, vcc")
        a(f"v_lshlrev_b32 v{T2}, 4, v{T2}")
        a(f"v_lshrrev_b32 v{AV}, 5, v1")
        a(f"v_mul_u32_u24 v{AV}, 336, v{AV}")
        a(f"v_add_u32 v{AV}, v{AV}, v{T2}")
        a(f"v_add_u32 v{AV}, 1296, v{AV}")
        a(f"v_add_u32 v{AV}, s{S_RB}, v{AV}")
        for cur, nxt in ((AK16, AK16N), (AK8, AK8N), (AV, AVN)):
            a(f"v_add_u32 v{nxt}, {KVSLOT}, v{cur}")
    def blk_off(t, g=None):
        a(f"s_add_u32 s28, s{S_ROT}, {t}")
        a(f"s_and_b32 s28, s28, 7")
        a(f"s_lshl_b32 s28, s28, 2")
        if g is None:
            a(f"s_lshl_b32 s29, s{S_G}, 5")
            a(f"s_add_u32 s28, s28, s29")
        elif g: a(f"s_add_u32 s28, s28, {32*g}")
        a(f"s_add_u32 s28, s28, s{S_HH}")
        a(f"s_mul_i32 s{S_BLK}, s28, 3072")
    def kv_load(dst):
        for q in range(3):
            a(f"buffer_load_dwordx4 {v(dst+4*q,4)}, v{V_L16}, {R(SRD_WS)}, s{S_BLK} offen offset:{1024*q} sc1")
    def kv_write(src):
        a(f"ds_write_b128 v{V_KW}, {v(src,4)}")
        a(f"ds_write_b128 v{V_KW}, {v(src+4,4)} offset:1024")
        a(f"s_mov_b32 exec_hi, 0xff")
        a(f"ds_write_b128 v{V_KW}, {v(src+8,4)} offset:2048")
        a(f"s_mov_b64 exec, -1")
    uprep()
    tail_addrs()
    ring_addrs()
    lds_wait_imm(a, C_KVOK, 1, sleep=1)
    stamp(a, "kvok")
    blk_off(1); kv_load(KVST)
    a(f"v_mov_b32 v{V_CFW}, s{S_CFB}")
    for r in range(16):
        a(f"v_mov_b32 v{OF+r}, 0"); a(f"v_mov_b32 v{OG+r}, 0")
    for r in range(8): a(f"v_mov_b32 v{P+r}, 0")
    for r in range(4): a(f"v_mov_b32 v{V1+r}, 0")
    for r in range(12, 16): a(f"v_mov_b32 v{SG+r}, 0")
    a("s_waitcnt vmcnt(0)")
    lds_add1_imm(a, C_UCNT)
    lds_wait_ge(a, 4, V_CT, V_CFW, sleep=1)
    stamp(a, "full0")
    a(f"ds_read_b128 {v(K16,4)}, v{AK16}")
    a(f"ds_read_b64 {v(K8,2)}, v{AK8}")
    a(f"ds_read_b128 {v(V0,4)}, v{AV}")
    a("s_waitcnt lgkmcnt(0)")
    a(f"v_mfma_f32_32x32x16_bf16 {v(SF,16)}, {v(K16,4)}, {v(QF16,4)}, 0")
    a(f"v_mfma_f32_32x32x8_bf16 {v(SF,16)}, {v(K8,2)}, {v(QF8,2)}, {v(SF,16)}")
    a(f"s_mov_b32 s{S_T}, 0")
    a(f"s_mov_b32 s{S_SLOT}, {KVSLOT}")
    a(f"s_mov_b32 s{S_FT}, 4")
    a(f"s_mov_b32 s{S_DT}, 0")
    a(f"s_mov_b32 s{S_CA}, 4")
    a(f"s_mov_b32 s{S_DL}, {(-KVSLOT) & 0xffffffff}")
    def cnt_addrs():
        a(f"s_add_u32 s28, s{S_CFB}, s{S_CA}")
        a(f"v_mov_b32 v{V_CFW}, s28")
        a(f"v_add_u32 v{V_CD}, 32, v{V_CFW}")
    cnt_addrs()
    a.nop(8)
    V_PG, V_PGP, V_PT = 150, 151, 152
    a(f"s_lshl_b32 s28, s{S_W}, 2")
    a(f"s_add_u32 s29, s28, {C_PROG}")
    a(f"v_mov_b32 v{V_PG}, s29")
    a(f"s_xor_b32 s28, s28, 16")
    a(f"s_add_u32 s28, s28, {C_PROG}")
    a(f"v_mov_b32 v{V_PGP}, s28")
    a("s_setprio 1")
    stamp(a, "loop0")
    LOOP = "f_attn"
    if "align" in OPT: a(".p2align 6")
    a.label(LOOP)
    e = lambda S, i: a(f"v_exp_f32 v{S+i}, v{S+i}")
    c = lambda S, i: a(f"v_cvt_pk_bf16_f32 v{P+i}, v{S+2*i}, v{S+2*i+1}")
    def check_cnt(target, retry_addr):
        ok = a.newlabel("ok")
        a(f"v_readfirstlane_b32 s42, v{V_CT}")
        a("s_nop 3")
        a(f"s_cmp_ge_u32 s42, {target}")
        a(f"s_cbranch_scc1 {ok}")
        lds_wait_ge(a, target, V_CT, retry_addr, sleep=1)
        a.label(ok)
    for b in range(4):
        last = (b == 3)
        kA16, kA8, kAV, koff = (AK16N, AK8N, AVN, 0) if last else (AK16, AK8, AV, (b+1)*BLK)
        extra = b in (1, 2) or (b == 3 and "nolag" not in OPT)
        c(SG, 6); c(SG, 7)
        a(f"v_mfma_f32_32x32x16_bf16 {v(SG,16)}, {v(K16,4)}, {v(QG16,4)}, 0")
        a(f"ds_read_b128 {v(K16,4)}, v{kA16} offset:{koff}")
        if b == 1: a(f"ds_read_b32 v{V_CT}, v{V_CD}")
        if b == 2: a(f"ds_read_b32 v{V_CT}, v{V_CFW}")
        if b == 3 and "nolag" not in OPT: a(f"ds_read_b32 v{V_PT}, v{V_PGP}")
        for i in range(0, 4): e(SF, i)
        c(SF, 0); c(SF, 1)
        a(f"v_mfma_f32_32x32x16_bf16 {v(OG,16)}, {v(V1,4)}, {v(P+4,4)}, {v(OG,16)}")
        a(f"ds_read_b128 {v(V1,4)}, v{AV} offset:{b*BLK + 672}")
        for i in range(4, 8): e(SF, i)
        c(SF, 2); c(SF, 3)
        a(f"v_mfma_f32_32x32x8_bf16 {v(SG,16)}, {v(K8,2)}, {v(QG8,2)}, {v(SG,16)}")
        a(f"ds_read_b64 {v(K8,2)}, v{kA8} offset:{koff}")
        for i in range(8, 12): e(SF, i)
        c(SF, 4); c(SF, 5)
        a(f"s_waitcnt lgkmcnt({4 if extra else 3})")
        a(f"v_mfma_f32_32x32x16_bf16 {v(OF,16)}, {v(V0,4)}, {v(P,4)}, {v(OF,16)}")
        for i in range(12, 16): e(SF, i)
        c(SF, 6); c(SF, 7)
        a("s_waitcnt lgkmcnt(0)")
        a(f"v_mfma_f32_32x32x16_bf16 {v(SF,16)}, {v(K16,4)}, {v(QF16,4)}, 0")
        if b == 0:
            if_s(a, S_T, "lg", 0, lambda: lds_add1(a, V_CD, V_ONE))
        if b == 1:
            lb = a.newlabel("nw")
            a(f"s_cmp_ge_u32 s{S_T}, 7")
            a(f"s_cbranch_scc1 {lb}")
            check_cnt(f"s{S_DT}", V_CD)
            a(f"s_add_u32 s29, s{S_WB}, s{S_SLOT}")
            a(f"v_add_u32 v{V_KW}, s29, v{V_L16}")
            a("s_waitcnt vmcnt(0)")
            kv_write(KVST)
            lds_add1(a, V_CFW, V_ONE)
            a(f"s_cmp_ge_u32 s{S_T}, 6")
            a(f"s_cbranch_scc1 {lb}")
            a(f"s_add_u32 s30, s{S_T}, 2")
            blk_off("s30")
            kv_load(KVST)
            a.label(lb)
        if b == 2:
            lb = a.newlabel("nf")
            a(f"s_cmp_ge_u32 s{S_T}, 7")
            a(f"s_cbranch_scc1 {lb}")
            check_cnt(f"s{S_FT}", V_CFW)
            a.label(lb)
        for i in range(0, 4): e(SG, i)
        c(SG, 0); c(SG, 1)
        a(f"v_mfma_f32_32x32x16_bf16 {v(OF,16)}, {v(V1,4)}, {v(P+4,4)}, {v(OF,16)}")
        for i in range(4, 8): e(SG, i)
        c(SG, 2); c(SG, 3)
        a(f"v_mfma_f32_32x32x8_bf16 {v(SF,16)}, {v(K8,2)}, {v(QF8,2)}, {v(SF,16)}")
        for i in range(8, 12): e(SG, i)
        c(SG, 4); c(SG, 5)
        a(f"v_mfma_f32_32x32x16_bf16 {v(OG,16)}, {v(V0,4)}, {v(P,4)}, {v(OG,16)}")
        a(f"ds_read_b128 {v(V0,4)}, v{kAV} offset:{koff}")
        for i in range(12, 16): e(SG, i)
    a(f"s_add_u32 s{S_T}, s{S_T}, 1")
    if "nolag" not in OPT:
        a(f"v_mov_b32 v{V_CT}, s{S_T}")
        a(f"v_readfirstlane_b32 s42, v{V_PT}")
        a("s_mov_b64 exec, 1")
        a(f"ds_write_b32 v{V_PG}, v{V_CT}")
        a("s_mov_b64 exec, -1")
        lpa = a.newlabel("pa"); lpb = a.newlabel("pb")
        a(f"s_cmp_gt_u32 s{S_T}, s42")
        a(f"s_cbranch_scc1 {lpa}")
        a("s_setprio 2")
        a(f"s_branch {lpb}")
        a.label(lpa)
        a("s_setprio 1")
        a.label(lpb)
    a(f"s_xor_b32 s{S_CA}, s{S_CA}, 4")
    a(f"s_xor_b32 s{S_SLOT}, s{S_SLOT}, {KVSLOT}")
    a(f"s_cmp_eq_u32 s{S_CA}, 0")
    a(f"s_cselect_b32 s28, 4, 0")
    a(f"s_add_u32 s{S_FT}, s{S_FT}, s28")
    a(f"s_add_u32 s{S_DT}, s{S_DT}, s28")
    cnt_addrs()
    for cur, nxt in ((AK16, AK16N), (AK8, AK8N), (AV, AVN)):
        a(f"v_mov_b32 v{cur}, v{nxt}")
        a(f"v_add_u32 v{nxt}, s{S_DL}, v{nxt}")
    a(f"s_sub_u32 s{S_DL}, 0, s{S_DL}")
    if "stampc" in OPT:
        for k in range(8):
            nm = f"c{k}"
            if nm not in STAMPS: STAMPS.append(nm)
        base = STAMPS.index("c0")
        a(f"s_memtime s[98:99]")
        a(f"s_add_u32 m0, s{S_T}, {base - 1}")
        a(f"s_waitcnt lgkmcnt(0)")
        a(f"v_writelane_b32 v{V_ST}, s98, m0")
    a(f"s_cmp_lt_u32 s{S_T}, 8")
    a(f"s_cbranch_scc1 {LOOP}")
    stamp(a, "loopE")
    c(SG, 6); c(SG, 7)
    a(f"s_mul_i32 s28, s{S_W}, 3072")
    a(f"s_add_u32 s28, s28, {OX}")
    a(f"v_add_u32 v{T0}, s28, v{V_L16}")
    a(f"s_xor_b32 s29, s{S_W}, 4")
    a(f"s_mul_i32 s29, s29, 3072")
    a(f"s_add_u32 s29, s29, {OX}")
    a(f"v_add_u32 v{T1}, s29, v{V_L16}")
    a(f"v_mfma_f32_32x32x16_bf16 {v(OG,16)}, {v(V1,4)}, {v(P+4,4)}, {v(OG,16)}")
    a("s_setprio 2")
    a("s_waitcnt lgkmcnt(0)")
    a("s_barrier")
    a.nop(12)
    for q in range(3): a(f"ds_write_b128 v{T0}, {v(OG+4*q,4)} offset:{1024*q}")
    a("s_waitcnt lgkmcnt(0)")
    a("s_barrier")
    stamp(a, "J1")
    PB = 16
    for q in range(3): a(f"ds_read_b128 {v(PB+4*q,4)}, v{T1} offset:{1024*q}")
    a("s_waitcnt lgkmcnt(0)")
    for r in range(12): a(f"v_add_f32 v{OF+r}, v{OF+r}, v{PB+r}")
    a(f"v_mov_b32 v40, v{OF+8}")
    a(f"v_mov_b32 v41, v{OF+8}")
    a.nop(2)
    a(f"v_permlane32_swap_b32 v40, v41")
    a.nop(2)
    a(f"v_rcp_f32 v41, v41")
    a.nop(1)
    for r in range(12): a(f"v_mul_f32 v{OF+r}, v{OF+r}, v41")
    for r in range(6): a(f"v_cvt_pk_bf16_f32 v{104+r}, v{OF+2*r}, v{OF+2*r+1}")
    a(f"ds_write_b64 v{V_STG}, v[104:105]")
    a(f"ds_write_b64 v{V_STG}, v[106:107] offset:16")
    a(f"s_mov_b64 exec, 0xffffffff")
    a(f"ds_write_b64 v{V_STG}, v[108:109] offset:32")
    a(f"s_mov_b64 exec, -1")
    TAILJ = "f_tailj"
    a.label(TAILJ)
    a(f"s_mul_i32 s29, s{S_I}, 81920")
    a(f"s_mul_i32 s30, s{S_J}, 2560")
    a(f"s_add_u32 s29, s29, s30")
    a(f"s_add_u32 s29, s29, {O_OFF}")
    a("s_waitcnt lgkmcnt(0)")
    a("s_barrier")
    a(f"ds_read_b128 v[44:47], v{V_OL0} offset:{OST}")
    if_wave(a, "lt", 2, lambda: a(f"ds_read_b128 v[48:51], v{V_OL1} offset:{OST}"))
    a("s_waitcnt lgkmcnt(0)")
    a(f"buffer_store_dwordx4 v[44:47], v{V_OG0}, {R(SRD_WS)}, s29 offen sc1")
    if_wave(a, "lt", 2, lambda: a(f"buffer_store_dwordx4 v[48:51], v{V_OG1}, {R(SRD_WS)}, s29 offen sc1"))
    OFR, ACC, AF = 16, 56, 76
    def ldsA(s_):
        b = s_ & 1
        for mt in range(5):
            a(f"ds_read_b64_tr_b16 {v(AF+20*b+4*mt,2)}, v{V_WT} offset:{s_*5120 + 32*mt}")
            a(f"ds_read_b64_tr_b16 {v(AF+20*b+4*mt+2,2)}, v{V_WT} offset:{s_*5120 + 1280 + 32*mt}")
    lds_wait_imm(a, C_WOK, 3, sleep=0)
    ldsA(0)
    for r in range(20): a(f"v_mov_b32 v{ACC+r}, 0")
    a(f"s_mul_i32 s28, s{S_I}, 81920")
    a(f"s_mul_i32 s29, s{S_HH}, 20480")
    a(f"s_add_u32 s28, s28, s29")
    a(f"s_mul_i32 s29, s{S_G}, 10240")
    a(f"s_add_u32 s28, s28, s29")
    a(f"s_add_u32 s28, s28, {O_OFF}")
    a("s_waitcnt vmcnt(0)")
    stamp(a, "ostd")
    lds_add1_imm(a, C_OCNT)
    lds_wait_imm(a, C_OOK, 1, sleep=0)
    stamp(a, "h4ok")
    for s_ in range(10):
        a(f"buffer_load_dwordx4 {v(OFR+4*s_,4)}, v{V_TL16}, {R(SRD_WS)}, s28 offen offset:{1024*(s_%4)} sc1")
        if s_ % 4 == 3: a(f"s_add_u32 s28, s28, 4096")
    for s_ in range(10):
        if s_ < 9:
            ldsA(s_ + 1); a(f"s_waitcnt lgkmcnt(10) vmcnt({9 - s_})")
        else:
            a("s_waitcnt lgkmcnt(0) vmcnt(0)")
        b = s_ & 1
        for mt in range(5):
            a(f"v_mfma_f32_16x16x32_bf16 {v(ACC+4*mt,4)}, {v(AF+20*b+4*mt,4)}, {v(OFR+4*s_,4)}, {v(ACC+4*mt,4)}")
    stamp(a, "oproj")
    YF, GV = 16, 30
    def pxw():
        a.nop(8)
        for mt in range(5): a(f"ds_write_b128 v{V_PX}, {v(ACC+4*mt,4)} offset:{1024*mt}")
        a("s_waitcnt lgkmcnt(0)")
    if_wave(a, "ge", 4, pxw)
    def ypre():
        lds_wait_imm(a, C_YW, 2, T1, T0, sleep=0)
        for mt in range(5): a(f"ds_read_b64_tr_b16 {v(YF+2*mt,2)}, v{V_YT} offset:{2048*mt}")
        a(f"ds_read_b32 v{GV}, v{V_GA}")
        a("s_waitcnt lgkmcnt(0)")
        for mt in range(5):
            for hlf in range(2):
                yq = YF + 2*mt + hlf; qq = QT + 2*mt + hlf; d = 32 + 4*mt + 2*hlf
                a(f"v_lshlrev_b32 v{d}, 16, v{yq}")
                a(f"v_and_b32 v{d+1}, 0xffff0000, v{yq}")
                a(f"v_lshlrev_b32 v52, 16, v{qq}")
                a(f"v_and_b32 v53, 0xffff0000, v{qq}")
                a(f"v_mul_f32 v52, v52, v{GV}")
                a(f"v_mul_f32 v53, v53, v{GV}")
                a(f"v_mul_f32 v{d}, v{d}, v52")
                a(f"v_mul_f32 v{d+1}, v{d+1}, v53")
        a(f"v_sub_f32 v{GV+1}, 1.0, v{GV}")
    if_wave(a, "lt", 4, ypre)
    a("s_barrier")
    a(f"s_cmp_ge_u32 s{S_W}, 4")
    a(f"s_cbranch_scc1 f_fin")
    for mt in range(5): a(f"ds_read_b128 {v(AF+4*mt,4)}, v{V_PX} offset:{1024*mt}")
    for mt in range(5):
        a(f"s_waitcnt lgkmcnt({4-mt})")
        for r in range(4):
            a(f"v_add_f32 v{ACC+4*mt+r}, v{ACC+4*mt+r}, v{AF+4*mt+r}")
        for r in range(4):
            a(f"v_fmac_f32 v{32+4*mt+r}, v{ACC+4*mt+r}, v{GV+1}")
        a(f"v_cvt_pk_bf16_f32 v{100+2*mt}, v{32+4*mt}, v{32+4*mt+1}")
        a(f"v_cvt_pk_bf16_f32 v{100+2*mt+1}, v{32+4*mt+2}, v{32+4*mt+3}")
        a(f"buffer_store_dwordx2 {v(100+2*mt,2)}, v{V_OUT}, {R(SRD_OUT)}, 0 offen offset:{32*mt}")
    a(f"s_branch f_fin")

    a.label(PSTART)
    a("s_setprio 3")
    a(f"v_mov_b32 v4, 0")
    lead = a.newlabel("lead")
    def lead_fn():
        a(f"s_memrealtime s[28:29]")
        a("s_waitcnt lgkmcnt(0)")
        a(f"s_or_b32 s28, s28, 1")
        a(f"v_mov_b32 v5, s28")
        a(f"s_mov_b64 exec, 1")
        a(f"buffer_store_dword v5, v4, {R(SRD_DBG)}, 0 offen sc1")
        a(f"s_mov_b64 exec, -1")
    if_s(a, 2, "eq", 0, lead_fn)
    a(f"buffer_load_dword v20, v4, {R(SRD_DBG)}, 0 offen sc1")
    a(f"v_lshlrev_b32 v6, 21, v1")
    a(f"s_mov_b64 exec, 0xf")
    a(f"buffer_load_dword v8, v6, {R(SRD_WS)}, 0 offen offset:2048")
    a(f"s_mov_b64 exec, 0x3")
    a(f"buffer_load_dword v9, v6, {R(SRD_H)}, 0 offen")
    a(f"buffer_load_dword v10, v6, {R(SRD_OUT)}, 0 offen")
    a(f"s_mov_b64 exec, 0x1")
    a(f"buffer_load_dword v11, v6, {R(SRD_WO)}, 0 offen")
    a(f"s_mov_b64 exec, -1")
    a(f"v_lshlrev_b32 v5, 2, v1")
    a(f"v_add_u32 v7, {CNT}, v5")
    a(f"ds_write_b32 v7, v4")
    a(f"s_mov_b64 exec, -1")
    a("s_waitcnt lgkmcnt(0)")
    a("s_barrier")
    lds_wait_imm(a, C_UP, 4, sleep=0)
    PXF, PWF = 16, 48
    a(f"v_lshlrev_b32 v{T0}, 4, v1")
    a(f"v_add_u32 v{T1}, {UNIT_W}, v{T0}")
    for p_ in range(4):
        a(f"ds_read_b128 {v(PXF+8*p_,4)}, v{T1} offset:{UNIT_S*p_}")
        a(f"ds_read_b128 {v(PXF+8*p_+4,4)}, v{T1} offset:{UNIT_S*p_+1024}")
    a(f"s_lshl_b32 s28, s{S_I}, 1")
    a(f"s_bfe_u32 s29, s{S_J}, 0x10001")
    a(f"s_add_u32 s28, s28, s29")
    a(f"s_mul_i32 s29, s28, 3072")
    a(f"s_and_b32 s30, s{S_J}, 1")
    a("s_waitcnt lgkmcnt(0)")
    a(f"v_mov_b32 v12, {C_PD}")
    a(f"v_mov_b32 v13, 1")
    a(f"ds_write_b32 v12, v13")
    for p_ in range(1, 4):
        for r in range(8): a(f"v_add_f32 v{PXF+r}, v{PXF+r}, v{PXF+8*p_+r}")
    for r in range(4): a(f"v_cvt_pk_bf16_f32 v{PWF+r if r<2 else PWF+4+(r-2)}, v{PXF+2*r}, v{PXF+2*r+1}")
    a(f"v_mov_b32 v{PWF+6}, v{PWF}")
    a(f"v_mov_b32 v{PWF+7}, v{PWF+1}")
    a.nop(2)
    a(f"v_permlane32_swap_b32 v{PWF+6}, v{PWF+2}")
    a(f"v_permlane32_swap_b32 v{PWF+7}, v{PWF+3}")
    a(f"v_and_b32 v{T0}, 15, v1")
    a(f"v_bfe_u32 v{T1}, v1, 4, 1")
    labV2 = a.newlabel("stV"); labP = a.newlabel("pub")
    a(f"s_cmp_ge_u32 s{S_J}, 4")
    a(f"s_cbranch_scc1 {labV2}")
    a(f"s_lshl_b32 s31, s30, 4")
    a(f"v_add_u32 v{T0}, s31, v{T0}")
    a(f"v_lshlrev_b32 v{T1}, 5, v{T1}")
    a(f"v_add_u32 v{T1}, v{T1}, v{T0}")
    a(f"v_lshlrev_b32 v{T1}, 4, v{T1}")
    a(f"s_mov_b64 exec, 0xffffffff")
    a(f"buffer_store_dwordx4 {v(PWF,4)}, v{T1}, {R(SRD_WS)}, s29 offen sc1")
    a(f"s_mov_b64 exec, -1")
    a(f"v_lshlrev_b32 v{T0}, 3, v{T0}")
    a(f"v_add_u32 v{T0}, 1024, v{T0}")
    a(f"v_mov_b32 v{T1}, 1280")
    a(f"v_mov_b32 v{T2}, 0x3f803f80")
    a(f"v_mov_b32 v{T3}, 0x3f80")
    a(f"v_cmp_eq_u32 vcc, 16, v1")
    a.nop(2)
    a(f"v_cndmask_b32 v{T0}, v{T0}, v{T1}, vcc")
    a(f"v_cndmask_b32 v{PWF+4}, v{PWF+4}, v{T2}, vcc")
    a(f"v_cndmask_b32 v{PWF+5}, v{PWF+5}, v{T3}, vcc")
    a(f"s_mov_b32 s41, 0xffff")
    a(f"s_cmp_eq_u32 s30, 0")
    a(f"s_cselect_b32 s40, 0x1ffff, s41")
    a(f"s_mov_b32 s41, 0")
    a(f"s_mov_b64 exec, s[40:41]")
    a(f"buffer_store_dwordx2 {v(PWF+4,2)}, v{T0}, {R(SRD_WS)}, s29 offen sc1")
    a(f"s_mov_b64 exec, -1")
    a(f"s_branch {labP}")
    a.label(labV2)
    a(f"s_mul_i32 s31, s30, 672")
    a(f"s_add_u32 s31, s31, 1296")
    a(f"v_mul_u32_u24 v{T1}, 336, v{T1}")
    a(f"v_lshlrev_b32 v{T2}, 4, v{T0}")
    a(f"v_add_u32 v{T1}, v{T1}, v{T2}")
    a(f"v_add_u32 v{T1}, s31, v{T1}")
    a(f"s_mov_b64 exec, 0xffffffff")
    a(f"buffer_store_dwordx4 {v(PWF,4)}, v{T1}, {R(SRD_WS)}, s29 offen sc1")
    a(f"s_mov_b64 exec, -1")
    a(f"v_mov_b32 v{T2}, 0x3f803f80")
    a(f"v_cmp_eq_u32 vcc, 4, v{T0}")
    a.nop(2)
    a(f"v_cndmask_b32 v{PWF+4}, v{PWF+4}, v{T2}, vcc")
    a(f"v_cndmask_b32 v{PWF+5}, v{PWF+5}, v{T2}, vcc")
    a(f"v_mov_b32 v{PWF}, v{PWF+4}")
    a(f"v_mov_b32 v{PWF+1}, v{PWF+5}")
    a.nop(2)
    a(f"v_permlane32_swap_b32 v{PWF}, v{PWF+6}")
    a(f"v_permlane32_swap_b32 v{PWF+1}, v{PWF+7}")
    a(f"s_mov_b32 s40, 0x001f001f")
    a(f"s_mov_b32 s41, 0")
    a(f"s_mov_b64 exec, s[40:41]")
    a.nop(2)
    a(f"buffer_store_dwordx4 {v(PWF+4,4)}, v{T1}, {R(SRD_WS)}, s29 offen offset:256 sc1")
    a(f"s_mov_b64 exec, -1")
    a.label(labP)
    a(f"s_lshr_b32 s29, s28, 2")
    a(f"s_lshl_b32 s29, s29, 7")
    a(f"s_and_b32 s31, s28, 3")
    a(f"s_lshl_b32 s31, s31, 2")
    a(f"s_lshl_b32 s30, s30, 1")
    a(f"s_add_u32 s31, s31, s30")
    a(f"s_lshr_b32 s30, s{S_J}, 2")
    a(f"s_add_u32 s31, s31, s30")
    a(f"s_lshl_b32 s31, s31, 2")
    a(f"s_add_u32 s34, s29, s31")
    a(f"s_add_u32 s34, s34, {H1}")
    def push(nl, stride_sh, sbase):
        a(f"v_lshlrev_b32 v{T0}, {stride_sh}, v1")
        a(f"v_mov_b32 v{T1}, s{S_NONCE}")
        a(f"s_mov_b64 exec, {hex((1 << nl) - 1)}")
        a(f"buffer_store_dword v{T1}, v{T0}, {R(SRD_WS)}, s{sbase} offen sc1")
        a(f"s_mov_b64 exec, -1")
    def setw(addr):
        a(f"v_mov_b32 v12, {addr}")
        a(f"v_mov_b32 v13, 1")
        a(f"ds_write_b32 v12, v13")
    def ld(): a(f"buffer_load_dword v5, v4, {R(SRD_DBG)}, 0 offen sc1")
    def ck():
        a(f"v_readfirstlane_b32 s{S_NONCE}, v5")
        a("s_nop 3")
        a(f"s_cmp_lg_u32 s{S_NONCE}, 0")
    poll_global(a, ld, ck, sleep=0)
    push(8, 11, 34)
    stamp(a, "pflag")
    VKF = 6
    a(f"v_lshrrev_b32 v{VKF}, 2, v1")
    a(f"v_lshlrev_b32 v{VKF}, 7, v{VKF}")
    a(f"v_and_b32 v{T1}, 3, v1")
    a(f"v_lshlrev_b32 v{T1}, 4, v{T1}")
    a(f"v_add_u32 v{VKF}, v{VKF}, v{T1}")
    a(f"s_and_b32 s36, s2, 7")
    a(f"s_lshl_b32 s36, s36, 11")
    a(f"s_add_u32 s36, s36, {H1}")
    a(f"s_lshl_b32 s37, s{S_I}, 3")
    a(f"s_add_u32 s37, s37, s{S_J}")
    a(f"s_lshl_b32 s37, s37, 7")
    a(f"s_lshl_b32 s38, s{S_J}, 7")
    a(f"s_lshl_b32 s39, s{S_I}, 2")
    a(f"s_add_u32 s38, s38, s39")
    a(f"v_lshlrev_b32 v7, 2, v1")
    a(f"v_mov_b32 v14, {C_UCNT}")
    a(f"s_mov_b32 s35, 0")
    def service_step(with_barrier):
        l1 = a.newlabel("sv"); l2 = a.newlabel("sv"); l3 = a.newlabel("sv"); l4 = a.newlabel("sv")
        a(f"s_bitcmp1_b32 s35, 0")
        a(f"s_cbranch_scc1 {l1}")
        a(f"buffer_load_dwordx4 v[8:11], v{VKF}, {R(SRD_WS)}, s36 offen sc1")
        a.label(l1)
        a(f"ds_read_b32 v15, v14")
        a(f"s_add_u32 s29, s37, {H2}")
        a(f"buffer_load_dword v16, v7, {R(SRD_WS)}, s29 offen sc1")
        if with_barrier: a("s_barrier")
        a("s_waitcnt vmcnt(0) lgkmcnt(0)")
        a(f"s_bitcmp1_b32 s35, 0")
        a(f"s_cbranch_scc1 {l2}")
        a(f"s_mov_b64 s[40:41], -1")
        flags_check(a, 8, 4)
        a(f"s_cbranch_scc0 {l2}")
        setw(C_KVOK)
        stamp(a, "pkvok")
        a(f"s_or_b32 s35, s35, 1")
        a.label(l2)
        a(f"s_bitcmp1_b32 s35, 1")
        a(f"s_cbranch_scc1 {l3}")
        a(f"v_readfirstlane_b32 s42, v15")
        a("s_nop 3")
        a(f"s_cmp_lt_u32 s42, 8")
        a(f"s_cbranch_scc1 {l3}")
        a(f"s_add_u32 s29, s38, {H2}")
        push(32, 10, 29)
        a(f"s_or_b32 s35, s35, 2")
        a.label(l3)
        a(f"s_bitcmp1_b32 s35, 2")
        a(f"s_cbranch_scc1 {l4}")
        a(f"s_mov_b32 s40, -1")
        a(f"s_mov_b32 s41, 0")
        flags_check(a, 16, 1)
        a(f"s_cbranch_scc0 {l4}")
        setw(C_UOK)
        a(f"s_or_b32 s35, s35, 4")
        a.label(l4)
    lp = a.newlabel("svl"); dn = a.newlabel("svd")
    a(f"s_mov_b32 s33, 0")
    a.label(lp)
    a(f"s_cmp_eq_u32 s35, 7")
    a(f"s_cbranch_scc1 {dn}")
    service_step(False)
    a(f"s_add_u32 s33, s33, 1")
    a(f"s_cmp_lt_u32 s33, {POLL_MAX}")
    a(f"s_cbranch_scc1 {lp}")
    a.label(dn)
    stamp(a, "psvc")
    lds_wait_imm(a, C_CVD, 3, sleep=8)
    a(f"s_add_u32 s29, s38, {H3}")
    push(32, 10, 29)
    stamp(a, "pyflag")
    a(f"s_mov_b32 s35, 0")
    a(f"s_mov_b32 s33, 0")
    lyp = a.newlabel("yp"); lyd = a.newlabel("yd")
    a.label(lyp)
    a(f"s_add_u32 s29, s37, {H3}")
    a(f"buffer_load_dword v8, v7, {R(SRD_WS)}, s29 offen sc1")
    a(f"v_mov_b32 v12, {C_PROG}")
    a(f"ds_read_b32 v15, v12")
    a("s_waitcnt vmcnt(0) lgkmcnt(0)")
    a(f"s_mov_b32 s40, -1")
    a(f"s_mov_b32 s41, 0")
    flags_check(a, 8, 1)
    lyn = a.newlabel("yn")
    a(f"s_cbranch_scc0 {lyn}")
    setw(C_YOK)
    a(f"s_mov_b32 s35, 1")
    a(f"s_branch {lyd}")
    a.label(lyn)
    a(f"v_readfirstlane_b32 s42, v15")
    a("s_nop 3")
    a(f"s_cmp_ge_u32 s42, 7")
    a(f"s_cbranch_scc1 {lyd}")
    a(f"s_add_u32 s33, s33, 1")
    a(f"s_cmp_lt_u32 s33, {POLL_MAX}")
    a(f"s_cbranch_scc0 {lyd}")
    a("s_sleep 8")
    a(f"s_branch {lyp}")
    a.label(lyd)
    stamp(a, "pyok")
    a("s_waitcnt lgkmcnt(0)")
    a("s_barrier")
    a("s_barrier")
    a("s_barrier")
    lds_wait_imm(a, C_OCNT, 8, sleep=0)
    a(f"s_lshl_b32 s29, s{S_I}, 10")
    a(f"s_lshl_b32 s30, s{S_J}, 2")
    a(f"s_add_u32 s29, s29, s30")
    a(f"s_add_u32 s29, s29, {H4}")
    push(8, 7, 29)
    a(f"s_mov_b32 s33, 0")
    lop = a.newlabel("op"); lod = a.newlabel("od"); lo2 = a.newlabel("o2"); lo3 = a.newlabel("o3")
    a.label(lop)
    a(f"s_add_u32 s29, s37, {H4}")
    a(f"buffer_load_dword v8, v7, {R(SRD_WS)}, s29 offen sc1")
    a(f"s_add_u32 s29, s37, {H3}")
    a(f"buffer_load_dword v9, v7, {R(SRD_WS)}, s29 offen sc1")
    a("s_waitcnt vmcnt(0)")
    a(f"s_bitcmp1_b32 s35, 1")
    a(f"s_cbranch_scc1 {lo2}")
    a(f"s_mov_b32 s40, 0xff")
    a(f"s_mov_b32 s41, 0")
    flags_check(a, 8, 1)
    a(f"s_cbranch_scc0 {lo2}")
    setw(C_OOK)
    a(f"s_or_b32 s35, s35, 2")
    a.label(lo2)
    a(f"s_bitcmp1_b32 s35, 0")
    a(f"s_cbranch_scc1 {lo3}")
    a(f"s_mov_b32 s40, -1")
    a(f"s_mov_b32 s41, 0")
    flags_check(a, 9, 1)
    a(f"s_cbranch_scc0 {lo3}")
    setw(C_YOK)
    a(f"s_or_b32 s35, s35, 1")
    a.label(lo3)
    a(f"s_cmp_eq_u32 s35, 3")
    a(f"s_cbranch_scc1 {lod}")
    a(f"s_add_u32 s33, s33, 1")
    a(f"s_cmp_lt_u32 s33, {POLL_MAX}")
    a(f"s_cbranch_scc1 {lop}")
    a.label(lod)
    a("s_waitcnt lgkmcnt(0)")
    a("s_barrier")
    a(f"s_branch f_fin")
    gen_loader(a)
    a.label("f_fin")
    if "stamp" in OPT:
        a("s_waitcnt vmcnt(0)")
        stamp(a, "end"); stamp(a, "rt1", True)
        stamp_flush(a)
    a.label(END)
    a("s_endpgm")
    a.L.append(kernel_desc(name, NVGPR))


def gen_loader(a):
    S_LI = 34
    a.label("f_lstart")
    a("s_setprio 3")
    a(f"s_sub_u32 s{S_LI}, s{S_W}, 9")
    VX, VW, VL16 = 112, 116, 121
    RB3, RB4, HR = 16, 64, 112
    a(f"v_lshlrev_b32 v{T3}, 4, v1")
    a("s_barrier")
    for k in range(4):
        a(f"v_lshrrev_b32 v{T0}, 4, v1")
        a(f"v_add_u32 v{T0}, {4*k}, v{T0}")
        a(f"v_xor_b32 v{T1}, v1, v{T0}")
        a(f"v_and_b32 v{T1}, 15, v{T1}")
        a(f"v_lshlrev_b32 v{T1}, 4, v{T1}")
        a(f"s_lshl_b32 s28, s{S_I}, 6")
        a(f"v_add_u32 v{T0}, s28, v{T0}")
        a(f"v_mul_lo_u32 v{T0}, v{T0}, s{S_1280}")
        a(f"v_add_u32 v{VX+k}, v{T0}, v{T1}")
    a(f"s_mul_i32 s29, s{S_J}, 160")
    for t in range(5):
        a(f"v_add_u32 v{T0}, {64*t}, v1")
        div10(a, T0, T1, T0, T2)
        a(f"v_lshlrev_b32 v{T0}, 4, v{T0}")
        a(f"v_and_b32 v{T2}, 0xfff8, v{T1}")
        a(f"v_bfe_u32 v{VL16}, v{T1}, 1, 2")
        a(f"v_or_b32 v{T2}, v{T2}, v{VL16}")
        a(f"v_and_b32 v{T1}, 1, v{T1}")
        a(f"v_lshlrev_b32 v{T1}, 2, v{T1}")
        a(f"v_or_b32 v{T2}, v{T2}, v{T1}")
        a(f"v_mul_lo_u32 v{T2}, v{T2}, s{S_1280}")
        a(f"v_add_u32 v{T2}, v{T2}, v{T0}")
        a(f"v_add_u32 v{VW+t}, s29, v{T2}")
    def ut_issue():
        for t in range(7):
            a(f"s_add_u32 s28, s{S_LI}, {3*t}")
            a(f"s_cmp_lt_u32 s28, 11")
            a(f"s_cselect_b32 s30, 0, 11")
            a(f"s_cselect_b32 s31, 3, 0")
            a(f"s_sub_u32 s29, s28, s30")
            a(f"s_lshl_b32 s30, s29, 6")
            a(f"v_add_u32 v{T0}, s30, v1")
            div10(a, T0, T1, T0, T2)
            a(f"v_lshrrev_b32 v{T2}, 3, v{T1}")
            a(f"v_sub_u32 v{T0}, v{T0}, v{T2}")
            a(f"v_add_u32 v{T2}, 10, v{T0}")
            a(f"v_min_u32 v{T0}, v{T0}, v{T2}")
            a(f"v_lshlrev_b32 v{T0}, 4, v{T0}")
            a(f"s_lshl_b32 s30, s{S_I}, 6")
            a(f"s_sub_u32 s30, s30, s31")
            a(f"v_add_u32 v{T1}, s30, v{T1}")
            a(f"v_mul_lo_u32 v{T1}, v{T1}, s{S_1280}")
            a(f"v_add_u32 v{T0}, v{T0}, v{T1}")
            a(f"s_mul_i32 s30, s{S_J}, 160")
            a(f"v_add_u32 v{T0}, s30, v{T0}")
            a(f"s_lshl_b32 s29, s29, 10")
            lv = a.newlabel("uv"); ld_ = a.newlabel("ud")
            a(f"s_cmp_eq_u32 s31, 0")
            a(f"s_cbranch_scc1 {lv}")
            a(f"s_add_u32 m0, s29, {UT_K}")
            a(f"s_cmp_eq_u32 s28, 10")
            a(f"s_cselect_b32 s40, 0x3fffffff, -1")
            a(f"s_cselect_b32 s41, 0, -1")
            a(f"s_mov_b64 exec, s[40:41]")
            a(f"buffer_load_dwordx4 v{T0}, {R(SRD_K)}, 0 offen lds")
            a(f"s_mov_b64 exec, -1")
            a(f"s_branch {ld_}")
            a.label(lv)
            a(f"s_add_u32 m0, s29, {UT_V}")
            a(f"s_nop 0")
            a(f"buffer_load_dwordx4 v{T0}, {R(SRD_V)}, 0 offen lds")
            a.label(ld_)
    lists = [[("x", q) for q in range(12)],
             [("x", q) for q in range(12, 16)] + [("w", q) for q in range(8)],
             [("w", q) for q in range(8, 20)]]
    def ldoff(kind, q): return 1024*q if kind == "x" else 16384 + 1024*q
    def issue(lst, ch, dma_slot=None, regs=None):
        for n, (kind, q) in enumerate(lst):
            if kind == "x": srd_, vr, so = SRD_X, VX+(q&3), 256*ch + (q >> 2)*16*1280
            else: srd_, vr, so = SRD_WQ, VW+(q%5), 163840*ch + (q // 5)*40960
            a(f"s_mov_b32 s28, {so}")
            if dma_slot is not None:
                a(f"s_mov_b32 m0, {dma_slot*SLOT + ldoff(kind, q)}")
                a(f"s_nop 0")
                a(f"buffer_load_dwordx4 v{vr}, {R(srd_)}, s28 offen lds")
            else:
                a(f"buffer_load_dwordx4 {v(regs+4*n,4)}, v{vr}, {R(srd_)}, s28 offen")
    def signal(addr): lds_add1_imm(a, addr)
    LD_JOIN = a.newlabel("ldj")
    for li in range(3):
        nxt = a.newlabel("ldv")
        a(f"s_cmp_lg_u32 s{S_LI}, {li}")
        a(f"s_cbranch_scc1 {nxt}")
        L = lists[li]
        if "thr" in OPT: lds_wait_imm(a, C_CL + 0, 8, sleep=1)
        issue(L, 2, dma_slot=2)
        if "thr" in OPT: lds_wait_imm(a, C_CL + 4, 8, sleep=1)
        issue(L, 3, regs=RB3)
        if "thr" in OPT:
            a("s_waitcnt vmcnt(12)"); signal(C_CL + 8)
        issue(L, 4, regs=RB4)
        if "thr" not in OPT:
            a("s_waitcnt vmcnt(24)"); signal(C_CL + 8)
        for (RBx, gate, cl, n_after, slot) in ((RB3, C_C0C, 12, 12, 0), (RB4, C_C1C, 16, 0, 1)):
            lds_wait_imm(a, gate, 8, sleep=1)
            a(f"v_add_u32 v{T2}, {slot*SLOT}, v{T3}")
            a(f"s_waitcnt vmcnt({n_after})")
            for n, (kind, q) in enumerate(L):
                a(f"ds_write_b128 v{T2}, {v(RBx+4*n,4)} offset:{ldoff(kind, q)}")
            signal(C_CL + cl)
        a(f"s_branch {LD_JOIN}")
        a.label(nxt)
    a.label(LD_JOIN)
    ut_issue()
    stamp(a, "ldone")
    a("s_waitcnt vmcnt(0)"); signal(C_UTL)
    def kv0():
        lds_wait_imm(a, C_KVOK, 1, sleep=1)
        a(f"s_and_b32 s28, s{S_ROT}, 7")
        a(f"s_lshl_b32 s28, s28, 2")
        a(f"s_lshl_b32 s29, s{S_LI}, 5")
        a(f"s_add_u32 s28, s28, s29")
        a(f"s_mul_i32 s28, s28, 3072")
        for k in range(12):
            a(f"buffer_load_dwordx4 {v(16+4*k,4)}, v{T3}, {R(SRD_WS)}, s28 offen offset:{1024*(k%4)} sc1")
            if k % 4 == 3: a(f"s_add_u32 s28, s28, 4096")
        a(f"s_mul_i32 s28, s{S_LI}, {RING_STRIDE}")
        a(f"v_add_u32 v{T2}, s28, v{T3}")
        lds_wait_imm(a, C_QG, 8, sleep=1)
        a("s_waitcnt vmcnt(0)")
        for b in range(4):
            a(f"ds_write_b128 v{T2}, {v(16+12*b,4)} offset:{b*BLK}")
            a(f"ds_write_b128 v{T2}, {v(16+12*b+4,4)} offset:{b*BLK+1024}")
        a(f"s_mov_b32 exec_hi, 0xff")
        for b in range(4):
            a(f"ds_write_b128 v{T2}, {v(16+12*b+8,4)} offset:{b*BLK+2048}")
        a(f"s_mov_b64 exec, -1")
        a(f"s_lshl_b32 s28, s{S_LI}, 4")
        a(f"s_add_u32 s28, s28, {C_FULL}")
        a(f"v_mov_b32 v{T0}, s28")
        a(f"v_mov_b32 v{T1}, 4")
        lds_add1(a, T0, T1)
        stamp(a, "kv0")
    if_s(a, S_LI, "lt", 2, kv0)
    def h_loads():
        a(f"s_lshl_b32 s28, s{S_CH}, 12")
        for q in range(4):
            a(f"s_add_u32 s29, s28, {1024*q}")
            for k in range(3):
                a(f"buffer_load_dwordx4 {v(HR+12*q+4*k,4)}, v{T3}, {R(SRD_H)}, s29 offen offset:{4*k}")
        a(f"s_lshr_b32 s30, s{S_CH}, 1")
        a(f"s_lshl_b32 s30, s30, 2")
        a(f"s_load_dword s88, s[{S_DPTR}:{S_DPTR+1}], s30")
    NOC = a.newlabel("noconv")
    a(f"s_cmp_ge_u32 s{S_LI}, s{S_NCH}")
    a(f"s_cbranch_scc1 {NOC}")
    h_loads()
    lds_wait_imm(a, C_QG, 8, sleep=2)
    stamp(a, "conv0")
    gen_conv(a, HR)
    a("s_waitcnt vmcnt(0)")
    a.label(NOC)
    a("s_setprio 3")
    signal(C_CVD)
    stamp(a, "conv1")
    WD = 16
    VL = 21
    a(f"v_lshlrev_b32 v{VL}, 4, v1")
    a(f"s_mul_i32 s29, s{S_J}, 160")
    for t in range(5):
        a(f"v_add_u32 v{T0}, {64*t}, v1")
        div10(a, T0, T1, T0, T2)
        a(f"v_lshlrev_b32 v{T0}, 4, v{T0}")
        a(f"v_and_b32 v{T2}, 0xfff3, v{T1}")
        a(f"v_bfe_u32 v{T3}, v{T1}, 2, 1")
        a(f"v_lshlrev_b32 v{T3}, 3, v{T3}")
        a(f"v_or_b32 v{T2}, v{T2}, v{T3}")
        a(f"v_bfe_u32 v{T3}, v{T1}, 3, 1")
        a(f"v_lshlrev_b32 v{T3}, 2, v{T3}")
        a(f"v_or_b32 v{T2}, v{T2}, v{T3}")
        a(f"v_mul_lo_u32 v{T2}, v{T2}, s{S_1280}")
        a(f"v_add_u32 v{T2}, v{T2}, v{T0}")
        a(f"v_add_u32 v{WD+t}, s29, v{T2}")
    lds_wait_imm(a, C_CVD, 3, sleep=8)
    lds_wait_imm(a, C_QG, 8, sleep=8)
    a(f"s_mul_i32 s28, s{S_LI}, {35*1024}")
    a(f"s_add_u32 s28, s28, {WOL}")
    a(f"s_mul_i32 s30, s{S_LI}, {7*32*1280}")
    a(f"s_cmp_eq_u32 s{S_LI}, 2")
    a(f"s_cselect_b32 s33, 6, 7")
    WL = a.newlabel("wol")
    a(f"s_mov_b32 s31, 0")
    a.label(WL)
    for t in range(5):
        a(f"s_add_u32 m0, s28, {1024*t}")
        a(f"s_nop 0")
        a(f"buffer_load_dwordx4 v{WD+t}, {R(SRD_WO)}, s30 offen lds")
    a(f"s_add_u32 s28, s28, 5120")
    a(f"s_add_u32 s30, s30, {32*1280}")
    a(f"s_add_u32 s31, s31, 1")
    a(f"s_cmp_lt_u32 s31, s33")
    a(f"s_cbranch_scc1 {WL}")
    a("s_waitcnt vmcnt(0)")
    signal(C_WOK)
    stamp(a, "woready")
    for k in range(3): a("s_barrier")
    YS = 32
    def ytile():
        a(f"v_lshrrev_b32 v{T2}, 3, v1")
        a(f"v_lshlrev_b32 v{T2}, 12, v{T2}")
        a(f"v_and_b32 v{T3}, 7, v1")
        a(f"v_lshlrev_b32 v{T3}, 4, v{T3}")
        a(f"v_add_u32 v{T2}, v{T2}, v{T3}")
        lds_wait_imm(a, C_YOK, 1, sleep=1)
        a(f"s_mul_i32 s28, s{S_J}, {80*4096}")
        a(f"s_lshl_b32 s29, s{S_I}, 7")
        a(f"s_add_u32 s28, s28, s29")
        a(f"s_add_u32 s28, s28, {YT_OFF}")
        a(f"s_mul_i32 s29, s{S_LI}, {5*8*4096}")
        a(f"s_add_u32 s28, s28, s29")
        for t in range(5):
            a(f"buffer_load_dwordx4 {v(YS+4*t,4)}, v{T2}, {R(SRD_WS)}, s28 offen sc1")
            a(f"s_add_u32 s28, s28, {8*4096}")
        a(f"s_mul_i32 s28, s{S_LI}, 5120")
        a(f"s_add_u32 s28, s28, {YL}")
        a(f"v_add_u32 v{T2}, s28, v{VL}")
        a("s_waitcnt vmcnt(0)")
        for t in range(5): a(f"ds_write_b128 v{T2}, {v(YS+4*t,4)} offset:{1024*t}")
        signal(C_YW)
    if_s(a, S_LI, "lt", 2, ytile)
    a("s_waitcnt vmcnt(0) lgkmcnt(0)")
    a("s_barrier")

def gen_conv(a, HR):
    URL = 16640
    CA, FA, FB, AD = 16, 48, 80, 112
    VA, VB, CT2, CT3 = 160, 161, 162, 163
    a(f"v_lshlrev_b32 v{T2}, 4, v1")
    a(f"v_add_u32 v{T3}, s{S_CB}, v{T2}")
    a("s_waitcnt vmcnt(0)")
    for q in range(4):
        X0, X1, X2 = HR+12*q, HR+12*q+4, HR+12*q+8
        C1, C3 = CA + 8*(q & 1), CA + 8*(q & 1) + 4
        for k in range(4):
            a(f"v_alignbit_b32 v{C1+k}, v{X1+k}, v{X0+k}, 16")
            a(f"v_alignbit_b32 v{C3+k}, v{X2+k}, v{X1+k}, 16")
        o = 1024 * q + 32
        a(f"ds_write_b128 v{T3}, {v(X0,4)} offset:{o}")
        a(f"ds_write_b128 v{T3}, {v(C1,4)} offset:{4160+o}")
        a(f"ds_write_b128 v{T3}, {v(X1,4)} offset:{8320+o}")
        a(f"ds_write_b128 v{T3}, {v(C3,4)} offset:{12480+o}")
    Z = CA + 16
    for k in range(4): a(f"v_mov_b32 v{Z+k}, 0")
    a(f"v_alignbit_b32 v{Z+4}, v{HR+4}, v{HR}, 16")
    a(f"v_lshlrev_b32 v{Z+5}, 16, v{HR}")
    a(f"v_mov_b32 v{Z+6}, v{HR}")
    a(f"v_lshrrev_b32 v{T0}, 1, v1")
    a(f"v_mul_u32_u24 v{T0}, 4160, v{T0}")
    a(f"v_and_b32 v{T1}, 1, v1")
    a(f"v_lshlrev_b32 v{T1}, 4, v{T1}")
    a(f"v_add_u32 v{T0}, v{T0}, v{T1}")
    a(f"v_add_u32 v{T0}, s{S_CB}, v{T0}")
    a(f"s_mov_b64 exec, 0xff")
    a(f"ds_write_b128 v{T0}, {v(Z,4)}")
    a(f"s_mov_b64 exec, 0xffffffff")
    a(f"ds_write_b128 v{T3}, {v(Z,4)} offset:{URL+4096}")
    a(f"s_mov_b64 exec, 1")
    a(f"ds_write_b32 v{T3}, v{Z+5} offset:{4160+28}")
    a(f"ds_write_b32 v{T3}, v{Z+6} offset:{8320+28}")
    a(f"ds_write_b32 v{T3}, v{Z+5} offset:{12480+24}")
    a(f"ds_write_b32 v{T3}, v{Z+4} offset:{12480+28}")
    a(f"s_mov_b64 exec, -1")
    a("s_waitcnt lgkmcnt(0)")
    a(f"v_mov_b32 v{FA}, v{T3}")
    a(f"v_mov_b32 v{FA+1}, v{T2}")
    lds_wait_imm(a, C_UOK, 1, sleep=2)
    a(f"s_lshl_b32 s28, s{S_CH}, 12")
    a(f"s_add_u32 s28, s28, {UR_OFF}")
    for q in range(4):
        a(f"s_add_u32 s29, s28, {1024*q}")
        a(f"buffer_load_dwordx4 {v(FB+4*q,4)}, v{FA+1}, {R(SRD_WS)}, s29 offen sc1")
    a(f"v_and_b32 v{T0}, 15, v1")
    a(f"v_lshrrev_b32 v{T1}, 4, v1")
    a(f"v_add_u32 v{CT2}, 1, v{T0}")
    a(f"v_and_b32 v{CT3}, 3, v{CT2}")
    a(f"v_mul_u32_u24 v{VA}, 4160, v{CT3}")
    a(f"v_lshrrev_b32 v{CT2}, 2, v{CT2}")
    a(f"v_lshlrev_b32 v{CT2}, 3, v{CT2}")
    a(f"v_lshlrev_b32 v{CT3}, 4, v{T1}")
    a(f"v_add_u32 v{VA}, v{VA}, v{CT2}")
    a(f"v_add_u32 v{VA}, v{VA}, v{CT3}")
    a(f"v_add_u32 v{VA}, s{S_CB}, v{VA}")
    a(f"v_lshlrev_b32 v{CT2}, 5, v{T0}")
    a(f"v_sub_u32 v{VB}, v{CT3}, v{CT2}")
    a(f"s_add_u32 s28, s{S_CB}, {URL + 480}")
    a(f"v_add_u32 v{VB}, s28, v{VB}")
    a(f"s_and_b32 s30, s{S_CH}, 1")
    a(f"s_lshl_b32 s30, s30, 4")
    a(f"s_lshr_b32 s88, s88, s30")
    a(f"s_and_b32 s88, s88, 0xffff")
    a(f"v_lshlrev_b32 v{T1}, 3, v{T1}")
    a(f"v_add_u32 v{T0}, v{T0}, v{T1}")
    a(f"v_sub_u32 v{T0}, 15, v{T0}")
    a(f"v_and_b32 v{T1}, 1, v{T0}")
    a(f"v_lshlrev_b32 v{T1}, 4, v{T1}")
    a(f"v_mov_b32 v{CT2}, s88")
    a(f"v_lshlrev_b32 v{CT2}, v{T1}, v{CT2}")
    a(f"v_lshrrev_b32 v{T0}, 1, v{T0}")
    for k in range(4):
        a(f"v_cmp_eq_u32 vcc, {k}, v{T0}")
        a.nop(2)
        a(f"v_cndmask_b32 v{AD+k}, 0, v{CT2}, vcc")
    for r in range(32): a(f"v_mov_b32 v{CA+r}, 0")
    a("s_waitcnt vmcnt(0)")
    for q in range(4):
        a(f"ds_write_b128 v{FA}, {v(FB+4*q,4)} offset:{URL + 1024*q}")
    a("s_waitcnt lgkmcnt(0)")
    stamp(a, "convm")
    a("s_setprio 0")
    a(f"s_mov_b32 s86, 0")
    PL = a.newlabel("convph")
    a.label(PL)
    a(f"ds_read_b64 {v(FA,2)}, v{VA}")
    a(f"ds_read_b64 {v(FA+2,2)}, v{VA} offset:8")
    for vv in range(8):
        a(f"ds_read_b128 {v(FB+4*vv,4)}, v{VB} offset:{512*(7-vv)}")
    for i in range(1, 3):
        a(f"ds_read_b64 {v(FA+4*i,2)}, v{VA} offset:{512*i}")
        a(f"ds_read_b64 {v(FA+4*i+2,2)}, v{VA} offset:{512*i+8}")
    a("s_waitcnt lgkmcnt(4)")
    for i in range(3, 8):
        a(f"ds_read_b64 {v(FA+4*i,2)}, v{VA} offset:{512*i}")
        a(f"ds_read_b64 {v(FA+4*i+2,2)}, v{VA} offset:{512*i+8}")
    for vv in range(8):
        a(f"v_mfma_f32_16x16x32_bf16 {v(CA+4*vv,4)}, {v(FA,4)}, {v(FB+4*vv,4)}, {v(CA+4*vv,4)}")
    lab = a.newlabel("noD")
    a(f"s_cmp_lg_u32 s86, 0")
    a(f"s_cbranch_scc1 {lab}")
    for vv in range(8):
        a(f"v_mfma_f32_16x16x32_bf16 {v(CA+4*vv,4)}, {v(AD,4)}, {v(FB+4*vv,4)}, {v(CA+4*vv,4)}")
    a.label(lab)
    a("s_waitcnt lgkmcnt(0)")
    for i in range(1, 8):
        for vv in range(8 - i):
            t = i + vv
            a(f"v_mfma_f32_16x16x32_bf16 {v(CA+4*t,4)}, {v(FA+4*i,4)}, {v(FB+4*vv,4)}, {v(CA+4*t,4)}")
    a(f"v_add_u32 v{VA}, 64, v{VA}")
    a(f"v_add_u32 v{VB}, 64, v{VB}")
    a(f"s_add_u32 s86, s86, 1")
    a(f"s_cmp_lt_u32 s86, 8")
    a(f"s_cbranch_scc1 {PL}")
    a(f"s_lshl_b32 s28, s{S_CH}, 12")
    a(f"s_add_u32 s28, s28, {YT_OFF}")
    a(f"v_and_b32 v{CT2}, 15, v1")
    a(f"v_lshlrev_b32 v{CT2}, 5, v{CT2}")
    a(f"v_lshrrev_b32 v{CT3}, 4, v1")
    a(f"v_lshlrev_b32 v{CT3}, 3, v{CT3}")
    a(f"v_add_u32 v{CT2}, v{CT2}, v{CT3}")
    a.nop(4)
    for t in range(8):
        a(f"v_cvt_pk_bf16_f32 v{FB+2*t}, v{CA+4*t}, v{CA+4*t+1}")
        a(f"v_cvt_pk_bf16_f32 v{FB+2*t+1}, v{CA+4*t+2}, v{CA+4*t+3}")
        a(f"buffer_store_dwordx2 {v(FB+2*t,2)}, v{CT2}, {R(SRD_WS)}, s28 offen offset:{512*t} sc1")

HEADER = """; gated_mix: fused single kernel (generated by dev/gen9.py, gen4 o-layout)
; @launch grid=(256,1,1) block=(768,1,1) lds=163840
.amdgcn_target "amdgcn-amd-amdhsa--gfx950"
.text
"""
if __name__ == "__main__":
    if len(sys.argv) > 2: OPT.update(sys.argv[2].split(","))
    a = Asm()
    gen(a)
    h = HEADER
    if STAMPS: h = h.replace(".amdgcn", "; STAMPS " + ",".join(STAMPS) + "\n.amdgcn")
    open(sys.argv[1], "w").write(h + a.text())
```

```python
import sys, struct
from asmlib import *

NAME = "gated_mix__ssm_conv_h3__grouped_kv_mqa__prompt"
KVF_OFF = 0
UR_OFF = 0x40000
YT_OFF = 0x2C0000
O_OFF = 0x540000
FL_OFF = 0x7C0000
H1 = FL_OFF
H2 = FL_OFF + 0x4000
H3 = FL_OFF + 0xC000
H4 = FL_OFF + 0x14000
ST_OFF = 0x800000
WS_USED = 0x900000
XB = 2048 * 640 * 2
QSCALE = (20 ** -0.5) * 1.4426950408889634
def f32bits(x): return struct.unpack("<I", struct.pack("<f", x))[0]
OPT = set()
POLL_MAX = 40000

SRD_X, SRD_WQ, SRD_WS, SRD_H = 4, 8, 12, 16
S_I, S_J, S_W, S_HH, S_G, S_NONCE, S_1280, S_ROT = 20, 21, 22, 23, 24, 25, 26, 27
SRD_K, SRD_V, SRD_SH, SRD_W, SRD_GW, SRD_WO, SRD_OUT, SRD_DBG = 44, 48, 52, 56, 60, 64, 68, 72
S_DPTR = 76
S_CH, S_NCH, S_CB = 83, 84, 85
SLOT = 36864
UT_K = 137472
UT_V = UT_K + 10720
UNIT_W = 131552
UNIT_S = 6656
QXA = 110592
QXB = QXA + 8192
GWL = 159744
GP = GWL + 1280
G_L = 162048
CNT = G_L + 256
C_FULL, C_DONE = CNT, CNT + 32
C_KVOK, C_UCNT, C_CVD = CNT + 68, CNT + 72, CNT + 80
C_UOK, C_YOK, C_OCNT, C_OOK = CNT + 84, CNT + 88, CNT + 92, CNT + 96
C_UTL, C_UTC, C_UP, C_C0C, C_C1C, C_QG, C_WOK = CNT + 100, CNT + 104, CNT + 108, CNT + 112, CNT + 116, CNT + 120, CNT + 124
C_CL = CNT + 128
C_QXF = CNT + 160
C_PROG = CNT + 192
C_PD = CNT + 228
C_WOKB = CNT + 232
C_LE, C_ST, C_PFL = CNT + 236, CNT + 240, CNT + 244
C_XF = CNT + 256
C_PF = CNT + 288
C_YW = CNT + 224
BLK = 3072
KVSLOT = 4 * BLK
RING_STRIDE = 3 * KVSLOT
CONVB = 73728
CHB = 21248
WOA = 75776
WOB = 0
YL = 137216
DUMMY = 162688
OX = 137472
OST = 126976
PX = 51200
V_ST = 167
NVGPR = 168
T0, T1, T2, T3 = 2, 3, 164, 165

STAMPS = []
def stamp(a, name, real=False):
    if "stamp" not in OPT: return
    if name in STAMPS: idx = STAMPS.index(name)
    else:
        STAMPS.append(name); idx = len(STAMPS) - 1
    a(f"s_waitcnt lgkmcnt(0)")
    a(f"{'s_memrealtime' if real else 's_memtime'} s[98:99]")
    a(f"s_waitcnt lgkmcnt(0)")
    a(f"v_writelane_b32 v{V_ST}, s98, {idx}")
def stamp_flush(a):
    if "stamp" not in OPT: return
    a(f"s_mov_b64 exec, -1")
    a(f"s_mul_i32 s98, s2, 12")
    a(f"s_add_u32 s98, s98, s{S_W}")
    a(f"s_lshl_b32 s98, s98, 8")
    a(f"s_add_u32 s98, s98, {ST_OFF}")
    a(f"v_lshlrev_b32 v166, 2, v1")
    a(f"buffer_store_dword v{V_ST}, v166, s[{SRD_WS}:{SRD_WS+3}], s98 offen")
    a("s_waitcnt vmcnt(0)")

def R(b): return f"s[{b}:{b+3}]"

def poll_global(a, nload, check, sleep=1):
    lp = a.newlabel("poll"); dn = a.newlabel("pdone")
    a(f"s_mov_b32 s43, 0")
    a.label(lp)
    nload()
    a("s_waitcnt vmcnt(0)")
    check()
    a(f"s_cbranch_scc1 {dn}")
    a(f"s_add_u32 s43, s43, 1")
    a(f"s_cmp_lt_u32 s43, {POLL_MAX}")
    a(f"s_cbranch_scc0 {dn}")
    if sleep: a(f"s_sleep {sleep}")
    a(f"s_branch {lp}")
    a.label(dn)

def flags_check(a, vt, n):
    if n == 4:
        for k in range(4): a(f"v_xor_b32 v{vt+k}, s{S_NONCE}, v{vt+k}")
        a(f"v_or_b32 v{vt}, v{vt}, v{vt+1}")
        a(f"v_or_b32 v{vt+2}, v{vt+2}, v{vt+3}")
        a(f"v_or_b32 v{vt}, v{vt}, v{vt+2}")
        a(f"v_cmp_ne_u32 vcc, 0, v{vt}")
    else:
        a(f"v_cmp_ne_u32 vcc, s{S_NONCE}, v{vt}")
    a(f"s_nop 1")
    a(f"s_and_b64 vcc, vcc, s[40:41]")
    a(f"s_cmp_eq_u64 vcc, 0")
def poll_flags(a, vaddr, soff, lanes_mask, vt, n=1, sleep=1):
    def ld():
        if n == 1: a(f"buffer_load_dword v{vt}, v{vaddr}, {R(SRD_WS)}, {soff} offen sc1")
        else: a(f"buffer_load_dwordx4 {v(vt,4)}, v{vaddr}, {R(SRD_WS)}, {soff} offen sc1")
    a(f"s_mov_b32 s40, {lanes_mask & 0xffffffff}")
    a(f"s_mov_b32 s41, {(lanes_mask >> 32) & 0xffffffff}")
    poll_global(a, ld, lambda: flags_check(a, vt, n), sleep)

def lds_wait_ge(a, target, vt, vaddr, sleep=1):
    lp = a.newlabel("lw"); dn = a.newlabel("lwd")
    a(f"s_mov_b32 s43, 0")
    a.label(lp)
    a(f"ds_read_b32 v{vt}, v{vaddr}")
    a("s_waitcnt lgkmcnt(0)")
    a(f"v_readfirstlane_b32 s42, v{vt}")
    a("s_nop 3")
    a(f"s_cmp_ge_u32 s42, {target}")
    a(f"s_cbranch_scc1 {dn}")
    a(f"s_add_u32 s43, s43, 1")
    a(f"s_cmp_lt_u32 s43, {POLL_MAX * 8}")
    a(f"s_cbranch_scc0 {dn}")
    if sleep: a(f"s_sleep {sleep}")
    a(f"s_branch {lp}")
    a.label(dn)
def lds_wait_imm(a, addr, target, vt=T1, va=T0, sleep=1):
    a(f"v_mov_b32 v{va}, {addr}")
    lds_wait_ge(a, target, vt, va, sleep)
def lds_add1(a, vaddr, vone):
    a("s_mov_b64 exec, 1")
    a(f"ds_add_u32 v{vaddr}, v{vone}")
    a("s_mov_b64 exec, -1")
def lds_add1_imm(a, addr, va=T0, vo=T1):
    a(f"v_mov_b32 v{va}, {addr}")
    a(f"v_mov_b32 v{vo}, 1")
    lds_add1(a, va, vo)
def if_s(a, sreg, cmp, val, fn):
    lb = a.newlabel("ifw")
    inv = {"eq": "lg", "lt": "ge", "ge": "lt", "lg": "eq"}[cmp]
    a(f"s_cmp_{inv}_u32 s{sreg}, {val}")
    a(f"s_cbranch_scc1 {lb}")
    fn()
    a.label(lb)
def if_wave(a, cmp, val, fn): if_s(a, S_W, cmp, val, fn)

def div10(a, p, q, r, t):
    a(f"v_mul_u32_u24 v{q}, 6554, v{p}")
    a(f"v_lshrrev_b32 v{q}, 16, v{q}")
    a(f"v_mul_u32_u24 v{t}, 10, v{q}")
    a(f"v_sub_u32 v{r}, v{p}, v{t}")

def gen(a):
    name = NAME + "_kernel"
    a.L.append(kernel_header(name))
    END = "f_end"
    a(f"s_cmp_ge_u32 s2, 256")
    a(f"s_cbranch_scc1 {END}")
    a(f"s_load_dwordx16 s[76:91], s[0:1], 0")
    a(f"s_load_dwordx8 s[92:99], s[0:1], 64")
    a(f"s_load_dwordx4 s[28:31], s[0:1], 96")
    a(f"s_load_dwordx2 s[32:33], s[0:1], 112")
    a(f"v_lshrrev_b32 v1, 6, v0")
    a(f"s_and_b32 s{S_I}, s2, 7")
    a(f"s_lshl_b32 s{S_I}, s{S_I}, 2")
    a(f"s_lshr_b32 s{S_J}, s2, 6")
    a(f"s_add_u32 s{S_I}, s{S_I}, s{S_J}")
    a(f"s_lshr_b32 s{S_J}, s2, 3")
    a(f"s_and_b32 s{S_J}, s{S_J}, 7")
    a(f"v_readfirstlane_b32 s{S_W}, v1")
    a(f"v_and_b32 v1, 63, v0")
    a(f"s_movk_i32 s{S_1280}, 1280")
    a(f"s_add_u32 s{S_ROT}, s{S_I}, s{S_J}")
    a(f"s_and_b32 s{S_ROT}, s{S_ROT}, 7")
    a(f"s_and_b32 s{S_HH}, s{S_W}, 3")
    a(f"s_lshr_b32 s{S_G}, s{S_W}, 2")
    V_XD, V_WD, V_UST = 112, 113, 111
    HR = 116
    a(f"s_mul_i32 s37, s{S_I}, 3")
    a(f"s_lshl_b32 s34, s{S_I}, 1")
    a(f"s_add_u32 s34, s34, 16")
    a(f"s_cmp_lt_u32 s{S_I}, 16")
    a(f"s_cselect_b32 s35, s37, s34")
    a(f"s_cselect_b32 s36, 3, 2")
    a(f"s_mul_i32 s34, s{S_J}, 80")
    a(f"s_add_u32 s35, s35, s34")
    a(f"s_sub_u32 s38, s{S_W}, 9")
    a(f"s_add_u32 s35, s35, s38")
    a("s_waitcnt lgkmcnt(0)")
    srd(a, SRD_X, 76, XB)
    a(f"s_cmp_ge_u32 s{S_J}, 4")
    a(f"s_cselect_b32 s{SRD_W}, s94, s92")
    a(f"s_cselect_b32 s{SRD_W+1}, s95, s93")
    a(f"s_mov_b32 s{SRD_W+2}, 25600")
    a(f"s_mov_b32 s{SRD_W+3}, 0x00020000")
    srd(a, SRD_K, 78, XB)
    srd(a, SRD_V, 80, XB)
    srd(a, SRD_SH, 82, 640 * 4 * 2)
    srd(a, SRD_WS, 32, WS_USED)
    srd(a, SRD_DBG, 30, 256)
    srd(a, SRD_WQ, 90, 640 * 640 * 2)
    srd(a, SRD_GW, 98, 1280)
    srd(a, SRD_H, 84, XB)
    srd(a, SRD_WO, 96, 640 * 640 * 2)
    srd(a, SRD_OUT, 28, XB)
    a(f"s_mov_b32 s{S_DPTR}, s86")
    a(f"s_mov_b32 s{S_DPTR+1}, s87")
    a(f"s_mov_b32 s{S_CH}, s35")
    a(f"s_mov_b32 s{S_NCH}, s36")
    a(f"s_mul_i32 s{S_CB}, s38, {CHB}")
    a(f"s_add_u32 s{S_CB}, s{S_CB}, {CONVB}")
    if "stamp" in OPT: a(f"v_mov_b32 v{V_ST}, 0")
    stamp(a, "rt0", True); stamp(a, "t0")
    PSTART = "f_pstart"
    a(f"s_cmp_eq_u32 s{S_W}, 8")
    a(f"s_cbranch_scc1 {PSTART}")
    a(f"s_cmp_gt_u32 s{S_W}, 8")
    a(f"s_cbranch_scc1 f_lstart")

    XF, UACC, WFA, SH = 16, 4, 44, 36
    def unit_loads():
        a("s_setprio 2")
        a(f"s_and_b32 s28, s{S_J}, 3")
        a(f"s_lshl_b32 s28, s28, 4")
        a(f"s_lshl_b32 s29, s{S_I}, 6")
        a(f"s_add_u32 s28, s28, s29")
        a(f"v_and_b32 v{T0}, 15, v1")
        a(f"v_add_u32 v{T0}, s28, v{T0}")
        a(f"v_mul_lo_u32 v{T0}, v{T0}, s{S_1280}")
        a(f"v_lshrrev_b32 v{T1}, 4, v1")
        a(f"v_lshlrev_b32 v{T2}, 4, v{T1}")
        a(f"v_add_u32 v{T0}, v{T0}, v{T2}")
        a(f"s_mul_i32 s29, s{S_W}, 320")
        for s_ in range(5):
            a(f"buffer_load_dwordx4 {v(XF+4*s_,4)}, v{T0}, {R(SRD_X)}, s29 offen offset:{64*s_}")
        a(f"v_lshlrev_b32 v{T2}, 4, v1")
        a(f"s_mul_i32 s29, s{S_W}, 6400")
        a(f"s_mul_i32 s30, s{S_W}, {UNIT_S}")
        for q in range(7):
            a(f"s_add_u32 m0, s30, {UNIT_W + 1024*q}")
            a(f"s_add_u32 s31, s29, {1024*q}")
            if q == 6: a(f"s_mov_b64 exec, 0xffffffff")
            a(f"buffer_load_dwordx4 v{T2}, {R(SRD_W)}, s31 offen lds")
        a(f"s_mov_b64 exec, -1")
        a("s_setprio 0")
    if_wave(a, "lt", 4, unit_loads)
    a(f"v_lshrrev_b32 v{T0}, 4, v1")
    a(f"s_lshl_b32 s28, s{S_W}, 2")
    a(f"v_add_u32 v{T0}, s28, v{T0}")
    a(f"v_xor_b32 v{T1}, v1, v{T0}")
    a(f"v_and_b32 v{T1}, 15, v{T1}")
    a(f"v_lshlrev_b32 v{T1}, 4, v{T1}")
    a(f"s_lshl_b32 s28, s{S_I}, 6")
    a(f"v_add_u32 v{T0}, s28, v{T0}")
    a(f"v_mul_lo_u32 v{T0}, v{T0}, s{S_1280}")
    a(f"v_add_u32 v{V_XD}, v{T0}, v{T1}")
    a(f"s_mul_i32 s29, s{S_J}, 160")
    a(f"s_lshl_b32 s28, s{S_W}, 6")
    for t in range(3):
        a(f"v_add_u32 v{T0}, s28, v1")
        if t: a(f"v_add_u32 v{T0}, {512*t}, v{T0}")
        div10(a, T0, T1, T0, T2)
        a(f"v_lshlrev_b32 v{T0}, 4, v{T0}")
        a(f"v_and_b32 v{T2}, 0xfff8, v{T1}")
        a(f"v_bfe_u32 v{T3}, v{T1}, 1, 2")
        a(f"v_or_b32 v{T2}, v{T2}, v{T3}")
        a(f"v_and_b32 v{T1}, 1, v{T1}")
        a(f"v_lshlrev_b32 v{T1}, 2, v{T1}")
        a(f"v_or_b32 v{T2}, v{T2}, v{T1}")
        a(f"v_mul_lo_u32 v{T2}, v{T2}, s{S_1280}")
        a(f"v_add_u32 v{T2}, v{T2}, v{T0}")
        a(f"v_add_u32 v{V_WD+t}, s29, v{T2}")
    def dma_chunk(ch, slot):
        base = slot * SLOT
        a(f"s_lshl_b32 s28, s{S_W}, 10")
        for t in range(2):
            a(f"s_add_u32 m0, s28, {base + 8192*t}")
            a(f"s_mov_b32 s29, {256*ch + 32*1280*t}")
            a(f"buffer_load_dwordx4 v{V_XD}, {R(SRD_X)}, s29 offen lds")
        a(f"s_mov_b32 s29, {163840*ch}")
        for t in range(3):
            def one(t=t):
                a(f"s_add_u32 m0, s28, {base + 16384 + 8192*t}")
                a(f"s_nop 0")
                a(f"buffer_load_dwordx4 v{V_WD+t}, {R(SRD_WQ)}, s29 offen lds")
            if t < 2: one()
            else: if_wave(a, "lt", 4, one)
    def wait_vm(nA, nB):
        la = a.newlabel("wa"); lb = a.newlabel("wb")
        a(f"s_cmp_lt_u32 s{S_W}, 4")
        a(f"s_cbranch_scc1 {la}")
        a(f"s_waitcnt vmcnt({nB})")
        a(f"s_branch {lb}")
        a.label(la)
        a(f"s_waitcnt vmcnt({nA})")
        a.label(lb)
    NA, NB = 5, 4
    def gw():
        a(f"s_mul_i32 s28, s{S_HH}, 320")
        a(f"s_add_u32 m0, s28, {GWL}")
        a(f"v_lshlrev_b32 v{T0}, 4, v1")
        a(f"s_mov_b64 exec, 0xfffff")
        a(f"buffer_load_dwordx4 v{T0}, {R(SRD_GW)}, s28 offen lds")
        a(f"s_mov_b64 exec, -1")
    if_wave(a, "ge", 4, gw)
    dma_chunk(0, 0); dma_chunk(1, 1)
    a("s_barrier")
    def unit_compute():
        a(f"v_lshrrev_b32 v{T1}, 4, v1")
        a(f"v_bfe_u32 v{T2}, v1, 2, 2")
        a(f"v_lshlrev_b32 v{T1}, 3, v{T1}")
        a(f"v_add_u32 v{T2}, v{T2}, v{T1}")
        a(f"v_mul_u32_u24 v{T2}, 40, v{T2}")
        a(f"v_and_b32 v{T3}, 3, v1")
        a(f"v_lshlrev_b32 v{T3}, 3, v{T3}")
        a(f"v_add_u32 v{T2}, v{T2}, v{T3}")
        a(f"s_mul_i32 s30, s{S_W}, {UNIT_S}")
        a(f"s_add_u32 s30, s30, {UNIT_W}")
        a(f"v_add_u32 v{T2}, s30, v{T2}")
        for r in range(8): a(f"v_mov_b32 v{UACC+r}, 0")
        a(f"s_waitcnt vmcnt({2*NA})")
        stamp(a, "unitld")
        for s_ in range(5):
            for dt in range(2):
                for jj in range(2):
                    a(f"ds_read_b64_tr_b16 {v(WFA+8*s_+4*dt+2*jj,2)}, v{T2} offset:{1280*s_ + 160*jj + 32*dt}")
            if s_ == 2: a("s_waitcnt lgkmcnt(4)")
        labV = a.newlabel("kindV"); labD = a.newlabel("kindD")
        a("s_waitcnt lgkmcnt(0)")
        a(f"s_cmp_ge_u32 s{S_J}, 4")
        a(f"s_cbranch_scc1 {labV}")
        for kind in range(2):
            for s_ in range(5):
                for dt in range(2):
                    w_ = v(WFA+8*s_+4*dt, 4); x_ = v(XF+4*s_, 4)
                    A_, B_ = (w_, x_) if kind == 0 else (x_, w_)
                    a(f"v_mfma_f32_16x16x32_bf16 {v(UACC+4*dt,4)}, {A_}, {B_}, {v(UACC+4*dt,4)}")
            if kind == 0:
                a(f"s_branch {labD}")
                a.label(labV)
        a.label(labD)
        a.nop(8)
        a(f"s_mul_i32 s29, s{S_W}, {UNIT_S}")
        a(f"s_add_u32 s29, s29, {UNIT_W}")
        a(f"v_lshlrev_b32 v{T0}, 4, v1")
        a(f"v_add_u32 v{T1}, s29, v{T0}")
        a(f"ds_write_b128 v{T1}, {v(UACC,4)}")
        a(f"ds_write_b128 v{T1}, {v(UACC+4,4)} offset:1024")
        lds_add1_imm(a, C_UP)
    if_wave(a, "lt", 4, unit_compute)
    V_XA, V_WA, V_GWA, V_QXP = 24, 32, 33, 34
    QACC, GACC, GW, QXF, QWF = 44, 60, 76, 84, 96
    a(f"v_and_b32 v{T0}, 31, v1")
    a(f"s_lshl_b32 s28, s{S_G}, 5")
    a(f"v_add_u32 v{T0}, s28, v{T0}")
    a(f"v_lshrrev_b32 v{T1}, 5, v1")
    a(f"v_and_b32 v{T2}, 15, v{T0}")
    a(f"v_xor_b32 v{T2}, v{T2}, v{T1}")
    a(f"v_lshlrev_b32 v{T2}, 4, v{T2}")
    a(f"v_lshlrev_b32 v{T0}, 8, v{T0}")
    a(f"v_add_u32 v{V_XA}, v{T0}, v{T2}")
    for s_ in range(1, 8): a(f"v_xor_b32 v{V_XA+s_}, {32*s_}, v{V_XA}")
    a(f"v_bfe_u32 v{T0}, v1, 2, 2")
    a(f"v_lshlrev_b32 v{T0}, 1, v{T0}")
    a(f"v_lshlrev_b32 v{T2}, 3, v{T1}")
    a(f"v_add_u32 v{T0}, v{T0}, v{T2}")
    a(f"v_mul_u32_u24 v{T0}, 160, v{T0}")
    a(f"v_and_b32 v{T2}, 3, v1")
    a(f"v_lshlrev_b32 v{T2}, 3, v{T2}")
    a(f"v_and_b32 v{T3}, 16, v1")
    a(f"v_cmp_ne_u32 vcc, 0, v{T3}")
    a(f"s_mul_i32 s28, s{S_HH}, 40")
    a(f"s_add_u32 s28, s28, 16384")
    a(f"v_mov_b32 v{T3}, 32")
    a(f"v_cndmask_b32 v{T2}, v{T2}, v{T3}, vcc")
    a(f"v_add_u32 v{T0}, v{T0}, v{T2}")
    a(f"v_add_u32 v{V_WA}, s28, v{T0}")
    for r in range(16):
        a(f"v_mov_b32 v{QACC+r}, 0"); a(f"v_mov_b32 v{GACC+r}, 0")
    a(f"v_lshlrev_b32 v{T1}, 4, v{T1}")
    a(f"s_lshl_b32 s28, s{S_HH}, 5")
    a(f"s_add_u32 s28, s28, {GWL}")
    a(f"v_add_u32 v{V_GWA}, s28, v{T1}")
    def q_chunk(ch, slot):
        off = (slot & 1) * SLOT
        def loads(s_):
            b = s_ % 3
            a(f"ds_read_b128 {v(QXF+4*b,4)}, v{V_XA+s_} offset:{off}")
            a(f"ds_read_b64_tr_b16 {v(QWF+4*b,2)}, v{V_WA} offset:{off + 2560*s_}")
            a(f"ds_read_b64_tr_b16 {v(QWF+4*b+2,2)}, v{V_WA} offset:{off + 2560*s_ + 160}")
        a(f"ds_read_b128 {v(GW,4)}, v{V_GWA} offset:{128*(2*ch)}")
        a(f"ds_read_b128 {v(GW+4,4)}, v{V_GWA} offset:{128*(2*ch+1)}")
        loads(0); loads(1)
        for s_ in range(8):
            if s_ < 6:
                loads(s_+2); a("s_waitcnt lgkmcnt(6)")
            elif s_ == 6: a("s_waitcnt lgkmcnt(3)")
            else: a("s_waitcnt lgkmcnt(0)")
            b = s_ % 3
            a(f"v_mfma_f32_32x32x16_bf16 {v(QACC,16)}, {v(QWF+4*b,4)}, {v(QXF+4*b,4)}, {v(QACC,16)}")
            lg = a.newlabel("ng")
            a(f"s_cmp_lg_u32 s{S_HH}, {s_ & 3}")
            a(f"s_cbranch_scc1 {lg}")
            a(f"v_mfma_f32_32x32x16_bf16 {v(GACC,16)}, {v(GW+4*(s_>>2),4)}, {v(QXF+4*b,4)}, {v(GACC,16)}")
            a.label(lg)
    def bump(delta):
        op = "v_add_u32" if delta > 0 else "v_subrev_u32"
        for s_ in range(8): a(f"{op} v{V_XA+s_}, {abs(delta)}, v{V_XA+s_}")
        a(f"{op} v{V_WA}, {abs(delta)}, v{V_WA}")
    SF, SG = 16, 32
    P = 48
    OF, OG = 56, 72
    K16, K8, V0, V1 = 88, 92, 96, 100
    AK16, AK8, AV, AK16N, AK8N, AVN = 104, 105, 106, 107, 108, 109
    V_L16, V_ONE, V_CFW, V_CD, V_KW, V_CT = 110, 111, 112, 113, 114, 115
    KVST, KVST2 = 116, 16
    V_CFR = 128
    V_STG, V_OL0, V_OG0, V_OL1, V_OG1, V_OUT, V_WT, V_YT, V_GA, V_PX, V_TL16 = range(129, 140)
    QT, YS = 140, 150
    S_T, S_BLK, S_SLOT, S_NXT, S_FT, S_DT = 34, 35, 36, 37, 38, 39
    S_RB, S_M2, S_P1, S_DL, S_WB = 78, 79, 80, 81, 82
    S_CFB, S_CA, S_CBB = 89, 90, 91
    def tail_addrs():
        a(f"v_lshlrev_b32 v{V_TL16}, 4, v1")
        a(f"v_and_b32 v{T0}, 31, v1")
        a(f"v_mul_u32_u24 v{T0}, 160, v{T0}")
        a(f"v_lshrrev_b32 v{T1}, 5, v1")
        a(f"v_lshlrev_b32 v{T1}, 3, v{T1}")
        a(f"v_add_u32 v{T0}, v{T0}, v{T1}")
        a(f"s_mul_i32 s28, s{S_HH}, 40")
        a(f"s_mul_i32 s29, s{S_G}, 5120")
        a(f"s_add_u32 s28, s28, s29")
        a(f"s_add_u32 s28, s28, {OST}")
        a(f"v_add_u32 v{V_STG}, s28, v{T0}")
        for t, (vl, vg) in enumerate(((V_OL0, V_OG0), (V_OL1, V_OG1))):
            a(f"s_add_u32 s28, s{S_W}, {8*t}")
            a(f"s_lshl_b32 s28, s28, 2")
            a(f"v_lshrrev_b32 v{T0}, 4, v1")
            a(f"v_add_u32 v{T0}, s28, v{T0}")
            div10(a, T0, T1, T0, T2)
            a(f"v_and_b32 v{T2}, 15, v1")
            a(f"v_lshl_add_u32 v{T3}, v{T1}, 4, v{T2}")
            a(f"v_mul_u32_u24 v{T3}, 160, v{T3}")
            a(f"v_lshl_add_u32 v{vl}, v{T0}, 4, v{T3}")
            a(f"v_add_u32 v{vl}, {OST}, v{vl}")
            a(f"v_mul_u32_u24 v{T1}, 20480, v{T1}")
            a(f"v_lshl_add_u32 v{T1}, v{T0}, 8, v{T1}")
            a(f"v_lshl_add_u32 v{vg}, v{T2}, 4, v{T1}")
        a(f"v_and_b32 v{T0}, 15, v1")
        a(f"s_lshl_b32 s29, s{S_HH}, 4")
        a(f"s_lshl_b32 s28, s{S_I}, 6")
        a(f"s_add_u32 s28, s28, s29")
        a(f"v_add_u32 v{T1}, s28, v{T0}")
        a(f"v_mul_lo_u32 v{T1}, v{T1}, s{S_1280}")
        a(f"v_lshrrev_b32 v{T2}, 4, v1")
        a(f"v_lshlrev_b32 v{T3}, 3, v{T2}")
        a(f"v_add_u32 v{T1}, v{T1}, v{T3}")
        a(f"s_mul_i32 s28, s{S_J}, 160")
        a(f"v_add_u32 v{V_OUT}, s28, v{T1}")
        a(f"v_lshlrev_b32 v{T0}, 2, v{T0}")
        a(f"s_lshl_b32 s28, s{S_HH}, 6")
        a(f"s_add_u32 s28, s28, {G_L}")
        a(f"v_add_u32 v{V_GA}, s28, v{T0}")
        a(f"v_lshrrev_b32 v{T0}, 5, v1")
        a(f"v_lshlrev_b32 v{T0}, 4, v{T0}")
        a(f"v_bfe_u32 v{T1}, v1, 4, 1")
        a(f"v_lshlrev_b32 v{T1}, 2, v{T1}")
        a(f"v_add_u32 v{T0}, v{T0}, v{T1}")
        a(f"v_bfe_u32 v{T1}, v1, 2, 2")
        a(f"v_add_u32 v{T0}, v{T0}, v{T1}")
        a(f"v_mul_u32_u24 v{T0}, 160, v{T0}")
        a(f"v_and_b32 v{T1}, 3, v1")
        a(f"v_lshlrev_b32 v{T1}, 3, v{T1}")
        a(f"v_add_u32 v{T0}, v{T0}, v{T1}")
        a(f"s_cmp_eq_u32 s{S_G}, 0")
        a(f"s_cselect_b32 s28, {WOA}, {WOB}")
        a(f"v_add_u32 v{V_WT}, s28, v{T0}")
        a(f"v_bfe_u32 v{T0}, v1, 2, 4")
        a(f"v_lshlrev_b32 v{T0}, 7, v{T0}")
        a(f"v_add_u32 v{T0}, v{T0}, v{T1}")
        a(f"s_lshl_b32 s28, s{S_HH}, 5")
        a(f"s_add_u32 s28, s28, {YL}")
        a(f"v_add_u32 v{V_YT}, s28, v{T0}")
        a(f"s_mul_i32 s28, s{S_W}, 3072")
        a(f"s_add_u32 s28, s28, {PX}")
        a(f"v_add_u32 v{V_PX}, s28, v{V_TL16}")
    def ring_addrs():
        a(f"s_mul_i32 s{S_RB}, s{S_G}, {RING_STRIDE}")
        a(f"v_lshlrev_b32 v{V_L16}, 4, v1")
        a(f"v_mov_b32 v{V_ONE}, 1")
        a(f"s_lshl_b32 s28, s{S_G}, 4")
        a(f"s_add_u32 s{S_CFB}, s28, {C_FULL}")
        a(f"s_mul_i32 s29, s{S_HH}, {BLK}")
        a(f"s_add_u32 s{S_WB}, s{S_RB}, s29")
        a(f"v_add_u32 v{AK16}, s{S_RB}, v{V_L16}")
        a(f"v_and_b32 v{T0}, 31, v1")
        a(f"v_lshlrev_b32 v{T1}, 3, v{T0}")
        a(f"v_add_u32 v{T1}, 1024, v{T1}")
        a(f"v_mov_b32 v{AK8}, 1280")
        a(f"v_cmp_gt_u32 vcc, 32, v1")
        a(f"v_min_u32 v{T2}, 20, v{T0}")
        a(f"v_subrev_u32 v{AV}, 16, v{T0}")
        a(f"v_cndmask_b32 v{AK8}, v{AK8}, v{T1}, vcc")
        a(f"v_add_u32 v{AK8}, s{S_RB}, v{AK8}")
        a(f"v_cmp_lt_u32 vcc, 27, v{T0}")
        a.nop(2)
        a(f"v_cndmask_b32 v{T2}, v{T2}, v{AV}, vcc")
        a(f"v_lshlrev_b32 v{T2}, 4, v{T2}")
        a(f"v_lshrrev_b32 v{AV}, 5, v1")
        a(f"v_mul_u32_u24 v{AV}, 336, v{AV}")
        a(f"v_add_u32 v{AV}, v{AV}, v{T2}")
        a(f"v_add_u32 v{AV}, 1296, v{AV}")
        a(f"v_add_u32 v{AV}, s{S_RB}, v{AV}")
        a(f"v_lshlrev_b32 v{T0}, 2, v1")
        a(f"v_add_u32 v{T0}, {DUMMY}, v{T0}")
        a(f"v_mov_b32 v{T1}, s{S_CFB}")
        a(f"v_cmp_eq_u32 vcc, 0, v1")
        a.nop(2)
        a(f"v_cndmask_b32 v{V_CFW}, v{T0}, v{T1}, vcc")
        a(f"v_add_u32 v{V_KW}, s{S_WB}, v{V_L16}")
        a(f"s_lshl_b32 s28, s{S_W}, 2")
        a(f"s_add_u32 s29, s28, {C_PROG}")
        a(f"v_mov_b32 v{T1}, s29")
        a(f"v_cndmask_b32 v150, v{T0}, v{T1}, vcc")
        a(f"s_xor_b32 s28, s28, 16")
        a(f"s_add_u32 s28, s28, {C_PROG}")
        a(f"v_mov_b32 v151, s28")
    def blk_off(t, g=None):
        a(f"s_add_u32 s28, s{S_ROT}, {t}")
        a(f"s_and_b32 s28, s28, 7")
        a(f"s_lshl_b32 s28, s28, 2")
        if g is None:
            a(f"s_lshl_b32 s29, s{S_G}, 5")
            a(f"s_add_u32 s28, s28, s29")
        elif g: a(f"s_add_u32 s28, s28, {32*g}")
        a(f"s_add_u32 s28, s28, s{S_HH}")
        a(f"s_mul_i32 s{S_BLK}, s28, 3072")
    def kv_load(dst):
        for q in range(3):
            a(f"buffer_load_dwordx4 {v(dst+4*q,4)}, v{V_L16}, {R(SRD_WS)}, s{S_BLK} offen offset:{1024*q} sc1")
    def kv_write(src, off=0):
        for q in range(3): a(f"ds_write_b128 v{V_KW}, {v(src+4*q,4)} offset:{off + 1024*q}")
    def wait_chunk(ch):
        if ch < 2:
            if ch == 0: wait_vm(NA, NB)
            else: a("s_waitcnt vmcnt(0)")
            lds_add1_imm(a, C_CL + 4*ch)
            lds_wait_imm(a, C_CL + 4*ch, 8, sleep=0)
        else:
            lds_wait_imm(a, C_CL + 4*ch, 3, sleep=1)
        stamp(a, f"cl{ch}")
    wait_chunk(0)
    q_chunk(0, 0)
    lds_add1_imm(a, C_C0C)
    wait_chunk(1)
    q_chunk(1, 1)
    lds_add1_imm(a, C_C1C)
    tail_addrs()
    bump(2 * SLOT)
    wait_chunk(2)
    q_chunk(2, 2)
    bump(-2 * SLOT)
    wait_chunk(3)
    q_chunk(3, 0)
    wait_chunk(4)
    q_chunk(4, 1)
    KB = [116, 152]
    a(f"v_lshlrev_b32 v{V_L16}, 4, v1")
    lds_wait_imm(a, C_KVOK, 1, sleep=1)
    stamp(a, "kvok")
    blk_off(2); kv_load(KB[0])
    blk_off(3); kv_load(KB[1])
    stamp(a, "qdone")

    QF16, QF8, QG16, QG8 = 4, 8, 10, 14
    a.nop(16)
    a(f"s_mov_b32 s28, {hex(f32bits(QSCALE))}")
    for r in range(12): a(f"v_mul_f32 v{QACC+r}, s28, v{QACC+r}")
    for r in range(4): a(f"v_cvt_pk_bf16_f32 v{QF16+r}, v{QACC+2*r}, v{QACC+2*r+1}")
    for r in range(2): a(f"v_cvt_pk_bf16_f32 v{QF8+r}, v{QACC+8+2*r}, v{QACC+8+2*r+1}")
    a(f"v_cmp_gt_u32 vcc, 32, v1")
    a(f"s_lshl_b32 s28, s{S_W}, 10")
    a(f"v_lshlrev_b32 v{T2}, 4, v1")
    for r in range(2): a(f"v_cndmask_b32 v{QF8+r}, 0, v{QF8+r}, vcc")
    a(f"v_add_u32 v{T2}, s28, v{T2}")
    a(f"v_lshrrev_b32 v{T3}, 1, v{T2}")
    a(f"v_xor_b32 v{V_QXP}, 4096, v{T2}")
    a(f"v_xor_b32 v{V_QXP+1}, 2048, v{T3}")
    a(f"v_add_u32 v{T2}, {QXA}, v{T2}")
    a(f"v_add_u32 v{T3}, {QXB}, v{T3}")
    a(f"v_add_u32 v{V_QXP}, {QXA}, v{V_QXP}")
    a(f"v_add_u32 v{V_QXP+1}, {QXB}, v{V_QXP+1}")
    a(f"ds_write_b128 v{T2}, {v(QF16,4)}")
    a(f"ds_write_b64 v{T3}, {v(QF8,2)}")
    a(f"s_lshl_b32 s28, s{S_W}, 7")
    a(f"s_add_u32 s28, s28, {GP}")
    a(f"v_lshlrev_b32 v{T1}, 2, v1")
    a(f"v_add_u32 v{T1}, s28, v{T1}")
    a(f"s_mov_b64 exec, 0xffffffff")
    a(f"ds_write_b32 v{T1}, v{GACC}")
    a(f"s_mov_b64 exec, -1")
    a(f"s_lshl_b32 s28, s{S_W}, 2")
    a(f"s_add_u32 s29, s28, {C_QXF}")
    a(f"v_mov_b32 v{T0}, s29")
    a(f"v_mov_b32 v{T1}, 1")
    lds_add1(a, T0, T1)
    a(f"s_xor_b32 s28, s28, 16")
    a(f"s_add_u32 s28, s28, {C_QXF}")
    a(f"v_mov_b32 v{T0}, s28")
    lds_wait_ge(a, 1, T1, T0, sleep=1)
    a(f"ds_read_b128 {v(QG16,4)}, v{V_QXP}")
    a(f"ds_read_b64 {v(QG8,2)}, v{V_QXP+1}")
    a("s_waitcnt lgkmcnt(0)")
    lds_add1_imm(a, C_QG)
    def gate_fin():
        lds_wait_imm(a, C_QG, 8, sleep=1)
        a(f"v_lshrrev_b32 v{T0}, 5, v1")
        a(f"v_lshlrev_b32 v{T0}, 9, v{T0}")
        a(f"v_and_b32 v{T1}, 31, v1")
        a(f"v_lshlrev_b32 v{T1}, 2, v{T1}")
        a(f"v_add_u32 v{T0}, v{T0}, v{T1}")
        a(f"v_add_u32 v{T0}, {GP}, v{T0}")
        for k in range(4): a(f"ds_read_b32 v{96+k}, v{T0} offset:{128*k}")
        a("s_waitcnt lgkmcnt(0)")
        a(f"v_add_f32 v96, v96, v97")
        a(f"v_add_f32 v98, v98, v99")
        a(f"v_add_f32 v96, v96, v98")
        a(f"v_mul_f32 v96, {hex(f32bits(-1.4426950408889634))}, v96")
        a(f"v_exp_f32 v96, v96")
        a.nop(1)
        a(f"v_add_f32 v96, 1.0, v96")
        a(f"v_rcp_f32 v96, v96")
        a(f"v_lshlrev_b32 v{T0}, 2, v1")
        a(f"v_add_u32 v{T0}, {G_L}, v{T0}")
        a.nop(1)
        a(f"ds_write_b32 v{T0}, v96")
    if_wave(a, "eq", 7, gate_fin)
    stamp(a, "qg")

    ring_addrs()
    for r in range(16):
        a(f"v_mov_b32 v{OF+r}, 0"); a(f"v_mov_b32 v{OG+r}, 0")
    for r in range(8): a(f"v_mov_b32 v{P+r}, 0")
    for r in range(4): a(f"v_mov_b32 v{V1+r}, 0")
    for r in range(12, 16): a(f"v_mov_b32 v{SG+r}, 0")
    lds_wait_ge(a, 4, V_CT, V_CFW, sleep=1)
    stamp(a, "full0")
    a(f"ds_read_b128 {v(K16,4)}, v{AK16}")
    a(f"ds_read_b64 {v(K8,2)}, v{AK8}")
    a(f"ds_read_b128 {v(V0,4)}, v{AV}")
    a("s_waitcnt lgkmcnt(0)")
    a(f"v_mfma_f32_32x32x16_bf16 {v(SF,16)}, {v(K16,4)}, {v(QF16,4)}, 0")
    a(f"v_mfma_f32_32x32x8_bf16 {v(SF,16)}, {v(K8,2)}, {v(QF8,2)}, {v(SF,16)}")
    S_T, S_NC, S_GB, S_PR = 34, 39, 79, 80
    S_WS, S_DTG, S_FTG, S_DL, S_NX = 36, 37, 38, 81, 82-0
    S_NX = 90; S_PI = 91; S_NI = 89
    V_CW, V_CN = 112+0, 129-1
    a(f"s_mov_b32 s{S_T}, 0")
    a(f"s_mov_b32 s{S_PR}, 0")
    a(f"s_add_u32 s{S_NC}, s{S_ROT}, 4")
    a(f"s_lshl_b32 s28, s{S_G}, 5")
    a(f"s_add_u32 s28, s28, s{S_HH}")
    a(f"s_mul_i32 s{S_GB}, s28, 3072")
    a(f"s_mov_b32 s{S_WS}, {2*KVSLOT}")
    a(f"s_mov_b32 s{S_PI}, 8")
    a(f"s_mov_b32 s{S_NI}, 4")
    a(f"s_mov_b32 s{S_DTG}, 0")
    a(f"s_mov_b32 s{S_FTG}, 4")
    a(f"s_mov_b32 s{S_NX}, {KVSLOT}")
    V_CP, V_CNX, V_KWP = 113, 108, 109
    AK16N, AK8N, AVN = 129-129+153+11, 0, 0
    V_PG, V_PGP, V_PT = 150, 151, 128
    a(f"v_add_u32 v{V_CP}, 8, v{V_CFW}")
    a(f"v_add_u32 v{V_CNX}, 4, v{V_CFW}")
    a(f"v_add_u32 v{V_KWP}, {2*KVSLOT}, v{V_KW}")
    for cur, nxt in ((104, 94), (105, 95), (106, 107)):
        a(f"v_add_u32 v{nxt}, {KVSLOT}, v{cur}")
    for mt in range(5):
        a(f"buffer_load_dwordx2 {v(QT+2*mt,2)}, v{V_OUT}, {R(SRD_X)}, 0 offen offset:{32*mt}")
    a("s_setprio 1")
    stamp(a, "loop0")
    LOOP = "f_attn"
    if "align" in OPT: a(".p2align 6")
    a.label(LOOP)
    e = lambda S, i: a(f"v_exp_f32 v{S+i}, v{S+i}")
    c = lambda S, i: a(f"v_cvt_pk_bf16_f32 v{P+i}, v{S+2*i}, v{S+2*i+1}")
    def check_cnt(target, vaddr, off):
        ok = a.newlabel("ok"); lp = a.newlabel("rt")
        a(f"v_readfirstlane_b32 s42, v{V_CT}")
        a("s_nop 3")
        a(f"s_cmp_ge_u32 s42, {target}")
        a(f"s_cbranch_scc1 {ok}")
        a(f"s_mov_b32 s43, 0")
        a.label(lp)
        a("s_sleep 1")
        a(f"ds_read_b32 v{V_CT}, v{vaddr} offset:{off}")
        a("s_waitcnt lgkmcnt(0)")
        a(f"v_readfirstlane_b32 s42, v{V_CT}")
        a(f"s_add_u32 s43, s43, 1")
        a(f"s_cmp_ge_u32 s43, {POLL_MAX*8}")
        a(f"s_cbranch_scc1 {ok}")
        a(f"s_cmp_lt_u32 s42, {target}")
        a(f"s_cbranch_scc1 {lp}")
        a.label(ok)
    AN16, AN8, ANV = 153+11-11+0, 0, 0
    AN16, AN8, ANV = 129 + 0, 0, 0
    AN16, AN8, ANV = 94, 95, 107
    for par in range(2):
        for b in range(4):
            last = (b == 3)
            kA16, kA8, kAV, koff = (AN16, AN8, ANV, 0) if last else (AK16, AK8, AV, (b+1)*BLK)
            extra = b in (2, 3)
            c(SG, 6); c(SG, 7)
            a(f"v_mfma_f32_32x32x16_bf16 {v(SG,16)}, {v(K16,4)}, {v(QG16,4)}, 0")
            a(f"ds_read_b128 {v(K16,4)}, v{kA16} offset:{koff}")
            if b == 2: a(f"ds_read_b32 v{V_CT}, v{V_CNX}")
            if b == 3: a(f"ds_read_b32 v{V_CT}, v{V_CP} offset:32")
            for i in range(0, 4): e(SF, i)
            c(SF, 0); c(SF, 1)
            a(f"v_mfma_f32_32x32x16_bf16 {v(OG,16)}, {v(V1,4)}, {v(P+4,4)}, {v(OG,16)}")
            a(f"ds_read_b128 {v(V1,4)}, v{AV} offset:{b*BLK + 672}")
            for i in range(4, 8): e(SF, i)
            c(SF, 2); c(SF, 3)
            a(f"v_mfma_f32_32x32x8_bf16 {v(SG,16)}, {v(K8,2)}, {v(QG8,2)}, {v(SG,16)}")
            a(f"ds_read_b64 {v(K8,2)}, v{kA8} offset:{koff}")
            for i in range(8, 12): e(SF, i)
            c(SF, 4); c(SF, 5)
            a(f"s_waitcnt lgkmcnt({4 if extra else 3})")
            a(f"v_mfma_f32_32x32x16_bf16 {v(OF,16)}, {v(V0,4)}, {v(P,4)}, {v(OF,16)}")
            for i in range(12, 16): e(SF, i)
            c(SF, 6); c(SF, 7)
            a("s_waitcnt lgkmcnt(0)")
            a(f"v_mfma_f32_32x32x16_bf16 {v(SF,16)}, {v(K16,4)}, {v(QF16,4)}, 0")
            if b == 0:
                if par == 0: if_s(a, S_T, "lg", 0, lambda: a(f"ds_add_u32 v{V_CP}, v{V_ONE} offset:32"))
                else: a(f"ds_add_u32 v{V_CP}, v{V_ONE} offset:32")
            if b == 1 and "nolag" not in OPT:
                a(f"ds_read_b32 v{V_PT}, v{V_PGP}")
            if b == 2 and "nofeed" not in OPT:
                lb = a.newlabel("nf")
                a(f"s_cmp_ge_u32 s{S_T}, 7")
                a(f"s_cbranch_scc1 {lb}")
                check_cnt(f"s{S_FTG}", V_CNX, 0)
                a.label(lb)
            if b == 3 and "nofeed" not in OPT:
                lb = a.newlabel("nw")
                a(f"s_cmp_ge_u32 s{S_T}, 6")
                a(f"s_cbranch_scc1 {lb}")
                check_cnt(f"s{S_DTG}", V_CP, 32)
                l6 = a.newlabel("w6"); l7 = a.newlabel("w7")
                a(f"s_cmp_ge_u32 s{S_T}, 5")
                a(f"s_cbranch_scc1 {l6}")
                a("s_waitcnt vmcnt(3)")
                a(f"s_branch {l7}")
                a.label(l6)
                a("s_waitcnt vmcnt(0)")
                a.label(l7)
                for q in range(3): a(f"ds_write_b128 v{V_KWP}, {v(KB[par]+4*q,4)} offset:{1024*q}")
                a(f"ds_add_u32 v{V_CP}, v{V_ONE}")
                a(f"s_cmp_ge_u32 s{S_T}, 4")
                a(f"s_cbranch_scc1 {lb}")
                a(f"s_and_b32 s28, s{S_NC}, 7")
                a(f"s_mul_i32 s28, s28, 12288")
                a(f"s_add_u32 s{S_BLK}, s28, s{S_GB}")
                a(f"s_add_u32 s{S_NC}, s{S_NC}, 1")
                kv_load(KB[par])
                a.label(lb)
            for i in range(0, 4): e(SG, i)
            c(SG, 0); c(SG, 1)
            a(f"v_mfma_f32_32x32x16_bf16 {v(OF,16)}, {v(V1,4)}, {v(P+4,4)}, {v(OF,16)}")
            for i in range(4, 8): e(SG, i)
            c(SG, 2); c(SG, 3)
            a(f"v_mfma_f32_32x32x8_bf16 {v(SF,16)}, {v(K8,2)}, {v(QF8,2)}, {v(SF,16)}")
            for i in range(8, 12): e(SG, i)
            c(SG, 4); c(SG, 5)
            a(f"v_mfma_f32_32x32x16_bf16 {v(OG,16)}, {v(V0,4)}, {v(P,4)}, {v(OG,16)}")
            a(f"ds_read_b128 {v(V0,4)}, v{kAV} offset:{koff}")
            for i in range(12, 16): e(SG, i)
        a(f"s_add_u32 s{S_T}, s{S_T}, 1")
        a(f"s_add_u32 s{S_NX}, s{S_NX}, {KVSLOT}")
        a(f"s_cmp_ge_u32 s{S_NX}, {3*KVSLOT}")
        a(f"s_cselect_b32 s{S_DL}, s78, s35" if False else f"s_cselect_b32 s{S_DL}, {(-2*KVSLOT) & 0xffffffff}, s77" if False else f"s_cselect_b32 s{S_NX}, 0, s{S_NX}")
        a(f"s_mov_b32 s{S_DL}, {KVSLOT}")
        a(f"s_cselect_b32 s28, {(-3*KVSLOT) & 0xffffffff}, 0")
        a(f"s_add_u32 s{S_DL}, s{S_DL}, s28")
        for cur, nxt in ((AK16, AN16), (AK8, AN8), (AV, ANV)):
            a(f"v_mov_b32 v{cur}, v{nxt}")
            a(f"v_add_u32 v{nxt}, s{S_DL}, v{nxt}")
        a(f"s_add_u32 s{S_NI}, s{S_NI}, 4")
        a(f"s_cmp_ge_u32 s{S_NI}, 12")
        a(f"s_cselect_b32 s29, 4, 0")
        a(f"s_cselect_b32 s28, -8, 4")
        a(f"s_cselect_b32 s{S_NI}, 0, s{S_NI}")
        a(f"s_add_u32 s{S_FTG}, s{S_FTG}, s29")
        a(f"v_add_u32 v{V_CNX}, s28, v{V_CNX}")
        a(f"s_add_u32 s{S_PI}, s{S_PI}, 4")
        a(f"s_cmp_ge_u32 s{S_PI}, 12")
        a(f"s_cselect_b32 s29, 4, 0")
        a(f"s_cselect_b32 s28, -8, 4")
        a(f"s_cselect_b32 s{S_PI}, 0, s{S_PI}")
        a(f"s_add_u32 s{S_DTG}, s{S_DTG}, s29")
        a(f"v_add_u32 v{V_CP}, s28, v{V_CP}")
        a(f"s_cselect_b32 s28, {(-2*KVSLOT) & 0xffffffff}, s77" if False else f"s_mul_i32 s28, s28, {KVSLOT // 4}")
        a(f"v_add_u32 v{V_KWP}, s28, v{V_KWP}")
        if "nolag" not in OPT:
            a(f"v_mov_b32 v{V_CT}, s{S_T}")
            a(f"v_readfirstlane_b32 s42, v{V_PT}")
            a(f"ds_write_b32 v{V_PG}, v{V_CT}")
            lpa = a.newlabel("pa"); lpb = a.newlabel("pb")
            a(f"s_cmp_gt_u32 s{S_T}, s42")
            a(f"s_cbranch_scc1 {lpa}")
            a("s_setprio 2")
            a(f"s_branch {lpb}")
            a.label(lpa)
            a("s_setprio 1")
            a.label(lpb)
    a(f"s_cmp_lt_u32 s{S_T}, 8")
    a(f"s_cbranch_scc1 {LOOP}")
    stamp(a, "loopE")
    c(SG, 6); c(SG, 7)
    a(f"s_mul_i32 s28, s{S_W}, 3072")
    a(f"s_add_u32 s28, s28, {OX}")
    a(f"v_add_u32 v{T2}, s28, v{V_L16}")
    a(f"s_xor_b32 s29, s{S_W}, 4")
    a(f"s_mul_i32 s29, s29, 3072")
    a(f"s_add_u32 s29, s29, {OX}")
    a(f"v_mfma_f32_32x32x16_bf16 {v(OG,16)}, {v(V1,4)}, {v(P+4,4)}, {v(OG,16)}")
    a(f"v_add_u32 v{T3}, s29, v{V_L16}")
    a("s_setprio 2")
    V_LA = 94
    def cadd(addr):
        a(f"v_add_u32 v95, {addr}, v{V_LA}" if False else f"v_mov_b32 v95, {addr}")
        lds_add1(a, 95, V_ONE)
    a("s_waitcnt lgkmcnt(0)")
    cadd(C_LE)
    a.nop(6)
    for q in range(3): a(f"ds_write_b128 v{T2}, {v(OG+4*q,4)} offset:{1024*q}")
    a(f"s_lshl_b32 s28, s{S_W}, 2")
    a(f"s_add_u32 s30, s28, {C_XF}")
    a(f"v_mov_b32 v95, s30")
    lds_add1(a, 95, V_ONE)
    a(f"s_xor_b32 s28, s28, 16")
    a(f"s_add_u32 s30, s28, {C_XF}")
    a(f"v_mov_b32 v{T0}, s30")
    lds_wait_ge(a, 1, T1, T0, sleep=0)
    lds_wait_imm(a, C_CVD, 3, sleep=1)
    stamp(a, "J1")
    PB = 16
    for q in range(3): a(f"ds_read_b128 {v(PB+4*q,4)}, v{T3} offset:{1024*q}")
    a("s_waitcnt lgkmcnt(0)")
    for r in range(12): a(f"v_add_f32 v{OF+r}, v{OF+r}, v{PB+r}")
    a(f"v_mov_b32 v40, v{OF+8}")
    a(f"v_mov_b32 v41, v{OF+8}")
    a.nop(2)
    a(f"v_permlane32_swap_b32 v40, v41")
    a.nop(2)
    a(f"v_rcp_f32 v41, v41")
    a.nop(1)
    for r in range(12): a(f"v_mul_f32 v{OF+r}, v{OF+r}, v41")
    for r in range(6): a(f"v_cvt_pk_bf16_f32 v{104+r}, v{OF+2*r}, v{OF+2*r+1}")
    a(f"ds_write_b64 v{V_STG}, v[104:105]")
    a(f"ds_write_b64 v{V_STG}, v[106:107] offset:16")
    a(f"s_mov_b64 exec, 0xffffffff")
    a(f"ds_write_b64 v{V_STG}, v[108:109] offset:32")
    a(f"s_mov_b64 exec, -1")
    cadd(C_ST)
    a(f"s_mul_i32 s29, s{S_I}, 81920")
    a(f"s_mul_i32 s30, s{S_J}, 2560")
    a(f"s_add_u32 s29, s29, s30")
    a(f"s_add_u32 s29, s29, {O_OFF}")
    lds_wait_imm(a, C_ST, 8, sleep=0)
    a(f"ds_read_b128 v[44:47], v{V_OL0}")
    if_wave(a, "lt", 2, lambda: a(f"ds_read_b128 v[48:51], v{V_OL1}"))
    a("s_waitcnt lgkmcnt(0)")
    a(f"buffer_store_dwordx4 v[44:47], v{V_OG0}, {R(SRD_WS)}, s29 offen sc1")
    if_wave(a, "lt", 2, lambda: a(f"buffer_store_dwordx4 v[48:51], v{V_OG1}, {R(SRD_WS)}, s29 offen sc1"))
    OFR, ACC, AF = 16, 56, 76
    def ldsA(s_):
        b = s_ & 1
        for mt in range(5):
            a(f"ds_read_b64_tr_b16 {v(AF+20*b+4*mt,2)}, v{V_WT} offset:{s_*5120 + 32*mt}")
            a(f"ds_read_b64_tr_b16 {v(AF+20*b+4*mt+2,2)}, v{V_WT} offset:{s_*5120 + 1280 + 32*mt}")
    for r in range(20): a(f"v_mov_b32 v{ACC+r}, 0")
    a(f"s_mul_i32 s28, s{S_I}, 81920")
    a(f"s_mul_i32 s29, s{S_HH}, 20480")
    a(f"s_add_u32 s28, s28, s29")
    a(f"s_mul_i32 s29, s{S_G}, 10240")
    a(f"s_add_u32 s28, s28, s29")
    a(f"s_add_u32 s28, s28, {O_OFF}")
    a("s_waitcnt vmcnt(0)")
    stamp(a, "ostd")
    cadd(C_OCNT)
    a(f"s_cmp_eq_u32 s{S_G}, 0")
    a(f"s_cselect_b32 s30, 0, {C_WOKB - C_WOK}")
    a(f"s_add_u32 s30, s30, {C_WOK}")
    a(f"v_mov_b32 v{T0}, s30")
    lds_wait_ge(a, 3, T1, T0, sleep=1)
    ldsA(0)
    lds_wait_imm(a, C_OOK, 1, sleep=0)
    stamp(a, "h4ok")
    for s_ in range(10):
        a(f"buffer_load_dwordx4 {v(OFR+4*s_,4)}, v{V_TL16}, {R(SRD_WS)}, s28 offen offset:{1024*(s_%4)} sc1")
        if s_ % 4 == 3: a(f"s_add_u32 s28, s28, 4096")
    for s_ in range(10):
        if s_ < 9:
            ldsA(s_ + 1); a(f"s_waitcnt lgkmcnt(10) vmcnt({9 - s_})")
        else:
            a("s_waitcnt lgkmcnt(0) vmcnt(0)")
        b = s_ & 1
        for mt in range(5):
            a(f"v_mfma_f32_16x16x32_bf16 {v(ACC+4*mt,4)}, {v(AF+20*b+4*mt,4)}, {v(OFR+4*s_,4)}, {v(ACC+4*mt,4)}")
    stamp(a, "oproj")
    YF, GV = 16, 30
    FINA = "f_fina"; FINB = "f_finb"
    a(f"v_xor_b32 v{T3}, 0, v{V_PX}" if False else f"s_xor_b32 s29, s{S_W}, 4")
    a(f"s_mul_i32 s29, s29, 3072")
    a(f"s_add_u32 s29, s29, {PX}")
    a(f"v_add_u32 v{T3}, s29, v{V_TL16}")
    lds_wait_imm(a, C_YW, 2, T1, T0, sleep=0)
    def fin(keep, send):
        for mt in keep: a(f"ds_read_b64_tr_b16 {v(YF+2*mt,2)}, v{V_YT} offset:{2048*mt}")
        a(f"ds_read_b32 v{GV}, v{V_GA}")
        a.nop(4)
        for n, mt in enumerate(send): a(f"ds_write_b128 v{V_PX}, {v(ACC+4*mt,4)} offset:{1024*n}")
        a(f"s_lshl_b32 s28, s{S_W}, 2")
        a(f"s_add_u32 s30, s28, {C_PF}")
        a(f"v_mov_b32 v{T0}, s30")
        a(f"v_mov_b32 v{T1}, 1")
        lds_add1(a, T0, T1)
        a("s_waitcnt lgkmcnt(0)")
        for mt in keep:
            for hlf in range(2):
                yq = YF + 2*mt + hlf; qq = QT + 2*mt + hlf; d = 32 + 4*mt + 2*hlf
                a(f"v_lshlrev_b32 v{d}, 16, v{yq}")
                a(f"v_and_b32 v{d+1}, 0xffff0000, v{yq}")
                a(f"v_lshlrev_b32 v52, 16, v{qq}")
                a(f"v_and_b32 v53, 0xffff0000, v{qq}")
                a(f"v_mul_f32 v52, v52, v{GV}")
                a(f"v_mul_f32 v53, v53, v{GV}")
                a(f"v_mul_f32 v{d}, v{d}, v52")
                a(f"v_mul_f32 v{d+1}, v{d+1}, v53")
        a(f"v_sub_f32 v{GV+1}, 1.0, v{GV}")
        a(f"s_xor_b32 s28, s28, 16")
        a(f"s_add_u32 s30, s28, {C_PF}")
        a(f"v_mov_b32 v{T0}, s30")
        lds_wait_ge(a, 1, T1, T0, sleep=0)
        for n, mt in enumerate(keep): a(f"ds_read_b128 {v(AF+4*n,4)}, v{T3} offset:{1024*n}")
        for n, mt in enumerate(keep):
            a(f"s_waitcnt lgkmcnt({len(keep)-1-n})")
            for r in range(4): a(f"v_add_f32 v{ACC+4*mt+r}, v{ACC+4*mt+r}, v{AF+4*n+r}")
            for r in range(4): a(f"v_fmac_f32 v{32+4*mt+r}, v{ACC+4*mt+r}, v{GV+1}")
            a(f"v_cvt_pk_bf16_f32 v{100+2*mt}, v{32+4*mt}, v{32+4*mt+1}")
            a(f"v_cvt_pk_bf16_f32 v{100+2*mt+1}, v{32+4*mt+2}, v{32+4*mt+3}")
            a(f"buffer_store_dwordx2 {v(100+2*mt,2)}, v{V_OUT}, {R(SRD_OUT)}, 0 offen offset:{32*mt}")
    a(f"s_cmp_ge_u32 s{S_W}, 4")
    a(f"s_cbranch_scc1 {FINB}")
    fin([0, 1, 2], [3, 4])
    a(f"s_branch f_fin")
    a.label(FINB)
    fin([3, 4], [0, 1, 2])
    a(f"s_branch f_fin")

    a.label(PSTART)
    a("s_setprio 3")
    a(f"v_mov_b32 v4, 0")
    lead = a.newlabel("lead")
    def lead_fn():
        a(f"s_memrealtime s[28:29]")
        a("s_waitcnt lgkmcnt(0)")
        a(f"s_or_b32 s28, s28, 1")
        a(f"v_mov_b32 v5, s28")
        a(f"s_mov_b64 exec, 1")
        a(f"buffer_store_dword v5, v4, {R(SRD_DBG)}, 0 offen sc1")
        a(f"s_mov_b64 exec, -1")
    if_s(a, 2, "eq", 0, lead_fn)
    a(f"buffer_load_dword v20, v4, {R(SRD_DBG)}, 0 offen sc1")
    a(f"v_lshlrev_b32 v6, 21, v1")
    a(f"s_mov_b64 exec, 0xf")
    a(f"buffer_load_dword v8, v6, {R(SRD_WS)}, 0 offen offset:2048")
    a(f"s_mov_b64 exec, 0x3")
    a(f"buffer_load_dword v9, v6, {R(SRD_H)}, 0 offen")
    a(f"buffer_load_dword v10, v6, {R(SRD_OUT)}, 0 offen")
    a(f"s_mov_b64 exec, 0x1")
    a(f"buffer_load_dword v11, v6, {R(SRD_WO)}, 0 offen")
    a(f"s_mov_b64 exec, -1")
    a(f"v_lshlrev_b32 v5, 2, v1")
    a(f"v_add_u32 v7, {CNT}, v5")
    a(f"ds_write_b32 v7, v4")
    a(f"ds_write_b32 v7, v4 offset:256")
    a(f"s_mov_b64 exec, -1")
    a("s_waitcnt lgkmcnt(0)")
    a("s_barrier")
    lds_wait_imm(a, C_UP, 4, sleep=0)
    PXF, PWF = 16, 48
    a(f"v_lshlrev_b32 v{T0}, 4, v1")
    a(f"v_add_u32 v{T1}, {UNIT_W}, v{T0}")
    for p_ in range(4):
        a(f"ds_read_b128 {v(PXF+8*p_,4)}, v{T1} offset:{UNIT_S*p_}")
        a(f"ds_read_b128 {v(PXF+8*p_+4,4)}, v{T1} offset:{UNIT_S*p_+1024}")
    a(f"s_lshl_b32 s28, s{S_I}, 1")
    a(f"s_bfe_u32 s29, s{S_J}, 0x10001")
    a(f"s_add_u32 s28, s28, s29")
    a(f"s_mul_i32 s29, s28, 3072")
    a(f"s_and_b32 s30, s{S_J}, 1")
    a("s_waitcnt lgkmcnt(0)")
    a(f"v_mov_b32 v12, {C_PD}")
    a(f"v_mov_b32 v13, 1")
    a(f"ds_write_b32 v12, v13")
    for p_ in range(1, 4):
        for r in range(8): a(f"v_add_f32 v{PXF+r}, v{PXF+r}, v{PXF+8*p_+r}")
    for r in range(4): a(f"v_cvt_pk_bf16_f32 v{PWF+r if r<2 else PWF+4+(r-2)}, v{PXF+2*r}, v{PXF+2*r+1}")
    a(f"v_mov_b32 v{PWF+6}, v{PWF}")
    a(f"v_mov_b32 v{PWF+7}, v{PWF+1}")
    a.nop(2)
    a(f"v_permlane32_swap_b32 v{PWF+6}, v{PWF+2}")
    a(f"v_permlane32_swap_b32 v{PWF+7}, v{PWF+3}")
    a(f"v_and_b32 v{T0}, 15, v1")
    a(f"v_bfe_u32 v{T1}, v1, 4, 1")
    labV2 = a.newlabel("stV"); labP = a.newlabel("pub")
    a(f"s_cmp_ge_u32 s{S_J}, 4")
    a(f"s_cbranch_scc1 {labV2}")
    a(f"s_lshl_b32 s31, s30, 4")
    a(f"v_add_u32 v{T0}, s31, v{T0}")
    a(f"v_lshlrev_b32 v{T1}, 5, v{T1}")
    a(f"v_add_u32 v{T1}, v{T1}, v{T0}")
    a(f"v_lshlrev_b32 v{T1}, 4, v{T1}")
    a(f"s_mov_b64 exec, 0xffffffff")
    a(f"buffer_store_dwordx4 {v(PWF,4)}, v{T1}, {R(SRD_WS)}, s29 offen sc1")
    a(f"s_mov_b64 exec, -1")
    a(f"v_lshlrev_b32 v{T0}, 3, v{T0}")
    a(f"v_add_u32 v{T0}, 1024, v{T0}")
    a(f"v_mov_b32 v{T1}, 1280")
    a(f"v_mov_b32 v{T2}, 0x3f803f80")
    a(f"v_mov_b32 v{T3}, 0x3f80")
    a(f"v_cmp_eq_u32 vcc, 16, v1")
    a.nop(2)
    a(f"v_cndmask_b32 v{T0}, v{T0}, v{T1}, vcc")
    a(f"v_cndmask_b32 v{PWF+4}, v{PWF+4}, v{T2}, vcc")
    a(f"v_cndmask_b32 v{PWF+5}, v{PWF+5}, v{T3}, vcc")
    a(f"s_mov_b32 s41, 0xffff")
    a(f"s_cmp_eq_u32 s30, 0")
    a(f"s_cselect_b32 s40, 0x1ffff, s41")
    a(f"s_mov_b32 s41, 0")
    a(f"s_mov_b64 exec, s[40:41]")
    a(f"buffer_store_dwordx2 {v(PWF+4,2)}, v{T0}, {R(SRD_WS)}, s29 offen sc1")
    a(f"s_mov_b64 exec, -1")
    a(f"s_branch {labP}")
    a.label(labV2)
    a(f"s_mul_i32 s31, s30, 672")
    a(f"s_add_u32 s31, s31, 1296")
    a(f"v_mul_u32_u24 v{T1}, 336, v{T1}")
    a(f"v_lshlrev_b32 v{T2}, 4, v{T0}")
    a(f"v_add_u32 v{T1}, v{T1}, v{T2}")
    a(f"v_add_u32 v{T1}, s31, v{T1}")
    a(f"s_mov_b64 exec, 0xffffffff")
    a(f"buffer_store_dwordx4 {v(PWF,4)}, v{T1}, {R(SRD_WS)}, s29 offen sc1")
    a(f"s_mov_b64 exec, -1")
    a(f"v_mov_b32 v{T2}, 0x3f803f80")
    a(f"v_cmp_eq_u32 vcc, 4, v{T0}")
    a.nop(2)
    a(f"v_cndmask_b32 v{PWF+4}, v{PWF+4}, v{T2}, vcc")
    a(f"v_cndmask_b32 v{PWF+5}, v{PWF+5}, v{T2}, vcc")
    a(f"v_mov_b32 v{PWF}, v{PWF+4}")
    a(f"v_mov_b32 v{PWF+1}, v{PWF+5}")
    a.nop(2)
    a(f"v_permlane32_swap_b32 v{PWF}, v{PWF+6}")
    a(f"v_permlane32_swap_b32 v{PWF+1}, v{PWF+7}")
    a(f"s_mov_b32 s40, 0x001f001f")
    a(f"s_mov_b32 s41, 0")
    a(f"s_mov_b64 exec, s[40:41]")
    a.nop(2)
    a(f"buffer_store_dwordx4 {v(PWF+4,4)}, v{T1}, {R(SRD_WS)}, s29 offen offset:256 sc1")
    a(f"s_mov_b64 exec, -1")
    a.label(labP)
    a(f"s_lshr_b32 s29, s28, 2")
    a(f"s_lshl_b32 s29, s29, 7")
    a(f"s_and_b32 s31, s28, 3")
    a(f"s_lshl_b32 s31, s31, 2")
    a(f"s_lshl_b32 s30, s30, 1")
    a(f"s_add_u32 s31, s31, s30")
    a(f"s_lshr_b32 s30, s{S_J}, 2")
    a(f"s_add_u32 s31, s31, s30")
    a(f"s_lshl_b32 s31, s31, 2")
    a(f"s_add_u32 s34, s29, s31")
    a(f"s_add_u32 s34, s34, {H1}")
    def push(nl, stride_sh, sbase):
        a(f"v_lshlrev_b32 v{T0}, {stride_sh}, v1")
        a(f"v_mov_b32 v{T1}, s{S_NONCE}")
        a(f"s_mov_b64 exec, {hex((1 << nl) - 1)}")
        a(f"buffer_store_dword v{T1}, v{T0}, {R(SRD_WS)}, s{sbase} offen sc1")
        a(f"s_mov_b64 exec, -1")
    def setw(addr):
        a(f"v_mov_b32 v12, {addr}")
        a(f"v_mov_b32 v13, 1")
        a(f"ds_write_b32 v12, v13")
    def ld(): a(f"buffer_load_dword v5, v4, {R(SRD_DBG)}, 0 offen sc1")
    def ck():
        a(f"v_readfirstlane_b32 s{S_NONCE}, v5")
        a("s_nop 3")
        a(f"s_cmp_lg_u32 s{S_NONCE}, 0")
    poll_global(a, ld, ck, sleep=0)
    push(8, 11, 34)
    setw(C_PFL)
    stamp(a, "pflag")
    VKF = 6
    a(f"v_lshrrev_b32 v{VKF}, 2, v1")
    a(f"v_lshlrev_b32 v{VKF}, 7, v{VKF}")
    a(f"v_and_b32 v{T1}, 3, v1")
    a(f"v_lshlrev_b32 v{T1}, 4, v{T1}")
    a(f"v_add_u32 v{VKF}, v{VKF}, v{T1}")
    a(f"s_and_b32 s36, s2, 7")
    a(f"s_lshl_b32 s36, s36, 11")
    a(f"s_add_u32 s36, s36, {H1}")
    a(f"s_lshl_b32 s37, s{S_I}, 3")
    a(f"s_add_u32 s37, s37, s{S_J}")
    a(f"s_lshl_b32 s37, s37, 7")
    a(f"s_lshl_b32 s38, s{S_J}, 7")
    a(f"s_lshl_b32 s39, s{S_I}, 2")
    a(f"s_add_u32 s38, s38, s39")
    a(f"v_lshlrev_b32 v7, 2, v1")
    a(f"v_mov_b32 v14, {C_UCNT}")
    a(f"s_mov_b32 s35, 0")
    def service_step(with_barrier):
        l1 = a.newlabel("sv"); l2 = a.newlabel("sv"); l3 = a.newlabel("sv"); l4 = a.newlabel("sv")
        a(f"s_bitcmp1_b32 s35, 0")
        a(f"s_cbranch_scc1 {l1}")
        a(f"buffer_load_dwordx4 v[8:11], v{VKF}, {R(SRD_WS)}, s36 offen sc1")
        a.label(l1)
        a(f"ds_read_b32 v15, v14")
        a(f"s_add_u32 s29, s37, {H2}")
        a(f"buffer_load_dword v16, v7, {R(SRD_WS)}, s29 offen sc1")
        if with_barrier: a("s_barrier")
        a("s_waitcnt vmcnt(0) lgkmcnt(0)")
        a(f"s_bitcmp1_b32 s35, 0")
        a(f"s_cbranch_scc1 {l2}")
        a(f"s_mov_b64 s[40:41], -1")
        flags_check(a, 8, 4)
        a(f"s_cbranch_scc0 {l2}")
        setw(C_KVOK)
        stamp(a, "pkvok")
        a(f"s_or_b32 s35, s35, 1")
        a.label(l2)
        a(f"s_bitcmp1_b32 s35, 1")
        a(f"s_cbranch_scc1 {l3}")
        a(f"v_readfirstlane_b32 s42, v15")
        a("s_nop 3")
        a(f"s_cmp_lt_u32 s42, 3")
        a(f"s_cbranch_scc1 {l3}")
        a(f"s_add_u32 s29, s38, {H2}")
        push(32, 10, 29)
        a(f"s_or_b32 s35, s35, 2")
        a.label(l3)
        a(f"s_bitcmp1_b32 s35, 2")
        a(f"s_cbranch_scc1 {l4}")
        a(f"s_mov_b32 s40, -1")
        a(f"s_mov_b32 s41, 0")
        flags_check(a, 16, 1)
        a(f"s_cbranch_scc0 {l4}")
        setw(C_UOK)
        a(f"s_or_b32 s35, s35, 4")
        a.label(l4)
    lp = a.newlabel("svl"); dn = a.newlabel("svd")
    a(f"s_mov_b32 s33, 0")
    a.label(lp)
    a(f"s_cmp_eq_u32 s35, 7")
    a(f"s_cbranch_scc1 {dn}")
    service_step(False)
    a(f"s_add_u32 s33, s33, 1")
    a(f"s_cmp_lt_u32 s33, {POLL_MAX}")
    a(f"s_cbranch_scc1 {lp}")
    a.label(dn)
    stamp(a, "psvc")
    lds_wait_imm(a, C_CVD, 3, sleep=8)
    a(f"s_add_u32 s29, s38, {H3}")
    push(32, 10, 29)
    stamp(a, "pyflag")
    a(f"s_mov_b32 s35, 0")
    a(f"s_mov_b32 s33, 0")
    lyp = a.newlabel("yp"); lyd = a.newlabel("yd")
    a.label(lyp)
    a(f"s_add_u32 s29, s37, {H3}")
    a(f"buffer_load_dword v8, v7, {R(SRD_WS)}, s29 offen sc1")
    a(f"v_mov_b32 v12, {C_PROG}")
    a(f"ds_read_b32 v15, v12")
    a("s_waitcnt vmcnt(0) lgkmcnt(0)")
    a(f"s_mov_b32 s40, -1")
    a(f"s_mov_b32 s41, 0")
    flags_check(a, 8, 1)
    lyn = a.newlabel("yn")
    a(f"s_cbranch_scc0 {lyn}")
    setw(C_YOK)
    a(f"s_mov_b32 s35, 1")
    a(f"s_branch {lyd}")
    a.label(lyn)
    a(f"v_readfirstlane_b32 s42, v15")
    a("s_nop 3")
    a(f"s_cmp_ge_u32 s42, 7")
    a(f"s_cbranch_scc1 {lyd}")
    a(f"s_add_u32 s33, s33, 1")
    a(f"s_cmp_lt_u32 s33, {POLL_MAX}")
    a(f"s_cbranch_scc0 {lyd}")
    a("s_sleep 8")
    a(f"s_branch {lyp}")
    a.label(lyd)
    stamp(a, "pyok")
    a("s_waitcnt lgkmcnt(0)")
    lds_wait_imm(a, C_OCNT, 8, sleep=0)
    a(f"s_lshl_b32 s29, s{S_I}, 10")
    a(f"s_lshl_b32 s30, s{S_J}, 2")
    a(f"s_add_u32 s29, s29, s30")
    a(f"s_add_u32 s29, s29, {H4}")
    push(8, 7, 29)
    a(f"s_mov_b32 s33, 0")
    lop = a.newlabel("op"); lod = a.newlabel("od"); lo2 = a.newlabel("o2"); lo3 = a.newlabel("o3")
    a.label(lop)
    a(f"s_add_u32 s29, s37, {H4}")
    a(f"buffer_load_dword v8, v7, {R(SRD_WS)}, s29 offen sc1")
    a(f"s_add_u32 s29, s37, {H3}")
    a(f"buffer_load_dword v9, v7, {R(SRD_WS)}, s29 offen sc1")
    a("s_waitcnt vmcnt(0)")
    a(f"s_bitcmp1_b32 s35, 1")
    a(f"s_cbranch_scc1 {lo2}")
    a(f"s_mov_b32 s40, 0xff")
    a(f"s_mov_b32 s41, 0")
    flags_check(a, 8, 1)
    a(f"s_cbranch_scc0 {lo2}")
    setw(C_OOK)
    a(f"s_or_b32 s35, s35, 2")
    a.label(lo2)
    a(f"s_bitcmp1_b32 s35, 0")
    a(f"s_cbranch_scc1 {lo3}")
    a(f"s_mov_b32 s40, -1")
    a(f"s_mov_b32 s41, 0")
    flags_check(a, 9, 1)
    a(f"s_cbranch_scc0 {lo3}")
    setw(C_YOK)
    a(f"s_or_b32 s35, s35, 1")
    a.label(lo3)
    a(f"s_cmp_eq_u32 s35, 3")
    a(f"s_cbranch_scc1 {lod}")
    a(f"s_add_u32 s33, s33, 1")
    a(f"s_cmp_lt_u32 s33, {POLL_MAX}")
    a(f"s_cbranch_scc1 {lop}")
    a.label(lod)
    a(f"s_branch f_fin")
    gen_loader(a)
    a.label("f_fin")
    if "stamp" in OPT:
        a("s_waitcnt vmcnt(0)")
        stamp(a, "end"); stamp(a, "rt1", True)
        stamp_flush(a)
    a.label(END)
    a("s_endpgm")
    a.L.append(kernel_desc(name, NVGPR))


def gen_loader(a):
    S_LI = 34
    a.label("f_lstart")
    a("s_setprio 3")
    a(f"s_sub_u32 s{S_LI}, s{S_W}, 9")
    VX, VW, VL16 = 112, 116, 121
    RB3, RB4, HR = 16, 64, 112
    a(f"v_lshlrev_b32 v{T3}, 4, v1")
    a("s_barrier")
    if "nopf" not in OPT:
        a(f"s_lshr_b32 s28, s2, 3")
        a(f"s_mul_i32 s28, s28, 25600")
        a(f"s_lshl_b32 s29, s{S_LI}, 10")
        a(f"s_add_u32 s28, s28, s29")
        for k in range(9):
            def pf(k=k):
                a(f"buffer_load_dwordx4 v[160:163], v{T3}, {R(SRD_WQ)}, s28 offen")
            if k < 8: pf()
            else: if_s(a, S_LI, "eq", 0, pf)
            a(f"s_add_u32 s28, s28, 3072")
        a(f"s_mul_i32 s28, s{S_I}, 81920")
        a(f"s_mul_i32 s30, s{S_J}, 10240")
        a(f"s_add_u32 s28, s28, s30")
        a(f"s_add_u32 s28, s28, s29")
        for k in range(4):
            def pf(k=k):
                a(f"buffer_load_dwordx4 v[160:163], v{T3}, {R(SRD_X)}, s28 offen")
            if k < 3: pf()
            else: if_s(a, S_LI, "eq", 0, pf)
            a(f"s_add_u32 s28, s28, 3072")
    for k in range(4):
        a(f"v_lshrrev_b32 v{T0}, 4, v1")
        a(f"v_add_u32 v{T0}, {4*k}, v{T0}")
        a(f"v_xor_b32 v{T1}, v1, v{T0}")
        a(f"v_and_b32 v{T1}, 15, v{T1}")
        a(f"v_lshlrev_b32 v{T1}, 4, v{T1}")
        a(f"s_lshl_b32 s28, s{S_I}, 6")
        a(f"v_add_u32 v{T0}, s28, v{T0}")
        a(f"v_mul_lo_u32 v{T0}, v{T0}, s{S_1280}")
        a(f"v_add_u32 v{VX+k}, v{T0}, v{T1}")
    a(f"s_mul_i32 s29, s{S_J}, 160")
    for t in range(5):
        a(f"v_add_u32 v{T0}, {64*t}, v1")
        div10(a, T0, T1, T0, T2)
        a(f"v_lshlrev_b32 v{T0}, 4, v{T0}")
        a(f"v_and_b32 v{T2}, 0xfff8, v{T1}")
        a(f"v_bfe_u32 v{VL16}, v{T1}, 1, 2")
        a(f"v_or_b32 v{T2}, v{T2}, v{VL16}")
        a(f"v_and_b32 v{T1}, 1, v{T1}")
        a(f"v_lshlrev_b32 v{T1}, 2, v{T1}")
        a(f"v_or_b32 v{T2}, v{T2}, v{T1}")
        a(f"v_mul_lo_u32 v{T2}, v{T2}, s{S_1280}")
        a(f"v_add_u32 v{T2}, v{T2}, v{T0}")
        a(f"v_add_u32 v{VW+t}, s29, v{T2}")
    def ut_issue_all():
        for kind, nq, base_l, srd_, halo in (("k", 11, UT_K, SRD_K, 3), ("v", 10, UT_V, SRD_V, 0)):
            for q in range(nq):
                a(f"v_add_u32 v{T0}, {64*q}, v1")
                div10(a, T0, T1, T0, T2)
                a(f"v_lshrrev_b32 v{T2}, 3, v{T1}")
                a(f"v_sub_u32 v{T0}, v{T0}, v{T2}")
                a(f"v_add_u32 v{T2}, 10, v{T0}")
                a(f"v_min_u32 v{T0}, v{T0}, v{T2}")
                a(f"v_lshlrev_b32 v{T0}, 4, v{T0}")
                a(f"v_add_u32 v{T1}, s39, v{T1}") if halo == 0 else a(f"v_add_u32 v{T1}, s33, v{T1}")
                a(f"v_mul_lo_u32 v{T1}, v{T1}, s{S_1280}")
                a(f"v_add3_u32 v{T0}, v{T0}, v{T1}, s38")
                a(f"s_mov_b32 m0, {base_l + 1024*q}")
                if kind == "k" and q == 10: a(f"s_mov_b64 exec, 0x3fffffff")
                else: a("s_nop 0")
                a(f"buffer_load_dwordx4 v{T0}, {R(srd_)}, 0 offen lds")
                if kind == "k" and q == 10: a(f"s_mov_b64 exec, -1")
    a(f"s_lshl_b32 s39, s{S_I}, 6")
    a(f"s_sub_u32 s33, s39, 3")
    a(f"s_mul_i32 s38, s{S_J}, 160")
    lists = [[("x", q) for q in range(12)],
             [("x", q) for q in range(12, 16)] + [("w", q) for q in range(8)],
             [("w", q) for q in range(8, 20)]]
    def ldoff(kind, q): return 1024*q if kind == "x" else 16384 + 1024*q
    def issue(lst, ch, dma_slot=None, regs=None):
        for n, (kind, q) in enumerate(lst):
            if kind == "x": srd_, vr, so = SRD_X, VX+(q&3), 256*ch + (q >> 2)*16*1280
            else: srd_, vr, so = SRD_WQ, VW+(q%5), 163840*ch + (q // 5)*40960
            a(f"s_mov_b32 s28, {so}")
            if dma_slot is not None:
                a(f"s_mov_b32 m0, {dma_slot*SLOT + ldoff(kind, q)}")
                a(f"s_nop 0")
                a(f"buffer_load_dwordx4 v{vr}, {R(srd_)}, s28 offen lds")
            else:
                a(f"buffer_load_dwordx4 {v(regs+4*n,4)}, v{vr}, {R(srd_)}, s28 offen")
    def signal(addr): lds_add1_imm(a, addr)
    LD_JOIN = a.newlabel("ldj")
    for li in range(3):
        nxt = a.newlabel("ldv")
        a(f"s_cmp_lg_u32 s{S_LI}, {li}")
        a(f"s_cbranch_scc1 {nxt}")
        L = lists[li]
        issue(L, 2, dma_slot=2)
        if "gate" in OPT: lds_wait_imm(a, C_PFL, 1, sleep=1)
        issue(L, 3, regs=RB3)
        if "thr" in OPT:
            a("s_waitcnt vmcnt(12)"); signal(C_CL + 8)
        issue(L, 4, regs=RB4)
        stamp(a, "lissue")
        a(f"s_waitcnt vmcnt(24)"); signal(C_CL + 8)
        nut = 0
        for (RBx, gate, cl, n_after, slot) in ((RB3, C_C0C, 12, 12, 0), (RB4, C_C1C, 16, 0, 1)):
            lds_wait_imm(a, gate, 8, sleep=1)
            a(f"v_add_u32 v{T2}, {slot*SLOT}, v{T3}")
            a(f"s_waitcnt vmcnt({n_after + nut})")
            stamp(a, f"lw{cl}")
            for n, (kind, q) in enumerate(L):
                a(f"ds_write_b128 v{T2}, {v(RBx+4*n,4)} offset:{ldoff(kind, q)}")
            signal(C_CL + cl)
        if li == 2:
            lds_wait_imm(a, C_PD, 1, sleep=1)
            ut_issue_all()
        a(f"s_branch {LD_JOIN}")
        a.label(nxt)
    a.label(LD_JOIN)
    stamp(a, "ldone")
    def kv0():
        lds_wait_imm(a, C_KVOK, 1, sleep=1)
        for cc in range(2):
            a(f"s_add_u32 s28, s{S_ROT}, {cc}")
            a(f"s_and_b32 s28, s28, 7")
            a(f"s_lshl_b32 s28, s28, 2")
            a(f"s_lshl_b32 s29, s{S_LI}, 5")
            a(f"s_add_u32 s28, s28, s29")
            a(f"s_mul_i32 s28, s28, 3072")
            for k in range(12):
                a(f"buffer_load_dwordx4 {v(16+48*cc+4*k,4)}, v{T3}, {R(SRD_WS)}, s28 offen offset:{1024*(k%4)} sc1")
                if k % 4 == 3: a(f"s_add_u32 s28, s28, 4096")
        a(f"s_mul_i32 s28, s{S_LI}, {RING_STRIDE}")
        a(f"v_add_u32 v{T2}, s28, v{T3}")
        lds_wait_imm(a, C_QG, 8, sleep=0)
        for cc in range(2):
            a(f"s_waitcnt vmcnt({12 - 12*cc})")
            for k in range(12):
                a(f"ds_write_b128 v{T2}, {v(16+48*cc+4*k,4)} offset:{cc*KVSLOT + 1024*k}")
            a(f"s_lshl_b32 s28, s{S_LI}, 4")
            a(f"s_add_u32 s28, s28, {C_FULL + 4*cc}")
            a(f"v_mov_b32 v{T0}, s28")
            a(f"v_mov_b32 v{T1}, 4")
            lds_add1(a, T0, T1)
        stamp(a, "kv0")
    if_s(a, S_LI, "lt", 2, kv0)
    if_s(a, S_LI, "eq", 2, lambda: (a("s_waitcnt vmcnt(0)"), signal(C_UTL)))
    def uround(rnd_sgpr):
        KD, VD, SH = 16, 28, 36
        KA_, KB_, WA_, WB_, UA, UB, UT = 44, 56, 68, 72, 76, 84, 92
        A0, A1, UST = 93, 94, 95
        a(f"s_lshl_b32 s28, s{rnd_sgpr}, 6")
        a(f"v_add_u32 v{T0}, s28, v1")
        a(f"v_lshrrev_b32 v{T1}, 3, v{T0}")
        a(f"v_and_b32 v{T0}, 7, v{T0}")
        a(f"s_mul_i32 s29, s{S_J}, 160")
        a(f"v_lshlrev_b32 v{T2}, 2, v{T1}")
        a(f"v_add_u32 v{T2}, s29, v{T2}")
        a(f"v_lshlrev_b32 v{UST}, 2, v{T2}")
        a(f"buffer_load_dwordx4 {v(SH,4)}, v{UST}, {R(SRD_SH)}, 0 offen")
        a(f"v_lshlrev_b32 v{UST}, 11, v{T2}")
        a(f"v_lshlrev_b32 v{T2}, 4, v{T0}")
        a(f"v_sub_u32 v{UST}, v{UST}, v{T2}")
        a(f"s_lshl_b32 s29, s{S_I}, 7")
        a(f"s_sub_u32 s29, {UR_OFF + 4080}, s29")
        a(f"v_add_u32 v{UST}, s29, v{UST}")
        a(f"v_lshrrev_b32 v{T2}, 2, v{T1}")
        a(f"v_add_u32 v{T2}, v{T2}, v{T0}")
        a(f"v_and_b32 v{T1}, 3, v{T1}")
        a(f"v_lshlrev_b32 v{T1}, 2, v{T1}")
        a(f"v_mul_u32_u24 v{T0}, 1280, v{T0}")
        a(f"v_add3_u32 v{T0}, v{T0}, v{T1}, s77" if False else f"v_add_u32 v{T0}, v{T0}, v{T1}")
        a(f"v_add_u32 v{T0}, {UT_K}, v{T0}")
        for (dst, add) in ((A0, 0), (A1, 1)):
            a(f"v_add_u32 v{UT}, {add}, v{T2}")
            a(f"v_subrev_u32 v{T1}, 10, v{UT}")
            a(f"v_min_u32 v{UT}, v{UT}, v{T1}")
            a(f"v_lshlrev_b32 v{UT}, 4, v{UT}")
            a(f"v_add_u32 v{dst}, v{T0}, v{UT}")
        for r in range(8): a(f"ds_read_b32 v{KD+r}, v{A0} offset:{160*r}")
        for r in range(8, 11): a(f"ds_read_b32 v{KD+r}, v{A1} offset:{160*r}")
        a("s_waitcnt lgkmcnt(4)")
        for r in range(8): a(f"ds_read_b32 v{VD+r}, v{A0} offset:{10720 + 160*r}")
        a("s_waitcnt lgkmcnt(0) vmcnt(0)")
        for r in range(11):
            a(f"v_lshlrev_b32 v{KA_+r}, 16, v{KD+r}")
            a(f"v_and_b32 v{KB_+r}, 0xffff0000, v{KD+r}")
        for (W, base) in ((WA_, SH), (WB_, SH + 2)):
            a(f"v_lshlrev_b32 v{W}, 16, v{base}")
            a(f"v_and_b32 v{W+1}, 0xffff0000, v{base}")
            a(f"v_lshlrev_b32 v{W+2}, 16, v{base+1}")
            a(f"v_and_b32 v{W+3}, 0xffff0000, v{base+1}")
        for e_ in range(8):
            for (U, Kf, W, lo) in ((UA, KA_, WA_, True), (UB, KB_, WB_, False)):
                a(f"v_mul_f32 v{U+e_}, v{Kf+e_+3}, v{W}")
                for jx in range(1, 4):
                    a(f"v_fmac_f32 v{U+e_}, v{Kf+e_+3-jx}, v{W+jx}")
                if lo: a(f"v_lshlrev_b32 v{UT}, 16, v{VD+e_}")
                else: a(f"v_and_b32 v{UT}, 0xffff0000, v{VD+e_}")
                a(f"v_mul_f32 v{U+e_}, v{U+e_}, v{UT}")
        for (U, O_) in ((UA, KD), (UB, KD + 4)):
            for i in range(4):
                a(f"v_cvt_pk_bf16_f32 v{O_+i}, v{U+7-2*i}, v{U+6-2*i}")
        a(f"buffer_store_dwordx4 {v(KD,4)}, v{UST}, {R(SRD_WS)}, 0 offen sc1")
        a(f"v_add_u32 v{UST}, 4096, v{UST}")
        a(f"buffer_store_dwordx4 {v(KD+4,4)}, v{UST}, {R(SRD_WS)}, 0 offen sc1")
    lds_wait_imm(a, C_UTL, 1, sleep=1)
    stamp(a, "utl")
    a(f"s_mov_b32 s87, s{S_LI}")
    uround(87)
    def second():
        a(f"s_add_u32 s87, s{S_LI}, 3")
        a("s_waitcnt vmcnt(0)")
        uround(87)
    if_s(a, S_LI, "lt", 2, second)
    a("s_waitcnt vmcnt(0)")
    signal(C_UCNT)
    stamp(a, "udone")
    def h_loads():
        a(f"s_lshl_b32 s28, s{S_CH}, 12")
        for q in range(4):
            a(f"s_add_u32 s29, s28, {1024*q}")
            for k in range(3):
                a(f"buffer_load_dwordx4 {v(HR+12*q+4*k,4)}, v{T3}, {R(SRD_H)}, s29 offen offset:{4*k}")
        a(f"s_lshr_b32 s30, s{S_CH}, 1")
        a(f"s_lshl_b32 s30, s30, 2")
        a(f"s_load_dword s88, s[{S_DPTR}:{S_DPTR+1}], s30")
    NOC = a.newlabel("noconv")
    a(f"s_cmp_ge_u32 s{S_LI}, s{S_NCH}")
    a(f"s_cbranch_scc1 {NOC}")
    if "noconv" in OPT: a(f"s_branch {NOC}")
    h_loads()
    lds_wait_imm(a, C_QG, 8, sleep=2)
    stamp(a, "conv0")
    gen_conv(a, HR)
    a("s_waitcnt vmcnt(0)")
    a.label(NOC)
    a("s_setprio 3")
    signal(C_CVD)
    stamp(a, "conv1")
    WD = 16
    VL = 21
    a(f"v_lshlrev_b32 v{VL}, 4, v1")
    a(f"s_mul_i32 s29, s{S_J}, 160")
    for t in range(5):
        a(f"v_add_u32 v{T0}, {64*t}, v1")
        div10(a, T0, T1, T0, T2)
        a(f"v_lshlrev_b32 v{T0}, 4, v{T0}")
        a(f"v_and_b32 v{T2}, 0xfff3, v{T1}")
        a(f"v_bfe_u32 v{T3}, v{T1}, 2, 1")
        a(f"v_lshlrev_b32 v{T3}, 3, v{T3}")
        a(f"v_or_b32 v{T2}, v{T2}, v{T3}")
        a(f"v_bfe_u32 v{T3}, v{T1}, 3, 1")
        a(f"v_lshlrev_b32 v{T3}, 2, v{T3}")
        a(f"v_or_b32 v{T2}, v{T2}, v{T3}")
        a(f"v_mul_lo_u32 v{T2}, v{T2}, s{S_1280}")
        a(f"v_add_u32 v{T2}, v{T2}, v{T0}")
        a(f"v_add_u32 v{WD+t}, s29, v{T2}")
    lds_wait_imm(a, C_CVD, 3, sleep=8)
    lds_wait_imm(a, C_QG, 8, sleep=8)
    def wo_half(half, base):
        a(f"s_mul_i32 s31, s{S_LI}, 3")
        a(f"s_min_u32 s33, s{S_LI}, 1")
        a(f"s_add_u32 s31, s31, s33")
        a(f"s_cmp_eq_u32 s{S_LI}, 0")
        a(f"s_cselect_b32 s33, 4, 3")
        a(f"s_mul_i32 s28, s31, 5120")
        a(f"s_add_u32 s28, s28, {base}")
        a(f"s_mul_i32 s30, s31, {32*1280}")
        a(f"s_add_u32 s30, s30, {half*320*1280}")
        WL = a.newlabel("wol")
        a(f"s_mov_b32 s31, 0")
        a.label(WL)
        for t in range(5):
            a(f"s_add_u32 m0, s28, {1024*t}")
            a(f"s_nop 0")
            a(f"buffer_load_dwordx4 v{WD+t}, {R(SRD_WO)}, s30 offen lds")
        a(f"s_add_u32 s28, s28, 5120")
        a(f"s_add_u32 s30, s30, {32*1280}")
        a(f"s_add_u32 s31, s31, 1")
        a(f"s_cmp_lt_u32 s31, s33")
        a(f"s_cbranch_scc1 {WL}")
    wo_half(0, WOA)
    a("s_waitcnt vmcnt(0)")
    signal(C_WOK)
    stamp(a, "woready")
    lds_wait_imm(a, C_LE, 8, sleep=2)
    wo_half(1, WOB)
    a("s_waitcnt vmcnt(0)")
    signal(C_WOKB)
    YS = 32
    def ytile():
        a(f"v_lshrrev_b32 v{T2}, 3, v1")
        a(f"v_lshlrev_b32 v{T2}, 12, v{T2}")
        a(f"v_and_b32 v{T3}, 7, v1")
        a(f"v_lshlrev_b32 v{T3}, 4, v{T3}")
        a(f"v_add_u32 v{T2}, v{T2}, v{T3}")
        lds_wait_imm(a, C_YOK, 1, sleep=1)
        lds_wait_imm(a, C_ST, 8, sleep=1)
        a(f"s_mul_i32 s28, s{S_J}, {80*4096}")
        a(f"s_lshl_b32 s29, s{S_I}, 7")
        a(f"s_add_u32 s28, s28, s29")
        a(f"s_add_u32 s28, s28, {YT_OFF}")
        a(f"s_mul_i32 s29, s{S_LI}, {5*8*4096}")
        a(f"s_add_u32 s28, s28, s29")
        for t in range(5):
            a(f"buffer_load_dwordx4 {v(YS+4*t,4)}, v{T2}, {R(SRD_WS)}, s28 offen sc1")
            a(f"s_add_u32 s28, s28, {8*4096}")
        a(f"s_mul_i32 s28, s{S_LI}, 5120")
        a(f"s_add_u32 s28, s28, {YL}")
        a(f"v_add_u32 v{T2}, s28, v{VL}")
        a("s_waitcnt vmcnt(0)")
        for t in range(5): a(f"ds_write_b128 v{T2}, {v(YS+4*t,4)} offset:{1024*t}")
        signal(C_YW)
    if_s(a, S_LI, "lt", 2, ytile)

def gen_conv(a, HR):
    URL = 16640
    CA, FA, FB, AD = 16, 48, 80, 112
    VA, VB, CT2, CT3 = 160, 161, 162, 163
    a(f"v_lshlrev_b32 v{T2}, 4, v1")
    a(f"v_add_u32 v{T3}, s{S_CB}, v{T2}")
    a("s_waitcnt vmcnt(0)")
    for q in range(4):
        X0, X1, X2 = HR+12*q, HR+12*q+4, HR+12*q+8
        C1, C3 = CA + 8*(q & 1), CA + 8*(q & 1) + 4
        for k in range(4):
            a(f"v_alignbit_b32 v{C1+k}, v{X1+k}, v{X0+k}, 16")
            a(f"v_alignbit_b32 v{C3+k}, v{X2+k}, v{X1+k}, 16")
        o = 1024 * q + 32
        a(f"ds_write_b128 v{T3}, {v(X0,4)} offset:{o}")
        a(f"ds_write_b128 v{T3}, {v(C1,4)} offset:{4160+o}")
        a(f"ds_write_b128 v{T3}, {v(X1,4)} offset:{8320+o}")
        a(f"ds_write_b128 v{T3}, {v(C3,4)} offset:{12480+o}")
    Z = CA + 16
    for k in range(4): a(f"v_mov_b32 v{Z+k}, 0")
    a(f"v_alignbit_b32 v{Z+4}, v{HR+4}, v{HR}, 16")
    a(f"v_lshlrev_b32 v{Z+5}, 16, v{HR}")
    a(f"v_mov_b32 v{Z+6}, v{HR}")
    a(f"v_lshrrev_b32 v{T0}, 1, v1")
    a(f"v_mul_u32_u24 v{T0}, 4160, v{T0}")
    a(f"v_and_b32 v{T1}, 1, v1")
    a(f"v_lshlrev_b32 v{T1}, 4, v{T1}")
    a(f"v_add_u32 v{T0}, v{T0}, v{T1}")
    a(f"v_add_u32 v{T0}, s{S_CB}, v{T0}")
    a(f"s_mov_b64 exec, 0xff")
    a(f"ds_write_b128 v{T0}, {v(Z,4)}")
    a(f"s_mov_b64 exec, 0xffffffff")
    a(f"ds_write_b128 v{T3}, {v(Z,4)} offset:{URL+4096}")
    a(f"s_mov_b64 exec, 1")
    a(f"ds_write_b32 v{T3}, v{Z+5} offset:{4160+28}")
    a(f"ds_write_b32 v{T3}, v{Z+6} offset:{8320+28}")
    a(f"ds_write_b32 v{T3}, v{Z+5} offset:{12480+24}")
    a(f"ds_write_b32 v{T3}, v{Z+4} offset:{12480+28}")
    a(f"s_mov_b64 exec, -1")
    a("s_waitcnt lgkmcnt(0)")
    a(f"v_mov_b32 v{FA}, v{T3}")
    a(f"v_mov_b32 v{FA+1}, v{T2}")
    lds_wait_imm(a, C_UOK, 1, sleep=2)
    a(f"s_lshl_b32 s28, s{S_CH}, 12")
    a(f"s_add_u32 s28, s28, {UR_OFF}")
    for q in range(4):
        a(f"s_add_u32 s29, s28, {1024*q}")
        a(f"buffer_load_dwordx4 {v(FB+4*q,4)}, v{FA+1}, {R(SRD_WS)}, s29 offen sc1")
    a(f"v_and_b32 v{T0}, 15, v1")
    a(f"v_lshrrev_b32 v{T1}, 4, v1")
    a(f"v_add_u32 v{CT2}, 1, v{T0}")
    a(f"v_and_b32 v{CT3}, 3, v{CT2}")
    a(f"v_mul_u32_u24 v{VA}, 4160, v{CT3}")
    a(f"v_lshrrev_b32 v{CT2}, 2, v{CT2}")
    a(f"v_lshlrev_b32 v{CT2}, 3, v{CT2}")
    a(f"v_lshlrev_b32 v{CT3}, 4, v{T1}")
    a(f"v_add_u32 v{VA}, v{VA}, v{CT2}")
    a(f"v_add_u32 v{VA}, v{VA}, v{CT3}")
    a(f"v_add_u32 v{VA}, s{S_CB}, v{VA}")
    a(f"v_lshlrev_b32 v{CT2}, 5, v{T0}")
    a(f"v_sub_u32 v{VB}, v{CT3}, v{CT2}")
    a(f"s_add_u32 s28, s{S_CB}, {URL + 480}")
    a(f"v_add_u32 v{VB}, s28, v{VB}")
    a(f"s_and_b32 s30, s{S_CH}, 1")
    a(f"s_lshl_b32 s30, s30, 4")
    a(f"s_lshr_b32 s88, s88, s30")
    a(f"s_and_b32 s88, s88, 0xffff")
    a(f"v_lshlrev_b32 v{T1}, 3, v{T1}")
    a(f"v_add_u32 v{T0}, v{T0}, v{T1}")
    a(f"v_sub_u32 v{T0}, 15, v{T0}")
    a(f"v_and_b32 v{T1}, 1, v{T0}")
    a(f"v_lshlrev_b32 v{T1}, 4, v{T1}")
    a(f"v_mov_b32 v{CT2}, s88")
    a(f"v_lshlrev_b32 v{CT2}, v{T1}, v{CT2}")
    a(f"v_lshrrev_b32 v{T0}, 1, v{T0}")
    for k in range(4):
        a(f"v_cmp_eq_u32 vcc, {k}, v{T0}")
        a.nop(2)
        a(f"v_cndmask_b32 v{AD+k}, 0, v{CT2}, vcc")
    for r in range(32): a(f"v_mov_b32 v{CA+r}, 0")
    a("s_waitcnt vmcnt(0)")
    for q in range(4):
        a(f"ds_write_b128 v{FA}, {v(FB+4*q,4)} offset:{URL + 1024*q}")
    a("s_waitcnt lgkmcnt(0)")
    stamp(a, "convm")
    a("s_setprio 0")
    a(f"s_mov_b32 s86, 0")
    PL = a.newlabel("convph")
    a.label(PL)
    a(f"ds_read_b64 {v(FA,2)}, v{VA}")
    a(f"ds_read_b64 {v(FA+2,2)}, v{VA} offset:8")
    for vv in range(8):
        a(f"ds_read_b128 {v(FB+4*vv,4)}, v{VB} offset:{512*(7-vv)}")
    for i in range(1, 3):
        a(f"ds_read_b64 {v(FA+4*i,2)}, v{VA} offset:{512*i}")
        a(f"ds_read_b64 {v(FA+4*i+2,2)}, v{VA} offset:{512*i+8}")
    a("s_waitcnt lgkmcnt(4)")
    for i in range(3, 8):
        a(f"ds_read_b64 {v(FA+4*i,2)}, v{VA} offset:{512*i}")
        a(f"ds_read_b64 {v(FA+4*i+2,2)}, v{VA} offset:{512*i+8}")
    for vv in range(8):
        a(f"v_mfma_f32_16x16x32_bf16 {v(CA+4*vv,4)}, {v(FA,4)}, {v(FB+4*vv,4)}, {v(CA+4*vv,4)}")
    lab = a.newlabel("noD")
    a(f"s_cmp_lg_u32 s86, 0")
    a(f"s_cbranch_scc1 {lab}")
    for vv in range(8):
        a(f"v_mfma_f32_16x16x32_bf16 {v(CA+4*vv,4)}, {v(AD,4)}, {v(FB+4*vv,4)}, {v(CA+4*vv,4)}")
    a.label(lab)
    a("s_waitcnt lgkmcnt(0)")
    for i in range(1, 8):
        for vv in range(8 - i):
            t = i + vv
            a(f"v_mfma_f32_16x16x32_bf16 {v(CA+4*t,4)}, {v(FA+4*i,4)}, {v(FB+4*vv,4)}, {v(CA+4*t,4)}")
    a(f"v_add_u32 v{VA}, 64, v{VA}")
    a(f"v_add_u32 v{VB}, 64, v{VB}")
    a(f"s_add_u32 s86, s86, 1")
    a(f"s_cmp_lt_u32 s86, 8")
    a(f"s_cbranch_scc1 {PL}")
    a(f"s_lshl_b32 s28, s{S_CH}, 12")
    a(f"s_add_u32 s28, s28, {YT_OFF}")
    a(f"v_and_b32 v{CT2}, 15, v1")
    a(f"v_lshlrev_b32 v{CT2}, 5, v{CT2}")
    a(f"v_lshrrev_b32 v{CT3}, 4, v1")
    a(f"v_lshlrev_b32 v{CT3}, 3, v{CT3}")
    a(f"v_add_u32 v{CT2}, v{CT2}, v{CT3}")
    a.nop(4)
    for t in range(8):
        a(f"v_cvt_pk_bf16_f32 v{FB+2*t}, v{CA+4*t}, v{CA+4*t+1}")
        a(f"v_cvt_pk_bf16_f32 v{FB+2*t+1}, v{CA+4*t+2}, v{CA+4*t+3}")
        a(f"buffer_store_dwordx2 {v(FB+2*t,2)}, v{CT2}, {R(SRD_WS)}, s28 offen offset:{512*t} sc1")

HEADER = """; gated_mix: fused single kernel (generated by dev/gen14.py, gen4 o-layout)
; @launch grid=(256,1,1) block=(768,1,1) lds=163840
.amdgcn_target "amdgcn-amd-amdhsa--gfx950"
.text
"""
if __name__ == "__main__":
    if len(sys.argv) > 2: OPT.update(sys.argv[2].split(","))
    a = Asm()
    gen(a)
    h = HEADER
    if STAMPS: h = h.replace(".amdgcn", "; STAMPS " + ",".join(STAMPS) + "\n.amdgcn")
    open(sys.argv[1], "w").write(h + a.text())
```

```python
import sys, struct
from asmlib import *

NAME = "gated_mix__ssm_conv_h3__grouped_kv_mqa__prompt"
KVF_OFF = 0
UR_OFF = 0x40000
YT_OFF = 0x2C0000
O_OFF = 0x540000
FL_OFF = 0x7C0000
H1 = FL_OFF
H2 = FL_OFF + 0x4000
H3 = FL_OFF + 0xC000
H4 = FL_OFF + 0x14000
ST_OFF = 0x800000
WS_USED = 0x900000
XB = 2048 * 640 * 2
QSCALE = (20 ** -0.5) * 1.4426950408889634
def f32bits(x): return struct.unpack("<I", struct.pack("<f", x))[0]
OPT = set()
POLL_MAX = 40000

SRD_X, SRD_WQ, SRD_WS, SRD_H = 4, 8, 12, 16
S_I, S_J, S_W, S_HH, S_G, S_NONCE, S_1280, S_ROT = 20, 21, 22, 23, 24, 25, 26, 27
SRD_K, SRD_V, SRD_SH, SRD_W, SRD_GW, SRD_WO, SRD_OUT, SRD_DBG = 44, 48, 52, 56, 60, 64, 68, 72
S_DPTR = 76
S_CH, S_NCH, S_CB = 83, 84, 85
SLOT = 36864
UT_K = 137472
UT_V = UT_K + 10720
UNIT_W = 131552
UNIT_S = 6656
QXA = 110592
QXB = QXA + 8192
GWL = 159744
GP = GWL + 1280
G_L = 162048
CNT = G_L + 256
C_FULL, C_DONE = CNT, CNT + 32
C_KVOK, C_UCNT, C_CVD = CNT + 68, CNT + 72, CNT + 80
C_UOK, C_YOK, C_OCNT, C_OOK = CNT + 84, CNT + 88, CNT + 92, CNT + 96
C_UTL, C_UTC, C_UP, C_C0C, C_C1C, C_QG, C_WOK = CNT + 100, CNT + 104, CNT + 108, CNT + 112, CNT + 116, CNT + 120, CNT + 124
C_CL = CNT + 128
C_QXF = CNT + 160
C_PROG = CNT + 192
C_PD = CNT + 228
C_WOKB = CNT + 232
C_LE, C_ST, C_PFL, C_QRD = CNT + 236, CNT + 240, CNT + 244, CNT + 248
C_XF = CNT + 256
C_PF = CNT + 288
C_YW = CNT + 224
BLK = 3072
KVSLOT = 4 * BLK
RING_STRIDE = 3 * KVSLOT
CONVB = 73728
CHB = 21248
WOA = 75776
WOB = 0
YL = 137216
DUMMY = 162688
OX = 137472
OST = 126976
PX = 51200
V_ST = 167
NVGPR = 168
T0, T1, T2, T3 = 2, 3, 164, 165

STAMPS = []
def stamp(a, name, real=False):
    if "stamp" not in OPT: return
    if name in STAMPS: idx = STAMPS.index(name)
    else:
        STAMPS.append(name); idx = len(STAMPS) - 1
    a(f"s_waitcnt lgkmcnt(0)")
    a(f"{'s_memrealtime' if real else 's_memtime'} s[98:99]")
    a(f"s_waitcnt lgkmcnt(0)")
    a(f"v_writelane_b32 v{V_ST}, s98, {idx}")
def stamp_flush(a):
    if "stamp" not in OPT: return
    a(f"s_mov_b64 exec, -1")
    a(f"s_mul_i32 s98, s2, 12")
    a(f"s_add_u32 s98, s98, s{S_W}")
    a(f"s_lshl_b32 s98, s98, 8")
    a(f"s_add_u32 s98, s98, {ST_OFF}")
    a(f"v_lshlrev_b32 v166, 2, v1")
    a(f"buffer_store_dword v{V_ST}, v166, s[{SRD_WS}:{SRD_WS+3}], s98 offen")
    a("s_waitcnt vmcnt(0)")

def R(b): return f"s[{b}:{b+3}]"

def poll_global(a, nload, check, sleep=1):
    lp = a.newlabel("poll"); dn = a.newlabel("pdone")
    a(f"s_mov_b32 s43, 0")
    a.label(lp)
    nload()
    a("s_waitcnt vmcnt(0)")
    check()
    a(f"s_cbranch_scc1 {dn}")
    a(f"s_add_u32 s43, s43, 1")
    a(f"s_cmp_lt_u32 s43, {POLL_MAX}")
    a(f"s_cbranch_scc0 {dn}")
    if sleep: a(f"s_sleep {sleep}")
    a(f"s_branch {lp}")
    a.label(dn)

def flags_check(a, vt, n):
    if n == 4:
        for k in range(4): a(f"v_xor_b32 v{vt+k}, s{S_NONCE}, v{vt+k}")
        a(f"v_or_b32 v{vt}, v{vt}, v{vt+1}")
        a(f"v_or_b32 v{vt+2}, v{vt+2}, v{vt+3}")
        a(f"v_or_b32 v{vt}, v{vt}, v{vt+2}")
        a(f"v_cmp_ne_u32 vcc, 0, v{vt}")
    else:
        a(f"v_cmp_ne_u32 vcc, s{S_NONCE}, v{vt}")
    a(f"s_nop 1")
    a(f"s_and_b64 vcc, vcc, s[40:41]")
    a(f"s_cmp_eq_u64 vcc, 0")
def poll_flags(a, vaddr, soff, lanes_mask, vt, n=1, sleep=1):
    def ld():
        if n == 1: a(f"buffer_load_dword v{vt}, v{vaddr}, {R(SRD_WS)}, {soff} offen sc1")
        else: a(f"buffer_load_dwordx4 {v(vt,4)}, v{vaddr}, {R(SRD_WS)}, {soff} offen sc1")
    a(f"s_mov_b32 s40, {lanes_mask & 0xffffffff}")
    a(f"s_mov_b32 s41, {(lanes_mask >> 32) & 0xffffffff}")
    poll_global(a, ld, lambda: flags_check(a, vt, n), sleep)

def lds_wait_ge(a, target, vt, vaddr, sleep=1):
    lp = a.newlabel("lw"); dn = a.newlabel("lwd")
    a(f"s_mov_b32 s43, 0")
    a.label(lp)
    a(f"ds_read_b32 v{vt}, v{vaddr}")
    a("s_waitcnt lgkmcnt(0)")
    a(f"v_readfirstlane_b32 s42, v{vt}")
    a("s_nop 3")
    a(f"s_cmp_ge_u32 s42, {target}")
    a(f"s_cbranch_scc1 {dn}")
    a(f"s_add_u32 s43, s43, 1")
    a(f"s_cmp_lt_u32 s43, {POLL_MAX * 8}")
    a(f"s_cbranch_scc0 {dn}")
    if sleep: a(f"s_sleep {sleep}")
    a(f"s_branch {lp}")
    a.label(dn)
def lds_wait_imm(a, addr, target, vt=T1, va=T0, sleep=1):
    a(f"v_mov_b32 v{va}, {addr}")
    lds_wait_ge(a, target, vt, va, sleep)
def lds_add1(a, vaddr, vone):
    a("s_mov_b64 exec, 1")
    a(f"ds_add_u32 v{vaddr}, v{vone}")
    a("s_mov_b64 exec, -1")
def lds_add1_imm(a, addr, va=T0, vo=T1):
    a(f"v_mov_b32 v{va}, {addr}")
    a(f"v_mov_b32 v{vo}, 1")
    lds_add1(a, va, vo)
def if_s(a, sreg, cmp, val, fn):
    lb = a.newlabel("ifw")
    inv = {"eq": "lg", "lt": "ge", "ge": "lt", "lg": "eq"}[cmp]
    a(f"s_cmp_{inv}_u32 s{sreg}, {val}")
    a(f"s_cbranch_scc1 {lb}")
    fn()
    a.label(lb)
def if_wave(a, cmp, val, fn): if_s(a, S_W, cmp, val, fn)

def div10(a, p, q, r, t):
    a(f"v_mul_u32_u24 v{q}, 6554, v{p}")
    a(f"v_lshrrev_b32 v{q}, 16, v{q}")
    a(f"v_mul_u32_u24 v{t}, 10, v{q}")
    a(f"v_sub_u32 v{r}, v{p}, v{t}")

def gen(a):
    name = NAME + "_kernel"
    a.L.append(kernel_header(name))
    END = "f_end"
    a(f"s_cmp_ge_u32 s2, 256")
    a(f"s_cbranch_scc1 {END}")
    a(f"s_load_dwordx16 s[76:91], s[0:1], 0")
    a(f"s_load_dwordx8 s[92:99], s[0:1], 64")
    a(f"s_load_dwordx4 s[28:31], s[0:1], 96")
    a(f"s_load_dwordx2 s[32:33], s[0:1], 112")
    a(f"v_lshrrev_b32 v1, 6, v0")
    a(f"s_and_b32 s{S_I}, s2, 7")
    a(f"s_lshl_b32 s{S_I}, s{S_I}, 2")
    a(f"s_lshr_b32 s{S_J}, s2, 6")
    a(f"s_add_u32 s{S_I}, s{S_I}, s{S_J}")
    a(f"s_lshr_b32 s{S_J}, s2, 3")
    a(f"s_and_b32 s{S_J}, s{S_J}, 7")
    a(f"v_readfirstlane_b32 s{S_W}, v1")
    a(f"v_and_b32 v1, 63, v0")
    a(f"s_movk_i32 s{S_1280}, 1280")
    a(f"s_add_u32 s{S_ROT}, s{S_I}, s{S_J}")
    a(f"s_and_b32 s{S_ROT}, s{S_ROT}, 7")
    a(f"s_and_b32 s{S_HH}, s{S_W}, 3")
    a(f"s_lshr_b32 s{S_G}, s{S_W}, 2")
    V_XD, V_WD, V_UST = 112, 113, 111
    HR = 116
    a(f"s_mul_i32 s37, s{S_I}, 3")
    a(f"s_lshl_b32 s34, s{S_I}, 1")
    a(f"s_add_u32 s34, s34, 16")
    a(f"s_cmp_lt_u32 s{S_I}, 16")
    a(f"s_cselect_b32 s35, s37, s34")
    a(f"s_cselect_b32 s36, 3, 2")
    a(f"s_mul_i32 s34, s{S_J}, 80")
    a(f"s_add_u32 s35, s35, s34")
    a(f"s_sub_u32 s38, s{S_W}, 9")
    a(f"s_add_u32 s35, s35, s38")
    a("s_waitcnt lgkmcnt(0)")
    srd(a, SRD_X, 76, XB)
    a(f"s_cmp_ge_u32 s{S_J}, 4")
    a(f"s_cselect_b32 s{SRD_W}, s94, s92")
    a(f"s_cselect_b32 s{SRD_W+1}, s95, s93")
    a(f"s_mov_b32 s{SRD_W+2}, 25600")
    a(f"s_mov_b32 s{SRD_W+3}, 0x00020000")
    srd(a, SRD_K, 78, XB)
    srd(a, SRD_V, 80, XB)
    srd(a, SRD_SH, 82, 640 * 4 * 2)
    srd(a, SRD_WS, 32, WS_USED)
    srd(a, SRD_DBG, 30, 256)
    srd(a, SRD_WQ, 90, 640 * 640 * 2)
    srd(a, SRD_GW, 98, 1280)
    srd(a, SRD_H, 84, XB)
    srd(a, SRD_WO, 96, 640 * 640 * 2)
    srd(a, SRD_OUT, 28, XB)
    a(f"s_mov_b32 s{S_DPTR}, s86")
    a(f"s_mov_b32 s{S_DPTR+1}, s87")
    a(f"s_mov_b32 s{S_CH}, s35")
    a(f"s_mov_b32 s{S_NCH}, s36")
    a(f"s_mul_i32 s{S_CB}, s38, {CHB}")
    a(f"s_add_u32 s{S_CB}, s{S_CB}, {CONVB}")
    if "stamp" in OPT: a(f"v_mov_b32 v{V_ST}, 0")
    stamp(a, "rt0", True); stamp(a, "t0")
    PSTART = "f_pstart"
    a(f"s_cmp_eq_u32 s{S_W}, 8")
    a(f"s_cbranch_scc1 {PSTART}")
    a(f"s_cmp_gt_u32 s{S_W}, 8")
    a(f"s_cbranch_scc1 f_lstart")

    XF, UACC, WFA, SH = 16, 4, 44, 36
    def unit_loads():
        a("s_setprio 2")
        a(f"s_and_b32 s28, s{S_J}, 3")
        a(f"s_lshl_b32 s28, s28, 4")
        a(f"s_lshl_b32 s29, s{S_I}, 6")
        a(f"s_add_u32 s28, s28, s29")
        a(f"v_and_b32 v{T0}, 15, v1")
        a(f"v_add_u32 v{T0}, s28, v{T0}")
        a(f"v_mul_lo_u32 v{T0}, v{T0}, s{S_1280}")
        a(f"v_lshrrev_b32 v{T1}, 4, v1")
        a(f"v_lshlrev_b32 v{T2}, 4, v{T1}")
        a(f"v_add_u32 v{T0}, v{T0}, v{T2}")
        a(f"s_mul_i32 s29, s{S_W}, 320")
        for s_ in range(5):
            a(f"buffer_load_dwordx4 {v(XF+4*s_,4)}, v{T0}, {R(SRD_X)}, s29 offen offset:{64*s_}")
        a(f"v_lshlrev_b32 v{T2}, 4, v1")
        a(f"s_mul_i32 s29, s{S_W}, 6400")
        a(f"s_mul_i32 s30, s{S_W}, {UNIT_S}")
        for q in range(7):
            a(f"s_add_u32 m0, s30, {UNIT_W + 1024*q}")
            a(f"s_add_u32 s31, s29, {1024*q}")
            if q == 6: a(f"s_mov_b64 exec, 0xffffffff")
            a(f"buffer_load_dwordx4 v{T2}, {R(SRD_W)}, s31 offen lds")
        a(f"s_mov_b64 exec, -1")
        a("s_setprio 0")
    if_wave(a, "lt", 4, unit_loads)
    a(f"v_lshrrev_b32 v{T0}, 4, v1")
    a(f"s_lshl_b32 s28, s{S_W}, 2")
    a(f"v_add_u32 v{T0}, s28, v{T0}")
    a(f"v_xor_b32 v{T1}, v1, v{T0}")
    a(f"v_and_b32 v{T1}, 15, v{T1}")
    a(f"v_lshlrev_b32 v{T1}, 4, v{T1}")
    a(f"s_lshl_b32 s28, s{S_I}, 6")
    a(f"v_add_u32 v{T0}, s28, v{T0}")
    a(f"v_mul_lo_u32 v{T0}, v{T0}, s{S_1280}")
    a(f"v_add_u32 v{V_XD}, v{T0}, v{T1}")
    a(f"s_mul_i32 s29, s{S_J}, 160")
    a(f"s_lshl_b32 s28, s{S_W}, 6")
    for t in range(3):
        a(f"v_add_u32 v{T0}, s28, v1")
        if t: a(f"v_add_u32 v{T0}, {512*t}, v{T0}")
        div10(a, T0, T1, T0, T2)
        a(f"v_lshlrev_b32 v{T0}, 4, v{T0}")
        a(f"v_and_b32 v{T2}, 0xfff8, v{T1}")
        a(f"v_bfe_u32 v{T3}, v{T1}, 1, 2")
        a(f"v_or_b32 v{T2}, v{T2}, v{T3}")
        a(f"v_and_b32 v{T1}, 1, v{T1}")
        a(f"v_lshlrev_b32 v{T1}, 2, v{T1}")
        a(f"v_or_b32 v{T2}, v{T2}, v{T1}")
        a(f"v_mul_lo_u32 v{T2}, v{T2}, s{S_1280}")
        a(f"v_add_u32 v{T2}, v{T2}, v{T0}")
        a(f"v_add_u32 v{V_WD+t}, s29, v{T2}")
    def dma_chunk(ch, slot):
        base = slot * SLOT
        a(f"s_lshl_b32 s28, s{S_W}, 10")
        for t in range(2):
            a(f"s_add_u32 m0, s28, {base + 8192*t}")
            a(f"s_mov_b32 s29, {256*ch + 32*1280*t}")
            a(f"buffer_load_dwordx4 v{V_XD}, {R(SRD_X)}, s29 offen lds")
        a(f"s_mov_b32 s29, {163840*ch}")
        for t in range(3):
            def one(t=t):
                a(f"s_add_u32 m0, s28, {base + 16384 + 8192*t}")
                a(f"s_nop 0")
                a(f"buffer_load_dwordx4 v{V_WD+t}, {R(SRD_WQ)}, s29 offen lds")
            if t < 2: one()
            else: if_wave(a, "lt", 4, one)
    def wait_vm(nA, nB):
        la = a.newlabel("wa"); lb = a.newlabel("wb")
        a(f"s_cmp_lt_u32 s{S_W}, 4")
        a(f"s_cbranch_scc1 {la}")
        a(f"s_waitcnt vmcnt({nB})")
        a(f"s_branch {lb}")
        a.label(la)
        a(f"s_waitcnt vmcnt({nA})")
        a.label(lb)
    NA, NB = 5, 4
    def gw():
        a(f"s_mul_i32 s28, s{S_HH}, 320")
        a(f"s_add_u32 m0, s28, {GWL}")
        a(f"v_lshlrev_b32 v{T0}, 4, v1")
        a(f"s_mov_b64 exec, 0xfffff")
        a(f"buffer_load_dwordx4 v{T0}, {R(SRD_GW)}, s28 offen lds")
        a(f"s_mov_b64 exec, -1")
    if_wave(a, "ge", 4, gw)
    dma_chunk(0, 0); dma_chunk(1, 1)
    a("s_barrier")
    def unit_compute():
        a(f"v_lshrrev_b32 v{T1}, 4, v1")
        a(f"v_bfe_u32 v{T2}, v1, 2, 2")
        a(f"v_lshlrev_b32 v{T1}, 3, v{T1}")
        a(f"v_add_u32 v{T2}, v{T2}, v{T1}")
        a(f"v_mul_u32_u24 v{T2}, 40, v{T2}")
        a(f"v_and_b32 v{T3}, 3, v1")
        a(f"v_lshlrev_b32 v{T3}, 3, v{T3}")
        a(f"v_add_u32 v{T2}, v{T2}, v{T3}")
        a(f"s_mul_i32 s30, s{S_W}, {UNIT_S}")
        a(f"s_add_u32 s30, s30, {UNIT_W}")
        a(f"v_add_u32 v{T2}, s30, v{T2}")
        for r in range(8): a(f"v_mov_b32 v{UACC+r}, 0")
        a(f"s_waitcnt vmcnt({2*NA})")
        stamp(a, "unitld")
        for s_ in range(5):
            for dt in range(2):
                for jj in range(2):
                    a(f"ds_read_b64_tr_b16 {v(WFA+8*s_+4*dt+2*jj,2)}, v{T2} offset:{1280*s_ + 160*jj + 32*dt}")
            if s_ == 2: a("s_waitcnt lgkmcnt(4)")
        labV = a.newlabel("kindV"); labD = a.newlabel("kindD")
        a("s_waitcnt lgkmcnt(0)")
        a(f"s_cmp_ge_u32 s{S_J}, 4")
        a(f"s_cbranch_scc1 {labV}")
        for kind in range(2):
            for s_ in range(5):
                for dt in range(2):
                    w_ = v(WFA+8*s_+4*dt, 4); x_ = v(XF+4*s_, 4)
                    A_, B_ = (w_, x_) if kind == 0 else (x_, w_)
                    a(f"v_mfma_f32_16x16x32_bf16 {v(UACC+4*dt,4)}, {A_}, {B_}, {v(UACC+4*dt,4)}")
            if kind == 0:
                a(f"s_branch {labD}")
                a.label(labV)
        a.label(labD)
        a.nop(8)
        a(f"s_mul_i32 s29, s{S_W}, {UNIT_S}")
        a(f"s_add_u32 s29, s29, {UNIT_W}")
        a(f"v_lshlrev_b32 v{T0}, 4, v1")
        a(f"v_add_u32 v{T1}, s29, v{T0}")
        a(f"ds_write_b128 v{T1}, {v(UACC,4)}")
        a(f"ds_write_b128 v{T1}, {v(UACC+4,4)} offset:1024")
        lds_add1_imm(a, C_UP)
    if_wave(a, "lt", 4, unit_compute)
    V_XA, V_WA, V_GWA, V_QXP = 24, 32, 33, 34
    QACC, GACC, GW, QXF, QWF = 44, 60, 76, 84, 96
    a(f"v_and_b32 v{T0}, 31, v1")
    a(f"s_lshl_b32 s28, s{S_G}, 5")
    a(f"v_add_u32 v{T0}, s28, v{T0}")
    a(f"v_lshrrev_b32 v{T1}, 5, v1")
    a(f"v_and_b32 v{T2}, 15, v{T0}")
    a(f"v_xor_b32 v{T2}, v{T2}, v{T1}")
    a(f"v_lshlrev_b32 v{T2}, 4, v{T2}")
    a(f"v_lshlrev_b32 v{T0}, 8, v{T0}")
    a(f"v_add_u32 v{V_XA}, v{T0}, v{T2}")
    for s_ in range(1, 8): a(f"v_xor_b32 v{V_XA+s_}, {32*s_}, v{V_XA}")
    a(f"v_bfe_u32 v{T0}, v1, 2, 2")
    a(f"v_lshlrev_b32 v{T0}, 1, v{T0}")
    a(f"v_lshlrev_b32 v{T2}, 3, v{T1}")
    a(f"v_add_u32 v{T0}, v{T0}, v{T2}")
    a(f"v_mul_u32_u24 v{T0}, 160, v{T0}")
    a(f"v_and_b32 v{T2}, 3, v1")
    a(f"v_lshlrev_b32 v{T2}, 3, v{T2}")
    a(f"v_and_b32 v{T3}, 16, v1")
    a(f"v_cmp_ne_u32 vcc, 0, v{T3}")
    a(f"s_mul_i32 s28, s{S_HH}, 40")
    a(f"s_add_u32 s28, s28, 16384")
    a(f"v_mov_b32 v{T3}, 32")
    a(f"v_cndmask_b32 v{T2}, v{T2}, v{T3}, vcc")
    a(f"v_add_u32 v{T0}, v{T0}, v{T2}")
    a(f"v_add_u32 v{V_WA}, s28, v{T0}")
    for r in range(16):
        a(f"v_mov_b32 v{QACC+r}, 0"); a(f"v_mov_b32 v{GACC+r}, 0")
    a(f"v_lshlrev_b32 v{T1}, 4, v{T1}")
    a(f"s_lshl_b32 s28, s{S_HH}, 5")
    a(f"s_add_u32 s28, s28, {GWL}")
    a(f"v_add_u32 v{V_GWA}, s28, v{T1}")
    def q_chunk(ch, slot):
        off = (slot & 1) * SLOT
        def loads(s_):
            b = s_ % 3
            a(f"ds_read_b128 {v(QXF+4*b,4)}, v{V_XA+s_} offset:{off}")
            a(f"ds_read_b64_tr_b16 {v(QWF+4*b,2)}, v{V_WA} offset:{off + 2560*s_}")
            a(f"ds_read_b64_tr_b16 {v(QWF+4*b+2,2)}, v{V_WA} offset:{off + 2560*s_ + 160}")
        a(f"ds_read_b128 {v(GW,4)}, v{V_GWA} offset:{128*(2*ch)}")
        a(f"ds_read_b128 {v(GW+4,4)}, v{V_GWA} offset:{128*(2*ch+1)}")
        loads(0); loads(1)
        for s_ in range(8):
            if s_ < 6:
                loads(s_+2); a("s_waitcnt lgkmcnt(6)")
            elif s_ == 6: a("s_waitcnt lgkmcnt(3)")
            else: a("s_waitcnt lgkmcnt(0)")
            b = s_ % 3
            a(f"v_mfma_f32_32x32x16_bf16 {v(QACC,16)}, {v(QWF+4*b,4)}, {v(QXF+4*b,4)}, {v(QACC,16)}")
            lg = a.newlabel("ng")
            a(f"s_cmp_lg_u32 s{S_HH}, {s_ & 3}")
            a(f"s_cbranch_scc1 {lg}")
            a(f"v_mfma_f32_32x32x16_bf16 {v(GACC,16)}, {v(GW+4*(s_>>2),4)}, {v(QXF+4*b,4)}, {v(GACC,16)}")
            a.label(lg)
    def bump(delta):
        op = "v_add_u32" if delta > 0 else "v_subrev_u32"
        for s_ in range(8): a(f"{op} v{V_XA+s_}, {abs(delta)}, v{V_XA+s_}")
        a(f"{op} v{V_WA}, {abs(delta)}, v{V_WA}")
    SF, SG = 16, 32
    P = 48
    OF, OG = 56, 72
    K16, K8, V0, V1 = 88, 92, 96, 100
    AK16, AK8, AV, AK16N, AK8N, AVN = 104, 105, 106, 107, 108, 109
    V_L16, V_ONE, V_CFW, V_CD, V_KW, V_CT = 110, 111, 112, 113, 114, 115
    KVST, KVST2 = 116, 16
    V_CFR = 128
    V_STG, V_OL0, V_OG0, V_OL1, V_OG1, V_OUT, V_WT, V_YT, V_GA, V_PX, V_TL16 = range(129, 140)
    QT, YS = 140, 150
    S_T, S_BLK, S_SLOT, S_NXT, S_FT, S_DT = 34, 35, 36, 37, 38, 39
    S_RB, S_M2, S_P1, S_DL, S_WB = 78, 79, 80, 81, 82
    S_CFB, S_CA, S_CBB = 89, 90, 91
    def tail_addrs():
        a(f"v_lshlrev_b32 v{V_TL16}, 4, v1")
        a(f"v_and_b32 v{T0}, 31, v1")
        a(f"v_mul_u32_u24 v{T0}, 160, v{T0}")
        a(f"v_lshrrev_b32 v{T1}, 5, v1")
        a(f"v_lshlrev_b32 v{T1}, 3, v{T1}")
        a(f"v_add_u32 v{T0}, v{T0}, v{T1}")
        a(f"s_mul_i32 s28, s{S_HH}, 40")
        a(f"s_mul_i32 s29, s{S_G}, 5120")
        a(f"s_add_u32 s28, s28, s29")
        a(f"s_add_u32 s28, s28, {OST}")
        a(f"v_add_u32 v{V_STG}, s28, v{T0}")
        for t, (vl, vg) in enumerate(((V_OL0, V_OG0), (V_OL1, V_OG1))):
            a(f"s_add_u32 s28, s{S_W}, {8*t}")
            a(f"s_lshl_b32 s28, s28, 2")
            a(f"v_lshrrev_b32 v{T0}, 4, v1")
            a(f"v_add_u32 v{T0}, s28, v{T0}")
            div10(a, T0, T1, T0, T2)
            a(f"v_and_b32 v{T2}, 15, v1")
            a(f"v_lshl_add_u32 v{T3}, v{T1}, 4, v{T2}")
            a(f"v_mul_u32_u24 v{T3}, 160, v{T3}")
            a(f"v_lshl_add_u32 v{vl}, v{T0}, 4, v{T3}")
            a(f"v_add_u32 v{vl}, {OST}, v{vl}")
            a(f"v_mul_u32_u24 v{T1}, 20480, v{T1}")
            a(f"v_lshl_add_u32 v{T1}, v{T0}, 8, v{T1}")
            a(f"v_lshl_add_u32 v{vg}, v{T2}, 4, v{T1}")
        a(f"v_and_b32 v{T0}, 15, v1")
        a(f"s_lshl_b32 s29, s{S_HH}, 4")
        a(f"s_lshl_b32 s28, s{S_I}, 6")
        a(f"s_add_u32 s28, s28, s29")
        a(f"v_add_u32 v{T1}, s28, v{T0}")
        a(f"v_mul_lo_u32 v{T1}, v{T1}, s{S_1280}")
        a(f"v_lshrrev_b32 v{T2}, 4, v1")
        a(f"v_lshlrev_b32 v{T3}, 3, v{T2}")
        a(f"v_add_u32 v{T1}, v{T1}, v{T3}")
        a(f"s_mul_i32 s28, s{S_J}, 160")
        a(f"v_add_u32 v{V_OUT}, s28, v{T1}")
        a(f"v_lshlrev_b32 v{T0}, 2, v{T0}")
        a(f"s_lshl_b32 s28, s{S_HH}, 6")
        a(f"s_add_u32 s28, s28, {G_L}")
        a(f"v_add_u32 v{V_GA}, s28, v{T0}")
        a(f"v_lshrrev_b32 v{T0}, 5, v1")
        a(f"v_lshlrev_b32 v{T0}, 4, v{T0}")
        a(f"v_bfe_u32 v{T1}, v1, 4, 1")
        a(f"v_lshlrev_b32 v{T1}, 2, v{T1}")
        a(f"v_add_u32 v{T0}, v{T0}, v{T1}")
        a(f"v_bfe_u32 v{T1}, v1, 2, 2")
        a(f"v_add_u32 v{T0}, v{T0}, v{T1}")
        a(f"v_mul_u32_u24 v{T0}, 160, v{T0}")
        a(f"v_and_b32 v{T1}, 3, v1")
        a(f"v_lshlrev_b32 v{T1}, 3, v{T1}")
        a(f"v_add_u32 v{T0}, v{T0}, v{T1}")
        a(f"s_cmp_eq_u32 s{S_G}, 0")
        a(f"s_cselect_b32 s28, {WOA}, {WOB}")
        a(f"v_add_u32 v{V_WT}, s28, v{T0}")
        a(f"v_bfe_u32 v{T0}, v1, 2, 4")
        a(f"v_lshlrev_b32 v{T0}, 7, v{T0}")
        a(f"v_add_u32 v{T0}, v{T0}, v{T1}")
        a(f"s_lshl_b32 s28, s{S_HH}, 5")
        a(f"s_add_u32 s28, s28, {YL}")
        a(f"v_add_u32 v{V_YT}, s28, v{T0}")
        a(f"s_mul_i32 s28, s{S_W}, 3072")
        a(f"s_add_u32 s28, s28, {PX}")
        a(f"v_add_u32 v{V_PX}, s28, v{V_TL16}")
    def ring_addrs():
        a(f"s_mul_i32 s{S_RB}, s{S_G}, {RING_STRIDE}")
        a(f"v_lshlrev_b32 v{V_L16}, 4, v1")
        a(f"v_mov_b32 v{V_ONE}, 1")
        a(f"s_lshl_b32 s28, s{S_G}, 4")
        a(f"s_add_u32 s{S_CFB}, s28, {C_FULL}")
        a(f"s_mul_i32 s29, s{S_HH}, {BLK}")
        a(f"s_add_u32 s{S_WB}, s{S_RB}, s29")
        a(f"v_add_u32 v{AK16}, s{S_RB}, v{V_L16}")
        a(f"v_and_b32 v{T0}, 31, v1")
        a(f"v_lshlrev_b32 v{T1}, 3, v{T0}")
        a(f"v_add_u32 v{T1}, 1024, v{T1}")
        a(f"v_mov_b32 v{AK8}, 1280")
        a(f"v_cmp_gt_u32 vcc, 32, v1")
        a(f"v_min_u32 v{T2}, 20, v{T0}")
        a(f"v_subrev_u32 v{AV}, 16, v{T0}")
        a(f"v_cndmask_b32 v{AK8}, v{AK8}, v{T1}, vcc")
        a(f"v_add_u32 v{AK8}, s{S_RB}, v{AK8}")
        a(f"v_cmp_lt_u32 vcc, 27, v{T0}")
        a.nop(2)
        a(f"v_cndmask_b32 v{T2}, v{T2}, v{AV}, vcc")
        a(f"v_lshlrev_b32 v{T2}, 4, v{T2}")
        a(f"v_lshrrev_b32 v{AV}, 5, v1")
        a(f"v_mul_u32_u24 v{AV}, 336, v{AV}")
        a(f"v_add_u32 v{AV}, v{AV}, v{T2}")
        a(f"v_add_u32 v{AV}, 1296, v{AV}")
        a(f"v_add_u32 v{AV}, s{S_RB}, v{AV}")
        a(f"v_lshlrev_b32 v{T0}, 2, v1")
        a(f"v_add_u32 v{T0}, {DUMMY}, v{T0}")
        a(f"v_mov_b32 v{T1}, s{S_CFB}")
        a(f"v_cmp_eq_u32 vcc, 0, v1")
        a.nop(2)
        a(f"v_cndmask_b32 v{V_CFW}, v{T0}, v{T1}, vcc")
        a(f"v_add_u32 v{V_KW}, s{S_WB}, v{V_L16}")
        a(f"s_lshl_b32 s28, s{S_W}, 2")
        a(f"s_add_u32 s29, s28, {C_PROG}")
        a(f"v_mov_b32 v{T1}, s29")
        a(f"v_cndmask_b32 v150, v{T0}, v{T1}, vcc")
        a(f"s_xor_b32 s28, s28, 16")
        a(f"s_add_u32 s28, s28, {C_PROG}")
        a(f"v_mov_b32 v151, s28")
    def blk_off(t, g=None):
        a(f"s_add_u32 s28, s{S_ROT}, {t}")
        a(f"s_and_b32 s28, s28, 7")
        a(f"s_lshl_b32 s28, s28, 2")
        if g is None:
            a(f"s_lshl_b32 s29, s{S_G}, 5")
            a(f"s_add_u32 s28, s28, s29")
        elif g: a(f"s_add_u32 s28, s28, {32*g}")
        a(f"s_add_u32 s28, s28, s{S_HH}")
        a(f"s_mul_i32 s{S_BLK}, s28, 3072")
    def kv_load(dst):
        for q in range(3):
            a(f"buffer_load_dwordx4 {v(dst+4*q,4)}, v{V_L16}, {R(SRD_WS)}, s{S_BLK} offen offset:{1024*q} sc1")
    def kv_write(src, off=0):
        for q in range(3): a(f"ds_write_b128 v{V_KW}, {v(src+4*q,4)} offset:{off + 1024*q}")
    def wait_chunk(ch):
        if ch < 2:
            if ch == 0: wait_vm(NA, NB)
            else: a("s_waitcnt vmcnt(0)")
            lds_add1_imm(a, C_CL + 4*ch)
            lds_wait_imm(a, C_CL + 4*ch, 8, sleep=0)
        else:
            lds_wait_imm(a, C_CL + 4*ch, 3, sleep=1)
        stamp(a, f"cl{ch}")
    wait_chunk(0)
    q_chunk(0, 0)
    lds_add1_imm(a, C_C0C)
    wait_chunk(1)
    q_chunk(1, 1)
    lds_add1_imm(a, C_C1C)
    tail_addrs()
    bump(2 * SLOT)
    wait_chunk(2)
    q_chunk(2, 2)
    bump(-2 * SLOT)
    wait_chunk(3)
    q_chunk(3, 0)
    KB = [116, 152]
    a(f"v_lshlrev_b32 v{V_L16}, 4, v1")
    lds_wait_imm(a, C_KVOK, 1, sleep=1)
    stamp(a, "kvok")
    blk_off(2); kv_load(KB[0])
    blk_off(3); kv_load(KB[1])
    wait_chunk(4)
    q_chunk(4, 1)
    lds_add1_imm(a, C_QRD)
    stamp(a, "qdone")

    QF16, QF8, QG16, QG8 = 4, 8, 10, 14
    ring_addrs()
    a(f"s_lshl_b32 s28, s{S_W}, 10")
    a(f"v_lshlrev_b32 v{T2}, 4, v1")
    a(f"v_add_u32 v{T2}, s28, v{T2}")
    a(f"v_lshrrev_b32 v{T3}, 1, v{T2}")
    a(f"v_xor_b32 v{V_QXP}, 4096, v{T2}")
    a(f"v_xor_b32 v{V_QXP+1}, 2048, v{T3}")
    a(f"v_add_u32 v{T2}, {QXA}, v{T2}")
    a(f"v_add_u32 v{T3}, {QXB}, v{T3}")
    a(f"v_add_u32 v{V_QXP}, {QXA}, v{V_QXP}")
    a(f"v_add_u32 v{V_QXP+1}, {QXB}, v{V_QXP+1}")
    a(f"s_mov_b32 s28, {hex(f32bits(QSCALE))}")
    for r in range(12): a(f"v_mul_f32 v{QACC+r}, s28, v{QACC+r}")
    a(f"v_cmp_gt_u32 vcc, 32, v1")
    for r in range(4): a(f"v_cvt_pk_bf16_f32 v{QF16+r}, v{QACC+2*r}, v{QACC+2*r+1}")
    for r in range(2): a(f"v_cvt_pk_bf16_f32 v{QF8+r}, v{QACC+8+2*r}, v{QACC+8+2*r+1}")
    a(f"ds_write_b128 v{T2}, {v(QF16,4)}")
    for r in range(2): a(f"v_cndmask_b32 v{QF8+r}, 0, v{QF8+r}, vcc")
    a(f"s_lshl_b32 s28, s{S_W}, 7")
    a(f"s_add_u32 s28, s28, {GP}")
    a(f"v_lshlrev_b32 v{T1}, 2, v1")
    a(f"v_add_u32 v{T1}, s28, v{T1}")
    a(f"ds_write_b64 v{T3}, {v(QF8,2)}")
    a(f"s_mov_b64 exec, 0xffffffff")
    a(f"ds_write_b32 v{T1}, v{GACC}")
    a(f"s_mov_b64 exec, -1")
    a(f"s_lshl_b32 s28, s{S_W}, 2")
    a(f"s_add_u32 s29, s28, {C_QXF}")
    a(f"v_mov_b32 v{T0}, s29")
    lds_add1(a, T0, V_ONE)
    a(f"s_xor_b32 s28, s28, 16")
    a(f"s_add_u32 s28, s28, {C_QXF}")
    a(f"v_mov_b32 v{T0}, s28")
    for r in range(16):
        a(f"v_mov_b32 v{OF+r}, 0"); a(f"v_mov_b32 v{OG+r}, 0")
    for r in range(8): a(f"v_mov_b32 v{P+r}, 0")
    for r in range(4): a(f"v_mov_b32 v{V1+r}, 0")
    for r in range(12, 16): a(f"v_mov_b32 v{SG+r}, 0")
    lds_wait_ge(a, 1, T1, T0, sleep=0)
    a(f"ds_read_b128 {v(QG16,4)}, v{V_QXP}")
    a(f"ds_read_b64 {v(QG8,2)}, v{V_QXP+1}")
    a("s_waitcnt lgkmcnt(0)")
    lds_add1_imm(a, C_QG)
    stamp(a, "qg")
    lds_wait_ge(a, 4, V_CT, V_CFW, sleep=1)
    stamp(a, "full0")
    a(f"ds_read_b128 {v(K16,4)}, v{AK16}")
    a(f"ds_read_b64 {v(K8,2)}, v{AK8}")
    a(f"ds_read_b128 {v(V0,4)}, v{AV}")
    a("s_waitcnt lgkmcnt(0)")
    a(f"v_mfma_f32_32x32x16_bf16 {v(SF,16)}, {v(K16,4)}, {v(QF16,4)}, 0")
    a(f"v_mfma_f32_32x32x8_bf16 {v(SF,16)}, {v(K8,2)}, {v(QF8,2)}, {v(SF,16)}")
    S_T, S_NC, S_GB, S_PR = 34, 39, 79, 80
    S_WS, S_DTG, S_FTG, S_DL, S_NX = 36, 37, 38, 81, 82-0
    S_NX = 90; S_PI = 91; S_NI = 89
    V_CW, V_CN = 112+0, 129-1
    a(f"s_mov_b32 s{S_T}, 0")
    a(f"s_mov_b32 s{S_PR}, 0")
    a(f"s_add_u32 s{S_NC}, s{S_ROT}, 4")
    a(f"s_lshl_b32 s28, s{S_G}, 5")
    a(f"s_add_u32 s28, s28, s{S_HH}")
    a(f"s_mul_i32 s{S_GB}, s28, 3072")
    a(f"s_mov_b32 s{S_WS}, {2*KVSLOT}")
    a(f"s_mov_b32 s{S_PI}, 8")
    a(f"s_mov_b32 s{S_NI}, 4")
    a(f"s_mov_b32 s{S_DTG}, 0")
    a(f"s_mov_b32 s{S_FTG}, 4")
    a(f"s_mov_b32 s{S_NX}, {KVSLOT}")
    V_CP, V_CNX, V_KWP = 113, 108, 109
    AK16N, AK8N, AVN = 129-129+153+11, 0, 0
    V_PG, V_PGP, V_PT = 150, 151, 128
    a(f"v_add_u32 v{V_CP}, 8, v{V_CFW}")
    a(f"v_add_u32 v{V_CNX}, 4, v{V_CFW}")
    a(f"v_add_u32 v{V_KWP}, {2*KVSLOT}, v{V_KW}")
    for cur, nxt in ((104, 94), (105, 95), (106, 107)):
        a(f"v_add_u32 v{nxt}, {KVSLOT}, v{cur}")
    for mt in range(5):
        a(f"buffer_load_dwordx2 {v(QT+2*mt,2)}, v{V_OUT}, {R(SRD_X)}, 0 offen offset:{32*mt}")
    a("s_setprio 1")
    stamp(a, "loop0")
    LOOP = "f_attn"
    if "align" in OPT: a(".p2align 6")
    a.label(LOOP)
    e = lambda S, i: a(f"v_exp_f32 v{S+i}, v{S+i}")
    c = lambda S, i: a(f"v_cvt_pk_bf16_f32 v{P+i}, v{S+2*i}, v{S+2*i+1}")
    def check_cnt(target, vaddr, off):
        ok = a.newlabel("ok"); lp = a.newlabel("rt")
        a(f"v_readfirstlane_b32 s42, v{V_CT}")
        a("s_nop 3")
        a(f"s_cmp_ge_u32 s42, {target}")
        a(f"s_cbranch_scc1 {ok}")
        a(f"s_mov_b32 s43, 0")
        a.label(lp)
        a("s_sleep 1")
        a(f"ds_read_b32 v{V_CT}, v{vaddr} offset:{off}")
        a("s_waitcnt lgkmcnt(0)")
        a(f"v_readfirstlane_b32 s42, v{V_CT}")
        a(f"s_add_u32 s43, s43, 1")
        a(f"s_cmp_ge_u32 s43, {POLL_MAX*8}")
        a(f"s_cbranch_scc1 {ok}")
        a(f"s_cmp_lt_u32 s42, {target}")
        a(f"s_cbranch_scc1 {lp}")
        a.label(ok)
    AN16, AN8, ANV = 153+11-11+0, 0, 0
    AN16, AN8, ANV = 129 + 0, 0, 0
    AN16, AN8, ANV = 94, 95, 107
    for par in range(2):
        for b in range(4):
            last = (b == 3)
            kA16, kA8, kAV, koff = (AN16, AN8, ANV, 0) if last else (AK16, AK8, AV, (b+1)*BLK)
            extra = b in (2, 3)
            c(SG, 6); c(SG, 7)
            a(f"v_mfma_f32_32x32x16_bf16 {v(SG,16)}, {v(K16,4)}, {v(QG16,4)}, 0")
            a(f"ds_read_b128 {v(K16,4)}, v{kA16} offset:{koff}")
            if b == 2: a(f"ds_read_b32 v{V_CT}, v{V_CNX}")
            if b == 3: a(f"ds_read_b32 v{V_CT}, v{V_CP} offset:32")
            for i in range(0, 4): e(SF, i)
            c(SF, 0); c(SF, 1)
            a(f"v_mfma_f32_32x32x16_bf16 {v(OG,16)}, {v(V1,4)}, {v(P+4,4)}, {v(OG,16)}")
            a(f"ds_read_b128 {v(V1,4)}, v{AV} offset:{b*BLK + 672}")
            for i in range(4, 8): e(SF, i)
            c(SF, 2); c(SF, 3)
            a(f"v_mfma_f32_32x32x8_bf16 {v(SG,16)}, {v(K8,2)}, {v(QG8,2)}, {v(SG,16)}")
            a(f"ds_read_b64 {v(K8,2)}, v{kA8} offset:{koff}")
            for i in range(8, 12): e(SF, i)
            c(SF, 4); c(SF, 5)
            a(f"s_waitcnt lgkmcnt({4 if extra else 3})")
            a(f"v_mfma_f32_32x32x16_bf16 {v(OF,16)}, {v(V0,4)}, {v(P,4)}, {v(OF,16)}")
            for i in range(12, 16): e(SF, i)
            c(SF, 6); c(SF, 7)
            a("s_waitcnt lgkmcnt(0)")
            a(f"v_mfma_f32_32x32x16_bf16 {v(SF,16)}, {v(K16,4)}, {v(QF16,4)}, 0")
            if b == 0:
                if par == 0: if_s(a, S_T, "lg", 0, lambda: a(f"ds_add_u32 v{V_CP}, v{V_ONE} offset:32"))
                else: a(f"ds_add_u32 v{V_CP}, v{V_ONE} offset:32")
            if b == 1 and "nolag" not in OPT:
                a(f"ds_read_b32 v{V_PT}, v{V_PGP}")
            if b == 2 and "nofeed" not in OPT:
                lb = a.newlabel("nf")
                a(f"s_cmp_ge_u32 s{S_T}, 7")
                a(f"s_cbranch_scc1 {lb}")
                check_cnt(f"s{S_FTG}", V_CNX, 0)
                a.label(lb)
            if b == 3 and "nofeed" not in OPT:
                lb = a.newlabel("nw")
                a(f"s_cmp_ge_u32 s{S_T}, 6")
                a(f"s_cbranch_scc1 {lb}")
                check_cnt(f"s{S_DTG}", V_CP, 32)
                l6 = a.newlabel("w6"); l7 = a.newlabel("w7")
                a(f"s_cmp_ge_u32 s{S_T}, 5")
                a(f"s_cbranch_scc1 {l6}")
                a("s_waitcnt vmcnt(3)")
                a(f"s_branch {l7}")
                a.label(l6)
                a("s_waitcnt vmcnt(0)")
                a.label(l7)
                for q in range(3): a(f"ds_write_b128 v{V_KWP}, {v(KB[par]+4*q,4)} offset:{1024*q}")
                a(f"ds_add_u32 v{V_CP}, v{V_ONE}")
                a(f"s_cmp_ge_u32 s{S_T}, 4")
                a(f"s_cbranch_scc1 {lb}")
                a(f"s_and_b32 s28, s{S_NC}, 7")
                a(f"s_mul_i32 s28, s28, 12288")
                a(f"s_add_u32 s{S_BLK}, s28, s{S_GB}")
                a(f"s_add_u32 s{S_NC}, s{S_NC}, 1")
                kv_load(KB[par])
                a.label(lb)
            for i in range(0, 4): e(SG, i)
            c(SG, 0); c(SG, 1)
            a(f"v_mfma_f32_32x32x16_bf16 {v(OF,16)}, {v(V1,4)}, {v(P+4,4)}, {v(OF,16)}")
            for i in range(4, 8): e(SG, i)
            c(SG, 2); c(SG, 3)
            a(f"v_mfma_f32_32x32x8_bf16 {v(SF,16)}, {v(K8,2)}, {v(QF8,2)}, {v(SF,16)}")
            for i in range(8, 12): e(SG, i)
            c(SG, 4); c(SG, 5)
            a(f"v_mfma_f32_32x32x16_bf16 {v(OG,16)}, {v(V0,4)}, {v(P,4)}, {v(OG,16)}")
            a(f"ds_read_b128 {v(V0,4)}, v{kAV} offset:{koff}")
            for i in range(12, 16): e(SG, i)
        a(f"s_add_u32 s{S_T}, s{S_T}, 1")
        a(f"s_add_u32 s{S_NX}, s{S_NX}, {KVSLOT}")
        a(f"s_cmp_ge_u32 s{S_NX}, {3*KVSLOT}")
        a(f"s_cselect_b32 s{S_DL}, s78, s35" if False else f"s_cselect_b32 s{S_DL}, {(-2*KVSLOT) & 0xffffffff}, s77" if False else f"s_cselect_b32 s{S_NX}, 0, s{S_NX}")
        a(f"s_mov_b32 s{S_DL}, {KVSLOT}")
        a(f"s_cselect_b32 s28, {(-3*KVSLOT) & 0xffffffff}, 0")
        a(f"s_add_u32 s{S_DL}, s{S_DL}, s28")
        for cur, nxt in ((AK16, AN16), (AK8, AN8), (AV, ANV)):
            a(f"v_mov_b32 v{cur}, v{nxt}")
            a(f"v_add_u32 v{nxt}, s{S_DL}, v{nxt}")
        a(f"s_add_u32 s{S_NI}, s{S_NI}, 4")
        a(f"s_cmp_ge_u32 s{S_NI}, 12")
        a(f"s_cselect_b32 s29, 4, 0")
        a(f"s_cselect_b32 s28, -8, 4")
        a(f"s_cselect_b32 s{S_NI}, 0, s{S_NI}")
        a(f"s_add_u32 s{S_FTG}, s{S_FTG}, s29")
        a(f"v_add_u32 v{V_CNX}, s28, v{V_CNX}")
        a(f"s_add_u32 s{S_PI}, s{S_PI}, 4")
        a(f"s_cmp_ge_u32 s{S_PI}, 12")
        a(f"s_cselect_b32 s29, 4, 0")
        a(f"s_cselect_b32 s28, -8, 4")
        a(f"s_cselect_b32 s{S_PI}, 0, s{S_PI}")
        a(f"s_add_u32 s{S_DTG}, s{S_DTG}, s29")
        a(f"v_add_u32 v{V_CP}, s28, v{V_CP}")
        a(f"s_cselect_b32 s28, {(-2*KVSLOT) & 0xffffffff}, s77" if False else f"s_mul_i32 s28, s28, {KVSLOT // 4}")
        a(f"v_add_u32 v{V_KWP}, s28, v{V_KWP}")
        if "nolag" not in OPT:
            a(f"v_mov_b32 v{V_CT}, s{S_T}")
            a(f"v_readfirstlane_b32 s42, v{V_PT}")
            a(f"ds_write_b32 v{V_PG}, v{V_CT}")
            lpa = a.newlabel("pa"); lpb = a.newlabel("pb")
            a(f"s_cmp_gt_u32 s{S_T}, s42")
            a(f"s_cbranch_scc1 {lpa}")
            a("s_setprio 2")
            a(f"s_branch {lpb}")
            a.label(lpa)
            a("s_setprio 1")
            a.label(lpb)
    a(f"s_cmp_lt_u32 s{S_T}, 8")
    a(f"s_cbranch_scc1 {LOOP}")
    stamp(a, "loopE")
    S_FBD = 81
    a(f"s_mov_b32 s{S_FBD}, 0")
    c(SG, 6); c(SG, 7)
    a(f"s_mul_i32 s28, s{S_W}, 3072")
    a(f"s_add_u32 s28, s28, {OX}")
    a(f"v_add_u32 v{T2}, s28, v{V_L16}")
    a(f"s_xor_b32 s29, s{S_W}, 4")
    a(f"s_mul_i32 s29, s29, 3072")
    a(f"s_add_u32 s29, s29, {OX}")
    a(f"v_mfma_f32_32x32x16_bf16 {v(OG,16)}, {v(V1,4)}, {v(P+4,4)}, {v(OG,16)}")
    a(f"v_add_u32 v{T3}, s29, v{V_L16}")
    a("s_setprio 2")
    V_LA = 94
    def cadd(addr):
        a(f"v_add_u32 v95, {addr}, v{V_LA}" if False else f"v_mov_b32 v95, {addr}")
        lds_add1(a, 95, V_ONE)
    a("s_waitcnt lgkmcnt(0)")
    cadd(C_LE)
    a.nop(6)
    for q in range(3): a(f"ds_write_b128 v{T2}, {v(OG+4*q,4)} offset:{1024*q}")
    a(f"s_lshl_b32 s28, s{S_W}, 2")
    a(f"s_add_u32 s30, s28, {C_XF}")
    a(f"v_mov_b32 v95, s30")
    lds_add1(a, 95, V_ONE)
    a(f"s_xor_b32 s28, s28, 16")
    a(f"s_add_u32 s30, s28, {C_XF}")
    a(f"v_mov_b32 v{T0}, s30")
    lds_wait_ge(a, 1, T1, T0, sleep=0)
    stamp(a, "xf")
    lds_wait_imm(a, C_CVD, 3, sleep=1)
    stamp(a, "J1")
    PB = 16
    for q in range(3): a(f"ds_read_b128 {v(PB+4*q,4)}, v{T3} offset:{1024*q}")
    a("s_waitcnt lgkmcnt(0)")
    for r in range(12): a(f"v_add_f32 v{OF+r}, v{OF+r}, v{PB+r}")
    NORM = "f_norm"; FB = "f_fallback"
    a.label(NORM)
    a(f"v_mov_b32 v40, v{OF+8}")
    a(f"v_mov_b32 v41, v{OF+8}")
    a.nop(2)
    a(f"v_permlane32_swap_b32 v40, v41")
    a(f"v_max3_f32 v42, abs(v{OF}), abs(v{OF+1}), abs(v{OF+2})")
    a(f"v_max3_f32 v43, abs(v{OF+3}), abs(v{OF+4}), abs(v{OF+5})")
    a(f"v_max3_f32 v42, v42, abs(v{OF+6}), abs(v{OF+7})")
    a(f"v_max3_f32 v43, v43, abs(v{OF+8}), abs(v{OF+9})")
    a(f"v_max3_f32 v42, v42, abs(v{OF+10}), abs(v{OF+11})")
    a(f"v_max_f32 v42, v42, v43")
    a(f"s_mov_b32 s28, 0x21800000")
    a(f"s_mov_b32 s29, 0x5d800000")
    a(f"s_mov_b32 s30, 0x7e800000")
    a(f"v_cmp_ge_f32 s[40:41], v41, s28" if False else f"v_cmp_le_f32 s[40:41], s28, v41")
    a(f"v_cmp_ge_f32 vcc, s29, v41")
    a(f"s_and_b64 s[40:41], s[40:41], vcc")
    a(f"v_cmp_gt_f32 vcc, s30, v42")
    a(f"s_and_b64 s[40:41], s[40:41], vcc")
    a(f"s_or_b32 s40, s40, s{S_FBD}")
    a(f"s_or_b32 s41, s41, s{S_FBD}")
    a(f"s_cmp_eq_u64 s[40:41], -1")
    a(f"s_cbranch_scc0 {FB}")
    a(f"v_rcp_f32 v41, v41")
    a.nop(1)
    for r in range(12): a(f"v_mul_f32 v{OF+r}, v{OF+r}, v41")
    for r in range(6): a(f"v_cvt_pk_bf16_f32 v{104+r}, v{OF+2*r}, v{OF+2*r+1}")
    a(f"ds_write_b64 v{V_STG}, v[104:105]")
    a(f"ds_write_b64 v{V_STG}, v[106:107] offset:16")
    a(f"s_mov_b64 exec, 0xffffffff")
    a(f"ds_write_b64 v{V_STG}, v[108:109] offset:32")
    a(f"s_mov_b64 exec, -1")
    cadd(C_ST)
    a(f"s_mul_i32 s29, s{S_I}, 81920")
    a(f"s_mul_i32 s30, s{S_J}, 2560")
    a(f"s_add_u32 s29, s29, s30")
    a(f"s_add_u32 s29, s29, {O_OFF}")
    stamp(a, "stg")
    lds_wait_imm(a, C_ST, 8, sleep=0)
    stamp(a, "st8")
    a(f"ds_read_b128 v[44:47], v{V_OL0}")
    if_wave(a, "lt", 2, lambda: a(f"ds_read_b128 v[48:51], v{V_OL1}"))
    a("s_waitcnt lgkmcnt(0)")
    a(f"buffer_store_dwordx4 v[44:47], v{V_OG0}, {R(SRD_WS)}, s29 offen sc1")
    if_wave(a, "lt", 2, lambda: a(f"buffer_store_dwordx4 v[48:51], v{V_OG1}, {R(SRD_WS)}, s29 offen sc1"))
    OFR, ACC, AF = 16, 56, 76
    def ldsA(s_):
        b = s_ & 1
        for mt in range(5):
            a(f"ds_read_b64_tr_b16 {v(AF+20*b+4*mt,2)}, v{V_WT} offset:{s_*5120 + 32*mt}")
            a(f"ds_read_b64_tr_b16 {v(AF+20*b+4*mt+2,2)}, v{V_WT} offset:{s_*5120 + 1280 + 32*mt}")
    for r in range(20): a(f"v_mov_b32 v{ACC+r}, 0")
    a(f"s_mul_i32 s28, s{S_I}, 81920")
    a(f"s_mul_i32 s29, s{S_HH}, 20480")
    a(f"s_add_u32 s28, s28, s29")
    a(f"s_mul_i32 s29, s{S_G}, 10240")
    a(f"s_add_u32 s28, s28, s29")
    a(f"s_add_u32 s28, s28, {O_OFF}")
    a("s_waitcnt vmcnt(0)")
    stamp(a, "ostd")
    cadd(C_OCNT)
    a(f"s_cmp_eq_u32 s{S_G}, 0")
    a(f"s_cselect_b32 s30, 0, {C_WOKB - C_WOK}")
    a(f"s_add_u32 s30, s30, {C_WOK}")
    a(f"v_mov_b32 v{T0}, s30")
    lds_wait_ge(a, 3, T1, T0, sleep=1)
    stamp(a, "wok")
    ldsA(0)
    lds_wait_imm(a, C_OOK, 1, sleep=0)
    stamp(a, "h4ok")
    for s_ in range(10):
        a(f"buffer_load_dwordx4 {v(OFR+4*s_,4)}, v{V_TL16}, {R(SRD_WS)}, s28 offen offset:{1024*(s_%4)} sc1")
        if s_ % 4 == 3: a(f"s_add_u32 s28, s28, 4096")
    for s_ in range(10):
        if s_ < 9:
            ldsA(s_ + 1); a(f"s_waitcnt lgkmcnt(10) vmcnt({9 - s_})")
        else:
            a("s_waitcnt lgkmcnt(0) vmcnt(0)")
        b = s_ & 1
        for mt in range(5):
            a(f"v_mfma_f32_16x16x32_bf16 {v(ACC+4*mt,4)}, {v(AF+20*b+4*mt,4)}, {v(OFR+4*s_,4)}, {v(ACC+4*mt,4)}")
    stamp(a, "oproj")
    YF, GV = 16, 30
    FINA = "f_fina"; FINB = "f_finb"
    a(f"v_xor_b32 v{T3}, 0, v{V_PX}" if False else f"s_xor_b32 s29, s{S_W}, 4")
    a(f"s_mul_i32 s29, s29, 3072")
    a(f"s_add_u32 s29, s29, {PX}")
    a(f"v_add_u32 v{T3}, s29, v{V_TL16}")
    lds_wait_imm(a, C_YW, 2, T1, T0, sleep=0)
    stamp(a, "yw")
    def fin(keep, send):
        for mt in keep: a(f"ds_read_b64_tr_b16 {v(YF+2*mt,2)}, v{V_YT} offset:{2048*mt}")
        a(f"ds_read_b32 v{GV}, v{V_GA}")
        a.nop(4)
        for n, mt in enumerate(send): a(f"ds_write_b128 v{V_PX}, {v(ACC+4*mt,4)} offset:{1024*n}")
        a(f"s_lshl_b32 s28, s{S_W}, 2")
        a(f"s_add_u32 s30, s28, {C_PF}")
        a(f"v_mov_b32 v{T0}, s30")
        a(f"v_mov_b32 v{T1}, 1")
        lds_add1(a, T0, T1)
        a("s_waitcnt lgkmcnt(0)")
        for mt in keep:
            for hlf in range(2):
                yq = YF + 2*mt + hlf; qq = QT + 2*mt + hlf; d = 32 + 4*mt + 2*hlf
                a(f"v_lshlrev_b32 v{d}, 16, v{yq}")
                a(f"v_and_b32 v{d+1}, 0xffff0000, v{yq}")
                a(f"v_lshlrev_b32 v52, 16, v{qq}")
                a(f"v_and_b32 v53, 0xffff0000, v{qq}")
                a(f"v_mul_f32 v52, v52, v{GV}")
                a(f"v_mul_f32 v53, v53, v{GV}")
                a(f"v_mul_f32 v{d}, v{d}, v52")
                a(f"v_mul_f32 v{d+1}, v{d+1}, v53")
        a(f"v_sub_f32 v{GV+1}, 1.0, v{GV}")
        a(f"s_xor_b32 s28, s28, 16")
        a(f"s_add_u32 s30, s28, {C_PF}")
        a(f"v_mov_b32 v{T0}, s30")
        lds_wait_ge(a, 1, T1, T0, sleep=0)
        for n, mt in enumerate(keep): a(f"ds_read_b128 {v(AF+4*n,4)}, v{T3} offset:{1024*n}")
        for n, mt in enumerate(keep):
            a(f"s_waitcnt lgkmcnt({len(keep)-1-n})")
            for r in range(4): a(f"v_add_f32 v{ACC+4*mt+r}, v{ACC+4*mt+r}, v{AF+4*n+r}")
            for r in range(4): a(f"v_fmac_f32 v{32+4*mt+r}, v{ACC+4*mt+r}, v{GV+1}")
            a(f"v_cvt_pk_bf16_f32 v{100+2*mt}, v{32+4*mt}, v{32+4*mt+1}")
            a(f"v_cvt_pk_bf16_f32 v{100+2*mt+1}, v{32+4*mt+2}, v{32+4*mt+3}")
            a(f"buffer_store_dwordx2 {v(100+2*mt,2)}, v{V_OUT}, {R(SRD_OUT)}, 0 offen offset:{32*mt}")
    a(f"s_cmp_ge_u32 s{S_W}, 4")
    a(f"s_cbranch_scc1 {FINB}")
    fin([0, 1, 2], [3, 4])
    a(f"s_branch f_fin")
    a.label(FINB)
    fin([3, 4], [0, 1, 2])
    a(f"s_branch f_fin")

    a.label(FB)
    FK16, FK8, FV0, FV1 = 88, 92, 96, 100
    FA16, FA8, FAV, FM = 44, 45, 46, 47
    a(f"v_lshlrev_b32 v{FA16}, 4, v1")
    a(f"v_and_b32 v{T0}, 31, v1")
    a(f"v_lshlrev_b32 v{T1}, 3, v{T0}")
    a(f"v_add_u32 v{T1}, 1024, v{T1}")
    a(f"v_mov_b32 v{FA8}, 1280")
    a(f"v_cmp_gt_u32 vcc, 32, v1")
    a(f"v_min_u32 v{FM}, 20, v{T0}")
    a.nop(1)
    a(f"v_cndmask_b32 v{FA8}, v{FA8}, v{T1}, vcc")
    a(f"v_lshlrev_b32 v{FM}, 4, v{FM}")
    a(f"v_lshrrev_b32 v{FAV}, 5, v1")
    a(f"v_mul_u32_u24 v{FAV}, 336, v{FAV}")
    a(f"v_add_u32 v{FAV}, v{FAV}, v{FM}")
    a(f"v_add_u32 v{FAV}, 1296, v{FAV}")
    a(f"v_mov_b32 v{FM}, 0xff800000")
    a(f"s_mov_b32 s28, 0")
    FL1 = a.newlabel("fb1")
    a.label(FL1)
    a(f"buffer_load_dwordx4 {v(FK16,4)}, v{FA16}, {R(SRD_WS)}, s28 offen sc1")
    a(f"buffer_load_dwordx2 {v(FK8,2)}, v{FA8}, {R(SRD_WS)}, s28 offen sc1")
    a("s_waitcnt vmcnt(0)")
    a(f"v_mfma_f32_32x32x16_bf16 {v(SF,16)}, {v(FK16,4)}, {v(QF16,4)}, 0")
    a(f"v_mfma_f32_32x32x8_bf16 {v(SF,16)}, {v(FK8,2)}, {v(QF8,2)}, {v(SF,16)}")
    a.nop(16); a.nop(4)
    for r in range(0, 16, 2): a(f"v_max3_f32 v{FM}, v{FM}, v{SF+r}, v{SF+r+1}")
    a(f"s_add_u32 s28, s28, 3072")
    a(f"s_cmp_lt_u32 s28, {64*3072}")
    a(f"s_cbranch_scc1 {FL1}")
    a(f"v_mov_b32 v{T0}, v{FM}")
    a(f"v_mov_b32 v{T1}, v{FM}")
    a.nop(2)
    a(f"v_permlane32_swap_b32 v{T0}, v{T1}")
    a.nop(2)
    a(f"v_max3_f32 v{FM}, v{FM}, v{T0}, v{T1}")
    a(f"v_sub_f32 v{T0}, 0, v{FM}")
    a(f"v_cvt_pk_bf16_f32 v{T1}, v{T0}, v{T0}")
    a(f"v_and_b32 v42, 0xffff0000, v{T1}")
    a(f"v_sub_f32 v{T0}, v{T0}, v42")
    a(f"v_cvt_pk_bf16_f32 v43, v{T0}, v{T0}")
    a(f"v_and_b32 v42, 0xffff0000, v43")
    a(f"v_sub_f32 v{T0}, v{T0}, v42")
    a(f"v_cvt_pk_bf16_f32 v{T0}, v{T0}, v{T0}")
    a(f"v_and_b32 v{T1}, 0xffff, v{T1}")
    a(f"v_or_b32 v{T1}, v{T1}, v42")
    a(f"v_and_b32 v{T0}, 0xffff, v{T0}")
    a(f"v_cmp_gt_u32 vcc, 32, v1")
    a.nop(2)
    a(f"v_cndmask_b32 v{QF8}, v{T1}, v{QF8}, vcc")
    a(f"v_cndmask_b32 v{QF8+1}, v{T0}, v{QF8+1}, vcc")
    for r in range(16): a(f"v_mov_b32 v{OF+r}, 0")
    a(f"s_mov_b32 s28, 0")
    FL2 = a.newlabel("fb2")
    a.label(FL2)
    a(f"buffer_load_dwordx4 {v(FK16,4)}, v{FA16}, {R(SRD_WS)}, s28 offen sc1")
    a(f"buffer_load_dwordx2 {v(FK8,2)}, v{FA8}, {R(SRD_WS)}, s28 offen sc1")
    a(f"buffer_load_dwordx4 {v(FV0,4)}, v{FAV}, {R(SRD_WS)}, s28 offen sc1")
    a(f"buffer_load_dwordx4 {v(FV1,4)}, v{FAV}, {R(SRD_WS)}, s28 offen offset:672 sc1")
    a("s_waitcnt vmcnt(0)")
    a(f"v_mfma_f32_32x32x16_bf16 {v(SF,16)}, {v(FK16,4)}, {v(QF16,4)}, 0")
    a(f"v_mfma_f32_32x32x8_bf16 {v(SF,16)}, {v(FK8,2)}, {v(QF8,2)}, {v(SF,16)}")
    a.nop(16); a.nop(4)
    for i in range(16): a(f"v_exp_f32 v{SF+i}, v{SF+i}")
    a.nop(1)
    for i in range(8): a(f"v_cvt_pk_bf16_f32 v{P+i}, v{SF+2*i}, v{SF+2*i+1}")
    a.nop(2)
    a(f"v_mfma_f32_32x32x16_bf16 {v(OF,16)}, {v(FV0,4)}, {v(P,4)}, {v(OF,16)}")
    a(f"v_mfma_f32_32x32x16_bf16 {v(OF,16)}, {v(FV1,4)}, {v(P+4,4)}, {v(OF,16)}")
    a(f"s_add_u32 s28, s28, 3072")
    a(f"s_cmp_lt_u32 s28, {64*3072}")
    a(f"s_cbranch_scc1 {FL2}")
    a.nop(16)
    a(f"s_mov_b32 s{S_FBD}, -1")
    a(f"s_branch {NORM}")

    a.label(PSTART)
    a("s_setprio 3")
    a(f"v_mov_b32 v4, 0")
    lead = a.newlabel("lead")
    def lead_fn():
        a(f"s_memrealtime s[28:29]")
        a("s_waitcnt lgkmcnt(0)")
        a(f"s_or_b32 s28, s28, 1")
        a(f"v_mov_b32 v5, s28")
        a(f"s_mov_b64 exec, 1")
        a(f"buffer_store_dword v5, v4, {R(SRD_DBG)}, 0 offen sc1")
        a(f"s_mov_b64 exec, -1")
    if_s(a, 2, "eq", 0, lead_fn)
    a(f"buffer_load_dword v20, v4, {R(SRD_DBG)}, 0 offen sc1")
    a(f"v_lshlrev_b32 v6, 21, v1")
    a(f"s_mov_b64 exec, 0xf")
    a(f"buffer_load_dword v8, v6, {R(SRD_WS)}, 0 offen offset:2048")
    a(f"s_mov_b64 exec, 0x3")
    a(f"buffer_load_dword v9, v6, {R(SRD_H)}, 0 offen")
    a(f"buffer_load_dword v10, v6, {R(SRD_OUT)}, 0 offen")
    a(f"s_mov_b64 exec, 0x1")
    a(f"buffer_load_dword v11, v6, {R(SRD_WO)}, 0 offen")
    a(f"s_mov_b64 exec, -1")
    a(f"v_lshlrev_b32 v5, 2, v1")
    a(f"v_add_u32 v7, {CNT}, v5")
    a(f"ds_write_b32 v7, v4")
    a(f"ds_write_b32 v7, v4 offset:256")
    a(f"s_mov_b64 exec, -1")
    a("s_waitcnt lgkmcnt(0)")
    a("s_barrier")
    lds_wait_imm(a, C_UP, 4, sleep=0)
    PXF, PWF = 16, 48
    a(f"v_lshlrev_b32 v{T0}, 4, v1")
    a(f"v_add_u32 v{T1}, {UNIT_W}, v{T0}")
    for p_ in range(4):
        a(f"ds_read_b128 {v(PXF+8*p_,4)}, v{T1} offset:{UNIT_S*p_}")
        a(f"ds_read_b128 {v(PXF+8*p_+4,4)}, v{T1} offset:{UNIT_S*p_+1024}")
    a(f"s_lshl_b32 s28, s{S_I}, 1")
    a(f"s_bfe_u32 s29, s{S_J}, 0x10001")
    a(f"s_add_u32 s28, s28, s29")
    a(f"s_mul_i32 s29, s28, 3072")
    a(f"s_and_b32 s30, s{S_J}, 1")
    a("s_waitcnt lgkmcnt(0)")
    a(f"v_mov_b32 v12, {C_PD}")
    a(f"v_mov_b32 v13, 1")
    a(f"ds_write_b32 v12, v13")
    for p_ in range(1, 4):
        for r in range(8): a(f"v_add_f32 v{PXF+r}, v{PXF+r}, v{PXF+8*p_+r}")
    for r in range(4): a(f"v_cvt_pk_bf16_f32 v{PWF+r if r<2 else PWF+4+(r-2)}, v{PXF+2*r}, v{PXF+2*r+1}")
    a(f"v_mov_b32 v{PWF+6}, v{PWF}")
    a(f"v_mov_b32 v{PWF+7}, v{PWF+1}")
    a.nop(2)
    a(f"v_permlane32_swap_b32 v{PWF+6}, v{PWF+2}")
    a(f"v_permlane32_swap_b32 v{PWF+7}, v{PWF+3}")
    a(f"v_and_b32 v{T0}, 15, v1")
    a(f"v_bfe_u32 v{T1}, v1, 4, 1")
    labV2 = a.newlabel("stV"); labP = a.newlabel("pub")
    a(f"s_cmp_ge_u32 s{S_J}, 4")
    a(f"s_cbranch_scc1 {labV2}")
    a(f"s_lshl_b32 s31, s30, 4")
    a(f"v_add_u32 v{T0}, s31, v{T0}")
    a(f"v_lshlrev_b32 v{T1}, 5, v{T1}")
    a(f"v_add_u32 v{T1}, v{T1}, v{T0}")
    a(f"v_lshlrev_b32 v{T1}, 4, v{T1}")
    a(f"s_mov_b64 exec, 0xffffffff")
    a(f"buffer_store_dwordx4 {v(PWF,4)}, v{T1}, {R(SRD_WS)}, s29 offen sc1")
    a(f"s_mov_b64 exec, -1")
    a(f"v_lshlrev_b32 v{T0}, 3, v{T0}")
    a(f"v_add_u32 v{T0}, 1024, v{T0}")
    a(f"v_mov_b32 v{T1}, 1280")
    a(f"v_mov_b32 v{T2}, 0x3f803f80")
    a(f"v_mov_b32 v{T3}, 0x3f80")
    a(f"v_cmp_eq_u32 vcc, 16, v1")
    a.nop(2)
    a(f"v_cndmask_b32 v{T0}, v{T0}, v{T1}, vcc")
    a(f"v_cndmask_b32 v{PWF+4}, v{PWF+4}, v{T2}, vcc")
    a(f"v_cndmask_b32 v{PWF+5}, v{PWF+5}, v{T3}, vcc")
    a(f"s_mov_b32 s41, 0xffff")
    a(f"s_cmp_eq_u32 s30, 0")
    a(f"s_cselect_b32 s40, 0x1ffff, s41")
    a(f"s_mov_b32 s41, 0")
    a(f"s_mov_b64 exec, s[40:41]")
    a(f"buffer_store_dwordx2 {v(PWF+4,2)}, v{T0}, {R(SRD_WS)}, s29 offen sc1")
    a(f"s_mov_b64 exec, -1")
    a(f"s_branch {labP}")
    a.label(labV2)
    a(f"s_mul_i32 s31, s30, 672")
    a(f"s_add_u32 s31, s31, 1296")
    a(f"v_mul_u32_u24 v{T1}, 336, v{T1}")
    a(f"v_lshlrev_b32 v{T2}, 4, v{T0}")
    a(f"v_add_u32 v{T1}, v{T1}, v{T2}")
    a(f"v_add_u32 v{T1}, s31, v{T1}")
    a(f"s_mov_b64 exec, 0xffffffff")
    a(f"buffer_store_dwordx4 {v(PWF,4)}, v{T1}, {R(SRD_WS)}, s29 offen sc1")
    a(f"s_mov_b64 exec, -1")
    a(f"v_mov_b32 v{T2}, 0x3f803f80")
    a(f"v_cmp_eq_u32 vcc, 4, v{T0}")
    a.nop(2)
    a(f"v_cndmask_b32 v{PWF+4}, v{PWF+4}, v{T2}, vcc")
    a(f"v_cndmask_b32 v{PWF+5}, v{PWF+5}, v{T2}, vcc")
    a(f"v_mov_b32 v{PWF}, v{PWF+4}")
    a(f"v_mov_b32 v{PWF+1}, v{PWF+5}")
    a.nop(2)
    a(f"v_permlane32_swap_b32 v{PWF}, v{PWF+6}")
    a(f"v_permlane32_swap_b32 v{PWF+1}, v{PWF+7}")
    a(f"s_mov_b32 s40, 0x001f001f")
    a(f"s_mov_b32 s41, 0")
    a(f"s_mov_b64 exec, s[40:41]")
    a.nop(2)
    a(f"buffer_store_dwordx4 {v(PWF+4,4)}, v{T1}, {R(SRD_WS)}, s29 offen offset:256 sc1")
    a(f"s_mov_b64 exec, -1")
    a.label(labP)
    a(f"s_lshr_b32 s29, s28, 2")
    a(f"s_lshl_b32 s29, s29, 7")
    a(f"s_and_b32 s31, s28, 3")
    a(f"s_lshl_b32 s31, s31, 2")
    a(f"s_lshl_b32 s30, s30, 1")
    a(f"s_add_u32 s31, s31, s30")
    a(f"s_lshr_b32 s30, s{S_J}, 2")
    a(f"s_add_u32 s31, s31, s30")
    a(f"s_lshl_b32 s31, s31, 2")
    a(f"s_add_u32 s34, s29, s31")
    a(f"s_add_u32 s34, s34, {H1}")
    def push(nl, stride_sh, sbase):
        a(f"v_lshlrev_b32 v{T0}, {stride_sh}, v1")
        a(f"v_mov_b32 v{T1}, s{S_NONCE}")
        a(f"s_mov_b64 exec, {hex((1 << nl) - 1)}")
        a(f"buffer_store_dword v{T1}, v{T0}, {R(SRD_WS)}, s{sbase} offen sc1")
        a(f"s_mov_b64 exec, -1")
    def setw(addr):
        a(f"v_mov_b32 v12, {addr}")
        a(f"v_mov_b32 v13, 1")
        a(f"ds_write_b32 v12, v13")
    def ld(): a(f"buffer_load_dword v5, v4, {R(SRD_DBG)}, 0 offen sc1")
    def ck():
        a(f"v_readfirstlane_b32 s{S_NONCE}, v5")
        a("s_nop 3")
        a(f"s_cmp_lg_u32 s{S_NONCE}, 0")
    poll_global(a, ld, ck, sleep=0)
    push(8, 11, 34)
    setw(C_PFL)
    stamp(a, "pflag")
    VKF = 6
    a(f"v_lshrrev_b32 v{VKF}, 2, v1")
    a(f"v_lshlrev_b32 v{VKF}, 7, v{VKF}")
    a(f"v_and_b32 v{T1}, 3, v1")
    a(f"v_lshlrev_b32 v{T1}, 4, v{T1}")
    a(f"v_add_u32 v{VKF}, v{VKF}, v{T1}")
    a(f"s_and_b32 s36, s2, 7")
    a(f"s_lshl_b32 s36, s36, 11")
    a(f"s_add_u32 s36, s36, {H1}")
    a(f"s_lshl_b32 s37, s{S_I}, 3")
    a(f"s_add_u32 s37, s37, s{S_J}")
    a(f"s_lshl_b32 s37, s37, 7")
    a(f"s_lshl_b32 s38, s{S_J}, 7")
    a(f"s_lshl_b32 s39, s{S_I}, 2")
    a(f"s_add_u32 s38, s38, s39")
    a(f"v_lshlrev_b32 v7, 2, v1")
    a(f"v_mov_b32 v14, {C_UCNT}")
    poll_flags(a, VKF, "s36", 0xffffffffffffffff, 8, n=4, sleep=0)
    setw(C_KVOK)
    stamp(a, "pkvok")
    a(f"s_mov_b32 s35, 1")
    def service_step(with_barrier):
        l1 = a.newlabel("sv"); l2 = a.newlabel("sv"); l3 = a.newlabel("sv"); l4 = a.newlabel("sv")
        a(f"s_bitcmp1_b32 s35, 0")
        a(f"s_cbranch_scc1 {l1}")
        a(f"buffer_load_dwordx4 v[8:11], v{VKF}, {R(SRD_WS)}, s36 offen sc1")
        a.label(l1)
        a(f"ds_read_b32 v15, v14")
        a(f"s_add_u32 s29, s37, {H2}")
        a(f"buffer_load_dword v16, v7, {R(SRD_WS)}, s29 offen sc1")
        if with_barrier: a("s_barrier")
        a("s_waitcnt vmcnt(0) lgkmcnt(0)")
        a(f"s_bitcmp1_b32 s35, 0")
        a(f"s_cbranch_scc1 {l2}")
        a(f"s_mov_b64 s[40:41], -1")
        flags_check(a, 8, 4)
        a(f"s_cbranch_scc0 {l2}")
        setw(C_KVOK)
        a(f"s_or_b32 s35, s35, 1")
        a.label(l2)
        a(f"s_bitcmp1_b32 s35, 1")
        a(f"s_cbranch_scc1 {l3}")
        a(f"v_readfirstlane_b32 s42, v15")
        a("s_nop 3")
        a(f"s_cmp_lt_u32 s42, 3")
        a(f"s_cbranch_scc1 {l3}")
        a(f"s_add_u32 s29, s38, {H2}")
        push(32, 10, 29)
        a(f"s_or_b32 s35, s35, 2")
        a.label(l3)
        a(f"s_bitcmp1_b32 s35, 2")
        a(f"s_cbranch_scc1 {l4}")
        a(f"s_mov_b32 s40, -1")
        a(f"s_mov_b32 s41, 0")
        flags_check(a, 16, 1)
        a(f"s_cbranch_scc0 {l4}")
        setw(C_UOK)
        a(f"s_or_b32 s35, s35, 4")
        a.label(l4)
    lp = a.newlabel("svl"); dn = a.newlabel("svd")
    a(f"s_mov_b32 s33, 0")
    a.label(lp)
    a(f"s_cmp_eq_u32 s35, 7")
    a(f"s_cbranch_scc1 {dn}")
    service_step(False)
    a(f"s_add_u32 s33, s33, 1")
    a(f"s_cmp_lt_u32 s33, {POLL_MAX}")
    a(f"s_cbranch_scc1 {lp}")
    a.label(dn)
    stamp(a, "psvc")
    lds_wait_imm(a, C_CVD, 3, sleep=8)
    a(f"s_add_u32 s29, s38, {H3}")
    push(32, 10, 29)
    stamp(a, "pyflag")
    a(f"s_mov_b32 s35, 0")
    a(f"s_mov_b32 s33, 0")
    lyp = a.newlabel("yp"); lyd = a.newlabel("yd")
    a.label(lyp)
    a(f"s_add_u32 s29, s37, {H3}")
    a(f"buffer_load_dword v8, v7, {R(SRD_WS)}, s29 offen sc1")
    a(f"v_mov_b32 v12, {C_PROG}")
    a(f"ds_read_b32 v15, v12")
    a("s_waitcnt vmcnt(0) lgkmcnt(0)")
    a(f"s_mov_b32 s40, -1")
    a(f"s_mov_b32 s41, 0")
    flags_check(a, 8, 1)
    lyn = a.newlabel("yn")
    a(f"s_cbranch_scc0 {lyn}")
    setw(C_YOK)
    a(f"s_mov_b32 s35, 1")
    a(f"s_branch {lyd}")
    a.label(lyn)
    a(f"v_readfirstlane_b32 s42, v15")
    a("s_nop 3")
    a(f"s_cmp_ge_u32 s42, 7")
    a(f"s_cbranch_scc1 {lyd}")
    a(f"s_add_u32 s33, s33, 1")
    a(f"s_cmp_lt_u32 s33, {POLL_MAX}")
    a(f"s_cbranch_scc0 {lyd}")
    a("s_sleep 8")
    a(f"s_branch {lyp}")
    a.label(lyd)
    stamp(a, "pyok")
    a("s_waitcnt lgkmcnt(0)")
    lds_wait_imm(a, C_OCNT, 8, sleep=0)
    a(f"s_lshl_b32 s29, s{S_I}, 10")
    a(f"s_lshl_b32 s30, s{S_J}, 2")
    a(f"s_add_u32 s29, s29, s30")
    a(f"s_add_u32 s29, s29, {H4}")
    push(8, 7, 29)
    stamp(a, "popush")
    a(f"s_mov_b32 s33, 0")
    lop = a.newlabel("op"); lod = a.newlabel("od"); lo2 = a.newlabel("o2"); lo3 = a.newlabel("o3")
    a.label(lop)
    a(f"s_add_u32 s29, s37, {H4}")
    a(f"buffer_load_dword v8, v7, {R(SRD_WS)}, s29 offen sc1")
    a(f"s_add_u32 s29, s37, {H3}")
    a(f"buffer_load_dword v9, v7, {R(SRD_WS)}, s29 offen sc1")
    a("s_waitcnt vmcnt(0)")
    a(f"s_bitcmp1_b32 s35, 1")
    a(f"s_cbranch_scc1 {lo2}")
    a(f"s_mov_b32 s40, 0xff")
    a(f"s_mov_b32 s41, 0")
    flags_check(a, 8, 1)
    a(f"s_cbranch_scc0 {lo2}")
    setw(C_OOK)
    a(f"s_or_b32 s35, s35, 2")
    a.label(lo2)
    a(f"s_bitcmp1_b32 s35, 0")
    a(f"s_cbranch_scc1 {lo3}")
    a(f"s_mov_b32 s40, -1")
    a(f"s_mov_b32 s41, 0")
    flags_check(a, 9, 1)
    a(f"s_cbranch_scc0 {lo3}")
    setw(C_YOK)
    a(f"s_or_b32 s35, s35, 1")
    a.label(lo3)
    a(f"s_cmp_eq_u32 s35, 3")
    a(f"s_cbranch_scc1 {lod}")
    a(f"s_add_u32 s33, s33, 1")
    a(f"s_cmp_lt_u32 s33, {POLL_MAX}")
    a(f"s_cbranch_scc1 {lop}")
    a.label(lod)
    a(f"s_branch f_fin")
    gen_loader(a)
    a.label("f_fin")
    if "stamp" in OPT:
        a("s_waitcnt vmcnt(0)")
        stamp(a, "end"); stamp(a, "rt1", True)
        stamp_flush(a)
    a.label(END)
    a("s_endpgm")
    a.L.append(kernel_desc(name, NVGPR))


def gen_loader(a):
    S_LI = 34
    a.label("f_lstart")
    a("s_setprio 3")
    a(f"s_sub_u32 s{S_LI}, s{S_W}, 9")
    VX, VW, VL16 = 112, 116, 121
    RB3, RB4, HR = 16, 64, 112
    a(f"v_lshlrev_b32 v{T3}, 4, v1")
    if "pf" in OPT:
        a(f"s_lshr_b32 s28, s2, 3")
        a(f"s_mul_i32 s28, s28, 10240")
        a(f"s_lshl_b32 s29, s{S_LI}, 10")
        a(f"s_add_u32 s28, s28, s29")
        a(f"s_add_u32 s28, s28, {384*1280}")
        for k in range(4):
            def pf(k=k):
                a(f"buffer_load_dwordx4 v[160:163], v{T3}, {R(SRD_WQ)}, s28 offen")
            if k < 3: pf()
            else: if_s(a, S_LI, "eq", 0, pf)
            a(f"s_add_u32 s28, s28, 3072")
        a(f"v_lshrrev_b32 v{T0}, 5, v1")
        a(f"v_mul_u32_u24 v{T0}, 1280, v{T0}")
        a(f"v_and_b32 v{T1}, 31, v1")
        a(f"v_lshlrev_b32 v{T1}, 4, v{T1}")
        a(f"v_add_u32 v{T0}, v{T0}, v{T1}")
        a(f"s_lshl_b32 s28, s{S_I}, 6")
        a(f"s_lshl_b32 s30, s{S_J}, 3")
        a(f"s_add_u32 s28, s28, s30")
        a(f"s_lshl_b32 s30, s{S_LI}, 1")
        a(f"s_add_u32 s28, s28, s30")
        a(f"s_mul_i32 s28, s28, 1280")
        a(f"s_add_u32 s28, s28, 768")
        a(f"buffer_load_dwordx4 v[160:163], v{T0}, {R(SRD_X)}, s28 offen")
        def pf2():
            a(f"s_add_u32 s28, s28, {6*1280}")
            a(f"buffer_load_dwordx4 v[160:163], v{T0}, {R(SRD_X)}, s28 offen")
        if_s(a, S_LI, "eq", 0, pf2)
    a("s_barrier")
    for k in range(4):
        a(f"v_lshrrev_b32 v{T0}, 4, v1")
        a(f"v_add_u32 v{T0}, {4*k}, v{T0}")
        a(f"v_xor_b32 v{T1}, v1, v{T0}")
        a(f"v_and_b32 v{T1}, 15, v{T1}")
        a(f"v_lshlrev_b32 v{T1}, 4, v{T1}")
        a(f"s_lshl_b32 s28, s{S_I}, 6")
        a(f"v_add_u32 v{T0}, s28, v{T0}")
        a(f"v_mul_lo_u32 v{T0}, v{T0}, s{S_1280}")
        a(f"v_add_u32 v{VX+k}, v{T0}, v{T1}")
    a(f"s_mul_i32 s29, s{S_J}, 160")
    for t in range(5):
        a(f"v_add_u32 v{T0}, {64*t}, v1")
        div10(a, T0, T1, T0, T2)
        a(f"v_lshlrev_b32 v{T0}, 4, v{T0}")
        a(f"v_and_b32 v{T2}, 0xfff8, v{T1}")
        a(f"v_bfe_u32 v{VL16}, v{T1}, 1, 2")
        a(f"v_or_b32 v{T2}, v{T2}, v{VL16}")
        a(f"v_and_b32 v{T1}, 1, v{T1}")
        a(f"v_lshlrev_b32 v{T1}, 2, v{T1}")
        a(f"v_or_b32 v{T2}, v{T2}, v{T1}")
        a(f"v_mul_lo_u32 v{T2}, v{T2}, s{S_1280}")
        a(f"v_add_u32 v{T2}, v{T2}, v{T0}")
        a(f"v_add_u32 v{VW+t}, s29, v{T2}")
    def ut_issue_all():
        for kind, nq, base_l, srd_, halo in (("k", 11, UT_K, SRD_K, 3), ("v", 10, UT_V, SRD_V, 0)):
            for q in range(nq):
                a(f"v_add_u32 v{T0}, {64*q}, v1")
                div10(a, T0, T1, T0, T2)
                a(f"v_lshrrev_b32 v{T2}, 3, v{T1}")
                a(f"v_sub_u32 v{T0}, v{T0}, v{T2}")
                a(f"v_add_u32 v{T2}, 10, v{T0}")
                a(f"v_min_u32 v{T0}, v{T0}, v{T2}")
                a(f"v_lshlrev_b32 v{T0}, 4, v{T0}")
                a(f"v_add_u32 v{T1}, s39, v{T1}") if halo == 0 else a(f"v_add_u32 v{T1}, s33, v{T1}")
                a(f"v_mul_lo_u32 v{T1}, v{T1}, s{S_1280}")
                a(f"v_add3_u32 v{T0}, v{T0}, v{T1}, s38")
                a(f"s_mov_b32 m0, {base_l + 1024*q}")
                if kind == "k" and q == 10: a(f"s_mov_b64 exec, 0x3fffffff")
                else: a("s_nop 0")
                a(f"buffer_load_dwordx4 v{T0}, {R(srd_)}, 0 offen lds")
                if kind == "k" and q == 10: a(f"s_mov_b64 exec, -1")
    a(f"s_lshl_b32 s39, s{S_I}, 6")
    a(f"s_sub_u32 s33, s39, 3")
    a(f"s_mul_i32 s38, s{S_J}, 160")
    lists = [[("x", q) for q in range(12)],
             [("x", q) for q in range(12, 16)] + [("w", q) for q in range(8)],
             [("w", q) for q in range(8, 20)]]
    def ldoff(kind, q): return 1024*q if kind == "x" else 16384 + 1024*q
    def issue(lst, ch, dma_slot=None, regs=None):
        for n, (kind, q) in enumerate(lst):
            if kind == "x": srd_, vr, so = SRD_X, VX+(q&3), 256*ch + (q >> 2)*16*1280
            else: srd_, vr, so = SRD_WQ, VW+(q%5), 163840*ch + (q // 5)*40960
            a(f"s_mov_b32 s28, {so}")
            if dma_slot is not None:
                a(f"s_mov_b32 m0, {dma_slot*SLOT + ldoff(kind, q)}")
                a(f"s_nop 0")
                a(f"buffer_load_dwordx4 v{vr}, {R(srd_)}, s28 offen lds")
            else:
                a(f"buffer_load_dwordx4 {v(regs+4*n,4)}, v{vr}, {R(srd_)}, s28 offen")
    def signal(addr): lds_add1_imm(a, addr)
    LD_JOIN = a.newlabel("ldj")
    for li in range(3):
        nxt = a.newlabel("ldv")
        a(f"s_cmp_lg_u32 s{S_LI}, {li}")
        a(f"s_cbranch_scc1 {nxt}")
        L = lists[li]
        if "regs" in OPT:
            issue(L, 2, dma_slot=2)
            if "nogate" not in OPT:
                a("s_waitcnt vmcnt(0)"); signal(C_CL + 8)
                lds_wait_imm(a, C_PFL, 1, sleep=1)
            issue(L, 3, regs=RB3)
            if "thr" in OPT:
                a("s_waitcnt vmcnt(12)"); signal(C_CL + 8)
            issue(L, 4, regs=RB4)
            stamp(a, "lissue")
            if "nogate" in OPT:
                a(f"s_waitcnt vmcnt(24)"); signal(C_CL + 8)
            nut = 0
            for (RBx, gate, cl, n_after, slot) in ((RB3, C_C0C, 12, 12, 0), (RB4, C_C1C, 16, 0, 1)):
                lds_wait_imm(a, gate, 8, sleep=1)
                a(f"v_add_u32 v{T2}, {slot*SLOT}, v{T3}")
                a(f"s_waitcnt vmcnt({n_after + nut})")
                stamp(a, f"lw{cl}")
                for n, (kind, q) in enumerate(L):
                    a(f"ds_write_b128 v{T2}, {v(RBx+4*n,4)} offset:{ldoff(kind, q)}")
                signal(C_CL + cl)
        else:
            issue(L, 2, dma_slot=2)
            a("s_waitcnt vmcnt(0)"); signal(C_CL + 8)
            lds_wait_imm(a, C_C0C, 8, sleep=0)
            issue(L, 3, dma_slot=0)
            lds_wait_imm(a, C_C1C, 8, sleep=0)
            issue(L, 4, dma_slot=1)
            stamp(a, "lissue")
            a("s_waitcnt vmcnt(12)"); signal(C_CL + 12)
            a("s_waitcnt vmcnt(0)"); signal(C_CL + 16)
        if li == 2:
            lds_wait_imm(a, C_PD, 1, sleep=1)
            ut_issue_all()
        a(f"s_branch {LD_JOIN}")
        a.label(nxt)
    a.label(LD_JOIN)
    stamp(a, "ldone")
    def kv0():
        lds_wait_imm(a, C_KVOK, 1, sleep=1)
        for cc in range(2):
            a(f"s_add_u32 s28, s{S_ROT}, {cc}")
            a(f"s_and_b32 s28, s28, 7")
            a(f"s_lshl_b32 s28, s28, 2")
            a(f"s_lshl_b32 s29, s{S_LI}, 5")
            a(f"s_add_u32 s28, s28, s29")
            a(f"s_mul_i32 s28, s28, 3072")
            for k in range(12):
                a(f"buffer_load_dwordx4 {v(16+48*cc+4*k,4)}, v{T3}, {R(SRD_WS)}, s28 offen offset:{1024*(k%4)} sc1")
                if k % 4 == 3: a(f"s_add_u32 s28, s28, 4096")
        a(f"s_mul_i32 s28, s{S_LI}, {RING_STRIDE}")
        a(f"v_add_u32 v{T2}, s28, v{T3}")
        lds_wait_imm(a, C_QRD, 8, sleep=0)
        for cc in range(2):
            a(f"s_waitcnt vmcnt({12 - 12*cc})")
            for k in range(12):
                a(f"ds_write_b128 v{T2}, {v(16+48*cc+4*k,4)} offset:{cc*KVSLOT + 1024*k}")
            a(f"s_lshl_b32 s28, s{S_LI}, 4")
            a(f"s_add_u32 s28, s28, {C_FULL + 4*cc}")
            a(f"v_mov_b32 v{T0}, s28")
            a(f"v_mov_b32 v{T1}, 4")
            lds_add1(a, T0, T1)
        stamp(a, "kv0")
    if_s(a, S_LI, "lt", 2, kv0)
    if_s(a, S_LI, "eq", 2, lambda: (a("s_waitcnt vmcnt(0)"), signal(C_UTL)))
    def gate_fin():
        lds_wait_imm(a, C_QG, 8, sleep=1)
        a(f"v_lshrrev_b32 v{T0}, 5, v1")
        a(f"v_lshlrev_b32 v{T0}, 9, v{T0}")
        a(f"v_and_b32 v{T1}, 31, v1")
        a(f"v_lshlrev_b32 v{T1}, 2, v{T1}")
        a(f"v_add_u32 v{T0}, v{T0}, v{T1}")
        a(f"v_add_u32 v{T0}, {GP}, v{T0}")
        for k in range(4): a(f"ds_read_b32 v{96+k}, v{T0} offset:{128*k}")
        a("s_waitcnt lgkmcnt(0)")
        a(f"v_add_f32 v96, v96, v97")
        a(f"v_add_f32 v98, v98, v99")
        a(f"v_add_f32 v96, v96, v98")
        a(f"v_mul_f32 v96, {hex(f32bits(-1.4426950408889634))}, v96")
        a(f"v_exp_f32 v96, v96")
        a.nop(1)
        a(f"v_add_f32 v96, 1.0, v96")
        a(f"v_rcp_f32 v96, v96")
        a(f"v_lshlrev_b32 v{T0}, 2, v1")
        a(f"v_add_u32 v{T0}, {G_L}, v{T0}")
        a.nop(1)
        a(f"ds_write_b32 v{T0}, v96")
    if_s(a, S_LI, "eq", 2, gate_fin)
    def uround(rnd_sgpr):
        KD, VD, SH = 16, 28, 36
        KA_, KB_, WA_, WB_, UA, UB, UT = 44, 56, 68, 72, 76, 84, 92
        A0, A1, UST = 93, 94, 95
        a(f"s_lshl_b32 s28, s{rnd_sgpr}, 6")
        a(f"v_add_u32 v{T0}, s28, v1")
        a(f"v_lshrrev_b32 v{T1}, 3, v{T0}")
        a(f"v_and_b32 v{T0}, 7, v{T0}")
        a(f"s_mul_i32 s29, s{S_J}, 160")
        a(f"v_lshlrev_b32 v{T2}, 2, v{T1}")
        a(f"v_add_u32 v{T2}, s29, v{T2}")
        a(f"v_lshlrev_b32 v{UST}, 2, v{T2}")
        a(f"buffer_load_dwordx4 {v(SH,4)}, v{UST}, {R(SRD_SH)}, 0 offen")
        a(f"v_lshlrev_b32 v{UST}, 11, v{T2}")
        a(f"v_lshlrev_b32 v{T2}, 4, v{T0}")
        a(f"v_sub_u32 v{UST}, v{UST}, v{T2}")
        a(f"s_lshl_b32 s29, s{S_I}, 7")
        a(f"s_sub_u32 s29, {UR_OFF + 4080}, s29")
        a(f"v_add_u32 v{UST}, s29, v{UST}")
        a(f"v_lshrrev_b32 v{T2}, 2, v{T1}")
        a(f"v_add_u32 v{T2}, v{T2}, v{T0}")
        a(f"v_and_b32 v{T1}, 3, v{T1}")
        a(f"v_lshlrev_b32 v{T1}, 2, v{T1}")
        a(f"v_mul_u32_u24 v{T0}, 1280, v{T0}")
        a(f"v_add3_u32 v{T0}, v{T0}, v{T1}, s77" if False else f"v_add_u32 v{T0}, v{T0}, v{T1}")
        a(f"v_add_u32 v{T0}, {UT_K}, v{T0}")
        for (dst, add) in ((A0, 0), (A1, 1)):
            a(f"v_add_u32 v{UT}, {add}, v{T2}")
            a(f"v_subrev_u32 v{T1}, 10, v{UT}")
            a(f"v_min_u32 v{UT}, v{UT}, v{T1}")
            a(f"v_lshlrev_b32 v{UT}, 4, v{UT}")
            a(f"v_add_u32 v{dst}, v{T0}, v{UT}")
        for r in range(8): a(f"ds_read_b32 v{KD+r}, v{A0} offset:{160*r}")
        for r in range(8, 11): a(f"ds_read_b32 v{KD+r}, v{A1} offset:{160*r}")
        a("s_waitcnt lgkmcnt(4)")
        for r in range(8): a(f"ds_read_b32 v{VD+r}, v{A0} offset:{10720 + 160*r}")
        a("s_waitcnt lgkmcnt(0) vmcnt(0)")
        for r in range(11):
            a(f"v_lshlrev_b32 v{KA_+r}, 16, v{KD+r}")
            a(f"v_and_b32 v{KB_+r}, 0xffff0000, v{KD+r}")
        for (W, base) in ((WA_, SH), (WB_, SH + 2)):
            a(f"v_lshlrev_b32 v{W}, 16, v{base}")
            a(f"v_and_b32 v{W+1}, 0xffff0000, v{base}")
            a(f"v_lshlrev_b32 v{W+2}, 16, v{base+1}")
            a(f"v_and_b32 v{W+3}, 0xffff0000, v{base+1}")
        for e_ in range(8):
            for (U, Kf, W, lo) in ((UA, KA_, WA_, True), (UB, KB_, WB_, False)):
                a(f"v_mul_f32 v{U+e_}, v{Kf+e_+3}, v{W}")
                for jx in range(1, 4):
                    a(f"v_fmac_f32 v{U+e_}, v{Kf+e_+3-jx}, v{W+jx}")
                if lo: a(f"v_lshlrev_b32 v{UT}, 16, v{VD+e_}")
                else: a(f"v_and_b32 v{UT}, 0xffff0000, v{VD+e_}")
                a(f"v_mul_f32 v{U+e_}, v{U+e_}, v{UT}")
        for (U, O_) in ((UA, KD), (UB, KD + 4)):
            for i in range(4):
                a(f"v_cvt_pk_bf16_f32 v{O_+i}, v{U+7-2*i}, v{U+6-2*i}")
        a(f"buffer_store_dwordx4 {v(KD,4)}, v{UST}, {R(SRD_WS)}, 0 offen sc1")
        a(f"v_add_u32 v{UST}, 4096, v{UST}")
        a(f"buffer_store_dwordx4 {v(KD+4,4)}, v{UST}, {R(SRD_WS)}, 0 offen sc1")
    lds_wait_imm(a, C_UTL, 1, sleep=1)
    stamp(a, "utl")
    a(f"s_mov_b32 s87, s{S_LI}")
    uround(87)
    def second():
        a(f"s_add_u32 s87, s{S_LI}, 3")
        a("s_waitcnt vmcnt(0)")
        uround(87)
    if_s(a, S_LI, "lt", 2, second)
    a("s_waitcnt vmcnt(0)")
    signal(C_UCNT)
    stamp(a, "udone")
    def h_loads():
        a(f"s_lshl_b32 s28, s{S_CH}, 12")
        for q in range(4):
            a(f"s_add_u32 s29, s28, {1024*q}")
            for k in range(3):
                a(f"buffer_load_dwordx4 {v(HR+12*q+4*k,4)}, v{T3}, {R(SRD_H)}, s29 offen offset:{4*k}")
        a(f"s_lshr_b32 s30, s{S_CH}, 1")
        a(f"s_lshl_b32 s30, s30, 2")
        a(f"s_load_dword s88, s[{S_DPTR}:{S_DPTR+1}], s30")
    NOC = a.newlabel("noconv")
    a(f"s_cmp_ge_u32 s{S_LI}, s{S_NCH}")
    a(f"s_cbranch_scc1 {NOC}")
    if "noconv" in OPT: a(f"s_branch {NOC}")
    h_loads()
    lds_wait_imm(a, C_QG, 8, sleep=2)
    stamp(a, "conv0")
    gen_conv(a, HR)
    a("s_waitcnt vmcnt(0)")
    a.label(NOC)
    a("s_setprio 3")
    signal(C_CVD)
    stamp(a, "conv1")
    WD = 16
    VL = 21
    a(f"v_lshlrev_b32 v{VL}, 4, v1")
    a(f"s_mul_i32 s29, s{S_J}, 160")
    for t in range(5):
        a(f"v_add_u32 v{T0}, {64*t}, v1")
        div10(a, T0, T1, T0, T2)
        a(f"v_lshlrev_b32 v{T0}, 4, v{T0}")
        a(f"v_and_b32 v{T2}, 0xfff3, v{T1}")
        a(f"v_bfe_u32 v{T3}, v{T1}, 2, 1")
        a(f"v_lshlrev_b32 v{T3}, 3, v{T3}")
        a(f"v_or_b32 v{T2}, v{T2}, v{T3}")
        a(f"v_bfe_u32 v{T3}, v{T1}, 3, 1")
        a(f"v_lshlrev_b32 v{T3}, 2, v{T3}")
        a(f"v_or_b32 v{T2}, v{T2}, v{T3}")
        a(f"v_mul_lo_u32 v{T2}, v{T2}, s{S_1280}")
        a(f"v_add_u32 v{T2}, v{T2}, v{T0}")
        a(f"v_add_u32 v{WD+t}, s29, v{T2}")
    lds_wait_imm(a, C_CVD, 3, sleep=8)
    lds_wait_imm(a, C_QG, 8, sleep=8)
    def wo_half(half, base):
        a(f"s_mul_i32 s31, s{S_LI}, 3")
        a(f"s_min_u32 s33, s{S_LI}, 1")
        a(f"s_add_u32 s31, s31, s33")
        a(f"s_cmp_eq_u32 s{S_LI}, 0")
        a(f"s_cselect_b32 s33, 4, 3")
        a(f"s_mul_i32 s28, s31, 5120")
        a(f"s_add_u32 s28, s28, {base}")
        a(f"s_mul_i32 s30, s31, {32*1280}")
        a(f"s_add_u32 s30, s30, {half*320*1280}")
        WL = a.newlabel("wol")
        a(f"s_mov_b32 s31, 0")
        a.label(WL)
        for t in range(5):
            a(f"s_add_u32 m0, s28, {1024*t}")
            a(f"s_nop 0")
            a(f"buffer_load_dwordx4 v{WD+t}, {R(SRD_WO)}, s30 offen lds")
        a(f"s_add_u32 s28, s28, 5120")
        a(f"s_add_u32 s30, s30, {32*1280}")
        a(f"s_add_u32 s31, s31, 1")
        a(f"s_cmp_lt_u32 s31, s33")
        a(f"s_cbranch_scc1 {WL}")
    wo_half(0, WOA)
    a("s_waitcnt vmcnt(0)")
    signal(C_WOK)
    stamp(a, "woready")
    lds_wait_imm(a, C_LE, 8, sleep=2)
    wo_half(1, WOB)
    a("s_waitcnt vmcnt(0)")
    signal(C_WOKB)
    stamp(a, "wobr")
    YS = 32
    def ytile():
        a(f"v_lshrrev_b32 v{T2}, 3, v1")
        a(f"v_lshlrev_b32 v{T2}, 12, v{T2}")
        a(f"v_and_b32 v{T3}, 7, v1")
        a(f"v_lshlrev_b32 v{T3}, 4, v{T3}")
        a(f"v_add_u32 v{T2}, v{T2}, v{T3}")
        lds_wait_imm(a, C_YOK, 1, sleep=1)
        lds_wait_imm(a, C_ST, 8, sleep=1)
        a(f"s_mul_i32 s28, s{S_J}, {80*4096}")
        a(f"s_lshl_b32 s29, s{S_I}, 7")
        a(f"s_add_u32 s28, s28, s29")
        a(f"s_add_u32 s28, s28, {YT_OFF}")
        a(f"s_mul_i32 s29, s{S_LI}, {5*8*4096}")
        a(f"s_add_u32 s28, s28, s29")
        for t in range(5):
            a(f"buffer_load_dwordx4 {v(YS+4*t,4)}, v{T2}, {R(SRD_WS)}, s28 offen sc1")
            a(f"s_add_u32 s28, s28, {8*4096}")
        a(f"s_mul_i32 s28, s{S_LI}, 5120")
        a(f"s_add_u32 s28, s28, {YL}")
        a(f"v_add_u32 v{T2}, s28, v{VL}")
        a("s_waitcnt vmcnt(0)")
        for t in range(5): a(f"ds_write_b128 v{T2}, {v(YS+4*t,4)} offset:{1024*t}")
        signal(C_YW)
    if_s(a, S_LI, "lt", 2, ytile)

def gen_conv(a, HR):
    URL = 16640
    CA, FA, FB, AD = 16, 48, 80, 112
    VA, VB, CT2, CT3 = 160, 161, 162, 163
    a(f"v_lshlrev_b32 v{T2}, 4, v1")
    a(f"v_add_u32 v{T3}, s{S_CB}, v{T2}")
    a("s_waitcnt vmcnt(0)")
    for q in range(4):
        X0, X1, X2 = HR+12*q, HR+12*q+4, HR+12*q+8
        C1, C3 = CA + 8*(q & 1), CA + 8*(q & 1) + 4
        for k in range(4):
            a(f"v_alignbit_b32 v{C1+k}, v{X1+k}, v{X0+k}, 16")
            a(f"v_alignbit_b32 v{C3+k}, v{X2+k}, v{X1+k}, 16")
        o = 1024 * q + 32
        a(f"ds_write_b128 v{T3}, {v(X0,4)} offset:{o}")
        a(f"ds_write_b128 v{T3}, {v(C1,4)} offset:{4160+o}")
        a(f"ds_write_b128 v{T3}, {v(X1,4)} offset:{8320+o}")
        a(f"ds_write_b128 v{T3}, {v(C3,4)} offset:{12480+o}")
    Z = CA + 16
    for k in range(4): a(f"v_mov_b32 v{Z+k}, 0")
    a(f"v_alignbit_b32 v{Z+4}, v{HR+4}, v{HR}, 16")
    a(f"v_lshlrev_b32 v{Z+5}, 16, v{HR}")
    a(f"v_mov_b32 v{Z+6}, v{HR}")
    a(f"v_lshrrev_b32 v{T0}, 1, v1")
    a(f"v_mul_u32_u24 v{T0}, 4160, v{T0}")
    a(f"v_and_b32 v{T1}, 1, v1")
    a(f"v_lshlrev_b32 v{T1}, 4, v{T1}")
    a(f"v_add_u32 v{T0}, v{T0}, v{T1}")
    a(f"v_add_u32 v{T0}, s{S_CB}, v{T0}")
    a(f"s_mov_b64 exec, 0xff")
    a(f"ds_write_b128 v{T0}, {v(Z,4)}")
    a(f"s_mov_b64 exec, 0xffffffff")
    a(f"ds_write_b128 v{T3}, {v(Z,4)} offset:{URL+4096}")
    a(f"s_mov_b64 exec, 1")
    a(f"ds_write_b32 v{T3}, v{Z+5} offset:{4160+28}")
    a(f"ds_write_b32 v{T3}, v{Z+6} offset:{8320+28}")
    a(f"ds_write_b32 v{T3}, v{Z+5} offset:{12480+24}")
    a(f"ds_write_b32 v{T3}, v{Z+4} offset:{12480+28}")
    a(f"s_mov_b64 exec, -1")
    a("s_waitcnt lgkmcnt(0)")
    a(f"v_mov_b32 v{FA}, v{T3}")
    a(f"v_mov_b32 v{FA+1}, v{T2}")
    lds_wait_imm(a, C_UOK, 1, sleep=2)
    a(f"s_lshl_b32 s28, s{S_CH}, 12")
    a(f"s_add_u32 s28, s28, {UR_OFF}")
    for q in range(4):
        a(f"s_add_u32 s29, s28, {1024*q}")
        a(f"buffer_load_dwordx4 {v(FB+4*q,4)}, v{FA+1}, {R(SRD_WS)}, s29 offen sc1")
    a(f"v_and_b32 v{T0}, 15, v1")
    a(f"v_lshrrev_b32 v{T1}, 4, v1")
    a(f"v_add_u32 v{CT2}, 1, v{T0}")
    a(f"v_and_b32 v{CT3}, 3, v{CT2}")
    a(f"v_mul_u32_u24 v{VA}, 4160, v{CT3}")
    a(f"v_lshrrev_b32 v{CT2}, 2, v{CT2}")
    a(f"v_lshlrev_b32 v{CT2}, 3, v{CT2}")
    a(f"v_lshlrev_b32 v{CT3}, 4, v{T1}")
    a(f"v_add_u32 v{VA}, v{VA}, v{CT2}")
    a(f"v_add_u32 v{VA}, v{VA}, v{CT3}")
    a(f"v_add_u32 v{VA}, s{S_CB}, v{VA}")
    a(f"v_lshlrev_b32 v{CT2}, 5, v{T0}")
    a(f"v_sub_u32 v{VB}, v{CT3}, v{CT2}")
    a(f"s_add_u32 s28, s{S_CB}, {URL + 480}")
    a(f"v_add_u32 v{VB}, s28, v{VB}")
    a(f"s_and_b32 s30, s{S_CH}, 1")
    a(f"s_lshl_b32 s30, s30, 4")
    a(f"s_lshr_b32 s88, s88, s30")
    a(f"s_and_b32 s88, s88, 0xffff")
    a(f"v_lshlrev_b32 v{T1}, 3, v{T1}")
    a(f"v_add_u32 v{T0}, v{T0}, v{T1}")
    a(f"v_sub_u32 v{T0}, 15, v{T0}")
    a(f"v_and_b32 v{T1}, 1, v{T0}")
    a(f"v_lshlrev_b32 v{T1}, 4, v{T1}")
    a(f"v_mov_b32 v{CT2}, s88")
    a(f"v_lshlrev_b32 v{CT2}, v{T1}, v{CT2}")
    a(f"v_lshrrev_b32 v{T0}, 1, v{T0}")
    for k in range(4):
        a(f"v_cmp_eq_u32 vcc, {k}, v{T0}")
        a.nop(2)
        a(f"v_cndmask_b32 v{AD+k}, 0, v{CT2}, vcc")
    for r in range(32): a(f"v_mov_b32 v{CA+r}, 0")
    a("s_waitcnt vmcnt(0)")
    for q in range(4):
        a(f"ds_write_b128 v{FA}, {v(FB+4*q,4)} offset:{URL + 1024*q}")
    a("s_waitcnt lgkmcnt(0)")
    stamp(a, "convm")
    a("s_setprio 0")
    a(f"s_mov_b32 s86, 0")
    PL = a.newlabel("convph")
    a.label(PL)
    a(f"ds_read_b64 {v(FA,2)}, v{VA}")
    a(f"ds_read_b64 {v(FA+2,2)}, v{VA} offset:8")
    for vv in range(8):
        a(f"ds_read_b128 {v(FB+4*vv,4)}, v{VB} offset:{512*(7-vv)}")
    for i in range(1, 3):
        a(f"ds_read_b64 {v(FA+4*i,2)}, v{VA} offset:{512*i}")
        a(f"ds_read_b64 {v(FA+4*i+2,2)}, v{VA} offset:{512*i+8}")
    a("s_waitcnt lgkmcnt(4)")
    for i in range(3, 8):
        a(f"ds_read_b64 {v(FA+4*i,2)}, v{VA} offset:{512*i}")
        a(f"ds_read_b64 {v(FA+4*i+2,2)}, v{VA} offset:{512*i+8}")
    for vv in range(8):
        a(f"v_mfma_f32_16x16x32_bf16 {v(CA+4*vv,4)}, {v(FA,4)}, {v(FB+4*vv,4)}, {v(CA+4*vv,4)}")
    lab = a.newlabel("noD")
    a(f"s_cmp_lg_u32 s86, 0")
    a(f"s_cbranch_scc1 {lab}")
    for vv in range(8):
        a(f"v_mfma_f32_16x16x32_bf16 {v(CA+4*vv,4)}, {v(AD,4)}, {v(FB+4*vv,4)}, {v(CA+4*vv,4)}")
    a.label(lab)
    a("s_waitcnt lgkmcnt(0)")
    for i in range(1, 8):
        for vv in range(8 - i):
            t = i + vv
            a(f"v_mfma_f32_16x16x32_bf16 {v(CA+4*t,4)}, {v(FA+4*i,4)}, {v(FB+4*vv,4)}, {v(CA+4*t,4)}")
    a(f"v_add_u32 v{VA}, 64, v{VA}")
    a(f"v_add_u32 v{VB}, 64, v{VB}")
    a(f"s_add_u32 s86, s86, 1")
    a(f"s_cmp_lt_u32 s86, 8")
    a(f"s_cbranch_scc1 {PL}")
    a(f"s_lshl_b32 s28, s{S_CH}, 12")
    a(f"s_add_u32 s28, s28, {YT_OFF}")
    a(f"v_and_b32 v{CT2}, 15, v1")
    a(f"v_lshlrev_b32 v{CT2}, 5, v{CT2}")
    a(f"v_lshrrev_b32 v{CT3}, 4, v1")
    a(f"v_lshlrev_b32 v{CT3}, 3, v{CT3}")
    a(f"v_add_u32 v{CT2}, v{CT2}, v{CT3}")
    a.nop(4)
    for t in range(8):
        a(f"v_cvt_pk_bf16_f32 v{FB+2*t}, v{CA+4*t}, v{CA+4*t+1}")
        a(f"v_cvt_pk_bf16_f32 v{FB+2*t+1}, v{CA+4*t+2}, v{CA+4*t+3}")
        a(f"buffer_store_dwordx2 {v(FB+2*t,2)}, v{CT2}, {R(SRD_WS)}, s28 offen offset:{512*t} sc1")

HEADER = """; gated_mix: fused single kernel (generated by dev/gen15.py, gen4 o-layout)
; @launch grid=(256,1,1) block=(768,1,1) lds=163840
.amdgcn_target "amdgcn-amd-amdhsa--gfx950"
.text
"""
if __name__ == "__main__":
    if len(sys.argv) > 2: OPT.update(sys.argv[2].split(","))
    a = Asm()
    gen(a)
    h = HEADER
    if STAMPS: h = h.replace(".amdgcn", "; STAMPS " + ",".join(STAMPS) + "\n.amdgcn")
    open(sys.argv[1], "w").write(h + a.text())
```

```python
import sys, struct
from asmlib import *

NAME = "gated_mix__ssm_conv_h3__grouped_kv_mqa__prompt"
KVF_OFF = 0
UR_OFF = 0x40000
YT_OFF = 0x2C0000
O_OFF = 0x540000
FL_OFF = 0x7C0000
H1 = FL_OFF
H2 = FL_OFF + 0x4000
H3 = FL_OFF + 0xC000
H4 = FL_OFF + 0x14000
ST_OFF = 0x800000
WS_USED = 0x900000
XB = 2048 * 640 * 2
QSCALE = (20 ** -0.5) * 1.4426950408889634
def f32bits(x): return struct.unpack("<I", struct.pack("<f", x))[0]
OPT = set()
POLL_MAX = 40000

SRD_X, SRD_WQ, SRD_WS, SRD_H = 4, 8, 12, 16
S_I, S_J, S_W, S_HH, S_G, S_NONCE, S_1280, S_ROT = 20, 21, 22, 23, 24, 25, 26, 27
SRD_K, SRD_V, SRD_SH, SRD_W, SRD_GW, SRD_WO, SRD_OUT, SRD_DBG = 44, 48, 52, 56, 60, 64, 68, 72
S_DPTR = 76
S_CH, S_NCH, S_CB = 83, 84, 85
SLOT = 36864
UT_K = 137472
UT_V = UT_K + 10720
UNIT_W = 131552
UNIT_S = 6656
QXA = 110592
QXB = QXA + 8192
GWL = 159744
GP = GWL + 1280
G_L = 162048
CNT = G_L + 256
C_FULL, C_DONE = CNT, CNT + 32
C_KVOK, C_UCNT, C_CVD = CNT + 68, CNT + 72, CNT + 80
C_UOK, C_YOK, C_OCNT, C_OOK = CNT + 84, CNT + 88, CNT + 92, CNT + 96
C_UTL, C_UTC, C_UP, C_C0C, C_C1C, C_QG, C_WOK = CNT + 100, CNT + 104, CNT + 108, CNT + 112, CNT + 116, CNT + 120, CNT + 124
C_CL = CNT + 128
C_QXF = CNT + 160
C_PROG = CNT + 192
C_PD = CNT + 228
C_WOKB = CNT + 232
C_LE, C_ST, C_PFL, C_QRD = CNT + 236, CNT + 240, CNT + 244, CNT + 248
C_XF = CNT + 256
C_PF = CNT + 288
C_YW = CNT + 224
BLK = 3072
KVSLOT = 4 * BLK
RING_STRIDE = 3 * KVSLOT
CONVB = 73728
CHB = 21248
WOA = 75776
WOB = 0
YL = 137216
DUMMY = 162688
OX = 137472
OST = 126976
PX = 51200
V_ST = 167
NVGPR = 168
T0, T1, T2, T3 = 2, 3, 164, 165

STAMPS = []
def stamp(a, name, real=False):
    if "stamp" not in OPT: return
    if name in STAMPS: idx = STAMPS.index(name)
    else:
        STAMPS.append(name); idx = len(STAMPS) - 1
    a(f"s_waitcnt lgkmcnt(0)")
    a(f"{'s_memrealtime' if real else 's_memtime'} s[98:99]")
    a(f"s_waitcnt lgkmcnt(0)")
    a(f"v_writelane_b32 v{V_ST}, s98, {idx}")
def stamp_flush(a):
    if "stamp" not in OPT: return
    a(f"s_mov_b64 exec, -1")
    a(f"s_mul_i32 s98, s2, 12")
    a(f"s_add_u32 s98, s98, s{S_W}")
    a(f"s_lshl_b32 s98, s98, 8")
    a(f"s_add_u32 s98, s98, {ST_OFF}")
    a(f"v_lshlrev_b32 v166, 2, v1")
    a(f"buffer_store_dword v{V_ST}, v166, s[{SRD_WS}:{SRD_WS+3}], s98 offen")
    a("s_waitcnt vmcnt(0)")

def R(b): return f"s[{b}:{b+3}]"

def poll_global(a, nload, check, sleep=1):
    lp = a.newlabel("poll"); dn = a.newlabel("pdone")
    a(f"s_mov_b32 s43, 0")
    a.label(lp)
    nload()
    a("s_waitcnt vmcnt(0)")
    check()
    a(f"s_cbranch_scc1 {dn}")
    a(f"s_add_u32 s43, s43, 1")
    a(f"s_cmp_lt_u32 s43, {POLL_MAX}")
    a(f"s_cbranch_scc0 {dn}")
    if sleep: a(f"s_sleep {sleep}")
    a(f"s_branch {lp}")
    a.label(dn)

def flags_check(a, vt, n):
    if n == 4:
        for k in range(4): a(f"v_xor_b32 v{vt+k}, s{S_NONCE}, v{vt+k}")
        a(f"v_or_b32 v{vt}, v{vt}, v{vt+1}")
        a(f"v_or_b32 v{vt+2}, v{vt+2}, v{vt+3}")
        a(f"v_or_b32 v{vt}, v{vt}, v{vt+2}")
        a(f"v_cmp_ne_u32 vcc, 0, v{vt}")
    else:
        a(f"v_cmp_ne_u32 vcc, s{S_NONCE}, v{vt}")
    a(f"s_nop 1")
    a(f"s_and_b64 vcc, vcc, s[40:41]")
    a(f"s_cmp_eq_u64 vcc, 0")
def poll_flags(a, vaddr, soff, lanes_mask, vt, n=1, sleep=1):
    def ld():
        if n == 1: a(f"buffer_load_dword v{vt}, v{vaddr}, {R(SRD_WS)}, {soff} offen sc1")
        else: a(f"buffer_load_dwordx4 {v(vt,4)}, v{vaddr}, {R(SRD_WS)}, {soff} offen sc1")
    a(f"s_mov_b32 s40, {lanes_mask & 0xffffffff}")
    a(f"s_mov_b32 s41, {(lanes_mask >> 32) & 0xffffffff}")
    poll_global(a, ld, lambda: flags_check(a, vt, n), sleep)

def lds_wait_ge(a, target, vt, vaddr, sleep=1):
    lp = a.newlabel("lw"); dn = a.newlabel("lwd")
    a(f"s_mov_b32 s43, 0")
    a.label(lp)
    a(f"ds_read_b32 v{vt}, v{vaddr}")
    a("s_waitcnt lgkmcnt(0)")
    a(f"v_readfirstlane_b32 s42, v{vt}")
    a("s_nop 3")
    a(f"s_cmp_ge_u32 s42, {target}")
    a(f"s_cbranch_scc1 {dn}")
    a(f"s_add_u32 s43, s43, 1")
    a(f"s_cmp_lt_u32 s43, {POLL_MAX * 8}")
    a(f"s_cbranch_scc0 {dn}")
    if sleep: a(f"s_sleep {sleep}")
    a(f"s_branch {lp}")
    a.label(dn)
def lds_wait_imm(a, addr, target, vt=T1, va=T0, sleep=1):
    a(f"v_mov_b32 v{va}, {addr}")
    lds_wait_ge(a, target, vt, va, sleep)
def lds_add1(a, vaddr, vone):
    a("s_mov_b64 exec, 1")
    a(f"ds_add_u32 v{vaddr}, v{vone}")
    a("s_mov_b64 exec, -1")
def lds_add1_imm(a, addr, va=T0, vo=T1):
    a(f"v_mov_b32 v{va}, {addr}")
    a(f"v_mov_b32 v{vo}, 1")
    lds_add1(a, va, vo)
def if_s(a, sreg, cmp, val, fn):
    lb = a.newlabel("ifw")
    inv = {"eq": "lg", "lt": "ge", "ge": "lt", "lg": "eq"}[cmp]
    a(f"s_cmp_{inv}_u32 s{sreg}, {val}")
    a(f"s_cbranch_scc1 {lb}")
    fn()
    a.label(lb)
def if_wave(a, cmp, val, fn): if_s(a, S_W, cmp, val, fn)

def div10(a, p, q, r, t):
    a(f"v_mul_u32_u24 v{q}, 6554, v{p}")
    a(f"v_lshrrev_b32 v{q}, 16, v{q}")
    a(f"v_mul_u32_u24 v{t}, 10, v{q}")
    a(f"v_sub_u32 v{r}, v{p}, v{t}")

def gen(a):
    name = NAME + "_kernel"
    a.L.append(kernel_header(name))
    END = "f_end"
    a(f"s_cmp_ge_u32 s2, 256")
    a(f"s_cbranch_scc1 {END}")
    a(f"s_load_dwordx16 s[76:91], s[0:1], 0")
    a(f"s_load_dwordx8 s[92:99], s[0:1], 64")
    a(f"s_load_dwordx4 s[28:31], s[0:1], 96")
    a(f"s_load_dwordx2 s[32:33], s[0:1], 112")
    a(f"v_lshrrev_b32 v1, 6, v0")
    a(f"s_and_b32 s{S_I}, s2, 7")
    a(f"s_lshl_b32 s{S_I}, s{S_I}, 2")
    a(f"s_lshr_b32 s{S_J}, s2, 6")
    a(f"s_add_u32 s{S_I}, s{S_I}, s{S_J}")
    a(f"s_lshr_b32 s{S_J}, s2, 3")
    a(f"s_and_b32 s{S_J}, s{S_J}, 7")
    a(f"v_readfirstlane_b32 s{S_W}, v1")
    a(f"v_and_b32 v1, 63, v0")
    a(f"s_movk_i32 s{S_1280}, 1280")
    a(f"s_add_u32 s{S_ROT}, s{S_I}, s{S_J}")
    a(f"s_and_b32 s{S_ROT}, s{S_ROT}, 7")
    a(f"s_and_b32 s{S_HH}, s{S_W}, 3")
    a(f"s_lshr_b32 s{S_G}, s{S_W}, 2")
    V_XD, V_WD, V_UST = 112, 113, 111
    HR = 116
    a(f"s_mul_i32 s37, s{S_I}, 3")
    a(f"s_lshl_b32 s34, s{S_I}, 1")
    a(f"s_add_u32 s34, s34, 16")
    a(f"s_cmp_lt_u32 s{S_I}, 16")
    a(f"s_cselect_b32 s35, s37, s34")
    a(f"s_cselect_b32 s36, 3, 2")
    a(f"s_mul_i32 s34, s{S_J}, 80")
    a(f"s_add_u32 s35, s35, s34")
    a(f"s_sub_u32 s38, s{S_W}, 9")
    a(f"s_add_u32 s35, s35, s38")
    a("s_waitcnt lgkmcnt(0)")
    srd(a, SRD_X, 76, XB)
    a(f"s_cmp_ge_u32 s{S_J}, 4")
    a(f"s_cselect_b32 s{SRD_W}, s94, s92")
    a(f"s_cselect_b32 s{SRD_W+1}, s95, s93")
    a(f"s_mov_b32 s{SRD_W+2}, 25600")
    a(f"s_mov_b32 s{SRD_W+3}, 0x00020000")
    srd(a, SRD_K, 78, XB)
    srd(a, SRD_V, 80, XB)
    srd(a, SRD_SH, 82, 640 * 4 * 2)
    srd(a, SRD_WS, 32, WS_USED)
    srd(a, SRD_DBG, 30, 256)
    srd(a, SRD_WQ, 90, 640 * 640 * 2)
    srd(a, SRD_GW, 98, 1280)
    srd(a, SRD_H, 84, XB)
    srd(a, SRD_WO, 96, 640 * 640 * 2)
    srd(a, SRD_OUT, 28, XB)
    a(f"s_mov_b32 s{S_DPTR}, s86")
    a(f"s_mov_b32 s{S_DPTR+1}, s87")
    a(f"s_mov_b32 s{S_CH}, s35")
    a(f"s_mov_b32 s{S_NCH}, s36")
    a(f"s_mul_i32 s{S_CB}, s38, {CHB}")
    a(f"s_add_u32 s{S_CB}, s{S_CB}, {CONVB}")
    if "stamp" in OPT: a(f"v_mov_b32 v{V_ST}, 0")
    stamp(a, "rt0", True); stamp(a, "t0")
    PSTART = "f_pstart"
    a(f"s_cmp_eq_u32 s{S_W}, 8")
    a(f"s_cbranch_scc1 {PSTART}")
    a(f"s_cmp_gt_u32 s{S_W}, 8")
    a(f"s_cbranch_scc1 f_lstart")

    XF, UACC, WFA, SH = 16, 4, 44, 36
    def unit_loads():
        a("s_setprio 2")
        a(f"s_and_b32 s28, s{S_J}, 3")
        a(f"s_lshl_b32 s28, s28, 4")
        a(f"s_lshl_b32 s29, s{S_I}, 6")
        a(f"s_add_u32 s28, s28, s29")
        a(f"v_and_b32 v{T0}, 15, v1")
        a(f"v_add_u32 v{T0}, s28, v{T0}")
        a(f"v_mul_lo_u32 v{T0}, v{T0}, s{S_1280}")
        a(f"v_lshrrev_b32 v{T1}, 4, v1")
        a(f"v_lshlrev_b32 v{T2}, 4, v{T1}")
        a(f"v_add_u32 v{T0}, v{T0}, v{T2}")
        a(f"s_mul_i32 s29, s{S_W}, 320")
        for s_ in range(5):
            a(f"buffer_load_dwordx4 {v(XF+4*s_,4)}, v{T0}, {R(SRD_X)}, s29 offen offset:{64*s_}")
        a(f"v_lshlrev_b32 v{T2}, 4, v1")
        a(f"s_mul_i32 s29, s{S_W}, 6400")
        a(f"s_mul_i32 s30, s{S_W}, {UNIT_S}")
        for q in range(7):
            a(f"s_add_u32 m0, s30, {UNIT_W + 1024*q}")
            a(f"s_add_u32 s31, s29, {1024*q}")
            if q == 6: a(f"s_mov_b64 exec, 0xffffffff")
            a(f"buffer_load_dwordx4 v{T2}, {R(SRD_W)}, s31 offen lds")
        a(f"s_mov_b64 exec, -1")
        a("s_setprio 0")
    if_wave(a, "lt", 4, unit_loads)
    a(f"v_lshrrev_b32 v{T0}, 4, v1")
    a(f"s_lshl_b32 s28, s{S_W}, 2")
    a(f"v_add_u32 v{T0}, s28, v{T0}")
    a(f"v_xor_b32 v{T1}, v1, v{T0}")
    a(f"v_and_b32 v{T1}, 15, v{T1}")
    a(f"v_lshlrev_b32 v{T1}, 4, v{T1}")
    a(f"s_lshl_b32 s28, s{S_I}, 6")
    a(f"v_add_u32 v{T0}, s28, v{T0}")
    a(f"v_mul_lo_u32 v{T0}, v{T0}, s{S_1280}")
    a(f"v_add_u32 v{V_XD}, v{T0}, v{T1}")
    a(f"s_mul_i32 s29, s{S_J}, 160")
    a(f"s_lshl_b32 s28, s{S_W}, 6")
    for t in range(3):
        a(f"v_add_u32 v{T0}, s28, v1")
        if t: a(f"v_add_u32 v{T0}, {512*t}, v{T0}")
        div10(a, T0, T1, T0, T2)
        a(f"v_lshlrev_b32 v{T0}, 4, v{T0}")
        a(f"v_and_b32 v{T2}, 0xfff8, v{T1}")
        a(f"v_bfe_u32 v{T3}, v{T1}, 1, 2")
        a(f"v_or_b32 v{T2}, v{T2}, v{T3}")
        a(f"v_and_b32 v{T1}, 1, v{T1}")
        a(f"v_lshlrev_b32 v{T1}, 2, v{T1}")
        a(f"v_or_b32 v{T2}, v{T2}, v{T1}")
        a(f"v_mul_lo_u32 v{T2}, v{T2}, s{S_1280}")
        a(f"v_add_u32 v{T2}, v{T2}, v{T0}")
        a(f"v_add_u32 v{V_WD+t}, s29, v{T2}")
    def dma_chunk(ch, slot):
        base = slot * SLOT
        a(f"s_lshl_b32 s28, s{S_W}, 10")
        for t in range(2):
            a(f"s_add_u32 m0, s28, {base + 8192*t}")
            a(f"s_mov_b32 s29, {256*ch + 32*1280*t}")
            a(f"buffer_load_dwordx4 v{V_XD}, {R(SRD_X)}, s29 offen lds")
        a(f"s_mov_b32 s29, {163840*ch}")
        for t in range(3):
            def one(t=t):
                a(f"s_add_u32 m0, s28, {base + 16384 + 8192*t}")
                a(f"s_nop 0")
                a(f"buffer_load_dwordx4 v{V_WD+t}, {R(SRD_WQ)}, s29 offen lds")
            if t < 2: one()
            else: if_wave(a, "lt", 4, one)
    def wait_vm(nA, nB):
        la = a.newlabel("wa"); lb = a.newlabel("wb")
        a(f"s_cmp_lt_u32 s{S_W}, 4")
        a(f"s_cbranch_scc1 {la}")
        a(f"s_waitcnt vmcnt({nB})")
        a(f"s_branch {lb}")
        a.label(la)
        a(f"s_waitcnt vmcnt({nA})")
        a.label(lb)
    NA, NB = 5, 4
    def gw():
        a(f"s_mul_i32 s28, s{S_HH}, 320")
        a(f"s_add_u32 m0, s28, {GWL}")
        a(f"v_lshlrev_b32 v{T0}, 4, v1")
        a(f"s_mov_b64 exec, 0xfffff")
        a(f"buffer_load_dwordx4 v{T0}, {R(SRD_GW)}, s28 offen lds")
        a(f"s_mov_b64 exec, -1")
    if_wave(a, "ge", 4, gw)
    dma_chunk(0, 0); dma_chunk(1, 1)
    a("s_barrier")
    def unit_compute():
        a(f"v_lshrrev_b32 v{T1}, 4, v1")
        a(f"v_bfe_u32 v{T2}, v1, 2, 2")
        a(f"v_lshlrev_b32 v{T1}, 3, v{T1}")
        a(f"v_add_u32 v{T2}, v{T2}, v{T1}")
        a(f"v_mul_u32_u24 v{T2}, 40, v{T2}")
        a(f"v_and_b32 v{T3}, 3, v1")
        a(f"v_lshlrev_b32 v{T3}, 3, v{T3}")
        a(f"v_add_u32 v{T2}, v{T2}, v{T3}")
        a(f"s_mul_i32 s30, s{S_W}, {UNIT_S}")
        a(f"s_add_u32 s30, s30, {UNIT_W}")
        a(f"v_add_u32 v{T2}, s30, v{T2}")
        for r in range(8): a(f"v_mov_b32 v{UACC+r}, 0")
        a(f"s_waitcnt vmcnt({2*NA})")
        stamp(a, "unitld")
        for s_ in range(5):
            for dt in range(2):
                for jj in range(2):
                    a(f"ds_read_b64_tr_b16 {v(WFA+8*s_+4*dt+2*jj,2)}, v{T2} offset:{1280*s_ + 160*jj + 32*dt}")
            if s_ == 2: a("s_waitcnt lgkmcnt(4)")
        labV = a.newlabel("kindV"); labD = a.newlabel("kindD")
        a("s_waitcnt lgkmcnt(0)")
        a(f"s_cmp_ge_u32 s{S_J}, 4")
        a(f"s_cbranch_scc1 {labV}")
        for kind in range(2):
            for s_ in range(5):
                for dt in range(2):
                    w_ = v(WFA+8*s_+4*dt, 4); x_ = v(XF+4*s_, 4)
                    A_, B_ = (w_, x_) if kind == 0 else (x_, w_)
                    a(f"v_mfma_f32_16x16x32_bf16 {v(UACC+4*dt,4)}, {A_}, {B_}, {v(UACC+4*dt,4)}")
            if kind == 0:
                a(f"s_branch {labD}")
                a.label(labV)
        a.label(labD)
        a.nop(8)
        a(f"s_mul_i32 s29, s{S_W}, {UNIT_S}")
        a(f"s_add_u32 s29, s29, {UNIT_W}")
        a(f"v_lshlrev_b32 v{T0}, 4, v1")
        a(f"v_add_u32 v{T1}, s29, v{T0}")
        a(f"ds_write_b128 v{T1}, {v(UACC,4)}")
        a(f"ds_write_b128 v{T1}, {v(UACC+4,4)} offset:1024")
        lds_add1_imm(a, C_UP)
    if_wave(a, "lt", 4, unit_compute)
    V_XA, V_WA, V_GWA, V_QXP = 24, 32, 33, 34
    QACC, GACC, GW, QXF, QWF = 44, 60, 76, 84, 96
    a(f"v_and_b32 v{T0}, 31, v1")
    a(f"s_lshl_b32 s28, s{S_G}, 5")
    a(f"v_add_u32 v{T0}, s28, v{T0}")
    a(f"v_lshrrev_b32 v{T1}, 5, v1")
    a(f"v_and_b32 v{T2}, 15, v{T0}")
    a(f"v_xor_b32 v{T2}, v{T2}, v{T1}")
    a(f"v_lshlrev_b32 v{T2}, 4, v{T2}")
    a(f"v_lshlrev_b32 v{T0}, 8, v{T0}")
    a(f"v_add_u32 v{V_XA}, v{T0}, v{T2}")
    for s_ in range(1, 8): a(f"v_xor_b32 v{V_XA+s_}, {32*s_}, v{V_XA}")
    a(f"v_bfe_u32 v{T0}, v1, 2, 2")
    a(f"v_lshlrev_b32 v{T0}, 1, v{T0}")
    a(f"v_lshlrev_b32 v{T2}, 3, v{T1}")
    a(f"v_add_u32 v{T0}, v{T0}, v{T2}")
    a(f"v_mul_u32_u24 v{T0}, 160, v{T0}")
    a(f"v_and_b32 v{T2}, 3, v1")
    a(f"v_lshlrev_b32 v{T2}, 3, v{T2}")
    a(f"v_and_b32 v{T3}, 16, v1")
    a(f"v_cmp_ne_u32 vcc, 0, v{T3}")
    a(f"s_mul_i32 s28, s{S_HH}, 40")
    a(f"s_add_u32 s28, s28, 16384")
    a(f"v_mov_b32 v{T3}, 32")
    a(f"v_cndmask_b32 v{T2}, v{T2}, v{T3}, vcc")
    a(f"v_add_u32 v{T0}, v{T0}, v{T2}")
    a(f"v_add_u32 v{V_WA}, s28, v{T0}")
    for r in range(16):
        a(f"v_mov_b32 v{QACC+r}, 0"); a(f"v_mov_b32 v{GACC+r}, 0")
    a(f"v_lshlrev_b32 v{T1}, 4, v{T1}")
    a(f"s_lshl_b32 s28, s{S_HH}, 5")
    a(f"s_add_u32 s28, s28, {GWL}")
    a(f"v_add_u32 v{V_GWA}, s28, v{T1}")
    def q_chunk(ch, slot):
        off = (slot & 1) * SLOT
        def loads(s_):
            b = s_ % 3
            a(f"ds_read_b128 {v(QXF+4*b,4)}, v{V_XA+s_} offset:{off}")
            a(f"ds_read_b64_tr_b16 {v(QWF+4*b,2)}, v{V_WA} offset:{off + 2560*s_}")
            a(f"ds_read_b64_tr_b16 {v(QWF+4*b+2,2)}, v{V_WA} offset:{off + 2560*s_ + 160}")
        a(f"ds_read_b128 {v(GW,4)}, v{V_GWA} offset:{128*(2*ch)}")
        a(f"ds_read_b128 {v(GW+4,4)}, v{V_GWA} offset:{128*(2*ch+1)}")
        loads(0); loads(1)
        for s_ in range(8):
            if s_ < 6:
                loads(s_+2); a("s_waitcnt lgkmcnt(6)")
            elif s_ == 6: a("s_waitcnt lgkmcnt(3)")
            else: a("s_waitcnt lgkmcnt(0)")
            b = s_ % 3
            a(f"v_mfma_f32_32x32x16_bf16 {v(QACC,16)}, {v(QWF+4*b,4)}, {v(QXF+4*b,4)}, {v(QACC,16)}")
            lg = a.newlabel("ng")
            a(f"s_cmp_lg_u32 s{S_HH}, {s_ & 3}")
            a(f"s_cbranch_scc1 {lg}")
            a(f"v_mfma_f32_32x32x16_bf16 {v(GACC,16)}, {v(GW+4*(s_>>2),4)}, {v(QXF+4*b,4)}, {v(GACC,16)}")
            a.label(lg)
    def bump(delta):
        op = "v_add_u32" if delta > 0 else "v_subrev_u32"
        for s_ in range(8): a(f"{op} v{V_XA+s_}, {abs(delta)}, v{V_XA+s_}")
        a(f"{op} v{V_WA}, {abs(delta)}, v{V_WA}")
    SF, SG = 16, 32
    P = 48
    OF, OG = 56, 72
    K16, K8, V0, V1 = 88, 92, 96, 100
    AK16, AK8, AV, AK16N, AK8N, AVN = 104, 105, 106, 107, 108, 109
    V_L16, V_ONE, V_CFW, V_CD, V_KW, V_CT = 110, 111, 112, 113, 114, 115
    KVST, KVST2 = 116, 16
    V_CFR = 128
    V_STG, V_OL0, V_OG0, V_OL1, V_OG1, V_OUT, V_WT, V_YT, V_GA, V_PX, V_TL16 = range(129, 140)
    QT, YS = 140, 150
    S_T, S_BLK, S_SLOT, S_NXT, S_FT, S_DT = 34, 35, 36, 37, 38, 39
    S_RB, S_M2, S_P1, S_DL, S_WB = 78, 79, 80, 81, 82
    S_CFB, S_CA, S_CBB = 89, 90, 91
    def tail_addrs():
        a(f"v_lshlrev_b32 v{V_TL16}, 4, v1")
        a(f"v_and_b32 v{T0}, 31, v1")
        a(f"v_mul_u32_u24 v{T0}, 160, v{T0}")
        a(f"v_lshrrev_b32 v{T1}, 5, v1")
        a(f"v_lshlrev_b32 v{T1}, 3, v{T1}")
        a(f"v_add_u32 v{T0}, v{T0}, v{T1}")
        a(f"s_mul_i32 s28, s{S_HH}, 40")
        a(f"s_mul_i32 s29, s{S_G}, 5120")
        a(f"s_add_u32 s28, s28, s29")
        a(f"s_add_u32 s28, s28, {OST}")
        a(f"v_add_u32 v{V_STG}, s28, v{T0}")
        for t, (vl, vg) in enumerate(((V_OL0, V_OG0), (V_OL1, V_OG1))):
            a(f"s_add_u32 s28, s{S_W}, {8*t}")
            a(f"s_lshl_b32 s28, s28, 2")
            a(f"v_lshrrev_b32 v{T0}, 4, v1")
            a(f"v_add_u32 v{T0}, s28, v{T0}")
            div10(a, T0, T1, T0, T2)
            a(f"v_and_b32 v{T2}, 15, v1")
            a(f"v_lshl_add_u32 v{T3}, v{T1}, 4, v{T2}")
            a(f"v_mul_u32_u24 v{T3}, 160, v{T3}")
            a(f"v_lshl_add_u32 v{vl}, v{T0}, 4, v{T3}")
            a(f"v_add_u32 v{vl}, {OST}, v{vl}")
            a(f"v_mul_u32_u24 v{T1}, 20480, v{T1}")
            a(f"v_lshl_add_u32 v{T1}, v{T0}, 8, v{T1}")
            a(f"v_lshl_add_u32 v{vg}, v{T2}, 4, v{T1}")
        a(f"v_and_b32 v{T0}, 15, v1")
        a(f"s_lshl_b32 s29, s{S_HH}, 4")
        a(f"s_lshl_b32 s28, s{S_I}, 6")
        a(f"s_add_u32 s28, s28, s29")
        a(f"v_add_u32 v{T1}, s28, v{T0}")
        a(f"v_mul_lo_u32 v{T1}, v{T1}, s{S_1280}")
        a(f"v_lshrrev_b32 v{T2}, 4, v1")
        a(f"v_lshlrev_b32 v{T3}, 3, v{T2}")
        a(f"v_add_u32 v{T1}, v{T1}, v{T3}")
        a(f"s_mul_i32 s28, s{S_J}, 160")
        a(f"v_add_u32 v{V_OUT}, s28, v{T1}")
        a(f"v_lshlrev_b32 v{T0}, 2, v{T0}")
        a(f"s_lshl_b32 s28, s{S_HH}, 6")
        a(f"s_add_u32 s28, s28, {G_L}")
        a(f"v_add_u32 v{V_GA}, s28, v{T0}")
        a(f"v_lshrrev_b32 v{T0}, 5, v1")
        a(f"v_lshlrev_b32 v{T0}, 4, v{T0}")
        a(f"v_bfe_u32 v{T1}, v1, 4, 1")
        a(f"v_lshlrev_b32 v{T1}, 2, v{T1}")
        a(f"v_add_u32 v{T0}, v{T0}, v{T1}")
        a(f"v_bfe_u32 v{T1}, v1, 2, 2")
        a(f"v_add_u32 v{T0}, v{T0}, v{T1}")
        a(f"v_mul_u32_u24 v{T0}, 160, v{T0}")
        a(f"v_and_b32 v{T1}, 3, v1")
        a(f"v_lshlrev_b32 v{T1}, 3, v{T1}")
        a(f"v_add_u32 v{T0}, v{T0}, v{T1}")
        a(f"s_cmp_eq_u32 s{S_G}, 0")
        a(f"s_cselect_b32 s28, {WOA}, {WOB}")
        a(f"v_add_u32 v{V_WT}, s28, v{T0}")
        a(f"v_bfe_u32 v{T0}, v1, 2, 4")
        a(f"v_lshlrev_b32 v{T0}, 7, v{T0}")
        a(f"v_add_u32 v{T0}, v{T0}, v{T1}")
        a(f"s_lshl_b32 s28, s{S_HH}, 5")
        a(f"s_add_u32 s28, s28, {YL}")
        a(f"v_add_u32 v{V_YT}, s28, v{T0}")
        a(f"s_mul_i32 s28, s{S_W}, 3072")
        a(f"s_add_u32 s28, s28, {PX}")
        a(f"v_add_u32 v{V_PX}, s28, v{V_TL16}")
    def ring_addrs():
        a(f"s_mul_i32 s{S_RB}, s{S_G}, {RING_STRIDE}")
        a(f"v_lshlrev_b32 v{V_L16}, 4, v1")
        a(f"v_mov_b32 v{V_ONE}, 1")
        a(f"s_lshl_b32 s28, s{S_G}, 4")
        a(f"s_add_u32 s{S_CFB}, s28, {C_FULL}")
        a(f"s_mul_i32 s29, s{S_HH}, {BLK}")
        a(f"s_add_u32 s{S_WB}, s{S_RB}, s29")
        a(f"v_add_u32 v{AK16}, s{S_RB}, v{V_L16}")
        a(f"v_and_b32 v{T0}, 31, v1")
        a(f"v_lshlrev_b32 v{T1}, 3, v{T0}")
        a(f"v_add_u32 v{T1}, 1024, v{T1}")
        a(f"v_mov_b32 v{AK8}, 1280")
        a(f"v_cmp_gt_u32 vcc, 32, v1")
        a(f"v_min_u32 v{T2}, 20, v{T0}")
        a(f"v_subrev_u32 v{AV}, 16, v{T0}")
        a(f"v_cndmask_b32 v{AK8}, v{AK8}, v{T1}, vcc")
        a(f"v_add_u32 v{AK8}, s{S_RB}, v{AK8}")
        a(f"v_cmp_lt_u32 vcc, 27, v{T0}")
        a.nop(2)
        a(f"v_cndmask_b32 v{T2}, v{T2}, v{AV}, vcc")
        a(f"v_lshlrev_b32 v{T2}, 4, v{T2}")
        a(f"v_lshrrev_b32 v{AV}, 5, v1")
        a(f"v_mul_u32_u24 v{AV}, 336, v{AV}")
        a(f"v_add_u32 v{AV}, v{AV}, v{T2}")
        a(f"v_add_u32 v{AV}, 1296, v{AV}")
        a(f"v_add_u32 v{AV}, s{S_RB}, v{AV}")
        a(f"v_lshlrev_b32 v{T0}, 2, v1")
        a(f"v_add_u32 v{T0}, {DUMMY}, v{T0}")
        a(f"v_mov_b32 v{T1}, s{S_CFB}")
        a(f"v_cmp_eq_u32 vcc, 0, v1")
        a.nop(2)
        a(f"v_cndmask_b32 v{V_CFW}, v{T0}, v{T1}, vcc")
        a(f"v_add_u32 v{V_KW}, s{S_WB}, v{V_L16}")
        a(f"s_lshl_b32 s28, s{S_W}, 2")
        a(f"s_add_u32 s29, s28, {C_PROG}")
        a(f"v_mov_b32 v{T1}, s29")
        a(f"v_cndmask_b32 v150, v{T0}, v{T1}, vcc")
        a(f"s_xor_b32 s28, s28, 16")
        a(f"s_add_u32 s28, s28, {C_PROG}")
        a(f"v_mov_b32 v151, s28")
    def blk_off(t, g=None):
        a(f"s_add_u32 s28, s{S_ROT}, {t}")
        a(f"s_and_b32 s28, s28, 7")
        a(f"s_lshl_b32 s28, s28, 2")
        if g is None:
            a(f"s_lshl_b32 s29, s{S_G}, 5")
            a(f"s_add_u32 s28, s28, s29")
        elif g: a(f"s_add_u32 s28, s28, {32*g}")
        a(f"s_add_u32 s28, s28, s{S_HH}")
        a(f"s_mul_i32 s{S_BLK}, s28, 3072")
    def kv_load(dst):
        for q in range(3):
            a(f"buffer_load_dwordx4 {v(dst+4*q,4)}, v{V_L16}, {R(SRD_WS)}, s{S_BLK} offen offset:{1024*q} sc1")
    def kv_write(src, off=0):
        for q in range(3): a(f"ds_write_b128 v{V_KW}, {v(src+4*q,4)} offset:{off + 1024*q}")
    def wait_chunk(ch):
        if ch < 2:
            if ch == 0: wait_vm(NA, NB)
            else: a("s_waitcnt vmcnt(0)")
            lds_add1_imm(a, C_CL + 4*ch)
            lds_wait_imm(a, C_CL + 4*ch, 8, sleep=0)
        else:
            lds_wait_imm(a, C_CL + 4*ch, 3, sleep=1)
        stamp(a, f"cl{ch}")
    wait_chunk(0)
    q_chunk(0, 0)
    lds_add1_imm(a, C_C0C)
    wait_chunk(1)
    q_chunk(1, 1)
    lds_add1_imm(a, C_C1C)
    tail_addrs()
    bump(2 * SLOT)
    wait_chunk(2)
    q_chunk(2, 2)
    bump(-2 * SLOT)
    wait_chunk(3)
    q_chunk(3, 0)
    KB = [116, 152]
    a(f"v_lshlrev_b32 v{V_L16}, 4, v1")
    lds_wait_imm(a, C_KVOK, 1, sleep=1)
    stamp(a, "kvok")
    blk_off(2); kv_load(KB[0])
    blk_off(3); kv_load(KB[1])
    wait_chunk(4)
    q_chunk(4, 1)
    lds_add1_imm(a, C_QRD)
    stamp(a, "qdone")

    QF16, QF8, QG16, QG8 = 4, 8, 10, 14
    ring_addrs()
    a(f"s_lshl_b32 s28, s{S_W}, 10")
    a(f"v_lshlrev_b32 v{T2}, 4, v1")
    a(f"v_add_u32 v{T2}, s28, v{T2}")
    a(f"v_lshrrev_b32 v{T3}, 1, v{T2}")
    a(f"v_xor_b32 v{V_QXP}, 4096, v{T2}")
    a(f"v_xor_b32 v{V_QXP+1}, 2048, v{T3}")
    a(f"v_add_u32 v{T2}, {QXA}, v{T2}")
    a(f"v_add_u32 v{T3}, {QXB}, v{T3}")
    a(f"v_add_u32 v{V_QXP}, {QXA}, v{V_QXP}")
    a(f"v_add_u32 v{V_QXP+1}, {QXB}, v{V_QXP+1}")
    a(f"s_mov_b32 s28, {hex(f32bits(QSCALE))}")
    for r in range(12): a(f"v_mul_f32 v{QACC+r}, s28, v{QACC+r}")
    a(f"v_cmp_gt_u32 vcc, 32, v1")
    for r in range(4): a(f"v_cvt_pk_bf16_f32 v{QF16+r}, v{QACC+2*r}, v{QACC+2*r+1}")
    for r in range(2): a(f"v_cvt_pk_bf16_f32 v{QF8+r}, v{QACC+8+2*r}, v{QACC+8+2*r+1}")
    a(f"ds_write_b128 v{T2}, {v(QF16,4)}")
    for r in range(2): a(f"v_cndmask_b32 v{QF8+r}, 0, v{QF8+r}, vcc")
    a(f"s_lshl_b32 s28, s{S_W}, 7")
    a(f"s_add_u32 s28, s28, {GP}")
    a(f"v_lshlrev_b32 v{T1}, 2, v1")
    a(f"v_add_u32 v{T1}, s28, v{T1}")
    a(f"ds_write_b64 v{T3}, {v(QF8,2)}")
    a(f"s_mov_b64 exec, 0xffffffff")
    a(f"ds_write_b32 v{T1}, v{GACC}")
    a(f"s_mov_b64 exec, -1")
    a(f"s_lshl_b32 s28, s{S_W}, 2")
    a(f"s_add_u32 s29, s28, {C_QXF}")
    a(f"v_mov_b32 v{T0}, s29")
    lds_add1(a, T0, V_ONE)
    a(f"s_xor_b32 s28, s28, 16")
    a(f"s_add_u32 s28, s28, {C_QXF}")
    a(f"v_mov_b32 v{T0}, s28")
    for r in range(16):
        a(f"v_mov_b32 v{OF+r}, 0"); a(f"v_mov_b32 v{OG+r}, 0")
    for r in range(8): a(f"v_mov_b32 v{P+r}, 0")
    for r in range(4): a(f"v_mov_b32 v{V1+r}, 0")
    for r in range(12, 16): a(f"v_mov_b32 v{SG+r}, 0")
    lds_wait_ge(a, 1, T1, T0, sleep=0)
    a(f"ds_read_b128 {v(QG16,4)}, v{V_QXP}")
    a(f"ds_read_b64 {v(QG8,2)}, v{V_QXP+1}")
    a("s_waitcnt lgkmcnt(0)")
    lds_add1_imm(a, C_QG)
    stamp(a, "qg")
    lds_wait_ge(a, 4, V_CT, V_CFW, sleep=1)
    stamp(a, "full0")
    a(f"ds_read_b128 {v(K16,4)}, v{AK16}")
    a(f"ds_read_b64 {v(K8,2)}, v{AK8}")
    a(f"ds_read_b128 {v(V0,4)}, v{AV}")
    a("s_waitcnt lgkmcnt(0)")
    a(f"v_mfma_f32_32x32x16_bf16 {v(SF,16)}, {v(K16,4)}, {v(QF16,4)}, 0")
    a(f"v_mfma_f32_32x32x8_bf16 {v(SF,16)}, {v(K8,2)}, {v(QF8,2)}, {v(SF,16)}")
    S_T, S_NC, S_GB, S_PR = 34, 39, 79, 80
    S_WS, S_DTG, S_FTG, S_DL, S_NX = 36, 37, 38, 81, 82-0
    S_NX = 90; S_PI = 91; S_NI = 89
    V_CW, V_CN = 112+0, 129-1
    a(f"s_mov_b32 s{S_T}, 0")
    a(f"s_mov_b32 s{S_PR}, 0")
    a(f"s_add_u32 s{S_NC}, s{S_ROT}, 4")
    a(f"s_lshl_b32 s28, s{S_G}, 5")
    a(f"s_add_u32 s28, s28, s{S_HH}")
    a(f"s_mul_i32 s{S_GB}, s28, 3072")
    a(f"s_mov_b32 s{S_WS}, {2*KVSLOT}")
    a(f"s_mov_b32 s{S_PI}, 8")
    a(f"s_mov_b32 s{S_NI}, 4")
    a(f"s_mov_b32 s{S_DTG}, 0")
    a(f"s_mov_b32 s{S_FTG}, 4")
    a(f"s_mov_b32 s{S_NX}, {KVSLOT}")
    V_CP, V_CNX, V_KWP = 113, 108, 109
    AK16N, AK8N, AVN = 129-129+153+11, 0, 0
    V_PG, V_PGP, V_PT = 150, 151, 128
    a(f"v_add_u32 v{V_CP}, 8, v{V_CFW}")
    a(f"v_add_u32 v{V_CNX}, 4, v{V_CFW}")
    a(f"v_add_u32 v{V_KWP}, {2*KVSLOT}, v{V_KW}")
    for cur, nxt in ((104, 94), (105, 95), (106, 107)):
        a(f"v_add_u32 v{nxt}, {KVSLOT}, v{cur}")
    for mt in range(5):
        a(f"buffer_load_dwordx2 {v(QT+2*mt,2)}, v{V_OUT}, {R(SRD_X)}, 0 offen offset:{32*mt}")
    a("s_setprio 1")
    stamp(a, "loop0")
    LOOP = "f_attn"
    if "align" in OPT: a(".p2align 6")
    a.label(LOOP)
    e = lambda S, i: a(f"v_exp_f32 v{S+i}, v{S+i}")
    c = lambda S, i: a(f"v_cvt_pk_bf16_f32 v{P+i}, v{S+2*i}, v{S+2*i+1}")
    def check_cnt(target, vaddr, off):
        ok = a.newlabel("ok"); lp = a.newlabel("rt")
        a(f"v_readfirstlane_b32 s42, v{V_CT}")
        a("s_nop 3")
        a(f"s_cmp_ge_u32 s42, {target}")
        a(f"s_cbranch_scc1 {ok}")
        a(f"s_mov_b32 s43, 0")
        a.label(lp)
        a("s_sleep 1")
        a(f"ds_read_b32 v{V_CT}, v{vaddr} offset:{off}")
        a("s_waitcnt lgkmcnt(0)")
        a(f"v_readfirstlane_b32 s42, v{V_CT}")
        a(f"s_add_u32 s43, s43, 1")
        a(f"s_cmp_ge_u32 s43, {POLL_MAX*8}")
        a(f"s_cbranch_scc1 {ok}")
        a(f"s_cmp_lt_u32 s42, {target}")
        a(f"s_cbranch_scc1 {lp}")
        a.label(ok)
    AN16, AN8, ANV = 153+11-11+0, 0, 0
    AN16, AN8, ANV = 129 + 0, 0, 0
    AN16, AN8, ANV = 94, 95, 107
    for par in range(2):
        for b in range(4):
            last = (b == 3)
            kA16, kA8, kAV, koff = (AN16, AN8, ANV, 0) if last else (AK16, AK8, AV, (b+1)*BLK)
            extra = b in (2, 3)
            c(SG, 6); c(SG, 7)
            a(f"v_mfma_f32_32x32x16_bf16 {v(SG,16)}, {v(K16,4)}, {v(QG16,4)}, 0")
            a(f"ds_read_b128 {v(K16,4)}, v{kA16} offset:{koff}")
            if b == 2: a(f"ds_read_b32 v{V_CT}, v{V_CNX}")
            if b == 3: a(f"ds_read_b32 v{V_CT}, v{V_CP} offset:32")
            for i in range(0, 4): e(SF, i)
            c(SF, 0); c(SF, 1)
            a(f"v_mfma_f32_32x32x16_bf16 {v(OG,16)}, {v(V1,4)}, {v(P+4,4)}, {v(OG,16)}")
            a(f"ds_read_b128 {v(V1,4)}, v{AV} offset:{b*BLK + 672}")
            for i in range(4, 8): e(SF, i)
            c(SF, 2); c(SF, 3)
            a(f"v_mfma_f32_32x32x8_bf16 {v(SG,16)}, {v(K8,2)}, {v(QG8,2)}, {v(SG,16)}")
            a(f"ds_read_b64 {v(K8,2)}, v{kA8} offset:{koff}")
            for i in range(8, 12): e(SF, i)
            c(SF, 4); c(SF, 5)
            a(f"s_waitcnt lgkmcnt({4 if extra else 3})")
            a(f"v_mfma_f32_32x32x16_bf16 {v(OF,16)}, {v(V0,4)}, {v(P,4)}, {v(OF,16)}")
            for i in range(12, 16): e(SF, i)
            c(SF, 6); c(SF, 7)
            a("s_waitcnt lgkmcnt(0)")
            a(f"v_mfma_f32_32x32x16_bf16 {v(SF,16)}, {v(K16,4)}, {v(QF16,4)}, 0")
            if b == 0:
                if par == 0: if_s(a, S_T, "lg", 0, lambda: a(f"ds_add_u32 v{V_CP}, v{V_ONE} offset:32"))
                else: a(f"ds_add_u32 v{V_CP}, v{V_ONE} offset:32")
            if b == 1 and "nolag" not in OPT:
                a(f"ds_read_b32 v{V_PT}, v{V_PGP}")
            if b == 2 and "nofeed" not in OPT:
                lb = a.newlabel("nf")
                a(f"s_cmp_ge_u32 s{S_T}, 7")
                a(f"s_cbranch_scc1 {lb}")
                check_cnt(f"s{S_FTG}", V_CNX, 0)
                a.label(lb)
            if b == 3 and "nofeed" not in OPT:
                lb = a.newlabel("nw")
                a(f"s_cmp_ge_u32 s{S_T}, 6")
                a(f"s_cbranch_scc1 {lb}")
                check_cnt(f"s{S_DTG}", V_CP, 32)
                l6 = a.newlabel("w6"); l7 = a.newlabel("w7")
                a(f"s_cmp_ge_u32 s{S_T}, 5")
                a(f"s_cbranch_scc1 {l6}")
                a("s_waitcnt vmcnt(3)")
                a(f"s_branch {l7}")
                a.label(l6)
                a("s_waitcnt vmcnt(0)")
                a.label(l7)
                for q in range(3): a(f"ds_write_b128 v{V_KWP}, {v(KB[par]+4*q,4)} offset:{1024*q}")
                a(f"ds_add_u32 v{V_CP}, v{V_ONE}")
                a(f"s_cmp_ge_u32 s{S_T}, 4")
                a(f"s_cbranch_scc1 {lb}")
                a(f"s_and_b32 s28, s{S_NC}, 7")
                a(f"s_mul_i32 s28, s28, 12288")
                a(f"s_add_u32 s{S_BLK}, s28, s{S_GB}")
                a(f"s_add_u32 s{S_NC}, s{S_NC}, 1")
                kv_load(KB[par])
                a.label(lb)
            for i in range(0, 4): e(SG, i)
            c(SG, 0); c(SG, 1)
            a(f"v_mfma_f32_32x32x16_bf16 {v(OF,16)}, {v(V1,4)}, {v(P+4,4)}, {v(OF,16)}")
            for i in range(4, 8): e(SG, i)
            c(SG, 2); c(SG, 3)
            a(f"v_mfma_f32_32x32x8_bf16 {v(SF,16)}, {v(K8,2)}, {v(QF8,2)}, {v(SF,16)}")
            for i in range(8, 12): e(SG, i)
            c(SG, 4); c(SG, 5)
            a(f"v_mfma_f32_32x32x16_bf16 {v(OG,16)}, {v(V0,4)}, {v(P,4)}, {v(OG,16)}")
            a(f"ds_read_b128 {v(V0,4)}, v{kAV} offset:{koff}")
            for i in range(12, 16): e(SG, i)
        a(f"s_add_u32 s{S_T}, s{S_T}, 1")
        a(f"s_add_u32 s{S_NX}, s{S_NX}, {KVSLOT}")
        a(f"s_cmp_ge_u32 s{S_NX}, {3*KVSLOT}")
        a(f"s_cselect_b32 s{S_DL}, s78, s35" if False else f"s_cselect_b32 s{S_DL}, {(-2*KVSLOT) & 0xffffffff}, s77" if False else f"s_cselect_b32 s{S_NX}, 0, s{S_NX}")
        a(f"s_mov_b32 s{S_DL}, {KVSLOT}")
        a(f"s_cselect_b32 s28, {(-3*KVSLOT) & 0xffffffff}, 0")
        a(f"s_add_u32 s{S_DL}, s{S_DL}, s28")
        for cur, nxt in ((AK16, AN16), (AK8, AN8), (AV, ANV)):
            a(f"v_mov_b32 v{cur}, v{nxt}")
            a(f"v_add_u32 v{nxt}, s{S_DL}, v{nxt}")
        a(f"s_add_u32 s{S_NI}, s{S_NI}, 4")
        a(f"s_cmp_ge_u32 s{S_NI}, 12")
        a(f"s_cselect_b32 s29, 4, 0")
        a(f"s_cselect_b32 s28, -8, 4")
        a(f"s_cselect_b32 s{S_NI}, 0, s{S_NI}")
        a(f"s_add_u32 s{S_FTG}, s{S_FTG}, s29")
        a(f"v_add_u32 v{V_CNX}, s28, v{V_CNX}")
        a(f"s_add_u32 s{S_PI}, s{S_PI}, 4")
        a(f"s_cmp_ge_u32 s{S_PI}, 12")
        a(f"s_cselect_b32 s29, 4, 0")
        a(f"s_cselect_b32 s28, -8, 4")
        a(f"s_cselect_b32 s{S_PI}, 0, s{S_PI}")
        a(f"s_add_u32 s{S_DTG}, s{S_DTG}, s29")
        a(f"v_add_u32 v{V_CP}, s28, v{V_CP}")
        a(f"s_cselect_b32 s28, {(-2*KVSLOT) & 0xffffffff}, s77" if False else f"s_mul_i32 s28, s28, {KVSLOT // 4}")
        a(f"v_add_u32 v{V_KWP}, s28, v{V_KWP}")
        if "nolag" not in OPT:
            a(f"v_mov_b32 v{V_CT}, s{S_T}")
            a(f"v_readfirstlane_b32 s42, v{V_PT}")
            a(f"ds_write_b32 v{V_PG}, v{V_CT}")
            lpa = a.newlabel("pa"); lpb = a.newlabel("pb")
            a(f"s_cmp_gt_u32 s{S_T}, s42")
            a(f"s_cbranch_scc1 {lpa}")
            a("s_setprio 2")
            a(f"s_branch {lpb}")
            a.label(lpa)
            a("s_setprio 1")
            a.label(lpb)
    a(f"s_cmp_lt_u32 s{S_T}, 8")
    a(f"s_cbranch_scc1 {LOOP}")
    stamp(a, "loopE")
    S_FBD = 81
    a(f"s_mov_b32 s{S_FBD}, 0")
    c(SG, 6); c(SG, 7)
    a(f"s_mul_i32 s28, s{S_W}, 3072")
    a(f"s_add_u32 s28, s28, {OX}")
    a(f"v_add_u32 v{T2}, s28, v{V_L16}")
    a(f"s_xor_b32 s29, s{S_W}, 4")
    a(f"s_mul_i32 s29, s29, 3072")
    a(f"s_add_u32 s29, s29, {OX}")
    a(f"v_mfma_f32_32x32x16_bf16 {v(OG,16)}, {v(V1,4)}, {v(P+4,4)}, {v(OG,16)}")
    a(f"v_add_u32 v{T3}, s29, v{V_L16}")
    a("s_setprio 2")
    V_LA = 94
    def cadd(addr):
        a(f"v_add_u32 v95, {addr}, v{V_LA}" if False else f"v_mov_b32 v95, {addr}")
        lds_add1(a, 95, V_ONE)
    a("s_waitcnt lgkmcnt(0)")
    cadd(C_LE)
    a.nop(6)
    for q in range(3): a(f"ds_write_b128 v{T2}, {v(OG+4*q,4)} offset:{1024*q}")
    a(f"s_lshl_b32 s28, s{S_W}, 2")
    a(f"s_add_u32 s30, s28, {C_XF}")
    a(f"v_mov_b32 v95, s30")
    lds_add1(a, 95, V_ONE)
    a(f"s_xor_b32 s28, s28, 16")
    a(f"s_add_u32 s30, s28, {C_XF}")
    a(f"v_mov_b32 v{T0}, s30")
    lds_wait_ge(a, 1, T1, T0, sleep=0)
    stamp(a, "xf")
    lds_wait_imm(a, C_CVD, 3, sleep=1)
    stamp(a, "J1")
    PB = 16
    for q in range(3): a(f"ds_read_b128 {v(PB+4*q,4)}, v{T3} offset:{1024*q}")
    a("s_waitcnt lgkmcnt(0)")
    for r in range(12): a(f"v_add_f32 v{OF+r}, v{OF+r}, v{PB+r}")
    NORM = "f_norm"; FB = "f_fallback"
    a.label(NORM)
    a(f"v_mov_b32 v40, v{OF+8}")
    a(f"v_mov_b32 v41, v{OF+8}")
    a.nop(2)
    a(f"v_permlane32_swap_b32 v40, v41")
    a(f"v_max3_f32 v42, abs(v{OF}), abs(v{OF+1}), abs(v{OF+2})")
    a(f"v_max3_f32 v43, abs(v{OF+3}), abs(v{OF+4}), abs(v{OF+5})")
    a(f"v_max3_f32 v42, v42, abs(v{OF+6}), abs(v{OF+7})")
    a(f"v_max3_f32 v43, v43, abs(v{OF+8}), abs(v{OF+9})")
    a(f"v_max3_f32 v42, v42, abs(v{OF+10}), abs(v{OF+11})")
    a(f"v_max_f32 v42, v42, v43")
    a(f"s_mov_b32 s28, 0x21800000")
    a(f"s_mov_b32 s29, 0x5d800000")
    a(f"s_mov_b32 s30, 0x7e800000")
    a(f"v_cmp_ge_f32 s[40:41], v41, s28" if False else f"v_cmp_le_f32 s[40:41], s28, v41")
    a(f"v_cmp_ge_f32 vcc, s29, v41")
    a(f"s_and_b64 s[40:41], s[40:41], vcc")
    a(f"v_cmp_gt_f32 vcc, s30, v42")
    a(f"s_and_b64 s[40:41], s[40:41], vcc")
    a(f"s_or_b32 s40, s40, s{S_FBD}")
    a(f"s_or_b32 s41, s41, s{S_FBD}")
    a(f"s_cmp_eq_u64 s[40:41], -1")
    a(f"s_cbranch_scc0 {FB}")
    a(f"v_rcp_f32 v41, v41")
    a.nop(1)
    for r in range(12): a(f"v_mul_f32 v{OF+r}, v{OF+r}, v41")
    for r in range(6): a(f"v_cvt_pk_bf16_f32 v{104+r}, v{OF+2*r}, v{OF+2*r+1}")
    a(f"ds_write_b64 v{V_STG}, v[104:105]")
    a(f"ds_write_b64 v{V_STG}, v[106:107] offset:16")
    a(f"s_mov_b64 exec, 0xffffffff")
    a(f"ds_write_b64 v{V_STG}, v[108:109] offset:32")
    a(f"s_mov_b64 exec, -1")
    cadd(C_ST)
    a(f"s_mul_i32 s29, s{S_I}, 81920")
    a(f"s_mul_i32 s30, s{S_J}, 2560")
    a(f"s_add_u32 s29, s29, s30")
    a(f"s_add_u32 s29, s29, {O_OFF}")
    stamp(a, "stg")
    lds_wait_imm(a, C_ST, 8, sleep=0)
    stamp(a, "st8")
    a(f"ds_read_b128 v[44:47], v{V_OL0}")
    if_wave(a, "lt", 2, lambda: a(f"ds_read_b128 v[48:51], v{V_OL1}"))
    a("s_waitcnt lgkmcnt(0)")
    a(f"buffer_store_dwordx4 v[44:47], v{V_OG0}, {R(SRD_WS)}, s29 offen sc1")
    if_wave(a, "lt", 2, lambda: a(f"buffer_store_dwordx4 v[48:51], v{V_OG1}, {R(SRD_WS)}, s29 offen sc1"))
    OFR, ACC, AF = 16, 56, 76
    def ldsA(s_):
        b = s_ & 1
        for mt in range(5):
            a(f"ds_read_b64_tr_b16 {v(AF+20*b+4*mt,2)}, v{V_WT} offset:{s_*5120 + 32*mt}")
            a(f"ds_read_b64_tr_b16 {v(AF+20*b+4*mt+2,2)}, v{V_WT} offset:{s_*5120 + 1280 + 32*mt}")
    for r in range(20): a(f"v_mov_b32 v{ACC+r}, 0")
    a(f"s_mul_i32 s28, s{S_I}, 81920")
    a(f"s_mul_i32 s29, s{S_HH}, 20480")
    a(f"s_add_u32 s28, s28, s29")
    a(f"s_mul_i32 s29, s{S_G}, 10240")
    a(f"s_add_u32 s28, s28, s29")
    a(f"s_add_u32 s28, s28, {O_OFF}")
    a("s_waitcnt vmcnt(0)")
    stamp(a, "ostd")
    cadd(C_OCNT)
    a(f"s_cmp_eq_u32 s{S_G}, 0")
    a(f"s_cselect_b32 s30, 0, {C_WOKB - C_WOK}")
    a(f"s_add_u32 s30, s30, {C_WOK}")
    a(f"v_mov_b32 v{T0}, s30")
    lds_wait_ge(a, 3, T1, T0, sleep=1)
    stamp(a, "wok")
    ldsA(0)
    lds_wait_imm(a, C_OOK, 1, sleep=0)
    stamp(a, "h4ok")
    for s_ in range(10):
        a(f"buffer_load_dwordx4 {v(OFR+4*s_,4)}, v{V_TL16}, {R(SRD_WS)}, s28 offen offset:{1024*(s_%4)} sc1")
        if s_ % 4 == 3: a(f"s_add_u32 s28, s28, 4096")
    for s_ in range(10):
        if s_ < 9:
            ldsA(s_ + 1); a(f"s_waitcnt lgkmcnt(10) vmcnt({9 - s_})")
        else:
            a("s_waitcnt lgkmcnt(0) vmcnt(0)")
        b = s_ & 1
        for mt in range(5):
            a(f"v_mfma_f32_16x16x32_bf16 {v(ACC+4*mt,4)}, {v(AF+20*b+4*mt,4)}, {v(OFR+4*s_,4)}, {v(ACC+4*mt,4)}")
    stamp(a, "oproj")
    YF, GV = 16, 30
    FINA = "f_fina"; FINB = "f_finb"
    a(f"v_xor_b32 v{T3}, 0, v{V_PX}" if False else f"s_xor_b32 s29, s{S_W}, 4")
    a(f"s_mul_i32 s29, s29, 3072")
    a(f"s_add_u32 s29, s29, {PX}")
    a(f"v_add_u32 v{T3}, s29, v{V_TL16}")
    lds_wait_imm(a, C_YW, 2, T1, T0, sleep=0)
    stamp(a, "yw")
    def fin(keep, send):
        for mt in keep: a(f"ds_read_b64_tr_b16 {v(YF+2*mt,2)}, v{V_YT} offset:{2048*mt}")
        a(f"ds_read_b32 v{GV}, v{V_GA}")
        a.nop(4)
        for n, mt in enumerate(send): a(f"ds_write_b128 v{V_PX}, {v(ACC+4*mt,4)} offset:{1024*n}")
        a(f"s_lshl_b32 s28, s{S_W}, 2")
        a(f"s_add_u32 s30, s28, {C_PF}")
        a(f"v_mov_b32 v{T0}, s30")
        a(f"v_mov_b32 v{T1}, 1")
        lds_add1(a, T0, T1)
        a("s_waitcnt lgkmcnt(0)")
        for mt in keep:
            for hlf in range(2):
                yq = YF + 2*mt + hlf; qq = QT + 2*mt + hlf; d = 32 + 4*mt + 2*hlf
                a(f"v_lshlrev_b32 v{d}, 16, v{yq}")
                a(f"v_and_b32 v{d+1}, 0xffff0000, v{yq}")
                a(f"v_lshlrev_b32 v52, 16, v{qq}")
                a(f"v_and_b32 v53, 0xffff0000, v{qq}")
                a(f"v_mul_f32 v52, v52, v{GV}")
                a(f"v_mul_f32 v53, v53, v{GV}")
                a(f"v_mul_f32 v{d}, v{d}, v52")
                a(f"v_mul_f32 v{d+1}, v{d+1}, v53")
        a(f"v_sub_f32 v{GV+1}, 1.0, v{GV}")
        a(f"s_xor_b32 s28, s28, 16")
        a(f"s_add_u32 s30, s28, {C_PF}")
        a(f"v_mov_b32 v{T0}, s30")
        lds_wait_ge(a, 1, T1, T0, sleep=0)
        for n, mt in enumerate(keep): a(f"ds_read_b128 {v(AF+4*n,4)}, v{T3} offset:{1024*n}")
        for n, mt in enumerate(keep):
            a(f"s_waitcnt lgkmcnt({len(keep)-1-n})")
            for r in range(4): a(f"v_add_f32 v{ACC+4*mt+r}, v{ACC+4*mt+r}, v{AF+4*n+r}")
            for r in range(4): a(f"v_fmac_f32 v{32+4*mt+r}, v{ACC+4*mt+r}, v{GV+1}")
            a(f"v_cvt_pk_bf16_f32 v{100+2*mt}, v{32+4*mt}, v{32+4*mt+1}")
            a(f"v_cvt_pk_bf16_f32 v{100+2*mt+1}, v{32+4*mt+2}, v{32+4*mt+3}")
            a(f"buffer_store_dwordx2 {v(100+2*mt,2)}, v{V_OUT}, {R(SRD_OUT)}, 0 offen offset:{32*mt}")
    a(f"s_cmp_ge_u32 s{S_W}, 4")
    a(f"s_cbranch_scc1 {FINB}")
    fin([0, 1, 2], [3, 4])
    a(f"s_branch f_fin")
    a.label(FINB)
    fin([3, 4], [0, 1, 2])
    a(f"s_branch f_fin")

    a.label(FB)
    FK16, FK8, FV0, FV1 = 88, 92, 96, 100
    FA16, FA8, FAV, FM = 44, 45, 46, 47
    a(f"v_lshlrev_b32 v{FA16}, 4, v1")
    a(f"v_and_b32 v{T0}, 31, v1")
    a(f"v_lshlrev_b32 v{T1}, 3, v{T0}")
    a(f"v_add_u32 v{T1}, 1024, v{T1}")
    a(f"v_mov_b32 v{FA8}, 1280")
    a(f"v_cmp_gt_u32 vcc, 32, v1")
    a(f"v_min_u32 v{FM}, 20, v{T0}")
    a.nop(1)
    a(f"v_cndmask_b32 v{FA8}, v{FA8}, v{T1}, vcc")
    a(f"v_lshlrev_b32 v{FM}, 4, v{FM}")
    a(f"v_lshrrev_b32 v{FAV}, 5, v1")
    a(f"v_mul_u32_u24 v{FAV}, 336, v{FAV}")
    a(f"v_add_u32 v{FAV}, v{FAV}, v{FM}")
    a(f"v_add_u32 v{FAV}, 1296, v{FAV}")
    a(f"v_mov_b32 v{FM}, 0xff800000")
    a(f"s_mov_b32 s28, 0")
    FL1 = a.newlabel("fb1")
    a.label(FL1)
    a(f"buffer_load_dwordx4 {v(FK16,4)}, v{FA16}, {R(SRD_WS)}, s28 offen sc1")
    a(f"buffer_load_dwordx2 {v(FK8,2)}, v{FA8}, {R(SRD_WS)}, s28 offen sc1")
    a("s_waitcnt vmcnt(0)")
    a(f"v_mfma_f32_32x32x16_bf16 {v(SF,16)}, {v(FK16,4)}, {v(QF16,4)}, 0")
    a(f"v_mfma_f32_32x32x8_bf16 {v(SF,16)}, {v(FK8,2)}, {v(QF8,2)}, {v(SF,16)}")
    a.nop(16); a.nop(4)
    for r in range(0, 16, 2): a(f"v_max3_f32 v{FM}, v{FM}, v{SF+r}, v{SF+r+1}")
    a(f"s_add_u32 s28, s28, 3072")
    a(f"s_cmp_lt_u32 s28, {64*3072}")
    a(f"s_cbranch_scc1 {FL1}")
    a(f"v_mov_b32 v{T0}, v{FM}")
    a(f"v_mov_b32 v{T1}, v{FM}")
    a.nop(2)
    a(f"v_permlane32_swap_b32 v{T0}, v{T1}")
    a.nop(2)
    a(f"v_max3_f32 v{FM}, v{FM}, v{T0}, v{T1}")
    a(f"v_sub_f32 v{T0}, 0, v{FM}")
    a(f"v_cvt_pk_bf16_f32 v{T1}, v{T0}, v{T0}")
    a(f"v_and_b32 v42, 0xffff0000, v{T1}")
    a(f"v_sub_f32 v{T0}, v{T0}, v42")
    a(f"v_cvt_pk_bf16_f32 v43, v{T0}, v{T0}")
    a(f"v_and_b32 v42, 0xffff0000, v43")
    a(f"v_sub_f32 v{T0}, v{T0}, v42")
    a(f"v_cvt_pk_bf16_f32 v{T0}, v{T0}, v{T0}")
    a(f"v_and_b32 v{T1}, 0xffff, v{T1}")
    a(f"v_or_b32 v{T1}, v{T1}, v42")
    a(f"v_and_b32 v{T0}, 0xffff, v{T0}")
    a(f"v_cmp_gt_u32 vcc, 32, v1")
    a.nop(2)
    a(f"v_cndmask_b32 v{QF8}, v{T1}, v{QF8}, vcc")
    a(f"v_cndmask_b32 v{QF8+1}, v{T0}, v{QF8+1}, vcc")
    for r in range(16): a(f"v_mov_b32 v{OF+r}, 0")
    a(f"s_mov_b32 s28, 0")
    FL2 = a.newlabel("fb2")
    a.label(FL2)
    a(f"buffer_load_dwordx4 {v(FK16,4)}, v{FA16}, {R(SRD_WS)}, s28 offen sc1")
    a(f"buffer_load_dwordx2 {v(FK8,2)}, v{FA8}, {R(SRD_WS)}, s28 offen sc1")
    a(f"buffer_load_dwordx4 {v(FV0,4)}, v{FAV}, {R(SRD_WS)}, s28 offen sc1")
    a(f"buffer_load_dwordx4 {v(FV1,4)}, v{FAV}, {R(SRD_WS)}, s28 offen offset:672 sc1")
    a("s_waitcnt vmcnt(0)")
    a(f"v_mfma_f32_32x32x16_bf16 {v(SF,16)}, {v(FK16,4)}, {v(QF16,4)}, 0")
    a(f"v_mfma_f32_32x32x8_bf16 {v(SF,16)}, {v(FK8,2)}, {v(QF8,2)}, {v(SF,16)}")
    a.nop(16); a.nop(4)
    for i in range(16): a(f"v_exp_f32 v{SF+i}, v{SF+i}")
    a.nop(1)
    for i in range(8): a(f"v_cvt_pk_bf16_f32 v{P+i}, v{SF+2*i}, v{SF+2*i+1}")
    a.nop(2)
    a(f"v_mfma_f32_32x32x16_bf16 {v(OF,16)}, {v(FV0,4)}, {v(P,4)}, {v(OF,16)}")
    a(f"v_mfma_f32_32x32x16_bf16 {v(OF,16)}, {v(FV1,4)}, {v(P+4,4)}, {v(OF,16)}")
    a(f"s_add_u32 s28, s28, 3072")
    a(f"s_cmp_lt_u32 s28, {64*3072}")
    a(f"s_cbranch_scc1 {FL2}")
    a.nop(16)
    a(f"s_mov_b32 s{S_FBD}, -1")
    a(f"s_branch {NORM}")

    a.label(PSTART)
    a("s_setprio 3")
    a(f"v_mov_b32 v4, 0")
    if "nocpf" not in OPT:
        a(f"s_getpc_b64 s[28:29]")
        a.label("f_pcref")
        a(f"s_sub_u32 s28, s28, f_pcref-{NAME}_kernel")
        a(f"s_subb_u32 s29, s29, 0")
        a(f"s_lshr_b32 s30, s2, 3")
        a(f"s_min_u32 s30, s30, (f_end-{NAME}_kernel)/1024-1")
        a(f"s_lshl_b32 s30, s30, 10")
        a(f"v_lshlrev_b32 v24, 4, v1")
        a(f"v_add_u32 v24, s30, v24")
        a(f"global_load_dwordx4 v[28:31], v24, s[28:29]")
        if "cpf2" in OPT: a(f"global_load_dwordx4 v[28:31], v24, s[28:29] offset:0")
    lead = a.newlabel("lead")
    def lead_fn():
        a(f"s_memrealtime s[28:29]")
        a("s_waitcnt lgkmcnt(0)")
        a(f"s_or_b32 s28, s28, 1")
        a(f"v_mov_b32 v5, s28")
        a(f"s_mov_b64 exec, 1")
        a(f"buffer_store_dword v5, v4, {R(SRD_DBG)}, 0 offen sc1")
        a(f"s_mov_b64 exec, -1")
    if_s(a, 2, "eq", 0, lead_fn)
    a(f"buffer_load_dword v20, v4, {R(SRD_DBG)}, 0 offen sc1")
    a(f"v_lshlrev_b32 v6, 21, v1")
    a(f"s_mov_b64 exec, 0xf")
    a(f"buffer_load_dword v8, v6, {R(SRD_WS)}, 0 offen offset:2048")
    a(f"s_mov_b64 exec, 0x3")
    a(f"buffer_load_dword v9, v6, {R(SRD_H)}, 0 offen")
    a(f"buffer_load_dword v10, v6, {R(SRD_OUT)}, 0 offen")
    a(f"s_mov_b64 exec, 0x1")
    a(f"buffer_load_dword v11, v6, {R(SRD_WO)}, 0 offen")
    a(f"s_mov_b64 exec, -1")
    a(f"v_lshlrev_b32 v5, 2, v1")
    a(f"v_add_u32 v7, {CNT}, v5")
    a(f"ds_write_b32 v7, v4")
    a(f"ds_write_b32 v7, v4 offset:256")
    a(f"s_mov_b64 exec, -1")
    a("s_waitcnt lgkmcnt(0)")
    a("s_barrier")
    lds_wait_imm(a, C_UP, 4, sleep=0)
    PXF, PWF = 16, 48
    a(f"v_lshlrev_b32 v{T0}, 4, v1")
    a(f"v_add_u32 v{T1}, {UNIT_W}, v{T0}")
    for p_ in range(4):
        a(f"ds_read_b128 {v(PXF+8*p_,4)}, v{T1} offset:{UNIT_S*p_}")
        a(f"ds_read_b128 {v(PXF+8*p_+4,4)}, v{T1} offset:{UNIT_S*p_+1024}")
    a(f"s_lshl_b32 s28, s{S_I}, 1")
    a(f"s_bfe_u32 s29, s{S_J}, 0x10001")
    a(f"s_add_u32 s28, s28, s29")
    a(f"s_mul_i32 s29, s28, 3072")
    a(f"s_and_b32 s30, s{S_J}, 1")
    a("s_waitcnt lgkmcnt(0)")
    a(f"v_mov_b32 v12, {C_PD}")
    a(f"v_mov_b32 v13, 1")
    a(f"ds_write_b32 v12, v13")
    for p_ in range(1, 4):
        for r in range(8): a(f"v_add_f32 v{PXF+r}, v{PXF+r}, v{PXF+8*p_+r}")
    for r in range(4): a(f"v_cvt_pk_bf16_f32 v{PWF+r if r<2 else PWF+4+(r-2)}, v{PXF+2*r}, v{PXF+2*r+1}")
    a(f"v_mov_b32 v{PWF+6}, v{PWF}")
    a(f"v_mov_b32 v{PWF+7}, v{PWF+1}")
    a.nop(2)
    a(f"v_permlane32_swap_b32 v{PWF+6}, v{PWF+2}")
    a(f"v_permlane32_swap_b32 v{PWF+7}, v{PWF+3}")
    a(f"v_and_b32 v{T0}, 15, v1")
    a(f"v_bfe_u32 v{T1}, v1, 4, 1")
    labV2 = a.newlabel("stV"); labP = a.newlabel("pub")
    a(f"s_cmp_ge_u32 s{S_J}, 4")
    a(f"s_cbranch_scc1 {labV2}")
    a(f"s_lshl_b32 s31, s30, 4")
    a(f"v_add_u32 v{T0}, s31, v{T0}")
    a(f"v_lshlrev_b32 v{T1}, 5, v{T1}")
    a(f"v_add_u32 v{T1}, v{T1}, v{T0}")
    a(f"v_lshlrev_b32 v{T1}, 4, v{T1}")
    a(f"s_mov_b64 exec, 0xffffffff")
    a(f"buffer_store_dwordx4 {v(PWF,4)}, v{T1}, {R(SRD_WS)}, s29 offen sc1")
    a(f"s_mov_b64 exec, -1")
    a(f"v_lshlrev_b32 v{T0}, 3, v{T0}")
    a(f"v_add_u32 v{T0}, 1024, v{T0}")
    a(f"v_mov_b32 v{T1}, 1280")
    a(f"v_mov_b32 v{T2}, 0x3f803f80")
    a(f"v_mov_b32 v{T3}, 0x3f80")
    a(f"v_cmp_eq_u32 vcc, 16, v1")
    a.nop(2)
    a(f"v_cndmask_b32 v{T0}, v{T0}, v{T1}, vcc")
    a(f"v_cndmask_b32 v{PWF+4}, v{PWF+4}, v{T2}, vcc")
    a(f"v_cndmask_b32 v{PWF+5}, v{PWF+5}, v{T3}, vcc")
    a(f"s_mov_b32 s41, 0xffff")
    a(f"s_cmp_eq_u32 s30, 0")
    a(f"s_cselect_b32 s40, 0x1ffff, s41")
    a(f"s_mov_b32 s41, 0")
    a(f"s_mov_b64 exec, s[40:41]")
    a(f"buffer_store_dwordx2 {v(PWF+4,2)}, v{T0}, {R(SRD_WS)}, s29 offen sc1")
    a(f"s_mov_b64 exec, -1")
    a(f"s_branch {labP}")
    a.label(labV2)
    a(f"s_mul_i32 s31, s30, 672")
    a(f"s_add_u32 s31, s31, 1296")
    a(f"v_mul_u32_u24 v{T1}, 336, v{T1}")
    a(f"v_lshlrev_b32 v{T2}, 4, v{T0}")
    a(f"v_add_u32 v{T1}, v{T1}, v{T2}")
    a(f"v_add_u32 v{T1}, s31, v{T1}")
    a(f"s_mov_b64 exec, 0xffffffff")
    a(f"buffer_store_dwordx4 {v(PWF,4)}, v{T1}, {R(SRD_WS)}, s29 offen sc1")
    a(f"s_mov_b64 exec, -1")
    a(f"v_mov_b32 v{T2}, 0x3f803f80")
    a(f"v_cmp_eq_u32 vcc, 4, v{T0}")
    a.nop(2)
    a(f"v_cndmask_b32 v{PWF+4}, v{PWF+4}, v{T2}, vcc")
    a(f"v_cndmask_b32 v{PWF+5}, v{PWF+5}, v{T2}, vcc")
    a(f"v_mov_b32 v{PWF}, v{PWF+4}")
    a(f"v_mov_b32 v{PWF+1}, v{PWF+5}")
    a.nop(2)
    a(f"v_permlane32_swap_b32 v{PWF}, v{PWF+6}")
    a(f"v_permlane32_swap_b32 v{PWF+1}, v{PWF+7}")
    a(f"s_mov_b32 s40, 0x001f001f")
    a(f"s_mov_b32 s41, 0")
    a(f"s_mov_b64 exec, s[40:41]")
    a.nop(2)
    a(f"buffer_store_dwordx4 {v(PWF+4,4)}, v{T1}, {R(SRD_WS)}, s29 offen offset:256 sc1")
    a(f"s_mov_b64 exec, -1")
    a.label(labP)
    a(f"s_lshr_b32 s29, s28, 2")
    a(f"s_lshl_b32 s29, s29, 7")
    a(f"s_and_b32 s31, s28, 3")
    a(f"s_lshl_b32 s31, s31, 2")
    a(f"s_lshl_b32 s30, s30, 1")
    a(f"s_add_u32 s31, s31, s30")
    a(f"s_lshr_b32 s30, s{S_J}, 2")
    a(f"s_add_u32 s31, s31, s30")
    a(f"s_lshl_b32 s31, s31, 2")
    a(f"s_add_u32 s34, s29, s31")
    a(f"s_add_u32 s34, s34, {H1}")
    def push(nl, stride_sh, sbase):
        a(f"v_lshlrev_b32 v{T0}, {stride_sh}, v1")
        a(f"v_mov_b32 v{T1}, s{S_NONCE}")
        a(f"s_mov_b64 exec, {hex((1 << nl) - 1)}")
        a(f"buffer_store_dword v{T1}, v{T0}, {R(SRD_WS)}, s{sbase} offen sc1")
        a(f"s_mov_b64 exec, -1")
    def setw(addr):
        a(f"v_mov_b32 v12, {addr}")
        a(f"v_mov_b32 v13, 1")
        a(f"ds_write_b32 v12, v13")
    def ld(): a(f"buffer_load_dword v5, v4, {R(SRD_DBG)}, 0 offen sc1")
    def ck():
        a(f"v_readfirstlane_b32 s{S_NONCE}, v5")
        a("s_nop 3")
        a(f"s_cmp_lg_u32 s{S_NONCE}, 0")
    poll_global(a, ld, ck, sleep=0)
    push(8, 11, 34)
    setw(C_PFL)
    stamp(a, "pflag")
    VKF = 6
    a(f"v_lshrrev_b32 v{VKF}, 2, v1")
    a(f"v_lshlrev_b32 v{VKF}, 7, v{VKF}")
    a(f"v_and_b32 v{T1}, 3, v1")
    a(f"v_lshlrev_b32 v{T1}, 4, v{T1}")
    a(f"v_add_u32 v{VKF}, v{VKF}, v{T1}")
    a(f"s_and_b32 s36, s2, 7")
    a(f"s_lshl_b32 s36, s36, 11")
    a(f"s_add_u32 s36, s36, {H1}")
    a(f"s_lshl_b32 s37, s{S_I}, 3")
    a(f"s_add_u32 s37, s37, s{S_J}")
    a(f"s_lshl_b32 s37, s37, 7")
    a(f"s_lshl_b32 s38, s{S_J}, 7")
    a(f"s_lshl_b32 s39, s{S_I}, 2")
    a(f"s_add_u32 s38, s38, s39")
    a(f"v_lshlrev_b32 v7, 2, v1")
    a(f"v_mov_b32 v14, {C_UCNT}")
    poll_flags(a, VKF, "s36", 0xffffffffffffffff, 8, n=4, sleep=0)
    setw(C_KVOK)
    stamp(a, "pkvok")
    a(f"s_mov_b32 s35, 1")
    def service_step(with_barrier):
        l1 = a.newlabel("sv"); l2 = a.newlabel("sv"); l3 = a.newlabel("sv"); l4 = a.newlabel("sv")
        a(f"s_bitcmp1_b32 s35, 0")
        a(f"s_cbranch_scc1 {l1}")
        a(f"buffer_load_dwordx4 v[8:11], v{VKF}, {R(SRD_WS)}, s36 offen sc1")
        a.label(l1)
        a(f"ds_read_b32 v15, v14")
        a(f"s_add_u32 s29, s37, {H2}")
        a(f"buffer_load_dword v16, v7, {R(SRD_WS)}, s29 offen sc1")
        if with_barrier: a("s_barrier")
        a("s_waitcnt vmcnt(0) lgkmcnt(0)")
        a(f"s_bitcmp1_b32 s35, 0")
        a(f"s_cbranch_scc1 {l2}")
        a(f"s_mov_b64 s[40:41], -1")
        flags_check(a, 8, 4)
        a(f"s_cbranch_scc0 {l2}")
        setw(C_KVOK)
        a(f"s_or_b32 s35, s35, 1")
        a.label(l2)
        a(f"s_bitcmp1_b32 s35, 1")
        a(f"s_cbranch_scc1 {l3}")
        a(f"v_readfirstlane_b32 s42, v15")
        a("s_nop 3")
        a(f"s_cmp_lt_u32 s42, 3")
        a(f"s_cbranch_scc1 {l3}")
        a(f"s_add_u32 s29, s38, {H2}")
        push(32, 10, 29)
        a(f"s_or_b32 s35, s35, 2")
        a.label(l3)
        a(f"s_bitcmp1_b32 s35, 2")
        a(f"s_cbranch_scc1 {l4}")
        a(f"s_mov_b32 s40, -1")
        a(f"s_mov_b32 s41, 0")
        flags_check(a, 16, 1)
        a(f"s_cbranch_scc0 {l4}")
        setw(C_UOK)
        a(f"s_or_b32 s35, s35, 4")
        a.label(l4)
    lp = a.newlabel("svl"); dn = a.newlabel("svd")
    a(f"s_mov_b32 s33, 0")
    a.label(lp)
    a(f"s_cmp_eq_u32 s35, 7")
    a(f"s_cbranch_scc1 {dn}")
    service_step(False)
    a(f"s_add_u32 s33, s33, 1")
    a(f"s_cmp_lt_u32 s33, {POLL_MAX}")
    a(f"s_cbranch_scc1 {lp}")
    a.label(dn)
    stamp(a, "psvc")
    lds_wait_imm(a, C_CVD, 3, sleep=8)
    a(f"s_add_u32 s29, s38, {H3}")
    push(32, 10, 29)
    stamp(a, "pyflag")
    a(f"s_mov_b32 s35, 0")
    a(f"s_mov_b32 s33, 0")
    lyp = a.newlabel("yp"); lyd = a.newlabel("yd")
    a.label(lyp)
    a(f"s_add_u32 s29, s37, {H3}")
    a(f"buffer_load_dword v8, v7, {R(SRD_WS)}, s29 offen sc1")
    a(f"v_mov_b32 v12, {C_PROG}")
    a(f"ds_read_b32 v15, v12")
    a("s_waitcnt vmcnt(0) lgkmcnt(0)")
    a(f"s_mov_b32 s40, -1")
    a(f"s_mov_b32 s41, 0")
    flags_check(a, 8, 1)
    lyn = a.newlabel("yn")
    a(f"s_cbranch_scc0 {lyn}")
    setw(C_YOK)
    a(f"s_mov_b32 s35, 1")
    a(f"s_branch {lyd}")
    a.label(lyn)
    a(f"v_readfirstlane_b32 s42, v15")
    a("s_nop 3")
    a(f"s_cmp_ge_u32 s42, 7")
    a(f"s_cbranch_scc1 {lyd}")
    a(f"s_add_u32 s33, s33, 1")
    a(f"s_cmp_lt_u32 s33, {POLL_MAX}")
    a(f"s_cbranch_scc0 {lyd}")
    a("s_sleep 8")
    a(f"s_branch {lyp}")
    a.label(lyd)
    stamp(a, "pyok")
    a("s_waitcnt lgkmcnt(0)")
    lds_wait_imm(a, C_OCNT, 8, sleep=0)
    a(f"s_lshl_b32 s29, s{S_I}, 10")
    a(f"s_lshl_b32 s30, s{S_J}, 2")
    a(f"s_add_u32 s29, s29, s30")
    a(f"s_add_u32 s29, s29, {H4}")
    push(8, 7, 29)
    stamp(a, "popush")
    a(f"s_mov_b32 s33, 0")
    lop = a.newlabel("op"); lod = a.newlabel("od"); lo2 = a.newlabel("o2"); lo3 = a.newlabel("o3")
    a.label(lop)
    a(f"s_add_u32 s29, s37, {H4}")
    a(f"buffer_load_dword v8, v7, {R(SRD_WS)}, s29 offen sc1")
    a(f"s_add_u32 s29, s37, {H3}")
    a(f"buffer_load_dword v9, v7, {R(SRD_WS)}, s29 offen sc1")
    a("s_waitcnt vmcnt(0)")
    a(f"s_bitcmp1_b32 s35, 1")
    a(f"s_cbranch_scc1 {lo2}")
    a(f"s_mov_b32 s40, 0xff")
    a(f"s_mov_b32 s41, 0")
    flags_check(a, 8, 1)
    a(f"s_cbranch_scc0 {lo2}")
    setw(C_OOK)
    a(f"s_or_b32 s35, s35, 2")
    a.label(lo2)
    a(f"s_bitcmp1_b32 s35, 0")
    a(f"s_cbranch_scc1 {lo3}")
    a(f"s_mov_b32 s40, -1")
    a(f"s_mov_b32 s41, 0")
    flags_check(a, 9, 1)
    a(f"s_cbranch_scc0 {lo3}")
    setw(C_YOK)
    a(f"s_or_b32 s35, s35, 1")
    a.label(lo3)
    a(f"s_cmp_eq_u32 s35, 3")
    a(f"s_cbranch_scc1 {lod}")
    a(f"s_add_u32 s33, s33, 1")
    a(f"s_cmp_lt_u32 s33, {POLL_MAX}")
    a(f"s_cbranch_scc1 {lop}")
    a.label(lod)
    a(f"s_branch f_fin")
    gen_loader(a)
    a.label("f_fin")
    if "stamp" in OPT:
        a("s_waitcnt vmcnt(0)")
        stamp(a, "end"); stamp(a, "rt1", True)
        stamp_flush(a)
    a.label(END)
    a("s_endpgm")
    a.L.append(kernel_desc(name, NVGPR))


def gen_loader(a):
    S_LI = 34
    a.label("f_lstart")
    a("s_setprio 3")
    a(f"s_sub_u32 s{S_LI}, s{S_W}, 9")
    VX, VW, VL16 = 112, 116, 121
    RB3, RB4, HR = 16, 64, 112
    a(f"v_lshlrev_b32 v{T3}, 4, v1")
    if "pf" in OPT:
        a(f"s_lshr_b32 s28, s2, 3")
        a(f"s_mul_i32 s28, s28, 10240")
        a(f"s_lshl_b32 s29, s{S_LI}, 10")
        a(f"s_add_u32 s28, s28, s29")
        a(f"s_add_u32 s28, s28, {384*1280}")
        for k in range(4):
            def pf(k=k):
                a(f"buffer_load_dwordx4 v[160:163], v{T3}, {R(SRD_WQ)}, s28 offen")
            if k < 3: pf()
            else: if_s(a, S_LI, "eq", 0, pf)
            a(f"s_add_u32 s28, s28, 3072")
        a(f"v_lshrrev_b32 v{T0}, 5, v1")
        a(f"v_mul_u32_u24 v{T0}, 1280, v{T0}")
        a(f"v_and_b32 v{T1}, 31, v1")
        a(f"v_lshlrev_b32 v{T1}, 4, v{T1}")
        a(f"v_add_u32 v{T0}, v{T0}, v{T1}")
        a(f"s_lshl_b32 s28, s{S_I}, 6")
        a(f"s_lshl_b32 s30, s{S_J}, 3")
        a(f"s_add_u32 s28, s28, s30")
        a(f"s_lshl_b32 s30, s{S_LI}, 1")
        a(f"s_add_u32 s28, s28, s30")
        a(f"s_mul_i32 s28, s28, 1280")
        a(f"s_add_u32 s28, s28, 768")
        a(f"buffer_load_dwordx4 v[160:163], v{T0}, {R(SRD_X)}, s28 offen")
        def pf2():
            a(f"s_add_u32 s28, s28, {6*1280}")
            a(f"buffer_load_dwordx4 v[160:163], v{T0}, {R(SRD_X)}, s28 offen")
        if_s(a, S_LI, "eq", 0, pf2)
    a("s_barrier")
    for k in range(4):
        a(f"v_lshrrev_b32 v{T0}, 4, v1")
        a(f"v_add_u32 v{T0}, {4*k}, v{T0}")
        a(f"v_xor_b32 v{T1}, v1, v{T0}")
        a(f"v_and_b32 v{T1}, 15, v{T1}")
        a(f"v_lshlrev_b32 v{T1}, 4, v{T1}")
        a(f"s_lshl_b32 s28, s{S_I}, 6")
        a(f"v_add_u32 v{T0}, s28, v{T0}")
        a(f"v_mul_lo_u32 v{T0}, v{T0}, s{S_1280}")
        a(f"v_add_u32 v{VX+k}, v{T0}, v{T1}")
    a(f"s_mul_i32 s29, s{S_J}, 160")
    for t in range(5):
        a(f"v_add_u32 v{T0}, {64*t}, v1")
        div10(a, T0, T1, T0, T2)
        a(f"v_lshlrev_b32 v{T0}, 4, v{T0}")
        a(f"v_and_b32 v{T2}, 0xfff8, v{T1}")
        a(f"v_bfe_u32 v{VL16}, v{T1}, 1, 2")
        a(f"v_or_b32 v{T2}, v{T2}, v{VL16}")
        a(f"v_and_b32 v{T1}, 1, v{T1}")
        a(f"v_lshlrev_b32 v{T1}, 2, v{T1}")
        a(f"v_or_b32 v{T2}, v{T2}, v{T1}")
        a(f"v_mul_lo_u32 v{T2}, v{T2}, s{S_1280}")
        a(f"v_add_u32 v{T2}, v{T2}, v{T0}")
        a(f"v_add_u32 v{VW+t}, s29, v{T2}")
    def ut_issue_all():
        for kind, nq, base_l, srd_, halo in (("k", 11, UT_K, SRD_K, 3), ("v", 10, UT_V, SRD_V, 0)):
            for q in range(nq):
                a(f"v_add_u32 v{T0}, {64*q}, v1")
                div10(a, T0, T1, T0, T2)
                a(f"v_lshrrev_b32 v{T2}, 3, v{T1}")
                a(f"v_sub_u32 v{T0}, v{T0}, v{T2}")
                a(f"v_add_u32 v{T2}, 10, v{T0}")
                a(f"v_min_u32 v{T0}, v{T0}, v{T2}")
                a(f"v_lshlrev_b32 v{T0}, 4, v{T0}")
                a(f"v_add_u32 v{T1}, s39, v{T1}") if halo == 0 else a(f"v_add_u32 v{T1}, s33, v{T1}")
                a(f"v_mul_lo_u32 v{T1}, v{T1}, s{S_1280}")
                a(f"v_add3_u32 v{T0}, v{T0}, v{T1}, s38")
                a(f"s_mov_b32 m0, {base_l + 1024*q}")
                if kind == "k" and q == 10: a(f"s_mov_b64 exec, 0x3fffffff")
                else: a("s_nop 0")
                a(f"buffer_load_dwordx4 v{T0}, {R(srd_)}, 0 offen lds")
                if kind == "k" and q == 10: a(f"s_mov_b64 exec, -1")
    a(f"s_lshl_b32 s39, s{S_I}, 6")
    a(f"s_sub_u32 s33, s39, 3")
    a(f"s_mul_i32 s38, s{S_J}, 160")
    lists = [[("x", q) for q in range(12)],
             [("x", q) for q in range(12, 16)] + [("w", q) for q in range(8)],
             [("w", q) for q in range(8, 20)]]
    def ldoff(kind, q): return 1024*q if kind == "x" else 16384 + 1024*q
    def issue(lst, ch, dma_slot=None, regs=None):
        for n, (kind, q) in enumerate(lst):
            if kind == "x": srd_, vr, so = SRD_X, VX+(q&3), 256*ch + (q >> 2)*16*1280
            else: srd_, vr, so = SRD_WQ, VW+(q%5), 163840*ch + (q // 5)*40960
            a(f"s_mov_b32 s28, {so}")
            if dma_slot is not None:
                a(f"s_mov_b32 m0, {dma_slot*SLOT + ldoff(kind, q)}")
                a(f"s_nop 0")
                a(f"buffer_load_dwordx4 v{vr}, {R(srd_)}, s28 offen lds")
            else:
                a(f"buffer_load_dwordx4 {v(regs+4*n,4)}, v{vr}, {R(srd_)}, s28 offen")
    def signal(addr): lds_add1_imm(a, addr)
    LD_JOIN = a.newlabel("ldj")
    for li in range(3):
        nxt = a.newlabel("ldv")
        a(f"s_cmp_lg_u32 s{S_LI}, {li}")
        a(f"s_cbranch_scc1 {nxt}")
        L = lists[li]
        if "regs" in OPT:
            issue(L, 2, dma_slot=2)
            if "nogate" not in OPT:
                a("s_waitcnt vmcnt(0)"); signal(C_CL + 8)
                lds_wait_imm(a, C_PFL, 1, sleep=1)
            issue(L, 3, regs=RB3)
            if "thr" in OPT:
                a("s_waitcnt vmcnt(12)"); signal(C_CL + 8)
            issue(L, 4, regs=RB4)
            stamp(a, "lissue")
            if "nogate" in OPT:
                a(f"s_waitcnt vmcnt(24)"); signal(C_CL + 8)
            nut = 0
            for (RBx, gate, cl, n_after, slot) in ((RB3, C_C0C, 12, 12, 0), (RB4, C_C1C, 16, 0, 1)):
                lds_wait_imm(a, gate, 8, sleep=1)
                a(f"v_add_u32 v{T2}, {slot*SLOT}, v{T3}")
                a(f"s_waitcnt vmcnt({n_after + nut})")
                stamp(a, f"lw{cl}")
                for n, (kind, q) in enumerate(L):
                    a(f"ds_write_b128 v{T2}, {v(RBx+4*n,4)} offset:{ldoff(kind, q)}")
                signal(C_CL + cl)
        else:
            issue(L, 2, dma_slot=2)
            a("s_waitcnt vmcnt(0)"); signal(C_CL + 8)
            lds_wait_imm(a, C_C0C, 8, sleep=0)
            issue(L, 3, dma_slot=0)
            lds_wait_imm(a, C_C1C, 8, sleep=0)
            issue(L, 4, dma_slot=1)
            stamp(a, "lissue")
            a("s_waitcnt vmcnt(12)"); signal(C_CL + 12)
            a("s_waitcnt vmcnt(0)"); signal(C_CL + 16)
        if li == 2:
            lds_wait_imm(a, C_PD, 1, sleep=1)
            ut_issue_all()
        a(f"s_branch {LD_JOIN}")
        a.label(nxt)
    a.label(LD_JOIN)
    stamp(a, "ldone")
    def kv0():
        lds_wait_imm(a, C_KVOK, 1, sleep=1)
        for cc in range(2):
            a(f"s_add_u32 s28, s{S_ROT}, {cc}")
            a(f"s_and_b32 s28, s28, 7")
            a(f"s_lshl_b32 s28, s28, 2")
            a(f"s_lshl_b32 s29, s{S_LI}, 5")
            a(f"s_add_u32 s28, s28, s29")
            a(f"s_mul_i32 s28, s28, 3072")
            for k in range(12):
                a(f"buffer_load_dwordx4 {v(16+48*cc+4*k,4)}, v{T3}, {R(SRD_WS)}, s28 offen offset:{1024*(k%4)} sc1")
                if k % 4 == 3: a(f"s_add_u32 s28, s28, 4096")
        a(f"s_mul_i32 s28, s{S_LI}, {RING_STRIDE}")
        a(f"v_add_u32 v{T2}, s28, v{T3}")
        lds_wait_imm(a, C_QRD, 8, sleep=0)
        for cc in range(2):
            a(f"s_waitcnt vmcnt({12 - 12*cc})")
            for k in range(12):
                a(f"ds_write_b128 v{T2}, {v(16+48*cc+4*k,4)} offset:{cc*KVSLOT + 1024*k}")
            a(f"s_lshl_b32 s28, s{S_LI}, 4")
            a(f"s_add_u32 s28, s28, {C_FULL + 4*cc}")
            a(f"v_mov_b32 v{T0}, s28")
            a(f"v_mov_b32 v{T1}, 4")
            lds_add1(a, T0, T1)
        stamp(a, "kv0")
    if_s(a, S_LI, "lt", 2, kv0)
    if_s(a, S_LI, "eq", 2, lambda: (a("s_waitcnt vmcnt(0)"), signal(C_UTL)))
    def gate_fin():
        lds_wait_imm(a, C_QG, 8, sleep=1)
        a(f"v_lshrrev_b32 v{T0}, 5, v1")
        a(f"v_lshlrev_b32 v{T0}, 9, v{T0}")
        a(f"v_and_b32 v{T1}, 31, v1")
        a(f"v_lshlrev_b32 v{T1}, 2, v{T1}")
        a(f"v_add_u32 v{T0}, v{T0}, v{T1}")
        a(f"v_add_u32 v{T0}, {GP}, v{T0}")
        for k in range(4): a(f"ds_read_b32 v{96+k}, v{T0} offset:{128*k}")
        a("s_waitcnt lgkmcnt(0)")
        a(f"v_add_f32 v96, v96, v97")
        a(f"v_add_f32 v98, v98, v99")
        a(f"v_add_f32 v96, v96, v98")
        a(f"v_mul_f32 v96, {hex(f32bits(-1.4426950408889634))}, v96")
        a(f"v_exp_f32 v96, v96")
        a.nop(1)
        a(f"v_add_f32 v96, 1.0, v96")
        a(f"v_rcp_f32 v96, v96")
        a(f"v_lshlrev_b32 v{T0}, 2, v1")
        a(f"v_add_u32 v{T0}, {G_L}, v{T0}")
        a.nop(1)
        a(f"ds_write_b32 v{T0}, v96")
    if_s(a, S_LI, "eq", 2, gate_fin)
    def uround(rnd_sgpr):
        KD, VD, SH = 16, 28, 36
        KA_, KB_, WA_, WB_, UA, UB, UT = 44, 56, 68, 72, 76, 84, 92
        A0, A1, UST = 93, 94, 95
        a(f"s_lshl_b32 s28, s{rnd_sgpr}, 6")
        a(f"v_add_u32 v{T0}, s28, v1")
        a(f"v_lshrrev_b32 v{T1}, 3, v{T0}")
        a(f"v_and_b32 v{T0}, 7, v{T0}")
        a(f"s_mul_i32 s29, s{S_J}, 160")
        a(f"v_lshlrev_b32 v{T2}, 2, v{T1}")
        a(f"v_add_u32 v{T2}, s29, v{T2}")
        a(f"v_lshlrev_b32 v{UST}, 2, v{T2}")
        a(f"buffer_load_dwordx4 {v(SH,4)}, v{UST}, {R(SRD_SH)}, 0 offen")
        a(f"v_lshlrev_b32 v{UST}, 11, v{T2}")
        a(f"v_lshlrev_b32 v{T2}, 4, v{T0}")
        a(f"v_sub_u32 v{UST}, v{UST}, v{T2}")
        a(f"s_lshl_b32 s29, s{S_I}, 7")
        a(f"s_sub_u32 s29, {UR_OFF + 4080}, s29")
        a(f"v_add_u32 v{UST}, s29, v{UST}")
        a(f"v_lshrrev_b32 v{T2}, 2, v{T1}")
        a(f"v_add_u32 v{T2}, v{T2}, v{T0}")
        a(f"v_and_b32 v{T1}, 3, v{T1}")
        a(f"v_lshlrev_b32 v{T1}, 2, v{T1}")
        a(f"v_mul_u32_u24 v{T0}, 1280, v{T0}")
        a(f"v_add3_u32 v{T0}, v{T0}, v{T1}, s77" if False else f"v_add_u32 v{T0}, v{T0}, v{T1}")
        a(f"v_add_u32 v{T0}, {UT_K}, v{T0}")
        for (dst, add) in ((A0, 0), (A1, 1)):
            a(f"v_add_u32 v{UT}, {add}, v{T2}")
            a(f"v_subrev_u32 v{T1}, 10, v{UT}")
            a(f"v_min_u32 v{UT}, v{UT}, v{T1}")
            a(f"v_lshlrev_b32 v{UT}, 4, v{UT}")
            a(f"v_add_u32 v{dst}, v{T0}, v{UT}")
        for r in range(8): a(f"ds_read_b32 v{KD+r}, v{A0} offset:{160*r}")
        for r in range(8, 11): a(f"ds_read_b32 v{KD+r}, v{A1} offset:{160*r}")
        a("s_waitcnt lgkmcnt(4)")
        for r in range(8): a(f"ds_read_b32 v{VD+r}, v{A0} offset:{10720 + 160*r}")
        a("s_waitcnt lgkmcnt(0) vmcnt(0)")
        for r in range(11):
            a(f"v_lshlrev_b32 v{KA_+r}, 16, v{KD+r}")
            a(f"v_and_b32 v{KB_+r}, 0xffff0000, v{KD+r}")
        for (W, base) in ((WA_, SH), (WB_, SH + 2)):
            a(f"v_lshlrev_b32 v{W}, 16, v{base}")
            a(f"v_and_b32 v{W+1}, 0xffff0000, v{base}")
            a(f"v_lshlrev_b32 v{W+2}, 16, v{base+1}")
            a(f"v_and_b32 v{W+3}, 0xffff0000, v{base+1}")
        for e_ in range(8):
            for (U, Kf, W, lo) in ((UA, KA_, WA_, True), (UB, KB_, WB_, False)):
                a(f"v_mul_f32 v{U+e_}, v{Kf+e_+3}, v{W}")
                for jx in range(1, 4):
                    a(f"v_fmac_f32 v{U+e_}, v{Kf+e_+3-jx}, v{W+jx}")
                if lo: a(f"v_lshlrev_b32 v{UT}, 16, v{VD+e_}")
                else: a(f"v_and_b32 v{UT}, 0xffff0000, v{VD+e_}")
                a(f"v_mul_f32 v{U+e_}, v{U+e_}, v{UT}")
        for (U, O_) in ((UA, KD), (UB, KD + 4)):
            for i in range(4):
                a(f"v_cvt_pk_bf16_f32 v{O_+i}, v{U+7-2*i}, v{U+6-2*i}")
        a(f"buffer_store_dwordx4 {v(KD,4)}, v{UST}, {R(SRD_WS)}, 0 offen sc1")
        a(f"v_add_u32 v{UST}, 4096, v{UST}")
        a(f"buffer_store_dwordx4 {v(KD+4,4)}, v{UST}, {R(SRD_WS)}, 0 offen sc1")
    lds_wait_imm(a, C_UTL, 1, sleep=1)
    stamp(a, "utl")
    a(f"s_mov_b32 s87, s{S_LI}")
    uround(87)
    def second():
        a(f"s_add_u32 s87, s{S_LI}, 3")
        a("s_waitcnt vmcnt(0)")
        uround(87)
    if_s(a, S_LI, "lt", 2, second)
    a("s_waitcnt vmcnt(0)")
    signal(C_UCNT)
    stamp(a, "udone")
    def h_loads():
        a(f"s_lshl_b32 s28, s{S_CH}, 12")
        for q in range(4):
            a(f"s_add_u32 s29, s28, {1024*q}")
            for k in range(3):
                a(f"buffer_load_dwordx4 {v(HR+12*q+4*k,4)}, v{T3}, {R(SRD_H)}, s29 offen offset:{4*k}")
        a(f"s_lshr_b32 s30, s{S_CH}, 1")
        a(f"s_lshl_b32 s30, s30, 2")
        a(f"s_load_dword s88, s[{S_DPTR}:{S_DPTR+1}], s30")
    NOC = a.newlabel("noconv")
    a(f"s_cmp_ge_u32 s{S_LI}, s{S_NCH}")
    a(f"s_cbranch_scc1 {NOC}")
    if "noconv" in OPT: a(f"s_branch {NOC}")
    h_loads()
    lds_wait_imm(a, C_QG, 8, sleep=2)
    stamp(a, "conv0")
    gen_conv(a, HR)
    a("s_waitcnt vmcnt(0)")
    a.label(NOC)
    a("s_setprio 3")
    signal(C_CVD)
    stamp(a, "conv1")
    WD = 16
    VL = 21
    a(f"v_lshlrev_b32 v{VL}, 4, v1")
    a(f"s_mul_i32 s29, s{S_J}, 160")
    for t in range(5):
        a(f"v_add_u32 v{T0}, {64*t}, v1")
        div10(a, T0, T1, T0, T2)
        a(f"v_lshlrev_b32 v{T0}, 4, v{T0}")
        a(f"v_and_b32 v{T2}, 0xfff3, v{T1}")
        a(f"v_bfe_u32 v{T3}, v{T1}, 2, 1")
        a(f"v_lshlrev_b32 v{T3}, 3, v{T3}")
        a(f"v_or_b32 v{T2}, v{T2}, v{T3}")
        a(f"v_bfe_u32 v{T3}, v{T1}, 3, 1")
        a(f"v_lshlrev_b32 v{T3}, 2, v{T3}")
        a(f"v_or_b32 v{T2}, v{T2}, v{T3}")
        a(f"v_mul_lo_u32 v{T2}, v{T2}, s{S_1280}")
        a(f"v_add_u32 v{T2}, v{T2}, v{T0}")
        a(f"v_add_u32 v{WD+t}, s29, v{T2}")
    lds_wait_imm(a, C_CVD, 3, sleep=8)
    lds_wait_imm(a, C_QG, 8, sleep=8)
    def wo_half(half, base):
        a(f"s_mul_i32 s31, s{S_LI}, 3")
        a(f"s_min_u32 s33, s{S_LI}, 1")
        a(f"s_add_u32 s31, s31, s33")
        a(f"s_cmp_eq_u32 s{S_LI}, 0")
        a(f"s_cselect_b32 s33, 4, 3")
        a(f"s_mul_i32 s28, s31, 5120")
        a(f"s_add_u32 s28, s28, {base}")
        a(f"s_mul_i32 s30, s31, {32*1280}")
        a(f"s_add_u32 s30, s30, {half*320*1280}")
        WL = a.newlabel("wol")
        a(f"s_mov_b32 s31, 0")
        a.label(WL)
        for t in range(5):
            a(f"s_add_u32 m0, s28, {1024*t}")
            a(f"s_nop 0")
            a(f"buffer_load_dwordx4 v{WD+t}, {R(SRD_WO)}, s30 offen lds")
        a(f"s_add_u32 s28, s28, 5120")
        a(f"s_add_u32 s30, s30, {32*1280}")
        a(f"s_add_u32 s31, s31, 1")
        a(f"s_cmp_lt_u32 s31, s33")
        a(f"s_cbranch_scc1 {WL}")
    wo_half(0, WOA)
    a("s_waitcnt vmcnt(0)")
    signal(C_WOK)
    stamp(a, "woready")
    lds_wait_imm(a, C_LE, 8, sleep=2)
    wo_half(1, WOB)
    a("s_waitcnt vmcnt(0)")
    signal(C_WOKB)
    stamp(a, "wobr")
    YS = 32
    def ytile():
        a(f"v_lshrrev_b32 v{T2}, 3, v1")
        a(f"v_lshlrev_b32 v{T2}, 12, v{T2}")
        a(f"v_and_b32 v{T3}, 7, v1")
        a(f"v_lshlrev_b32 v{T3}, 4, v{T3}")
        a(f"v_add_u32 v{T2}, v{T2}, v{T3}")
        lds_wait_imm(a, C_YOK, 1, sleep=1)
        lds_wait_imm(a, C_ST, 8, sleep=1)
        a(f"s_mul_i32 s28, s{S_J}, {80*4096}")
        a(f"s_lshl_b32 s29, s{S_I}, 7")
        a(f"s_add_u32 s28, s28, s29")
        a(f"s_add_u32 s28, s28, {YT_OFF}")
        a(f"s_mul_i32 s29, s{S_LI}, {5*8*4096}")
        a(f"s_add_u32 s28, s28, s29")
        for t in range(5):
            a(f"buffer_load_dwordx4 {v(YS+4*t,4)}, v{T2}, {R(SRD_WS)}, s28 offen sc1")
            a(f"s_add_u32 s28, s28, {8*4096}")
        a(f"s_mul_i32 s28, s{S_LI}, 5120")
        a(f"s_add_u32 s28, s28, {YL}")
        a(f"v_add_u32 v{T2}, s28, v{VL}")
        a("s_waitcnt vmcnt(0)")
        for t in range(5): a(f"ds_write_b128 v{T2}, {v(YS+4*t,4)} offset:{1024*t}")
        signal(C_YW)
    if_s(a, S_LI, "lt", 2, ytile)

def gen_conv(a, HR):
    URL = 16640
    CA, FA, FB, AD = 16, 48, 80, 112
    VA, VB, CT2, CT3 = 160, 161, 162, 163
    a(f"v_lshlrev_b32 v{T2}, 4, v1")
    a(f"v_add_u32 v{T3}, s{S_CB}, v{T2}")
    a("s_waitcnt vmcnt(0)")
    for q in range(4):
        X0, X1, X2 = HR+12*q, HR+12*q+4, HR+12*q+8
        C1, C3 = CA + 8*(q & 1), CA + 8*(q & 1) + 4
        for k in range(4):
            a(f"v_alignbit_b32 v{C1+k}, v{X1+k}, v{X0+k}, 16")
            a(f"v_alignbit_b32 v{C3+k}, v{X2+k}, v{X1+k}, 16")
        o = 1024 * q + 32
        a(f"ds_write_b128 v{T3}, {v(X0,4)} offset:{o}")
        a(f"ds_write_b128 v{T3}, {v(C1,4)} offset:{4160+o}")
        a(f"ds_write_b128 v{T3}, {v(X1,4)} offset:{8320+o}")
        a(f"ds_write_b128 v{T3}, {v(C3,4)} offset:{12480+o}")
    Z = CA + 16
    for k in range(4): a(f"v_mov_b32 v{Z+k}, 0")
    a(f"v_alignbit_b32 v{Z+4}, v{HR+4}, v{HR}, 16")
    a(f"v_lshlrev_b32 v{Z+5}, 16, v{HR}")
    a(f"v_mov_b32 v{Z+6}, v{HR}")
    a(f"v_lshrrev_b32 v{T0}, 1, v1")
    a(f"v_mul_u32_u24 v{T0}, 4160, v{T0}")
    a(f"v_and_b32 v{T1}, 1, v1")
    a(f"v_lshlrev_b32 v{T1}, 4, v{T1}")
    a(f"v_add_u32 v{T0}, v{T0}, v{T1}")
    a(f"v_add_u32 v{T0}, s{S_CB}, v{T0}")
    a(f"s_mov_b64 exec, 0xff")
    a(f"ds_write_b128 v{T0}, {v(Z,4)}")
    a(f"s_mov_b64 exec, 0xffffffff")
    a(f"ds_write_b128 v{T3}, {v(Z,4)} offset:{URL+4096}")
    a(f"s_mov_b64 exec, 1")
    a(f"ds_write_b32 v{T3}, v{Z+5} offset:{4160+28}")
    a(f"ds_write_b32 v{T3}, v{Z+6} offset:{8320+28}")
    a(f"ds_write_b32 v{T3}, v{Z+5} offset:{12480+24}")
    a(f"ds_write_b32 v{T3}, v{Z+4} offset:{12480+28}")
    a(f"s_mov_b64 exec, -1")
    a("s_waitcnt lgkmcnt(0)")
    a(f"v_mov_b32 v{FA}, v{T3}")
    a(f"v_mov_b32 v{FA+1}, v{T2}")
    lds_wait_imm(a, C_UOK, 1, sleep=2)
    a(f"s_lshl_b32 s28, s{S_CH}, 12")
    a(f"s_add_u32 s28, s28, {UR_OFF}")
    for q in range(4):
        a(f"s_add_u32 s29, s28, {1024*q}")
        a(f"buffer_load_dwordx4 {v(FB+4*q,4)}, v{FA+1}, {R(SRD_WS)}, s29 offen sc1")
    a(f"v_and_b32 v{T0}, 15, v1")
    a(f"v_lshrrev_b32 v{T1}, 4, v1")
    a(f"v_add_u32 v{CT2}, 1, v{T0}")
    a(f"v_and_b32 v{CT3}, 3, v{CT2}")
    a(f"v_mul_u32_u24 v{VA}, 4160, v{CT3}")
    a(f"v_lshrrev_b32 v{CT2}, 2, v{CT2}")
    a(f"v_lshlrev_b32 v{CT2}, 3, v{CT2}")
    a(f"v_lshlrev_b32 v{CT3}, 4, v{T1}")
    a(f"v_add_u32 v{VA}, v{VA}, v{CT2}")
    a(f"v_add_u32 v{VA}, v{VA}, v{CT3}")
    a(f"v_add_u32 v{VA}, s{S_CB}, v{VA}")
    a(f"v_lshlrev_b32 v{CT2}, 5, v{T0}")
    a(f"v_sub_u32 v{VB}, v{CT3}, v{CT2}")
    a(f"s_add_u32 s28, s{S_CB}, {URL + 480}")
    a(f"v_add_u32 v{VB}, s28, v{VB}")
    a(f"s_and_b32 s30, s{S_CH}, 1")
    a(f"s_lshl_b32 s30, s30, 4")
    a(f"s_lshr_b32 s88, s88, s30")
    a(f"s_and_b32 s88, s88, 0xffff")
    a(f"v_lshlrev_b32 v{T1}, 3, v{T1}")
    a(f"v_add_u32 v{T0}, v{T0}, v{T1}")
    a(f"v_sub_u32 v{T0}, 15, v{T0}")
    a(f"v_and_b32 v{T1}, 1, v{T0}")
    a(f"v_lshlrev_b32 v{T1}, 4, v{T1}")
    a(f"v_mov_b32 v{CT2}, s88")
    a(f"v_lshlrev_b32 v{CT2}, v{T1}, v{CT2}")
    a(f"v_lshrrev_b32 v{T0}, 1, v{T0}")
    for k in range(4):
        a(f"v_cmp_eq_u32 vcc, {k}, v{T0}")
        a.nop(2)
        a(f"v_cndmask_b32 v{AD+k}, 0, v{CT2}, vcc")
    for r in range(32): a(f"v_mov_b32 v{CA+r}, 0")
    a("s_waitcnt vmcnt(0)")
    for q in range(4):
        a(f"ds_write_b128 v{FA}, {v(FB+4*q,4)} offset:{URL + 1024*q}")
    a("s_waitcnt lgkmcnt(0)")
    stamp(a, "convm")
    a("s_setprio 0")
    a(f"s_mov_b32 s86, 0")
    PL = a.newlabel("convph")
    a.label(PL)
    a(f"ds_read_b64 {v(FA,2)}, v{VA}")
    a(f"ds_read_b64 {v(FA+2,2)}, v{VA} offset:8")
    for vv in range(8):
        a(f"ds_read_b128 {v(FB+4*vv,4)}, v{VB} offset:{512*(7-vv)}")
    for i in range(1, 3):
        a(f"ds_read_b64 {v(FA+4*i,2)}, v{VA} offset:{512*i}")
        a(f"ds_read_b64 {v(FA+4*i+2,2)}, v{VA} offset:{512*i+8}")
    a("s_waitcnt lgkmcnt(4)")
    for i in range(3, 8):
        a(f"ds_read_b64 {v(FA+4*i,2)}, v{VA} offset:{512*i}")
        a(f"ds_read_b64 {v(FA+4*i+2,2)}, v{VA} offset:{512*i+8}")
    for vv in range(8):
        a(f"v_mfma_f32_16x16x32_bf16 {v(CA+4*vv,4)}, {v(FA,4)}, {v(FB+4*vv,4)}, {v(CA+4*vv,4)}")
    lab = a.newlabel("noD")
    a(f"s_cmp_lg_u32 s86, 0")
    a(f"s_cbranch_scc1 {lab}")
    for vv in range(8):
        a(f"v_mfma_f32_16x16x32_bf16 {v(CA+4*vv,4)}, {v(AD,4)}, {v(FB+4*vv,4)}, {v(CA+4*vv,4)}")
    a.label(lab)
    a("s_waitcnt lgkmcnt(0)")
    for i in range(1, 8):
        for vv in range(8 - i):
            t = i + vv
            a(f"v_mfma_f32_16x16x32_bf16 {v(CA+4*t,4)}, {v(FA+4*i,4)}, {v(FB+4*vv,4)}, {v(CA+4*t,4)}")
    a(f"v_add_u32 v{VA}, 64, v{VA}")
    a(f"v_add_u32 v{VB}, 64, v{VB}")
    a(f"s_add_u32 s86, s86, 1")
    a(f"s_cmp_lt_u32 s86, 8")
    a(f"s_cbranch_scc1 {PL}")
    a(f"s_lshl_b32 s28, s{S_CH}, 12")
    a(f"s_add_u32 s28, s28, {YT_OFF}")
    a(f"v_and_b32 v{CT2}, 15, v1")
    a(f"v_lshlrev_b32 v{CT2}, 5, v{CT2}")
    a(f"v_lshrrev_b32 v{CT3}, 4, v1")
    a(f"v_lshlrev_b32 v{CT3}, 3, v{CT3}")
    a(f"v_add_u32 v{CT2}, v{CT2}, v{CT3}")
    a.nop(4)
    for t in range(8):
        a(f"v_cvt_pk_bf16_f32 v{FB+2*t}, v{CA+4*t}, v{CA+4*t+1}")
        a(f"v_cvt_pk_bf16_f32 v{FB+2*t+1}, v{CA+4*t+2}, v{CA+4*t+3}")
        a(f"buffer_store_dwordx2 {v(FB+2*t,2)}, v{CT2}, {R(SRD_WS)}, s28 offen offset:{512*t} sc1")

HEADER = """; gated_mix: fused single kernel (generated by dev/gen15.py, gen4 o-layout)
; @launch grid=(256,1,1) block=(768,1,1) lds=163840
.amdgcn_target "amdgcn-amd-amdhsa--gfx950"
.text
"""
if __name__ == "__main__":
    if len(sys.argv) > 2: OPT.update(sys.argv[2].split(","))
    a = Asm()
    gen(a)
    h = HEADER
    if STAMPS: h = h.replace(".amdgcn", "; STAMPS " + ",".join(STAMPS) + "\n.amdgcn")
    open(sys.argv[1], "w").write(h + a.text())
```

```python
import sys, struct
from asmlib import *

NAME = "gated_mix__ssm_conv_h3__grouped_kv_mqa__prompt"
KVF_OFF = 0
UR_OFF = 0x40000
YT_OFF = 0x2C0000
O_OFF = 0x540000
FL_OFF = 0x7C0000
H1 = FL_OFF
H2 = FL_OFF + 0x4000
H3 = FL_OFF + 0xC000
H4 = FL_OFF + 0x14000
ST_OFF = 0x800000
WS_USED = 0x900000
XB = 2048 * 640 * 2
QSCALE = (20 ** -0.5) * 1.4426950408889634
def f32bits(x): return struct.unpack("<I", struct.pack("<f", x))[0]
OPT = set()
POLL_MAX = 40000

SRD_X, SRD_WQ, SRD_WS, SRD_H = 4, 8, 12, 16
S_I, S_J, S_W, S_HH, S_G, S_NONCE, S_1280, S_ROT = 20, 21, 22, 23, 24, 25, 26, 27
SRD_K, SRD_V, SRD_SH, SRD_W, SRD_GW, SRD_WO, SRD_OUT, SRD_DBG = 44, 48, 52, 56, 60, 64, 68, 72
S_DPTR = 76
S_CH, S_NCH, S_CB = 83, 84, 85
SLOT = 36864
UT_K = 137472
UT_V = UT_K + 10720
UNIT_W = 131552
UNIT_S = 6656
QXA = 110592
QXB = QXA + 8192
GWL = 159744
GP = GWL + 1280
G_L = 162048
CNT = G_L + 256
C_FULL, C_DONE = CNT, CNT + 32
C_KVOK, C_UCNT, C_CVD = CNT + 68, CNT + 72, CNT + 80
C_UOK, C_YOK, C_OCNT, C_OOK = CNT + 84, CNT + 88, CNT + 92, CNT + 96
C_UTL, C_UTC, C_UP, C_C0C, C_C1C, C_QG, C_WOK = CNT + 100, CNT + 104, CNT + 108, CNT + 112, CNT + 116, CNT + 120, CNT + 124
C_CL = CNT + 128
C_QXF = CNT + 160
C_PROG = CNT + 192
C_PD = CNT + 228
C_WOKB = CNT + 232
C_LE, C_ST, C_PFL, C_QRD = CNT + 236, CNT + 240, CNT + 244, CNT + 248
C_LEB = CNT + 252
C_NONCE = CNT + 64
C_XF = CNT + 256
C_PF = CNT + 288
C_YW = CNT + 224
BLK = 3072
KVSLOT = 4 * BLK
RING_STRIDE = 2 * KVSLOT
CONVB = 49152
CHB = 21248
WOA = 49152
WOB = WOA + 51200
YL = 151552
DUMMY = 162688
OX = 0
OST = 12288
PX = 0
V_ST = 167
NVGPR = 168
T0, T1, T2, T3 = 2, 3, 164, 165

STAMPS = []
def stamp(a, name, real=False):
    if "stamp" not in OPT: return
    if name in STAMPS: idx = STAMPS.index(name)
    else:
        STAMPS.append(name); idx = len(STAMPS) - 1
    a(f"s_waitcnt lgkmcnt(0)")
    a(f"{'s_memrealtime' if real else 's_memtime'} s[98:99]")
    a(f"s_waitcnt lgkmcnt(0)")
    a(f"v_writelane_b32 v{V_ST}, s98, {idx}")
def stamp_flush(a):
    if "stamp" not in OPT: return
    a(f"s_mov_b64 exec, -1")
    a(f"s_mul_i32 s98, s2, 12")
    a(f"s_add_u32 s98, s98, s{S_W}")
    a(f"s_lshl_b32 s98, s98, 8")
    a(f"s_add_u32 s98, s98, {ST_OFF}")
    a(f"v_lshlrev_b32 v166, 2, v1")
    a(f"buffer_store_dword v{V_ST}, v166, s[{SRD_WS}:{SRD_WS+3}], s98 offen")
    a("s_waitcnt vmcnt(0)")

def R(b): return f"s[{b}:{b+3}]"

def poll_global(a, nload, check, sleep=1):
    lp = a.newlabel("poll"); dn = a.newlabel("pdone")
    a(f"s_mov_b32 s43, 0")
    a.label(lp)
    nload()
    a("s_waitcnt vmcnt(0)")
    check()
    a(f"s_cbranch_scc1 {dn}")
    a(f"s_add_u32 s43, s43, 1")
    a(f"s_cmp_lt_u32 s43, {POLL_MAX}")
    a(f"s_cbranch_scc0 {dn}")
    if sleep: a(f"s_sleep {sleep}")
    a(f"s_branch {lp}")
    a.label(dn)

def flags_check(a, vt, n):
    if n == 4:
        for k in range(4): a(f"v_xor_b32 v{vt+k}, s{S_NONCE}, v{vt+k}")
        a(f"v_or_b32 v{vt}, v{vt}, v{vt+1}")
        a(f"v_or_b32 v{vt+2}, v{vt+2}, v{vt+3}")
        a(f"v_or_b32 v{vt}, v{vt}, v{vt+2}")
        a(f"v_cmp_ne_u32 vcc, 0, v{vt}")
    else:
        a(f"v_cmp_ne_u32 vcc, s{S_NONCE}, v{vt}")
    a(f"s_nop 1")
    a(f"s_and_b64 vcc, vcc, s[40:41]")
    a(f"s_cmp_eq_u64 vcc, 0")
def poll_flags(a, vaddr, soff, lanes_mask, vt, n=1, sleep=1):
    def ld():
        if n == 1: a(f"buffer_load_dword v{vt}, v{vaddr}, {R(SRD_WS)}, {soff} offen sc1")
        else: a(f"buffer_load_dwordx4 {v(vt,4)}, v{vaddr}, {R(SRD_WS)}, {soff} offen sc1")
    a(f"s_mov_b32 s40, {lanes_mask & 0xffffffff}")
    a(f"s_mov_b32 s41, {(lanes_mask >> 32) & 0xffffffff}")
    poll_global(a, ld, lambda: flags_check(a, vt, n), sleep)

def lds_wait_ge(a, target, vt, vaddr, sleep=1):
    lp = a.newlabel("lw"); dn = a.newlabel("lwd")
    a(f"s_mov_b32 s43, 0")
    a.label(lp)
    a(f"ds_read_b32 v{vt}, v{vaddr}")
    a("s_waitcnt lgkmcnt(0)")
    a(f"v_readfirstlane_b32 s42, v{vt}")
    a("s_nop 3")
    a(f"s_cmp_ge_u32 s42, {target}")
    a(f"s_cbranch_scc1 {dn}")
    a(f"s_add_u32 s43, s43, 1")
    a(f"s_cmp_lt_u32 s43, {POLL_MAX * 8}")
    a(f"s_cbranch_scc0 {dn}")
    if sleep: a(f"s_sleep {sleep}")
    a(f"s_branch {lp}")
    a.label(dn)
def lds_wait_imm(a, addr, target, vt=T1, va=T0, sleep=1):
    a(f"v_mov_b32 v{va}, {addr}")
    lds_wait_ge(a, target, vt, va, sleep)
def lds_add1(a, vaddr, vone):
    a("s_mov_b64 exec, 1")
    a(f"ds_add_u32 v{vaddr}, v{vone}")
    a("s_mov_b64 exec, -1")
def lds_add1_imm(a, addr, va=T0, vo=T1):
    a(f"v_mov_b32 v{va}, {addr}")
    a(f"v_mov_b32 v{vo}, 1")
    lds_add1(a, va, vo)
def if_s(a, sreg, cmp, val, fn):
    lb = a.newlabel("ifw")
    inv = {"eq": "lg", "lt": "ge", "ge": "lt", "lg": "eq"}[cmp]
    a(f"s_cmp_{inv}_u32 s{sreg}, {val}")
    a(f"s_cbranch_scc1 {lb}")
    fn()
    a.label(lb)
def if_wave(a, cmp, val, fn): if_s(a, S_W, cmp, val, fn)

def div10(a, p, q, r, t):
    a(f"v_mul_u32_u24 v{q}, 6554, v{p}")
    a(f"v_lshrrev_b32 v{q}, 16, v{q}")
    a(f"v_mul_u32_u24 v{t}, 10, v{q}")
    a(f"v_sub_u32 v{r}, v{p}, v{t}")

def gen(a):
    name = NAME + "_kernel"
    a.L.append(kernel_header(name))
    END = "f_end"
    a(f"s_cmp_ge_u32 s2, 256")
    a(f"s_cbranch_scc1 {END}")
    a(f"s_load_dwordx16 s[76:91], s[0:1], 0")
    a(f"s_load_dwordx8 s[92:99], s[0:1], 64")
    a(f"s_load_dwordx4 s[28:31], s[0:1], 96")
    a(f"s_load_dwordx2 s[32:33], s[0:1], 112")
    a(f"v_lshrrev_b32 v1, 6, v0")
    a(f"s_and_b32 s{S_I}, s2, 7")
    a(f"s_lshl_b32 s{S_I}, s{S_I}, 2")
    a(f"s_lshr_b32 s{S_J}, s2, 6")
    a(f"s_add_u32 s{S_I}, s{S_I}, s{S_J}")
    a(f"s_lshr_b32 s{S_J}, s2, 3")
    a(f"s_and_b32 s{S_J}, s{S_J}, 7")
    a(f"v_readfirstlane_b32 s{S_W}, v1")
    a(f"v_and_b32 v1, 63, v0")
    a(f"s_movk_i32 s{S_1280}, 1280")
    a(f"s_add_u32 s{S_ROT}, s{S_I}, s{S_J}")
    a(f"s_and_b32 s{S_ROT}, s{S_ROT}, 7")
    a(f"s_and_b32 s{S_HH}, s{S_W}, 3")
    a(f"s_lshr_b32 s{S_G}, s{S_W}, 2")
    V_XD, V_WD, V_UST = 112, 113, 111
    HR = 116
    a(f"s_mul_i32 s37, s{S_I}, 3")
    a(f"s_lshl_b32 s34, s{S_I}, 1")
    a(f"s_add_u32 s34, s34, 16")
    a(f"s_cmp_lt_u32 s{S_I}, 16")
    a(f"s_cselect_b32 s35, s37, s34")
    a(f"s_cselect_b32 s36, 3, 2")
    a(f"s_mul_i32 s34, s{S_J}, 80")
    a(f"s_add_u32 s35, s35, s34")
    a(f"s_sub_u32 s38, s{S_W}, 9")
    a(f"s_add_u32 s35, s35, s38")
    a("s_waitcnt lgkmcnt(0)")
    srd(a, SRD_X, 76, XB)
    a(f"s_cmp_ge_u32 s{S_J}, 4")
    a(f"s_cselect_b32 s{SRD_W}, s94, s92")
    a(f"s_cselect_b32 s{SRD_W+1}, s95, s93")
    a(f"s_mov_b32 s{SRD_W+2}, 25600")
    a(f"s_mov_b32 s{SRD_W+3}, 0x00020000")
    srd(a, SRD_K, 78, XB)
    srd(a, SRD_V, 80, XB)
    srd(a, SRD_SH, 82, 640 * 4 * 2)
    srd(a, SRD_WS, 32, WS_USED)
    srd(a, SRD_DBG, 30, 256)
    srd(a, SRD_WQ, 90, 640 * 640 * 2)
    srd(a, SRD_GW, 98, 1280)
    srd(a, SRD_H, 84, XB)
    srd(a, SRD_WO, 96, 640 * 640 * 2)
    srd(a, SRD_OUT, 28, XB)
    a(f"s_mov_b32 s{S_DPTR}, s86")
    a(f"s_mov_b32 s{S_DPTR+1}, s87")
    a(f"s_mov_b32 s{S_CH}, s35")
    a(f"s_mov_b32 s{S_NCH}, s36")
    a(f"s_mul_i32 s{S_CB}, s38, {CHB}")
    a(f"s_add_u32 s{S_CB}, s{S_CB}, {CONVB}")
    if "stamp" in OPT: a(f"v_mov_b32 v{V_ST}, 0")
    stamp(a, "rt0", True); stamp(a, "t0")
    PSTART = "f_pstart"
    a(f"s_cmp_eq_u32 s{S_W}, 8")
    a(f"s_cbranch_scc1 {PSTART}")
    a(f"s_cmp_gt_u32 s{S_W}, 8")
    a(f"s_cbranch_scc1 f_lstart")

    XF, UACC, WFA, SH = 16, 4, 44, 36
    def unit_loads():
        a("s_setprio 2")
        a(f"s_and_b32 s28, s{S_J}, 3")
        a(f"s_lshl_b32 s28, s28, 4")
        a(f"s_lshl_b32 s29, s{S_I}, 6")
        a(f"s_add_u32 s28, s28, s29")
        a(f"v_and_b32 v{T0}, 15, v1")
        a(f"v_add_u32 v{T0}, s28, v{T0}")
        a(f"v_mul_lo_u32 v{T0}, v{T0}, s{S_1280}")
        a(f"v_lshrrev_b32 v{T1}, 4, v1")
        a(f"v_lshlrev_b32 v{T2}, 4, v{T1}")
        a(f"v_add_u32 v{T0}, v{T0}, v{T2}")
        a(f"s_mul_i32 s29, s{S_W}, 320")
        for s_ in range(5):
            a(f"buffer_load_dwordx4 {v(XF+4*s_,4)}, v{T0}, {R(SRD_X)}, s29 offen offset:{64*s_}")
        a(f"v_lshlrev_b32 v{T2}, 4, v1")
        a(f"s_mul_i32 s29, s{S_W}, 6400")
        a(f"s_mul_i32 s30, s{S_W}, {UNIT_S}")
        for q in range(7):
            a(f"s_add_u32 m0, s30, {UNIT_W + 1024*q}")
            a(f"s_add_u32 s31, s29, {1024*q}")
            if q == 6: a(f"s_mov_b64 exec, 0xffffffff")
            a(f"buffer_load_dwordx4 v{T2}, {R(SRD_W)}, s31 offen lds")
        a(f"s_mov_b64 exec, -1")
        a("s_setprio 0")
    if_wave(a, "lt", 4, unit_loads)
    a(f"v_lshrrev_b32 v{T0}, 4, v1")
    a(f"s_lshl_b32 s28, s{S_W}, 2")
    a(f"v_add_u32 v{T0}, s28, v{T0}")
    a(f"v_xor_b32 v{T1}, v1, v{T0}")
    a(f"v_and_b32 v{T1}, 15, v{T1}")
    a(f"v_lshlrev_b32 v{T1}, 4, v{T1}")
    a(f"s_lshl_b32 s28, s{S_I}, 6")
    a(f"v_add_u32 v{T0}, s28, v{T0}")
    a(f"v_mul_lo_u32 v{T0}, v{T0}, s{S_1280}")
    a(f"v_add_u32 v{V_XD}, v{T0}, v{T1}")
    a(f"s_mul_i32 s29, s{S_J}, 160")
    a(f"s_lshl_b32 s28, s{S_W}, 6")
    for t in range(3):
        a(f"v_add_u32 v{T0}, s28, v1")
        if t: a(f"v_add_u32 v{T0}, {512*t}, v{T0}")
        div10(a, T0, T1, T0, T2)
        a(f"v_lshlrev_b32 v{T0}, 4, v{T0}")
        a(f"v_and_b32 v{T2}, 0xfff8, v{T1}")
        a(f"v_bfe_u32 v{T3}, v{T1}, 1, 2")
        a(f"v_or_b32 v{T2}, v{T2}, v{T3}")
        a(f"v_and_b32 v{T1}, 1, v{T1}")
        a(f"v_lshlrev_b32 v{T1}, 2, v{T1}")
        a(f"v_or_b32 v{T2}, v{T2}, v{T1}")
        a(f"v_mul_lo_u32 v{T2}, v{T2}, s{S_1280}")
        a(f"v_add_u32 v{T2}, v{T2}, v{T0}")
        a(f"v_add_u32 v{V_WD+t}, s29, v{T2}")
    def dma_chunk(ch, slot):
        base = slot * SLOT
        a(f"s_lshl_b32 s28, s{S_W}, 10")
        for t in range(2):
            a(f"s_add_u32 m0, s28, {base + 8192*t}")
            a(f"s_mov_b32 s29, {256*ch + 32*1280*t}")
            a(f"buffer_load_dwordx4 v{V_XD}, {R(SRD_X)}, s29 offen lds")
        a(f"s_mov_b32 s29, {163840*ch}")
        for t in range(3):
            def one(t=t):
                a(f"s_add_u32 m0, s28, {base + 16384 + 8192*t}")
                a(f"s_nop 0")
                a(f"buffer_load_dwordx4 v{V_WD+t}, {R(SRD_WQ)}, s29 offen lds")
            if t < 2: one()
            else: if_wave(a, "lt", 4, one)
    def wait_vm(nA, nB):
        la = a.newlabel("wa"); lb = a.newlabel("wb")
        a(f"s_cmp_lt_u32 s{S_W}, 4")
        a(f"s_cbranch_scc1 {la}")
        a(f"s_waitcnt vmcnt({nB})")
        a(f"s_branch {lb}")
        a.label(la)
        a(f"s_waitcnt vmcnt({nA})")
        a.label(lb)
    NA, NB = 5, 4
    def gw():
        a(f"s_mul_i32 s28, s{S_HH}, 320")
        a(f"s_add_u32 m0, s28, {GWL}")
        a(f"v_lshlrev_b32 v{T0}, 4, v1")
        a(f"s_mov_b64 exec, 0xfffff")
        a(f"buffer_load_dwordx4 v{T0}, {R(SRD_GW)}, s28 offen lds")
        a(f"s_mov_b64 exec, -1")
    if_wave(a, "ge", 4, gw)
    dma_chunk(0, 0); dma_chunk(1, 1)
    a("s_barrier")
    def unit_compute():
        a(f"v_lshrrev_b32 v{T1}, 4, v1")
        a(f"v_bfe_u32 v{T2}, v1, 2, 2")
        a(f"v_lshlrev_b32 v{T1}, 3, v{T1}")
        a(f"v_add_u32 v{T2}, v{T2}, v{T1}")
        a(f"v_mul_u32_u24 v{T2}, 40, v{T2}")
        a(f"v_and_b32 v{T3}, 3, v1")
        a(f"v_lshlrev_b32 v{T3}, 3, v{T3}")
        a(f"v_add_u32 v{T2}, v{T2}, v{T3}")
        a(f"s_mul_i32 s30, s{S_W}, {UNIT_S}")
        a(f"s_add_u32 s30, s30, {UNIT_W}")
        a(f"v_add_u32 v{T2}, s30, v{T2}")
        for r in range(8): a(f"v_mov_b32 v{UACC+r}, 0")
        a(f"s_waitcnt vmcnt({2*NA})")
        stamp(a, "unitld")
        for s_ in range(5):
            for dt in range(2):
                for jj in range(2):
                    a(f"ds_read_b64_tr_b16 {v(WFA+8*s_+4*dt+2*jj,2)}, v{T2} offset:{1280*s_ + 160*jj + 32*dt}")
            if s_ == 2: a("s_waitcnt lgkmcnt(4)")
        labV = a.newlabel("kindV"); labD = a.newlabel("kindD")
        a("s_waitcnt lgkmcnt(0)")
        a(f"s_cmp_ge_u32 s{S_J}, 4")
        a(f"s_cbranch_scc1 {labV}")
        for kind in range(2):
            for s_ in range(5):
                for dt in range(2):
                    w_ = v(WFA+8*s_+4*dt, 4); x_ = v(XF+4*s_, 4)
                    A_, B_ = (w_, x_) if kind == 0 else (x_, w_)
                    a(f"v_mfma_f32_16x16x32_bf16 {v(UACC+4*dt,4)}, {A_}, {B_}, {v(UACC+4*dt,4)}")
            if kind == 0:
                a(f"s_branch {labD}")
                a.label(labV)
        a.label(labD)
        a.nop(8)
        a(f"s_mul_i32 s29, s{S_W}, {UNIT_S}")
        a(f"s_add_u32 s29, s29, {UNIT_W}")
        a(f"v_lshlrev_b32 v{T0}, 4, v1")
        a(f"v_add_u32 v{T1}, s29, v{T0}")
        a(f"ds_write_b128 v{T1}, {v(UACC,4)}")
        a(f"ds_write_b128 v{T1}, {v(UACC+4,4)} offset:1024")
        lds_add1_imm(a, C_UP)
    if_wave(a, "lt", 4, unit_compute)
    V_XA, V_WA, V_GWA, V_QXP = 24, 32, 33, 34
    QACC, GACC, GW, QXF, QWF = 44, 60, 76, 84, 96
    a(f"v_and_b32 v{T0}, 31, v1")
    a(f"s_lshl_b32 s28, s{S_G}, 5")
    a(f"v_add_u32 v{T0}, s28, v{T0}")
    a(f"v_lshrrev_b32 v{T1}, 5, v1")
    a(f"v_and_b32 v{T2}, 15, v{T0}")
    a(f"v_xor_b32 v{T2}, v{T2}, v{T1}")
    a(f"v_lshlrev_b32 v{T2}, 4, v{T2}")
    a(f"v_lshlrev_b32 v{T0}, 8, v{T0}")
    a(f"v_add_u32 v{V_XA}, v{T0}, v{T2}")
    for s_ in range(1, 8): a(f"v_xor_b32 v{V_XA+s_}, {32*s_}, v{V_XA}")
    a(f"v_bfe_u32 v{T0}, v1, 2, 2")
    a(f"v_lshlrev_b32 v{T0}, 1, v{T0}")
    a(f"v_lshlrev_b32 v{T2}, 3, v{T1}")
    a(f"v_add_u32 v{T0}, v{T0}, v{T2}")
    a(f"v_mul_u32_u24 v{T0}, 160, v{T0}")
    a(f"v_and_b32 v{T2}, 3, v1")
    a(f"v_lshlrev_b32 v{T2}, 3, v{T2}")
    a(f"v_and_b32 v{T3}, 16, v1")
    a(f"v_cmp_ne_u32 vcc, 0, v{T3}")
    a(f"s_mul_i32 s28, s{S_HH}, 40")
    a(f"s_add_u32 s28, s28, 16384")
    a(f"v_mov_b32 v{T3}, 32")
    a(f"v_cndmask_b32 v{T2}, v{T2}, v{T3}, vcc")
    a(f"v_add_u32 v{T0}, v{T0}, v{T2}")
    a(f"v_add_u32 v{V_WA}, s28, v{T0}")
    for r in range(16):
        a(f"v_mov_b32 v{QACC+r}, 0"); a(f"v_mov_b32 v{GACC+r}, 0")
    a(f"v_lshlrev_b32 v{T1}, 4, v{T1}")
    a(f"s_lshl_b32 s28, s{S_HH}, 5")
    a(f"s_add_u32 s28, s28, {GWL}")
    a(f"v_add_u32 v{V_GWA}, s28, v{T1}")
    def q_chunk(ch, slot):
        off = (slot & 1) * SLOT
        def loads(s_):
            b = s_ % 3
            a(f"ds_read_b128 {v(QXF+4*b,4)}, v{V_XA+s_} offset:{off}")
            a(f"ds_read_b64_tr_b16 {v(QWF+4*b,2)}, v{V_WA} offset:{off + 2560*s_}")
            a(f"ds_read_b64_tr_b16 {v(QWF+4*b+2,2)}, v{V_WA} offset:{off + 2560*s_ + 160}")
        a(f"ds_read_b128 {v(GW,4)}, v{V_GWA} offset:{128*(2*ch)}")
        a(f"ds_read_b128 {v(GW+4,4)}, v{V_GWA} offset:{128*(2*ch+1)}")
        loads(0); loads(1)
        for s_ in range(8):
            if s_ < 6:
                loads(s_+2); a("s_waitcnt lgkmcnt(6)")
            elif s_ == 6: a("s_waitcnt lgkmcnt(3)")
            else: a("s_waitcnt lgkmcnt(0)")
            b = s_ % 3
            a(f"v_mfma_f32_32x32x16_bf16 {v(QACC,16)}, {v(QWF+4*b,4)}, {v(QXF+4*b,4)}, {v(QACC,16)}")
            lg = a.newlabel("ng")
            a(f"s_cmp_lg_u32 s{S_HH}, {s_ & 3}")
            a(f"s_cbranch_scc1 {lg}")
            a(f"v_mfma_f32_32x32x16_bf16 {v(GACC,16)}, {v(GW+4*(s_>>2),4)}, {v(QXF+4*b,4)}, {v(GACC,16)}")
            a.label(lg)
    def bump(delta):
        op = "v_add_u32" if delta > 0 else "v_subrev_u32"
        for s_ in range(8): a(f"{op} v{V_XA+s_}, {abs(delta)}, v{V_XA+s_}")
        a(f"{op} v{V_WA}, {abs(delta)}, v{V_WA}")
    SF, SG = 16, 32
    P = 48
    OF, OG = 56, 72
    K16, K8, V0, V1 = 88, 92, 96, 100
    AK16, AK8, AV, AK16N, AK8N, AVN = 104, 105, 106, 107, 108, 109
    V_L16, V_ONE, V_CFW, V_CD, V_KW, V_CT = 110, 111, 112, 113, 114, 115
    KVST, KVST2 = 116, 16
    V_CFR = 128
    V_STG, V_OL0, V_OG0, V_OL1, V_OG1, V_OUT, V_WT, V_YT, V_GA, V_PX, V_TL16 = range(129, 140)
    QT, YS = 140, 150
    S_T, S_BLK, S_SLOT, S_NXT, S_FT, S_DT = 34, 35, 36, 37, 38, 39
    S_RB, S_M2, S_P1, S_DL, S_WB = 78, 79, 80, 81, 82
    S_CFB, S_CA, S_CBB = 89, 90, 91
    def tail_addrs():
        a(f"v_lshlrev_b32 v{V_TL16}, 4, v1")
        a(f"v_and_b32 v{T0}, 31, v1")
        a(f"v_mul_u32_u24 v{T0}, 160, v{T0}")
        a(f"v_lshrrev_b32 v{T1}, 5, v1")
        a(f"v_lshlrev_b32 v{T1}, 3, v{T1}")
        a(f"v_add_u32 v{T0}, v{T0}, v{T1}")
        a(f"s_mul_i32 s28, s{S_HH}, 40")
        a(f"s_mul_i32 s29, s{S_G}, 5120")
        a(f"s_add_u32 s28, s28, s29")
        a(f"s_add_u32 s28, s28, {OST}")
        a(f"v_add_u32 v{V_STG}, s28, v{T0}")
        for t, (vl, vg) in enumerate(((V_OL0, V_OG0), (V_OL1, V_OG1))):
            a(f"s_add_u32 s28, s{S_W}, {8*t}")
            a(f"s_lshl_b32 s28, s28, 2")
            a(f"v_lshrrev_b32 v{T0}, 4, v1")
            a(f"v_add_u32 v{T0}, s28, v{T0}")
            div10(a, T0, T1, T0, T2)
            a(f"v_and_b32 v{T2}, 15, v1")
            a(f"v_lshl_add_u32 v{T3}, v{T1}, 4, v{T2}")
            a(f"v_mul_u32_u24 v{T3}, 160, v{T3}")
            a(f"v_lshl_add_u32 v{vl}, v{T0}, 4, v{T3}")
            a(f"v_add_u32 v{vl}, {OST}, v{vl}")
            a(f"v_mul_u32_u24 v{T1}, 20480, v{T1}")
            a(f"v_lshl_add_u32 v{T1}, v{T0}, 8, v{T1}")
            a(f"v_lshl_add_u32 v{vg}, v{T2}, 4, v{T1}")
        a(f"v_and_b32 v{T0}, 15, v1")
        a(f"s_lshl_b32 s29, s{S_HH}, 4")
        a(f"s_lshl_b32 s28, s{S_I}, 6")
        a(f"s_add_u32 s28, s28, s29")
        a(f"v_add_u32 v{T1}, s28, v{T0}")
        a(f"v_mul_lo_u32 v{T1}, v{T1}, s{S_1280}")
        a(f"v_lshrrev_b32 v{T2}, 4, v1")
        a(f"v_lshlrev_b32 v{T3}, 3, v{T2}")
        a(f"v_add_u32 v{T1}, v{T1}, v{T3}")
        a(f"s_mul_i32 s28, s{S_J}, 160")
        a(f"v_add_u32 v{V_OUT}, s28, v{T1}")
        a(f"v_lshlrev_b32 v{T0}, 2, v{T0}")
        a(f"s_lshl_b32 s28, s{S_HH}, 6")
        a(f"s_add_u32 s28, s28, {G_L}")
        a(f"v_add_u32 v{V_GA}, s28, v{T0}")
        a(f"v_lshrrev_b32 v{T0}, 5, v1")
        a(f"v_lshlrev_b32 v{T0}, 4, v{T0}")
        a(f"v_bfe_u32 v{T1}, v1, 4, 1")
        a(f"v_lshlrev_b32 v{T1}, 2, v{T1}")
        a(f"v_add_u32 v{T0}, v{T0}, v{T1}")
        a(f"v_bfe_u32 v{T1}, v1, 2, 2")
        a(f"v_add_u32 v{T0}, v{T0}, v{T1}")
        a(f"v_mul_u32_u24 v{T0}, 160, v{T0}")
        a(f"v_and_b32 v{T1}, 3, v1")
        a(f"v_lshlrev_b32 v{T1}, 3, v{T1}")
        a(f"v_add_u32 v{T0}, v{T0}, v{T1}")
        a(f"s_mul_i32 s28, s{S_G}, 51200")
        a(f"s_add_u32 s28, s28, {WOA}")
        a(f"v_add_u32 v{V_WT}, s28, v{T0}")
        a(f"v_bfe_u32 v{T0}, v1, 2, 4")
        a(f"v_lshlrev_b32 v{T0}, 7, v{T0}")
        a(f"v_add_u32 v{T0}, v{T0}, v{T1}")
        a(f"s_lshl_b32 s28, s{S_HH}, 5")
        a(f"s_add_u32 s28, s28, {YL}")
        a(f"v_add_u32 v{V_YT}, s28, v{T0}")
        a(f"s_mul_i32 s28, s{S_W}, 3072")
        a(f"s_add_u32 s28, s28, {PX}")
        a(f"v_add_u32 v{V_PX}, s28, v{V_TL16}")
    def ring_addrs():
        a(f"s_mul_i32 s{S_RB}, s{S_G}, {RING_STRIDE}")
        a(f"v_lshlrev_b32 v{V_L16}, 4, v1")
        a(f"v_mov_b32 v{V_ONE}, 1")
        a(f"s_lshl_b32 s28, s{S_G}, 4")
        a(f"s_add_u32 s{S_CFB}, s28, {C_FULL}")
        a(f"s_mul_i32 s29, s{S_HH}, {BLK}")
        a(f"s_add_u32 s{S_WB}, s{S_RB}, s29")
        a(f"v_add_u32 v{AK16}, s{S_RB}, v{V_L16}")
        a(f"v_and_b32 v{T0}, 31, v1")
        a(f"v_lshlrev_b32 v{T1}, 3, v{T0}")
        a(f"v_add_u32 v{T1}, 1024, v{T1}")
        a(f"v_mov_b32 v{AK8}, 1280")
        a(f"v_cmp_gt_u32 vcc, 32, v1")
        a(f"v_min_u32 v{T2}, 20, v{T0}")
        a(f"v_subrev_u32 v{AV}, 16, v{T0}")
        a(f"v_cndmask_b32 v{AK8}, v{AK8}, v{T1}, vcc")
        a(f"v_add_u32 v{AK8}, s{S_RB}, v{AK8}")
        a(f"v_cmp_lt_u32 vcc, 27, v{T0}")
        a.nop(2)
        a(f"v_cndmask_b32 v{T2}, v{T2}, v{AV}, vcc")
        a(f"v_lshlrev_b32 v{T2}, 4, v{T2}")
        a(f"v_lshrrev_b32 v{AV}, 5, v1")
        a(f"v_mul_u32_u24 v{AV}, 336, v{AV}")
        a(f"v_add_u32 v{AV}, v{AV}, v{T2}")
        a(f"v_add_u32 v{AV}, 1296, v{AV}")
        a(f"v_add_u32 v{AV}, s{S_RB}, v{AV}")
        a(f"v_lshlrev_b32 v{T0}, 2, v1")
        a(f"v_add_u32 v{T0}, {DUMMY}, v{T0}")
        a(f"v_mov_b32 v{T1}, s{S_CFB}")
        a(f"v_cmp_eq_u32 vcc, 0, v1")
        a.nop(2)
        a(f"v_cndmask_b32 v{V_CFW}, v{T0}, v{T1}, vcc")
        a(f"v_add_u32 v{V_KW}, s{S_WB}, v{V_L16}")
        a(f"s_lshl_b32 s28, s{S_W}, 2")
        a(f"s_add_u32 s29, s28, {C_PROG}")
        a(f"v_mov_b32 v{T1}, s29")
        a(f"v_cndmask_b32 v150, v{T0}, v{T1}, vcc")
        a(f"s_xor_b32 s28, s28, 16")
        a(f"s_add_u32 s28, s28, {C_PROG}")
        a(f"v_mov_b32 v151, s28")
    def blk_off(t, g=None):
        a(f"s_add_u32 s28, s{S_ROT}, {t}")
        a(f"s_and_b32 s28, s28, 7")
        a(f"s_lshl_b32 s28, s28, 2")
        if g is None:
            a(f"s_lshl_b32 s29, s{S_G}, 5")
            a(f"s_add_u32 s28, s28, s29")
        elif g: a(f"s_add_u32 s28, s28, {32*g}")
        a(f"s_add_u32 s28, s28, s{S_HH}")
        a(f"s_mul_i32 s{S_BLK}, s28, 3072")
    def kv_load(dst):
        for q in range(3):
            a(f"buffer_load_dwordx4 {v(dst+4*q,4)}, v{V_L16}, {R(SRD_WS)}, s{S_BLK} offen offset:{1024*q} sc1")
    def kv_write(src, off=0):
        for q in range(3): a(f"ds_write_b128 v{V_KW}, {v(src+4*q,4)} offset:{off + 1024*q}")
    def wait_chunk(ch):
        if ch < 2:
            if ch == 0: wait_vm(NA, NB)
            else: a("s_waitcnt vmcnt(0)")
            lds_add1_imm(a, C_CL + 4*ch)
            lds_wait_imm(a, C_CL + 4*ch, 8, sleep=0)
        else:
            lds_wait_imm(a, C_CL + 4*ch, 3, sleep=1)
        stamp(a, f"cl{ch}")
    wait_chunk(0)
    q_chunk(0, 0)
    lds_add1_imm(a, C_C0C)
    wait_chunk(1)
    q_chunk(1, 1)
    lds_add1_imm(a, C_C1C)
    tail_addrs()
    bump(2 * SLOT)
    wait_chunk(2)
    q_chunk(2, 2)
    bump(-2 * SLOT)
    wait_chunk(3)
    q_chunk(3, 0)
    wait_chunk(4)
    q_chunk(4, 1)
    lds_add1_imm(a, C_QRD)
    stamp(a, "qdone")

    QF16, QF8, QG16, QG8 = 4, 8, 10, 14
    ring_addrs()
    a(f"s_lshl_b32 s28, s{S_W}, 10")
    a(f"v_lshlrev_b32 v{T2}, 4, v1")
    a(f"v_add_u32 v{T2}, s28, v{T2}")
    a(f"v_lshrrev_b32 v{T3}, 1, v{T2}")
    a(f"v_xor_b32 v{V_QXP}, 4096, v{T2}")
    a(f"v_xor_b32 v{V_QXP+1}, 2048, v{T3}")
    a(f"v_add_u32 v{T2}, {QXA}, v{T2}")
    a(f"v_add_u32 v{T3}, {QXB}, v{T3}")
    a(f"v_add_u32 v{V_QXP}, {QXA}, v{V_QXP}")
    a(f"v_add_u32 v{V_QXP+1}, {QXB}, v{V_QXP+1}")
    a(f"s_mov_b32 s28, {hex(f32bits(QSCALE))}")
    for r in range(12): a(f"v_mul_f32 v{QACC+r}, s28, v{QACC+r}")
    a(f"v_cmp_gt_u32 vcc, 32, v1")
    for r in range(4): a(f"v_cvt_pk_bf16_f32 v{QF16+r}, v{QACC+2*r}, v{QACC+2*r+1}")
    for r in range(2): a(f"v_cvt_pk_bf16_f32 v{QF8+r}, v{QACC+8+2*r}, v{QACC+8+2*r+1}")
    a(f"ds_write_b128 v{T2}, {v(QF16,4)}")
    for r in range(2): a(f"v_cndmask_b32 v{QF8+r}, 0, v{QF8+r}, vcc")
    a(f"s_lshl_b32 s28, s{S_W}, 7")
    a(f"s_add_u32 s28, s28, {GP}")
    a(f"v_lshlrev_b32 v{T1}, 2, v1")
    a(f"v_add_u32 v{T1}, s28, v{T1}")
    a(f"ds_write_b64 v{T3}, {v(QF8,2)}")
    a(f"s_mov_b64 exec, 0xffffffff")
    a(f"ds_write_b32 v{T1}, v{GACC}")
    a(f"s_mov_b64 exec, -1")
    a(f"s_lshl_b32 s28, s{S_W}, 2")
    a(f"s_add_u32 s29, s28, {C_QXF}")
    a(f"v_mov_b32 v{T0}, s29")
    lds_add1(a, T0, V_ONE)
    a(f"s_xor_b32 s28, s28, 16")
    a(f"s_add_u32 s28, s28, {C_QXF}")
    a(f"v_mov_b32 v{T0}, s28")
    for r in range(16):
        a(f"v_mov_b32 v{OF+r}, 0"); a(f"v_mov_b32 v{OG+r}, 0")
    for r in range(8): a(f"v_mov_b32 v{P+r}, 0")
    for r in range(4): a(f"v_mov_b32 v{V1+r}, 0")
    for r in range(12, 16): a(f"v_mov_b32 v{SG+r}, 0")
    lds_wait_ge(a, 1, T1, T0, sleep=0)
    a(f"ds_read_b128 {v(QG16,4)}, v{V_QXP}")
    a(f"ds_read_b64 {v(QG8,2)}, v{V_QXP+1}")
    a("s_waitcnt lgkmcnt(0)")
    lds_add1_imm(a, C_QG)
    stamp(a, "qg")
    lds_wait_ge(a, 1, V_CT, V_CFW, sleep=1)
    stamp(a, "full0")
    a(f"ds_read_b128 {v(K16,4)}, v{AK16}")
    a(f"ds_read_b64 {v(K8,2)}, v{AK8}")
    a(f"ds_read_b128 {v(V0,4)}, v{AV}")
    a("s_waitcnt lgkmcnt(0)")
    a(f"v_mfma_f32_32x32x16_bf16 {v(SF,16)}, {v(K16,4)}, {v(QF16,4)}, 0")
    a(f"v_mfma_f32_32x32x8_bf16 {v(SF,16)}, {v(K8,2)}, {v(QF8,2)}, {v(SF,16)}")
    S_U, S_B1, S_B2, S_PR = 34, 36, 37, 80
    a(f"s_mov_b32 s{S_U}, 0")
    a(f"s_mov_b32 s{S_B1}, 1")
    a(f"s_mov_b32 s{S_B2}, 2")
    a(f"s_mov_b32 s{S_PR}, 0")
    V_PG, V_PGP, V_PT = 150, 151, 128
    for mt in range(5):
        a(f"buffer_load_dwordx2 {v(QT+2*mt,2)}, v{V_OUT}, {R(SRD_X)}, 0 offen offset:{32*mt}")
    a("s_setprio 1")
    stamp(a, "loop0")
    LOOP = "f_attn"
    if "align" in OPT: a(".p2align 6")
    a.label(LOOP)
    e = lambda S, i: a(f"v_exp_f32 v{S+i}, v{S+i}")
    c = lambda S, i: a(f"v_cvt_pk_bf16_f32 v{P+i}, v{S+2*i}, v{S+2*i+1}")
    def check_cnt(target, off):
        ok = a.newlabel("ok"); lp = a.newlabel("rt")
        a(f"v_readfirstlane_b32 s42, v{V_CT}")
        a("s_nop 3")
        a(f"s_cmp_ge_u32 s42, {target}")
        a(f"s_cbranch_scc1 {ok}")
        a(f"s_mov_b32 s43, 0")
        a.label(lp)
        a("s_sleep 1")
        a(f"ds_read_b32 v{V_CT}, v{V_CFW} offset:{off}")
        a("s_waitcnt lgkmcnt(0)")
        a(f"v_readfirstlane_b32 s42, v{V_CT}")
        a(f"s_add_u32 s43, s43, 1")
        a(f"s_cmp_ge_u32 s43, {POLL_MAX*8}")
        a(f"s_cbranch_scc1 {ok}")
        a(f"s_cmp_lt_u32 s42, {target}")
        a(f"s_cbranch_scc1 {lp}")
        a.label(ok)
    for sl in range(2):
        so, no = sl * KVSLOT, (1 - sl) * KVSLOT
        FT = f"s{S_B1}" if sl == 0 else f"s{S_B2}"
        for b in range(4):
            koff = (no if b == 3 else so + (b+1)*BLK)
            extra = (b == 2) or (b == 1 and "nolag" not in OPT)
            c(SG, 6); c(SG, 7)
            a(f"v_mfma_f32_32x32x16_bf16 {v(SG,16)}, {v(K16,4)}, {v(QG16,4)}, 0")
            a(f"ds_read_b128 {v(K16,4)}, v{AK16} offset:{koff}")
            if b == 2: a(f"ds_read_b32 v{V_CT}, v{V_CFW} offset:{4*(1-sl)}")
            if b == 1 and "nolag" not in OPT: a(f"ds_read_b32 v{V_PT}, v{V_PGP}")
            for i in range(0, 4): e(SF, i)
            c(SF, 0); c(SF, 1)
            a(f"v_mfma_f32_32x32x16_bf16 {v(OG,16)}, {v(V1,4)}, {v(P+4,4)}, {v(OG,16)}")
            a(f"ds_read_b128 {v(V1,4)}, v{AV} offset:{so + b*BLK + 672}")
            for i in range(4, 8): e(SF, i)
            c(SF, 2); c(SF, 3)
            a(f"v_mfma_f32_32x32x8_bf16 {v(SG,16)}, {v(K8,2)}, {v(QG8,2)}, {v(SG,16)}")
            a(f"ds_read_b64 {v(K8,2)}, v{AK8} offset:{koff}")
            for i in range(8, 12): e(SF, i)
            c(SF, 4); c(SF, 5)
            a(f"s_waitcnt lgkmcnt({4 if extra else 3})")
            a(f"v_mfma_f32_32x32x16_bf16 {v(OF,16)}, {v(V0,4)}, {v(P,4)}, {v(OF,16)}")
            for i in range(12, 16): e(SF, i)
            c(SF, 6); c(SF, 7)
            a("s_waitcnt lgkmcnt(0)")
            a(f"v_mfma_f32_32x32x16_bf16 {v(SF,16)}, {v(K16,4)}, {v(QF16,4)}, 0")
            if b == 0:
                if sl == 0: if_s(a, S_U, "lg", 0, lambda: a(f"ds_add_u32 v{V_CFW}, v{V_ONE} offset:{32 + 4*(1-sl)}"))
                else: a(f"ds_add_u32 v{V_CFW}, v{V_ONE} offset:{32 + 4*(1-sl)}")
            if b == 2:
                lb = a.newlabel("nf")
                if sl == 1:
                    a(f"s_cmp_ge_u32 s{S_U}, 3")
                    a(f"s_cbranch_scc1 {lb}")
                check_cnt(FT, 4*(1-sl))
                a.label(lb)
                if "nolag" not in OPT:
                    a(f"v_readfirstlane_b32 s42, v{V_PT}")
                    lpa = a.newlabel("pa"); lpb = a.newlabel("pb")
                    a("s_nop 1")
                    a(f"s_cmp_gt_u32 s{S_PR}, s42")
                    a(f"s_cbranch_scc1 {lpa}")
                    a("s_setprio 2")
                    a(f"s_branch {lpb}")
                    a.label(lpa)
                    a("s_setprio 1")
                    a.label(lpb)
            for i in range(0, 4): e(SG, i)
            c(SG, 0); c(SG, 1)
            a(f"v_mfma_f32_32x32x16_bf16 {v(OF,16)}, {v(V1,4)}, {v(P+4,4)}, {v(OF,16)}")
            for i in range(4, 8): e(SG, i)
            c(SG, 2); c(SG, 3)
            a(f"v_mfma_f32_32x32x8_bf16 {v(SF,16)}, {v(K8,2)}, {v(QF8,2)}, {v(SF,16)}")
            for i in range(8, 12): e(SG, i)
            c(SG, 4); c(SG, 5)
            a(f"v_mfma_f32_32x32x16_bf16 {v(OG,16)}, {v(V0,4)}, {v(P,4)}, {v(OG,16)}")
            a(f"ds_read_b128 {v(V0,4)}, v{AV} offset:{koff}")
            for i in range(12, 16): e(SG, i)
        if "nolag" not in OPT:
            a(f"s_add_u32 s{S_PR}, s{S_PR}, 1")
            a(f"v_mov_b32 v{V_CT}, s{S_PR}")
            a(f"ds_write_b32 v{V_PG}, v{V_CT}")
    a(f"s_add_u32 s{S_U}, s{S_U}, 1")
    a(f"s_add_u32 s{S_B1}, s{S_B1}, 1")
    a(f"s_add_u32 s{S_B2}, s{S_B2}, 1")
    a(f"s_cmp_lt_u32 s{S_U}, 4")
    a(f"s_cbranch_scc1 {LOOP}")
    stamp(a, "loopE")
    S_FBD = 81
    a(f"s_mov_b32 s{S_FBD}, 0")
    c(SG, 6); c(SG, 7)
    a(f"s_mul_i32 s28, s{S_G}, {RING_STRIDE}")
    a(f"s_mul_i32 s29, s{S_HH}, 3072")
    a(f"s_add_u32 s28, s28, s29")
    a(f"v_add_u32 v{T2}, s28, v{V_L16}")
    a(f"s_xor_b32 s30, s{S_G}, 1")
    a(f"s_mul_i32 s30, s30, {RING_STRIDE}")
    a(f"s_add_u32 s29, s29, s30")
    a(f"v_mfma_f32_32x32x16_bf16 {v(OG,16)}, {v(V1,4)}, {v(P+4,4)}, {v(OG,16)}")
    a(f"v_add_u32 v{T3}, s29, v{V_L16}")
    a("s_setprio 2")
    V_LA = 94
    def cadd(addr):
        a(f"v_add_u32 v95, {addr}, v{V_LA}" if False else f"v_mov_b32 v95, {addr}")
        lds_add1(a, 95, V_ONE)
    a("s_waitcnt lgkmcnt(0)")
    a(f"s_lshl_b32 s30, s{S_G}, 4")
    a(f"s_add_u32 s30, s30, {C_LE}")
    a(f"v_mov_b32 v95, s30")
    lds_add1(a, 95, V_ONE)
    lds_wait_ge(a, 4, T1, 95, sleep=0)
    for q in range(3): a(f"ds_write_b128 v{T2}, {v(OG+4*q,4)} offset:{1024*q}")
    a(f"s_lshl_b32 s28, s{S_W}, 2")
    a(f"s_add_u32 s30, s28, {C_XF}")
    a(f"v_mov_b32 v95, s30")
    lds_add1(a, 95, V_ONE)
    a(f"s_xor_b32 s28, s28, 16")
    a(f"s_add_u32 s30, s28, {C_XF}")
    a(f"v_mov_b32 v{T0}, s30")
    lds_wait_ge(a, 1, T1, T0, sleep=0)
    stamp(a, "xf")
    stamp(a, "J1")
    PB = 16
    for q in range(3): a(f"ds_read_b128 {v(PB+4*q,4)}, v{T3} offset:{1024*q}")
    a("s_waitcnt lgkmcnt(0)")
    for r in range(12): a(f"v_add_f32 v{OF+r}, v{OF+r}, v{PB+r}")
    NORM = "f_norm"; FB = "f_fallback"
    a.label(NORM)
    a(f"v_mov_b32 v40, v{OF+8}")
    a(f"v_mov_b32 v41, v{OF+8}")
    a.nop(2)
    a(f"v_permlane32_swap_b32 v40, v41")
    a(f"v_max3_f32 v42, abs(v{OF}), abs(v{OF+1}), abs(v{OF+2})")
    a(f"v_max3_f32 v43, abs(v{OF+3}), abs(v{OF+4}), abs(v{OF+5})")
    a(f"v_max3_f32 v42, v42, abs(v{OF+6}), abs(v{OF+7})")
    a(f"v_max3_f32 v43, v43, abs(v{OF+8}), abs(v{OF+9})")
    a(f"v_max3_f32 v42, v42, abs(v{OF+10}), abs(v{OF+11})")
    a(f"v_max_f32 v42, v42, v43")
    a(f"s_mov_b32 s28, 0x21800000")
    a(f"s_mov_b32 s29, 0x5d800000")
    a(f"s_mov_b32 s30, 0x7e800000")
    a(f"v_cmp_ge_f32 s[40:41], v41, s28" if False else f"v_cmp_le_f32 s[40:41], s28, v41")
    a(f"v_cmp_ge_f32 vcc, s29, v41")
    a(f"s_and_b64 s[40:41], s[40:41], vcc")
    a(f"v_cmp_gt_f32 vcc, s30, v42")
    a(f"s_and_b64 s[40:41], s[40:41], vcc")
    a(f"s_or_b32 s40, s40, s{S_FBD}")
    a(f"s_or_b32 s41, s41, s{S_FBD}")
    a(f"s_cmp_eq_u64 s[40:41], -1")
    a(f"s_cbranch_scc0 {FB}")
    a(f"v_rcp_f32 v41, v41")
    a.nop(1)
    for r in range(12): a(f"v_mul_f32 v{OF+r}, v{OF+r}, v41")
    for r in range(6): a(f"v_cvt_pk_bf16_f32 v{104+r}, v{OF+2*r}, v{OF+2*r+1}")
    a(f"ds_write_b64 v{V_STG}, v[104:105]")
    a(f"ds_write_b64 v{V_STG}, v[106:107] offset:16")
    a(f"s_mov_b64 exec, 0xffffffff")
    a(f"ds_write_b64 v{V_STG}, v[108:109] offset:32")
    a(f"s_mov_b64 exec, -1")
    cadd(C_ST)
    a(f"s_mul_i32 s29, s{S_I}, 81920")
    a(f"s_mul_i32 s30, s{S_J}, 2560")
    a(f"s_add_u32 s29, s29, s30")
    a(f"s_add_u32 s29, s29, {O_OFF}")
    stamp(a, "stg")
    lds_wait_imm(a, C_ST, 8, sleep=0)
    stamp(a, "st8")
    a(f"ds_read_b128 v[44:47], v{V_OL0}")
    if_wave(a, "lt", 2, lambda: a(f"ds_read_b128 v[48:51], v{V_OL1}"))
    a("s_waitcnt lgkmcnt(0)")
    a(f"buffer_store_dwordx4 v[44:47], v{V_OG0}, {R(SRD_WS)}, s29 offen sc1")
    if_wave(a, "lt", 2, lambda: a(f"buffer_store_dwordx4 v[48:51], v{V_OG1}, {R(SRD_WS)}, s29 offen sc1"))
    OFR, ACC, AF = 16, 56, 76
    def ldsA(s_):
        b = s_ & 1
        for mt in range(5):
            a(f"ds_read_b64_tr_b16 {v(AF+20*b+4*mt,2)}, v{V_WT} offset:{s_*5120 + 32*mt}")
            a(f"ds_read_b64_tr_b16 {v(AF+20*b+4*mt+2,2)}, v{V_WT} offset:{s_*5120 + 1280 + 32*mt}")
    for r in range(20): a(f"v_mov_b32 v{ACC+r}, 0")
    a(f"s_mul_i32 s28, s{S_I}, 81920")
    a(f"s_mul_i32 s29, s{S_HH}, 20480")
    a(f"s_add_u32 s28, s28, s29")
    a(f"s_mul_i32 s29, s{S_G}, 10240")
    a(f"s_add_u32 s28, s28, s29")
    a(f"s_add_u32 s28, s28, {O_OFF}")
    a("s_waitcnt vmcnt(0)")
    stamp(a, "ostd")
    cadd(C_OCNT)
    lds_wait_imm(a, C_WOK, 3, sleep=1)
    stamp(a, "wok")
    ldsA(0)
    lds_wait_imm(a, C_OOK, 1, sleep=0)
    stamp(a, "h4ok")
    for s_ in range(10):
        a(f"buffer_load_dwordx4 {v(OFR+4*s_,4)}, v{V_TL16}, {R(SRD_WS)}, s28 offen offset:{1024*(s_%4)} sc1")
        if s_ % 4 == 3: a(f"s_add_u32 s28, s28, 4096")
    for s_ in range(10):
        if s_ < 9:
            ldsA(s_ + 1); a(f"s_waitcnt lgkmcnt(10) vmcnt({9 - s_})")
        else:
            a("s_waitcnt lgkmcnt(0) vmcnt(0)")
        b = s_ & 1
        for mt in range(5):
            a(f"v_mfma_f32_16x16x32_bf16 {v(ACC+4*mt,4)}, {v(AF+20*b+4*mt,4)}, {v(OFR+4*s_,4)}, {v(ACC+4*mt,4)}")
    stamp(a, "oproj")
    YF, GV = 16, 30
    FINA = "f_fina"; FINB = "f_finb"
    a(f"v_xor_b32 v{T3}, 0, v{V_PX}" if False else f"s_xor_b32 s29, s{S_W}, 4")
    a(f"s_mul_i32 s29, s29, 3072")
    a(f"s_add_u32 s29, s29, {PX}")
    a(f"v_add_u32 v{T3}, s29, v{V_TL16}")
    lds_wait_imm(a, C_YW, 2, T1, T0, sleep=0)
    stamp(a, "yw")
    def fin(keep, send):
        for mt in keep: a(f"ds_read_b64_tr_b16 {v(YF+2*mt,2)}, v{V_YT} offset:{2048*mt}")
        a(f"ds_read_b32 v{GV}, v{V_GA}")
        a.nop(4)
        for n, mt in enumerate(send): a(f"ds_write_b128 v{V_PX}, {v(ACC+4*mt,4)} offset:{1024*n}")
        a(f"s_lshl_b32 s28, s{S_W}, 2")
        a(f"s_add_u32 s30, s28, {C_PF}")
        a(f"v_mov_b32 v{T0}, s30")
        a(f"v_mov_b32 v{T1}, 1")
        lds_add1(a, T0, T1)
        a("s_waitcnt lgkmcnt(0)")
        for mt in keep:
            for hlf in range(2):
                yq = YF + 2*mt + hlf; qq = QT + 2*mt + hlf; d = 32 + 4*mt + 2*hlf
                a(f"v_lshlrev_b32 v{d}, 16, v{yq}")
                a(f"v_and_b32 v{d+1}, 0xffff0000, v{yq}")
                a(f"v_lshlrev_b32 v52, 16, v{qq}")
                a(f"v_and_b32 v53, 0xffff0000, v{qq}")
                a(f"v_mul_f32 v52, v52, v{GV}")
                a(f"v_mul_f32 v53, v53, v{GV}")
                a(f"v_mul_f32 v{d}, v{d}, v52")
                a(f"v_mul_f32 v{d+1}, v{d+1}, v53")
        a(f"v_sub_f32 v{GV+1}, 1.0, v{GV}")
        a(f"s_xor_b32 s28, s28, 16")
        a(f"s_add_u32 s30, s28, {C_PF}")
        a(f"v_mov_b32 v{T0}, s30")
        lds_wait_ge(a, 1, T1, T0, sleep=0)
        for n, mt in enumerate(keep): a(f"ds_read_b128 {v(AF+4*n,4)}, v{T3} offset:{1024*n}")
        for n, mt in enumerate(keep):
            a(f"s_waitcnt lgkmcnt({len(keep)-1-n})")
            for r in range(4): a(f"v_add_f32 v{ACC+4*mt+r}, v{ACC+4*mt+r}, v{AF+4*n+r}")
            for r in range(4): a(f"v_fmac_f32 v{32+4*mt+r}, v{ACC+4*mt+r}, v{GV+1}")
            a(f"v_cvt_pk_bf16_f32 v{100+2*mt}, v{32+4*mt}, v{32+4*mt+1}")
            a(f"v_cvt_pk_bf16_f32 v{100+2*mt+1}, v{32+4*mt+2}, v{32+4*mt+3}")
            a(f"buffer_store_dwordx2 {v(100+2*mt,2)}, v{V_OUT}, {R(SRD_OUT)}, 0 offen offset:{32*mt}")
    a(f"s_cmp_ge_u32 s{S_W}, 4")
    a(f"s_cbranch_scc1 {FINB}")
    fin([0, 1, 2], [3, 4])
    a(f"s_branch f_fin")
    a.label(FINB)
    fin([3, 4], [0, 1, 2])
    a(f"s_branch f_fin")

    a.label(FB)
    FK16, FK8, FV0, FV1 = 88, 92, 96, 100
    FA16, FA8, FAV, FM = 44, 45, 46, 47
    a(f"v_lshlrev_b32 v{FA16}, 4, v1")
    a(f"v_and_b32 v{T0}, 31, v1")
    a(f"v_lshlrev_b32 v{T1}, 3, v{T0}")
    a(f"v_add_u32 v{T1}, 1024, v{T1}")
    a(f"v_mov_b32 v{FA8}, 1280")
    a(f"v_cmp_gt_u32 vcc, 32, v1")
    a(f"v_min_u32 v{FM}, 20, v{T0}")
    a.nop(1)
    a(f"v_cndmask_b32 v{FA8}, v{FA8}, v{T1}, vcc")
    a(f"v_lshlrev_b32 v{FM}, 4, v{FM}")
    a(f"v_lshrrev_b32 v{FAV}, 5, v1")
    a(f"v_mul_u32_u24 v{FAV}, 336, v{FAV}")
    a(f"v_add_u32 v{FAV}, v{FAV}, v{FM}")
    a(f"v_add_u32 v{FAV}, 1296, v{FAV}")
    a(f"v_mov_b32 v{FM}, 0xff800000")
    a(f"s_mov_b32 s28, 0")
    FL1 = a.newlabel("fb1")
    a.label(FL1)
    a(f"buffer_load_dwordx4 {v(FK16,4)}, v{FA16}, {R(SRD_WS)}, s28 offen sc1")
    a(f"buffer_load_dwordx2 {v(FK8,2)}, v{FA8}, {R(SRD_WS)}, s28 offen sc1")
    a("s_waitcnt vmcnt(0)")
    a(f"v_mfma_f32_32x32x16_bf16 {v(SF,16)}, {v(FK16,4)}, {v(QF16,4)}, 0")
    a(f"v_mfma_f32_32x32x8_bf16 {v(SF,16)}, {v(FK8,2)}, {v(QF8,2)}, {v(SF,16)}")
    a.nop(16); a.nop(4)
    for r in range(0, 16, 2): a(f"v_max3_f32 v{FM}, v{FM}, v{SF+r}, v{SF+r+1}")
    a(f"s_add_u32 s28, s28, 3072")
    a(f"s_cmp_lt_u32 s28, {64*3072}")
    a(f"s_cbranch_scc1 {FL1}")
    a(f"v_mov_b32 v{T0}, v{FM}")
    a(f"v_mov_b32 v{T1}, v{FM}")
    a.nop(2)
    a(f"v_permlane32_swap_b32 v{T0}, v{T1}")
    a.nop(2)
    a(f"v_max3_f32 v{FM}, v{FM}, v{T0}, v{T1}")
    a(f"v_sub_f32 v{T0}, 0, v{FM}")
    a(f"v_cvt_pk_bf16_f32 v{T1}, v{T0}, v{T0}")
    a(f"v_and_b32 v42, 0xffff0000, v{T1}")
    a(f"v_sub_f32 v{T0}, v{T0}, v42")
    a(f"v_cvt_pk_bf16_f32 v43, v{T0}, v{T0}")
    a(f"v_and_b32 v42, 0xffff0000, v43")
    a(f"v_sub_f32 v{T0}, v{T0}, v42")
    a(f"v_cvt_pk_bf16_f32 v{T0}, v{T0}, v{T0}")
    a(f"v_and_b32 v{T1}, 0xffff, v{T1}")
    a(f"v_or_b32 v{T1}, v{T1}, v42")
    a(f"v_and_b32 v{T0}, 0xffff, v{T0}")
    a(f"v_cmp_gt_u32 vcc, 32, v1")
    a.nop(2)
    a(f"v_cndmask_b32 v{QF8}, v{T1}, v{QF8}, vcc")
    a(f"v_cndmask_b32 v{QF8+1}, v{T0}, v{QF8+1}, vcc")
    for r in range(16): a(f"v_mov_b32 v{OF+r}, 0")
    a(f"s_mov_b32 s28, 0")
    FL2 = a.newlabel("fb2")
    a.label(FL2)
    a(f"buffer_load_dwordx4 {v(FK16,4)}, v{FA16}, {R(SRD_WS)}, s28 offen sc1")
    a(f"buffer_load_dwordx2 {v(FK8,2)}, v{FA8}, {R(SRD_WS)}, s28 offen sc1")
    a(f"buffer_load_dwordx4 {v(FV0,4)}, v{FAV}, {R(SRD_WS)}, s28 offen sc1")
    a(f"buffer_load_dwordx4 {v(FV1,4)}, v{FAV}, {R(SRD_WS)}, s28 offen offset:672 sc1")
    a("s_waitcnt vmcnt(0)")
    a(f"v_mfma_f32_32x32x16_bf16 {v(SF,16)}, {v(FK16,4)}, {v(QF16,4)}, 0")
    a(f"v_mfma_f32_32x32x8_bf16 {v(SF,16)}, {v(FK8,2)}, {v(QF8,2)}, {v(SF,16)}")
    a.nop(16); a.nop(4)
    for i in range(16): a(f"v_exp_f32 v{SF+i}, v{SF+i}")
    a.nop(1)
    for i in range(8): a(f"v_cvt_pk_bf16_f32 v{P+i}, v{SF+2*i}, v{SF+2*i+1}")
    a.nop(2)
    a(f"v_mfma_f32_32x32x16_bf16 {v(OF,16)}, {v(FV0,4)}, {v(P,4)}, {v(OF,16)}")
    a(f"v_mfma_f32_32x32x16_bf16 {v(OF,16)}, {v(FV1,4)}, {v(P+4,4)}, {v(OF,16)}")
    a(f"s_add_u32 s28, s28, 3072")
    a(f"s_cmp_lt_u32 s28, {64*3072}")
    a(f"s_cbranch_scc1 {FL2}")
    a.nop(16)
    a(f"s_mov_b32 s{S_FBD}, -1")
    a(f"s_branch {NORM}")

    a.label(PSTART)
    a("s_setprio 3")
    a(f"v_mov_b32 v4, 0")
    if "nocpf" not in OPT:
        a(f"s_getpc_b64 s[28:29]")
        a.label("f_pcref")
        a(f"s_sub_u32 s28, s28, f_pcref-{NAME}_kernel")
        a(f"s_subb_u32 s29, s29, 0")
        a(f"s_lshr_b32 s30, s2, 3")
        a(f"s_min_u32 s30, s30, (f_end-{NAME}_kernel)/1024-1")
        a(f"s_lshl_b32 s30, s30, 10")
        a(f"v_lshlrev_b32 v24, 4, v1")
        a(f"v_add_u32 v24, s30, v24")
        a(f"global_load_dwordx4 v[28:31], v24, s[28:29]")
        if "cpf2" in OPT: a(f"global_load_dwordx4 v[28:31], v24, s[28:29] offset:0")
    lead = a.newlabel("lead")
    def lead_fn():
        a(f"s_memrealtime s[28:29]")
        a("s_waitcnt lgkmcnt(0)")
        a(f"s_or_b32 s28, s28, 1")
        a(f"v_mov_b32 v5, s28")
        a(f"s_mov_b64 exec, 1")
        a(f"buffer_store_dword v5, v4, {R(SRD_DBG)}, 0 offen sc1")
        a(f"s_mov_b64 exec, -1")
    if_s(a, 2, "eq", 0, lead_fn)
    a(f"buffer_load_dword v20, v4, {R(SRD_DBG)}, 0 offen sc1")
    a(f"v_lshlrev_b32 v6, 21, v1")
    a(f"s_mov_b64 exec, 0xf")
    a(f"buffer_load_dword v8, v6, {R(SRD_WS)}, 0 offen offset:2048")
    a(f"s_mov_b64 exec, 0x3")
    a(f"buffer_load_dword v9, v6, {R(SRD_H)}, 0 offen")
    a(f"buffer_load_dword v10, v6, {R(SRD_OUT)}, 0 offen")
    a(f"s_mov_b64 exec, 0x1")
    a(f"buffer_load_dword v11, v6, {R(SRD_WO)}, 0 offen")
    a(f"s_mov_b64 exec, -1")
    a(f"v_lshlrev_b32 v5, 2, v1")
    a(f"v_add_u32 v7, {CNT}, v5")
    a(f"ds_write_b32 v7, v4")
    a(f"ds_write_b32 v7, v4 offset:256")
    a(f"s_mov_b64 exec, -1")
    a("s_waitcnt lgkmcnt(0)")
    a("s_barrier")
    lds_wait_imm(a, C_UP, 4, sleep=0)
    PXF, PWF = 16, 48
    a(f"v_lshlrev_b32 v{T0}, 4, v1")
    a(f"v_add_u32 v{T1}, {UNIT_W}, v{T0}")
    for p_ in range(4):
        a(f"ds_read_b128 {v(PXF+8*p_,4)}, v{T1} offset:{UNIT_S*p_}")
        a(f"ds_read_b128 {v(PXF+8*p_+4,4)}, v{T1} offset:{UNIT_S*p_+1024}")
    a(f"s_lshl_b32 s28, s{S_I}, 1")
    a(f"s_bfe_u32 s29, s{S_J}, 0x10001")
    a(f"s_add_u32 s28, s28, s29")
    a(f"s_mul_i32 s29, s28, 3072")
    a(f"s_and_b32 s30, s{S_J}, 1")
    a("s_waitcnt lgkmcnt(0)")
    a(f"v_mov_b32 v12, {C_PD}")
    a(f"v_mov_b32 v13, 1")
    a(f"ds_write_b32 v12, v13")
    for p_ in range(1, 4):
        for r in range(8): a(f"v_add_f32 v{PXF+r}, v{PXF+r}, v{PXF+8*p_+r}")
    for r in range(4): a(f"v_cvt_pk_bf16_f32 v{PWF+r if r<2 else PWF+4+(r-2)}, v{PXF+2*r}, v{PXF+2*r+1}")
    a(f"v_mov_b32 v{PWF+6}, v{PWF}")
    a(f"v_mov_b32 v{PWF+7}, v{PWF+1}")
    a.nop(2)
    a(f"v_permlane32_swap_b32 v{PWF+6}, v{PWF+2}")
    a(f"v_permlane32_swap_b32 v{PWF+7}, v{PWF+3}")
    a(f"v_and_b32 v{T0}, 15, v1")
    a(f"v_bfe_u32 v{T1}, v1, 4, 1")
    labV2 = a.newlabel("stV"); labP = a.newlabel("pub")
    a(f"s_cmp_ge_u32 s{S_J}, 4")
    a(f"s_cbranch_scc1 {labV2}")
    a(f"s_lshl_b32 s31, s30, 4")
    a(f"v_add_u32 v{T0}, s31, v{T0}")
    a(f"v_lshlrev_b32 v{T1}, 5, v{T1}")
    a(f"v_add_u32 v{T1}, v{T1}, v{T0}")
    a(f"v_lshlrev_b32 v{T1}, 4, v{T1}")
    a(f"s_mov_b64 exec, 0xffffffff")
    a(f"buffer_store_dwordx4 {v(PWF,4)}, v{T1}, {R(SRD_WS)}, s29 offen sc1")
    a(f"s_mov_b64 exec, -1")
    a(f"v_lshlrev_b32 v{T0}, 3, v{T0}")
    a(f"v_add_u32 v{T0}, 1024, v{T0}")
    a(f"v_mov_b32 v{T1}, 1280")
    a(f"v_mov_b32 v{T2}, 0x3f803f80")
    a(f"v_mov_b32 v{T3}, 0x3f80")
    a(f"v_cmp_eq_u32 vcc, 16, v1")
    a.nop(2)
    a(f"v_cndmask_b32 v{T0}, v{T0}, v{T1}, vcc")
    a(f"v_cndmask_b32 v{PWF+4}, v{PWF+4}, v{T2}, vcc")
    a(f"v_cndmask_b32 v{PWF+5}, v{PWF+5}, v{T3}, vcc")
    a(f"s_mov_b32 s41, 0xffff")
    a(f"s_cmp_eq_u32 s30, 0")
    a(f"s_cselect_b32 s40, 0x1ffff, s41")
    a(f"s_mov_b32 s41, 0")
    a(f"s_mov_b64 exec, s[40:41]")
    a(f"buffer_store_dwordx2 {v(PWF+4,2)}, v{T0}, {R(SRD_WS)}, s29 offen sc1")
    a(f"s_mov_b64 exec, -1")
    a(f"s_branch {labP}")
    a.label(labV2)
    a(f"s_mul_i32 s31, s30, 672")
    a(f"s_add_u32 s31, s31, 1296")
    a(f"v_mul_u32_u24 v{T1}, 336, v{T1}")
    a(f"v_lshlrev_b32 v{T2}, 4, v{T0}")
    a(f"v_add_u32 v{T1}, v{T1}, v{T2}")
    a(f"v_add_u32 v{T1}, s31, v{T1}")
    a(f"s_mov_b64 exec, 0xffffffff")
    a(f"buffer_store_dwordx4 {v(PWF,4)}, v{T1}, {R(SRD_WS)}, s29 offen sc1")
    a(f"s_mov_b64 exec, -1")
    a(f"v_mov_b32 v{T2}, 0x3f803f80")
    a(f"v_cmp_eq_u32 vcc, 4, v{T0}")
    a.nop(2)
    a(f"v_cndmask_b32 v{PWF+4}, v{PWF+4}, v{T2}, vcc")
    a(f"v_cndmask_b32 v{PWF+5}, v{PWF+5}, v{T2}, vcc")
    a(f"v_mov_b32 v{PWF}, v{PWF+4}")
    a(f"v_mov_b32 v{PWF+1}, v{PWF+5}")
    a.nop(2)
    a(f"v_permlane32_swap_b32 v{PWF}, v{PWF+6}")
    a(f"v_permlane32_swap_b32 v{PWF+1}, v{PWF+7}")
    a(f"s_mov_b32 s40, 0x001f001f")
    a(f"s_mov_b32 s41, 0")
    a(f"s_mov_b64 exec, s[40:41]")
    a.nop(2)
    a(f"buffer_store_dwordx4 {v(PWF+4,4)}, v{T1}, {R(SRD_WS)}, s29 offen offset:256 sc1")
    a(f"s_mov_b64 exec, -1")
    a.label(labP)
    a(f"s_lshr_b32 s29, s28, 2")
    a(f"s_lshl_b32 s29, s29, 7")
    a(f"s_and_b32 s31, s28, 3")
    a(f"s_lshl_b32 s31, s31, 2")
    a(f"s_lshl_b32 s30, s30, 1")
    a(f"s_add_u32 s31, s31, s30")
    a(f"s_lshr_b32 s30, s{S_J}, 2")
    a(f"s_add_u32 s31, s31, s30")
    a(f"s_lshl_b32 s31, s31, 2")
    a(f"s_add_u32 s34, s29, s31")
    a(f"s_add_u32 s34, s34, {H1}")
    def push(nl, stride_sh, sbase):
        a(f"v_lshlrev_b32 v{T0}, {stride_sh}, v1")
        a(f"v_mov_b32 v{T1}, s{S_NONCE}")
        a(f"s_mov_b64 exec, {hex((1 << nl) - 1)}")
        a(f"buffer_store_dword v{T1}, v{T0}, {R(SRD_WS)}, s{sbase} offen sc1")
        a(f"s_mov_b64 exec, -1")
    def setw(addr):
        a(f"v_mov_b32 v12, {addr}")
        a(f"v_mov_b32 v13, 1")
        a(f"ds_write_b32 v12, v13")
    def ld(): a(f"buffer_load_dword v5, v4, {R(SRD_DBG)}, 0 offen sc1")
    def ck():
        a(f"v_readfirstlane_b32 s{S_NONCE}, v5")
        a("s_nop 3")
        a(f"s_cmp_lg_u32 s{S_NONCE}, 0")
    poll_global(a, ld, ck, sleep=0)
    push(8, 11, 34)
    a(f"v_mov_b32 v12, {C_NONCE}")
    a(f"v_mov_b32 v13, s{S_NONCE}")
    a(f"ds_write_b32 v12, v13")
    setw(C_PFL)
    stamp(a, "pflag")
    VKF = 6
    a(f"v_lshrrev_b32 v{VKF}, 2, v1")
    a(f"v_lshlrev_b32 v{VKF}, 7, v{VKF}")
    a(f"v_and_b32 v{T1}, 3, v1")
    a(f"v_lshlrev_b32 v{T1}, 4, v{T1}")
    a(f"v_add_u32 v{VKF}, v{VKF}, v{T1}")
    a(f"s_and_b32 s36, s2, 7")
    a(f"s_lshl_b32 s36, s36, 11")
    a(f"s_add_u32 s36, s36, {H1}")
    a(f"s_lshl_b32 s37, s{S_I}, 3")
    a(f"s_add_u32 s37, s37, s{S_J}")
    a(f"s_lshl_b32 s37, s37, 7")
    a(f"s_lshl_b32 s38, s{S_J}, 7")
    a(f"s_lshl_b32 s39, s{S_I}, 2")
    a(f"s_add_u32 s38, s38, s39")
    a(f"v_lshlrev_b32 v7, 2, v1")
    a(f"v_mov_b32 v14, {C_UCNT}")
    poll_flags(a, VKF, "s36", 0xffffffffffffffff, 8, n=4, sleep=0)
    stamp(a, "pkvok")
    FL16 = 20
    BUF = [32, 80]
    S_NX = [78, 79]; S_LAST = 80; S_SRC = 81
    a(f"v_lshlrev_b32 v{FL16}, 4, v1")
    def fissue(g):
        a(f"s_add_u32 s28, s{S_ROT}, s{S_NX[g]}")
        a(f"s_and_b32 s28, s28, 7")
        a(f"s_mul_i32 s28, s28, 12288")
        a(f"s_add_u32 s{S_SRC}, s28, {g*32*3072}")
        for k in range(12):
            a(f"buffer_load_dwordx4 {v(BUF[g]+4*k,4)}, v{FL16}, {R(SRD_WS)}, s{S_SRC} offen offset:{1024*(k%4)} sc1")
            if k % 4 == 3: a(f"s_add_u32 s{S_SRC}, s{S_SRC}, 4096")
        a(f"s_mov_b32 s{S_LAST}, {g}")
    a(f"s_mov_b32 s{S_NX[0]}, 0")
    a(f"s_mov_b32 s{S_NX[1]}, 0")
    fissue(0); fissue(1)
    lds_wait_imm(a, C_QRD, 8, sleep=0)
    FLP = a.newlabel("fl"); FDN = a.newlabel("fd")
    a(f"s_mov_b32 s33, 0")
    a.label(FLP)
    for g in range(2):
        a(f"s_and_b32 s28, s{S_NX[g]}, 1")
        a(f"s_lshl_b32 s28, s28, 2")
        a(f"s_add_u32 s28, s28, {C_DONE + 16*g}")
        a(f"v_mov_b32 v{22+g}, s28")
        a(f"ds_read_b32 v{24+g}, v{22+g}")
    a("s_waitcnt lgkmcnt(0)")
    a(f"s_mov_b32 s39, 0")
    for g in range(2):
        skip = a.newlabel("fs")
        a(f"s_cmp_ge_u32 s{S_NX[g]}, 8")
        a(f"s_cbranch_scc1 {skip}")
        a(f"v_readfirstlane_b32 s42, v{24+g}")
        a(f"s_lshr_b32 s28, s{S_NX[g]}, 1")
        a(f"s_lshl_b32 s28, s28, 2")
        a("s_nop 1")
        a(f"s_cmp_lt_u32 s42, s28")
        a(f"s_cbranch_scc1 {skip}")
        w0 = a.newlabel("fw"); w1 = a.newlabel("fw")
        a(f"s_cmp_eq_u32 s{S_LAST}, {g}")
        a(f"s_cbranch_scc1 {w0}")
        a("s_waitcnt vmcnt(12)")
        a(f"s_branch {w1}")
        a.label(w0)
        a("s_waitcnt vmcnt(0)")
        a.label(w1)
        a(f"s_and_b32 s28, s{S_NX[g]}, 1")
        a(f"s_mul_i32 s29, s28, {KVSLOT}")
        a(f"s_add_u32 s29, s29, {g*RING_STRIDE}")
        a(f"v_add_u32 v26, s29, v{FL16}")
        for k in range(12):
            a(f"ds_write_b128 v26, {v(BUF[g]+4*k,4)} offset:{1024*k}")
        a(f"s_lshl_b32 s28, s28, 2")
        a(f"s_add_u32 s28, s28, {C_FULL + 16*g}")
        a(f"v_mov_b32 v27, s28")
        a(f"v_mov_b32 v28, 1")
        lds_add1(a, 27, 28)
        a(f"s_add_u32 s{S_NX[g]}, s{S_NX[g]}, 1")
        a(f"s_mov_b32 s39, 1")
        a(f"s_cmp_ge_u32 s{S_NX[g]}, 8")
        a(f"s_cbranch_scc1 {skip}")
        fissue(g)
        a.label(skip)
    a(f"s_add_u32 s28, s{S_NX[0]}, s{S_NX[1]}")
    a(f"s_cmp_ge_u32 s28, 16")
    a(f"s_cbranch_scc1 {FDN}")
    a(f"s_add_u32 s33, s33, 1")
    a(f"s_cmp_ge_u32 s33, {POLL_MAX*8}")
    a(f"s_cbranch_scc1 {FDN}")
    a(f"s_cmp_lg_u32 s39, 0")
    a(f"s_cbranch_scc1 {FLP}")
    a("s_sleep 1")
    a(f"s_branch {FLP}")
    a.label(FDN)
    stamp(a, "pfed")
    a(f"s_lshl_b32 s37, s{S_I}, 3")
    a(f"s_add_u32 s37, s37, s{S_J}")
    a(f"s_lshl_b32 s37, s37, 7")
    a(f"v_lshlrev_b32 v7, 2, v1")
    lds_wait_imm(a, C_OCNT, 8, sleep=0)
    a(f"s_lshl_b32 s29, s{S_I}, 10")
    a(f"s_lshl_b32 s30, s{S_J}, 2")
    a(f"s_add_u32 s29, s29, s30")
    a(f"s_add_u32 s29, s29, {H4}")
    push(8, 7, 29)
    stamp(a, "popush")
    a(f"s_add_u32 s29, s37, {H4}")
    poll_flags(a, 7, "s29", 0xff, 8, sleep=0)
    setw(C_OOK)
    a(f"s_branch f_fin")
    gen_loader(a)
    a.label("f_fin")
    if "stamp" in OPT:
        a("s_waitcnt vmcnt(0)")
        stamp(a, "end"); stamp(a, "rt1", True)
        stamp_flush(a)
    a.label(END)
    a("s_endpgm")
    a.L.append(kernel_desc(name, NVGPR))


def gen_loader(a):
    S_LI = 34
    a.label("f_lstart")
    a("s_setprio 3")
    a(f"s_sub_u32 s{S_LI}, s{S_W}, 9")
    VX, VW, VL16 = 112, 116, 121
    RB3, RB4, HR = 16, 64, 112
    a(f"v_lshlrev_b32 v{T3}, 4, v1")
    if "pf" in OPT:
        a(f"s_lshr_b32 s28, s2, 3")
        a(f"s_mul_i32 s28, s28, 10240")
        a(f"s_lshl_b32 s29, s{S_LI}, 10")
        a(f"s_add_u32 s28, s28, s29")
        a(f"s_add_u32 s28, s28, {384*1280}")
        for k in range(4):
            def pf(k=k):
                a(f"buffer_load_dwordx4 v[160:163], v{T3}, {R(SRD_WQ)}, s28 offen")
            if k < 3: pf()
            else: if_s(a, S_LI, "eq", 0, pf)
            a(f"s_add_u32 s28, s28, 3072")
        a(f"v_lshrrev_b32 v{T0}, 5, v1")
        a(f"v_mul_u32_u24 v{T0}, 1280, v{T0}")
        a(f"v_and_b32 v{T1}, 31, v1")
        a(f"v_lshlrev_b32 v{T1}, 4, v{T1}")
        a(f"v_add_u32 v{T0}, v{T0}, v{T1}")
        a(f"s_lshl_b32 s28, s{S_I}, 6")
        a(f"s_lshl_b32 s30, s{S_J}, 3")
        a(f"s_add_u32 s28, s28, s30")
        a(f"s_lshl_b32 s30, s{S_LI}, 1")
        a(f"s_add_u32 s28, s28, s30")
        a(f"s_mul_i32 s28, s28, 1280")
        a(f"s_add_u32 s28, s28, 768")
        a(f"buffer_load_dwordx4 v[160:163], v{T0}, {R(SRD_X)}, s28 offen")
        def pf2():
            a(f"s_add_u32 s28, s28, {6*1280}")
            a(f"buffer_load_dwordx4 v[160:163], v{T0}, {R(SRD_X)}, s28 offen")
        if_s(a, S_LI, "eq", 0, pf2)
    a("s_barrier")
    for k in range(4):
        a(f"v_lshrrev_b32 v{T0}, 4, v1")
        a(f"v_add_u32 v{T0}, {4*k}, v{T0}")
        a(f"v_xor_b32 v{T1}, v1, v{T0}")
        a(f"v_and_b32 v{T1}, 15, v{T1}")
        a(f"v_lshlrev_b32 v{T1}, 4, v{T1}")
        a(f"s_lshl_b32 s28, s{S_I}, 6")
        a(f"v_add_u32 v{T0}, s28, v{T0}")
        a(f"v_mul_lo_u32 v{T0}, v{T0}, s{S_1280}")
        a(f"v_add_u32 v{VX+k}, v{T0}, v{T1}")
    a(f"s_mul_i32 s29, s{S_J}, 160")
    for t in range(5):
        a(f"v_add_u32 v{T0}, {64*t}, v1")
        div10(a, T0, T1, T0, T2)
        a(f"v_lshlrev_b32 v{T0}, 4, v{T0}")
        a(f"v_and_b32 v{T2}, 0xfff8, v{T1}")
        a(f"v_bfe_u32 v{VL16}, v{T1}, 1, 2")
        a(f"v_or_b32 v{T2}, v{T2}, v{VL16}")
        a(f"v_and_b32 v{T1}, 1, v{T1}")
        a(f"v_lshlrev_b32 v{T1}, 2, v{T1}")
        a(f"v_or_b32 v{T2}, v{T2}, v{T1}")
        a(f"v_mul_lo_u32 v{T2}, v{T2}, s{S_1280}")
        a(f"v_add_u32 v{T2}, v{T2}, v{T0}")
        a(f"v_add_u32 v{VW+t}, s29, v{T2}")
    def ut_issue_all():
        for kind, nq, base_l, srd_, halo in (("k", 11, UT_K, SRD_K, 3), ("v", 10, UT_V, SRD_V, 0)):
            for q in range(nq):
                a(f"v_add_u32 v{T0}, {64*q}, v1")
                div10(a, T0, T1, T0, T2)
                a(f"v_lshrrev_b32 v{T2}, 3, v{T1}")
                a(f"v_sub_u32 v{T0}, v{T0}, v{T2}")
                a(f"v_add_u32 v{T2}, 10, v{T0}")
                a(f"v_min_u32 v{T0}, v{T0}, v{T2}")
                a(f"v_lshlrev_b32 v{T0}, 4, v{T0}")
                a(f"v_add_u32 v{T1}, s39, v{T1}") if halo == 0 else a(f"v_add_u32 v{T1}, s33, v{T1}")
                a(f"v_mul_lo_u32 v{T1}, v{T1}, s{S_1280}")
                a(f"v_add3_u32 v{T0}, v{T0}, v{T1}, s38")
                a(f"s_mov_b32 m0, {base_l + 1024*q}")
                if kind == "k" and q == 10: a(f"s_mov_b64 exec, 0x3fffffff")
                else: a("s_nop 0")
                a(f"buffer_load_dwordx4 v{T0}, {R(srd_)}, 0 offen lds")
                if kind == "k" and q == 10: a(f"s_mov_b64 exec, -1")
    a(f"s_lshl_b32 s39, s{S_I}, 6")
    a(f"s_sub_u32 s33, s39, 3")
    a(f"s_mul_i32 s38, s{S_J}, 160")
    lists = [[("x", q) for q in range(12)],
             [("x", q) for q in range(12, 16)] + [("w", q) for q in range(8)],
             [("w", q) for q in range(8, 20)]]
    def ldoff(kind, q): return 1024*q if kind == "x" else 16384 + 1024*q
    def issue(lst, ch, dma_slot=None, regs=None):
        for n, (kind, q) in enumerate(lst):
            if kind == "x": srd_, vr, so = SRD_X, VX+(q&3), 256*ch + (q >> 2)*16*1280
            else: srd_, vr, so = SRD_WQ, VW+(q%5), 163840*ch + (q // 5)*40960
            a(f"s_mov_b32 s28, {so}")
            if dma_slot is not None:
                a(f"s_mov_b32 m0, {dma_slot*SLOT + ldoff(kind, q)}")
                a(f"s_nop 0")
                a(f"buffer_load_dwordx4 v{vr}, {R(srd_)}, s28 offen lds")
            else:
                a(f"buffer_load_dwordx4 {v(regs+4*n,4)}, v{vr}, {R(srd_)}, s28 offen")
    def signal(addr): lds_add1_imm(a, addr)
    LD_JOIN = a.newlabel("ldj")
    for li in range(3):
        nxt = a.newlabel("ldv")
        a(f"s_cmp_lg_u32 s{S_LI}, {li}")
        a(f"s_cbranch_scc1 {nxt}")
        L = lists[li]
        if "regs" in OPT:
            issue(L, 2, dma_slot=2)
            if "nogate" not in OPT:
                a("s_waitcnt vmcnt(0)"); signal(C_CL + 8)
                lds_wait_imm(a, C_PFL, 1, sleep=1)
            issue(L, 3, regs=RB3)
            if "thr" in OPT:
                a("s_waitcnt vmcnt(12)"); signal(C_CL + 8)
            issue(L, 4, regs=RB4)
            stamp(a, "lissue")
            if "nogate" in OPT:
                a(f"s_waitcnt vmcnt(24)"); signal(C_CL + 8)
            nut = 0
            for (RBx, gate, cl, n_after, slot) in ((RB3, C_C0C, 12, 12, 0), (RB4, C_C1C, 16, 0, 1)):
                lds_wait_imm(a, gate, 8, sleep=1)
                a(f"v_add_u32 v{T2}, {slot*SLOT}, v{T3}")
                a(f"s_waitcnt vmcnt({n_after + nut})")
                stamp(a, f"lw{cl}")
                for n, (kind, q) in enumerate(L):
                    a(f"ds_write_b128 v{T2}, {v(RBx+4*n,4)} offset:{ldoff(kind, q)}")
                signal(C_CL + cl)
        else:
            issue(L, 2, dma_slot=2)
            a("s_waitcnt vmcnt(0)"); signal(C_CL + 8)
            lds_wait_imm(a, C_C0C, 8, sleep=0)
            issue(L, 3, dma_slot=0)
            lds_wait_imm(a, C_C1C, 8, sleep=0)
            issue(L, 4, dma_slot=1)
            stamp(a, "lissue")
            a("s_waitcnt vmcnt(12)"); signal(C_CL + 12)
            a("s_waitcnt vmcnt(0)"); signal(C_CL + 16)
        if li == 2:
            lds_wait_imm(a, C_PD, 1, sleep=1)
            ut_issue_all()
        a(f"s_branch {LD_JOIN}")
        a.label(nxt)
    a.label(LD_JOIN)
    stamp(a, "ldone")
    if_s(a, S_LI, "eq", 2, lambda: (a("s_waitcnt vmcnt(0)"), signal(C_UTL)))
    def gate_fin():
        lds_wait_imm(a, C_QG, 8, sleep=1)
        a(f"v_lshrrev_b32 v{T0}, 5, v1")
        a(f"v_lshlrev_b32 v{T0}, 9, v{T0}")
        a(f"v_and_b32 v{T1}, 31, v1")
        a(f"v_lshlrev_b32 v{T1}, 2, v{T1}")
        a(f"v_add_u32 v{T0}, v{T0}, v{T1}")
        a(f"v_add_u32 v{T0}, {GP}, v{T0}")
        for k in range(4): a(f"ds_read_b32 v{96+k}, v{T0} offset:{128*k}")
        a("s_waitcnt lgkmcnt(0)")
        a(f"v_add_f32 v96, v96, v97")
        a(f"v_add_f32 v98, v98, v99")
        a(f"v_add_f32 v96, v96, v98")
        a(f"v_mul_f32 v96, {hex(f32bits(-1.4426950408889634))}, v96")
        a(f"v_exp_f32 v96, v96")
        a.nop(1)
        a(f"v_add_f32 v96, 1.0, v96")
        a(f"v_rcp_f32 v96, v96")
        a(f"v_lshlrev_b32 v{T0}, 2, v1")
        a(f"v_add_u32 v{T0}, {G_L}, v{T0}")
        a.nop(1)
        a(f"ds_write_b32 v{T0}, v96")
    if_s(a, S_LI, "eq", 2, gate_fin)
    def uround(rnd_sgpr):
        KD, VD, SH = 16, 28, 36
        KA_, KB_, WA_, WB_, UA, UB, UT = 44, 56, 68, 72, 76, 84, 92
        A0, A1, UST = 93, 94, 95
        a(f"s_lshl_b32 s28, s{rnd_sgpr}, 6")
        a(f"v_add_u32 v{T0}, s28, v1")
        a(f"v_lshrrev_b32 v{T1}, 3, v{T0}")
        a(f"v_and_b32 v{T0}, 7, v{T0}")
        a(f"s_mul_i32 s29, s{S_J}, 160")
        a(f"v_lshlrev_b32 v{T2}, 2, v{T1}")
        a(f"v_add_u32 v{T2}, s29, v{T2}")
        a(f"v_lshlrev_b32 v{UST}, 2, v{T2}")
        a(f"buffer_load_dwordx4 {v(SH,4)}, v{UST}, {R(SRD_SH)}, 0 offen")
        a(f"v_lshlrev_b32 v{UST}, 11, v{T2}")
        a(f"v_lshlrev_b32 v{T2}, 4, v{T0}")
        a(f"v_sub_u32 v{UST}, v{UST}, v{T2}")
        a(f"s_lshl_b32 s29, s{S_I}, 7")
        a(f"s_sub_u32 s29, {UR_OFF + 4080}, s29")
        a(f"v_add_u32 v{UST}, s29, v{UST}")
        a(f"v_lshrrev_b32 v{T2}, 2, v{T1}")
        a(f"v_add_u32 v{T2}, v{T2}, v{T0}")
        a(f"v_and_b32 v{T1}, 3, v{T1}")
        a(f"v_lshlrev_b32 v{T1}, 2, v{T1}")
        a(f"v_mul_u32_u24 v{T0}, 1280, v{T0}")
        a(f"v_add3_u32 v{T0}, v{T0}, v{T1}, s77" if False else f"v_add_u32 v{T0}, v{T0}, v{T1}")
        a(f"v_add_u32 v{T0}, {UT_K}, v{T0}")
        for (dst, add) in ((A0, 0), (A1, 1)):
            a(f"v_add_u32 v{UT}, {add}, v{T2}")
            a(f"v_subrev_u32 v{T1}, 10, v{UT}")
            a(f"v_min_u32 v{UT}, v{UT}, v{T1}")
            a(f"v_lshlrev_b32 v{UT}, 4, v{UT}")
            a(f"v_add_u32 v{dst}, v{T0}, v{UT}")
        for r in range(8): a(f"ds_read_b32 v{KD+r}, v{A0} offset:{160*r}")
        for r in range(8, 11): a(f"ds_read_b32 v{KD+r}, v{A1} offset:{160*r}")
        a("s_waitcnt lgkmcnt(4)")
        for r in range(8): a(f"ds_read_b32 v{VD+r}, v{A0} offset:{10720 + 160*r}")
        a("s_waitcnt lgkmcnt(0) vmcnt(0)")
        for r in range(11):
            a(f"v_lshlrev_b32 v{KA_+r}, 16, v{KD+r}")
            a(f"v_and_b32 v{KB_+r}, 0xffff0000, v{KD+r}")
        for (W, base) in ((WA_, SH), (WB_, SH + 2)):
            a(f"v_lshlrev_b32 v{W}, 16, v{base}")
            a(f"v_and_b32 v{W+1}, 0xffff0000, v{base}")
            a(f"v_lshlrev_b32 v{W+2}, 16, v{base+1}")
            a(f"v_and_b32 v{W+3}, 0xffff0000, v{base+1}")
        for e_ in range(8):
            for (U, Kf, W, lo) in ((UA, KA_, WA_, True), (UB, KB_, WB_, False)):
                a(f"v_mul_f32 v{U+e_}, v{Kf+e_+3}, v{W}")
                for jx in range(1, 4):
                    a(f"v_fmac_f32 v{U+e_}, v{Kf+e_+3-jx}, v{W+jx}")
                if lo: a(f"v_lshlrev_b32 v{UT}, 16, v{VD+e_}")
                else: a(f"v_and_b32 v{UT}, 0xffff0000, v{VD+e_}")
                a(f"v_mul_f32 v{U+e_}, v{U+e_}, v{UT}")
        for (U, O_) in ((UA, KD), (UB, KD + 4)):
            for i in range(4):
                a(f"v_cvt_pk_bf16_f32 v{O_+i}, v{U+7-2*i}, v{U+6-2*i}")
        a(f"buffer_store_dwordx4 {v(KD,4)}, v{UST}, {R(SRD_WS)}, 0 offen sc1")
        a(f"v_add_u32 v{UST}, 4096, v{UST}")
        a(f"buffer_store_dwordx4 {v(KD+4,4)}, v{UST}, {R(SRD_WS)}, 0 offen sc1")
    lds_wait_imm(a, C_UTL, 1, sleep=1)
    stamp(a, "utl")
    a(f"s_mov_b32 s87, s{S_LI}")
    uround(87)
    def second():
        a(f"s_add_u32 s87, s{S_LI}, 3")
        uround(87)
    if_s(a, S_LI, "lt", 2, second)
    a("s_waitcnt vmcnt(0)")
    signal(C_UCNT)
    stamp(a, "udone")
    def lpush(nl, stride_sh, sbase):
        a(f"v_lshlrev_b32 v{T0}, {stride_sh}, v1")
        a(f"v_mov_b32 v{T1}, s{S_NONCE}")
        a(f"s_mov_b64 exec, {hex((1 << nl) - 1)}")
        a(f"buffer_store_dword v{T1}, v{T0}, {R(SRD_WS)}, s{sbase} offen sc1")
        a(f"s_mov_b64 exec, -1")
    def lsetw(addr):
        a(f"v_mov_b32 v{T0}, {addr}")
        a(f"v_mov_b32 v{T1}, 1")
        a(f"ds_write_b32 v{T0}, v{T1}")
    S_MB, S_PB = 89, 90
    def l2_u():
        lds_wait_imm(a, C_NONCE, 1, sleep=1)
        a(f"s_mov_b32 s{S_NONCE}, s42")
        a(f"s_lshl_b32 s{S_MB}, s{S_I}, 3")
        a(f"s_add_u32 s{S_MB}, s{S_MB}, s{S_J}")
        a(f"s_lshl_b32 s{S_MB}, s{S_MB}, 7")
        a(f"s_lshl_b32 s{S_PB}, s{S_J}, 7")
        a(f"s_lshl_b32 s28, s{S_I}, 2")
        a(f"s_add_u32 s{S_PB}, s{S_PB}, s28")
        lds_wait_imm(a, C_UCNT, 3, sleep=1)
        a(f"s_add_u32 s29, s{S_PB}, {H2}")
        lpush(32, 10, 29)
        a(f"v_lshlrev_b32 v98, 2, v1")
        a(f"s_add_u32 s29, s{S_MB}, {H2}")
        poll_flags(a, 98, "s29", 0xffffffff, 99, sleep=1)
        lsetw(C_UOK)
        stamp(a, "uok")
    if_s(a, S_LI, "eq", 2, l2_u)
    def h_loads():
        a(f"s_lshl_b32 s28, s{S_CH}, 12")
        for q in range(4):
            a(f"s_add_u32 s29, s28, {1024*q}")
            for k in range(3):
                a(f"buffer_load_dwordx4 {v(HR+12*q+4*k,4)}, v{T3}, {R(SRD_H)}, s29 offen offset:{4*k}")
        a(f"s_lshr_b32 s30, s{S_CH}, 1")
        a(f"s_lshl_b32 s30, s30, 2")
        a(f"s_load_dword s88, s[{S_DPTR}:{S_DPTR+1}], s30")
    NOC = a.newlabel("noconv")
    a(f"s_cmp_ge_u32 s{S_LI}, s{S_NCH}")
    a(f"s_cbranch_scc1 {NOC}")
    if "noconv" in OPT: a(f"s_branch {NOC}")
    h_loads()
    lds_wait_imm(a, C_QG, 8, sleep=2)
    stamp(a, "conv0")
    gen_conv(a, HR)
    a("s_waitcnt vmcnt(0)")
    a.label(NOC)
    a("s_setprio 3")
    signal(C_CVD)
    stamp(a, "conv1")
    WD = 16
    VL = 21
    a(f"v_lshlrev_b32 v{VL}, 4, v1")
    a(f"s_mul_i32 s29, s{S_J}, 160")
    for t in range(5):
        a(f"v_add_u32 v{T0}, {64*t}, v1")
        div10(a, T0, T1, T0, T2)
        a(f"v_lshlrev_b32 v{T0}, 4, v{T0}")
        a(f"v_and_b32 v{T2}, 0xfff3, v{T1}")
        a(f"v_bfe_u32 v{T3}, v{T1}, 2, 1")
        a(f"v_lshlrev_b32 v{T3}, 3, v{T3}")
        a(f"v_or_b32 v{T2}, v{T2}, v{T3}")
        a(f"v_bfe_u32 v{T3}, v{T1}, 3, 1")
        a(f"v_lshlrev_b32 v{T3}, 2, v{T3}")
        a(f"v_or_b32 v{T2}, v{T2}, v{T3}")
        a(f"v_mul_lo_u32 v{T2}, v{T2}, s{S_1280}")
        a(f"v_add_u32 v{T2}, v{T2}, v{T0}")
        a(f"v_add_u32 v{WD+t}, s29, v{T2}")
    lds_wait_imm(a, C_CVD, 3, sleep=4)
    def l2_y():
        a(f"s_add_u32 s29, s{S_PB}, {H3}")
        lpush(32, 10, 29)
        stamp(a, "yflag")
    if_s(a, S_LI, "eq", 2, l2_y)
    def wo_half(half, base):
        a(f"s_mul_i32 s31, s{S_LI}, 3")
        a(f"s_min_u32 s33, s{S_LI}, 1")
        a(f"s_add_u32 s31, s31, s33")
        a(f"s_cmp_eq_u32 s{S_LI}, 0")
        a(f"s_cselect_b32 s33, 4, 3")
        a(f"s_mul_i32 s28, s31, 5120")
        a(f"s_add_u32 s28, s28, {base}")
        a(f"s_mul_i32 s30, s31, {32*1280}")
        a(f"s_add_u32 s30, s30, {half*320*1280}")
        WL = a.newlabel("wol")
        a(f"s_mov_b32 s31, 0")
        a.label(WL)
        for t in range(5):
            a(f"s_add_u32 m0, s28, {1024*t}")
            a(f"s_nop 0")
            a(f"buffer_load_dwordx4 v{WD+t}, {R(SRD_WO)}, s30 offen lds")
        a(f"s_add_u32 s28, s28, 5120")
        a(f"s_add_u32 s30, s30, {32*1280}")
        a(f"s_add_u32 s31, s31, 1")
        a(f"s_cmp_lt_u32 s31, s33")
        a(f"s_cbranch_scc1 {WL}")
    wo_half(0, WOA)
    wo_half(1, WOB)
    a("s_waitcnt vmcnt(0)")
    signal(C_WOK)
    stamp(a, "woready")
    def l2_yok():
        a(f"v_lshlrev_b32 v98, 2, v1")
        a(f"s_add_u32 s29, s{S_MB}, {H3}")
        poll_flags(a, 98, "s29", 0xffffffff, 99, sleep=2)
        lsetw(C_YOK)
        stamp(a, "yok")
    if_s(a, S_LI, "eq", 2, l2_yok)
    def ytile(li):
        YR = 32
        a(f"v_lshrrev_b32 v{T2}, 3, v1")
        a(f"v_lshlrev_b32 v{T2}, 12, v{T2}")
        a(f"v_and_b32 v{T3}, 7, v1")
        a(f"v_lshlrev_b32 v{T3}, 4, v{T3}")
        a(f"v_add_u32 v{T2}, v{T2}, v{T3}")
        lds_wait_imm(a, C_YOK, 1, sleep=2)
        a(f"s_mul_i32 s28, s{S_J}, {80*4096}")
        a(f"s_lshl_b32 s29, s{S_I}, 7")
        a(f"s_add_u32 s28, s28, s29")
        a(f"s_add_u32 s28, s28, {YT_OFF + li*5*8*4096}")
        for t in range(5):
            a(f"buffer_load_dwordx4 {v(YR+4*t,4)}, v{T2}, {R(SRD_WS)}, s28 offen sc1")
            a(f"s_add_u32 s28, s28, {8*4096}")
        a(f"v_add_u32 v{T2}, {YL + li*5120}, v{VL}")
        a("s_waitcnt vmcnt(0)")
        for t in range(5): a(f"ds_write_b128 v{T2}, {v(YR+4*t,4)} offset:{1024*t}")
        signal(C_YW)
    for li in range(2):
        if_s(a, S_LI, "eq", li, lambda li=li: ytile(li))

def gen_conv(a, HR):
    URL = 16640
    CA, FA, FB, AD = 16, 48, 80, 112
    VA, VB, CT2, CT3 = 160, 161, 162, 163
    a(f"v_lshlrev_b32 v{T2}, 4, v1")
    a(f"v_add_u32 v{T3}, s{S_CB}, v{T2}")
    a("s_waitcnt vmcnt(0)")
    for q in range(4):
        X0, X1, X2 = HR+12*q, HR+12*q+4, HR+12*q+8
        C1, C3 = CA + 8*(q & 1), CA + 8*(q & 1) + 4
        for k in range(4):
            a(f"v_alignbit_b32 v{C1+k}, v{X1+k}, v{X0+k}, 16")
            a(f"v_alignbit_b32 v{C3+k}, v{X2+k}, v{X1+k}, 16")
        o = 1024 * q + 32
        a(f"ds_write_b128 v{T3}, {v(X0,4)} offset:{o}")
        a(f"ds_write_b128 v{T3}, {v(C1,4)} offset:{4160+o}")
        a(f"ds_write_b128 v{T3}, {v(X1,4)} offset:{8320+o}")
        a(f"ds_write_b128 v{T3}, {v(C3,4)} offset:{12480+o}")
    Z = CA + 16
    for k in range(4): a(f"v_mov_b32 v{Z+k}, 0")
    a(f"v_alignbit_b32 v{Z+4}, v{HR+4}, v{HR}, 16")
    a(f"v_lshlrev_b32 v{Z+5}, 16, v{HR}")
    a(f"v_mov_b32 v{Z+6}, v{HR}")
    a(f"v_lshrrev_b32 v{T0}, 1, v1")
    a(f"v_mul_u32_u24 v{T0}, 4160, v{T0}")
    a(f"v_and_b32 v{T1}, 1, v1")
    a(f"v_lshlrev_b32 v{T1}, 4, v{T1}")
    a(f"v_add_u32 v{T0}, v{T0}, v{T1}")
    a(f"v_add_u32 v{T0}, s{S_CB}, v{T0}")
    a(f"s_mov_b64 exec, 0xff")
    a(f"ds_write_b128 v{T0}, {v(Z,4)}")
    a(f"s_mov_b64 exec, 0xffffffff")
    a(f"ds_write_b128 v{T3}, {v(Z,4)} offset:{URL+4096}")
    a(f"s_mov_b64 exec, 1")
    a(f"ds_write_b32 v{T3}, v{Z+5} offset:{4160+28}")
    a(f"ds_write_b32 v{T3}, v{Z+6} offset:{8320+28}")
    a(f"ds_write_b32 v{T3}, v{Z+5} offset:{12480+24}")
    a(f"ds_write_b32 v{T3}, v{Z+4} offset:{12480+28}")
    a(f"s_mov_b64 exec, -1")
    a("s_waitcnt lgkmcnt(0)")
    a(f"v_mov_b32 v{FA}, v{T3}")
    a(f"v_mov_b32 v{FA+1}, v{T2}")
    lds_wait_imm(a, C_UOK, 1, sleep=2)
    a(f"s_lshl_b32 s28, s{S_CH}, 12")
    a(f"s_add_u32 s28, s28, {UR_OFF}")
    for q in range(4):
        a(f"s_add_u32 s29, s28, {1024*q}")
        a(f"buffer_load_dwordx4 {v(FB+4*q,4)}, v{FA+1}, {R(SRD_WS)}, s29 offen sc1")
    a(f"v_and_b32 v{T0}, 15, v1")
    a(f"v_lshrrev_b32 v{T1}, 4, v1")
    a(f"v_add_u32 v{CT2}, 1, v{T0}")
    a(f"v_and_b32 v{CT3}, 3, v{CT2}")
    a(f"v_mul_u32_u24 v{VA}, 4160, v{CT3}")
    a(f"v_lshrrev_b32 v{CT2}, 2, v{CT2}")
    a(f"v_lshlrev_b32 v{CT2}, 3, v{CT2}")
    a(f"v_lshlrev_b32 v{CT3}, 4, v{T1}")
    a(f"v_add_u32 v{VA}, v{VA}, v{CT2}")
    a(f"v_add_u32 v{VA}, v{VA}, v{CT3}")
    a(f"v_add_u32 v{VA}, s{S_CB}, v{VA}")
    a(f"v_lshlrev_b32 v{CT2}, 5, v{T0}")
    a(f"v_sub_u32 v{VB}, v{CT3}, v{CT2}")
    a(f"s_add_u32 s28, s{S_CB}, {URL + 480}")
    a(f"v_add_u32 v{VB}, s28, v{VB}")
    a(f"s_and_b32 s30, s{S_CH}, 1")
    a(f"s_lshl_b32 s30, s30, 4")
    a(f"s_lshr_b32 s88, s88, s30")
    a(f"s_and_b32 s88, s88, 0xffff")
    a(f"v_lshlrev_b32 v{T1}, 3, v{T1}")
    a(f"v_add_u32 v{T0}, v{T0}, v{T1}")
    a(f"v_sub_u32 v{T0}, 15, v{T0}")
    a(f"v_and_b32 v{T1}, 1, v{T0}")
    a(f"v_lshlrev_b32 v{T1}, 4, v{T1}")
    a(f"v_mov_b32 v{CT2}, s88")
    a(f"v_lshlrev_b32 v{CT2}, v{T1}, v{CT2}")
    a(f"v_lshrrev_b32 v{T0}, 1, v{T0}")
    for k in range(4):
        a(f"v_cmp_eq_u32 vcc, {k}, v{T0}")
        a.nop(2)
        a(f"v_cndmask_b32 v{AD+k}, 0, v{CT2}, vcc")
    for r in range(32): a(f"v_mov_b32 v{CA+r}, 0")
    a("s_waitcnt vmcnt(0)")
    for q in range(4):
        a(f"ds_write_b128 v{FA}, {v(FB+4*q,4)} offset:{URL + 1024*q}")
    a("s_waitcnt lgkmcnt(0)")
    stamp(a, "convm")
    a(f"s_setprio {2 if 'cp2' in OPT else (1 if 'cp1' in OPT else 0)}")
    a(f"s_mov_b32 s86, 0")
    PL = a.newlabel("convph")
    a.label(PL)
    a(f"ds_read_b64 {v(FA,2)}, v{VA}")
    a(f"ds_read_b64 {v(FA+2,2)}, v{VA} offset:8")
    for vv in range(8):
        a(f"ds_read_b128 {v(FB+4*vv,4)}, v{VB} offset:{512*(7-vv)}")
    for i in range(1, 3):
        a(f"ds_read_b64 {v(FA+4*i,2)}, v{VA} offset:{512*i}")
        a(f"ds_read_b64 {v(FA+4*i+2,2)}, v{VA} offset:{512*i+8}")
    a("s_waitcnt lgkmcnt(4)")
    for i in range(3, 8):
        a(f"ds_read_b64 {v(FA+4*i,2)}, v{VA} offset:{512*i}")
        a(f"ds_read_b64 {v(FA+4*i+2,2)}, v{VA} offset:{512*i+8}")
    for vv in range(8):
        a(f"v_mfma_f32_16x16x32_bf16 {v(CA+4*vv,4)}, {v(FA,4)}, {v(FB+4*vv,4)}, {v(CA+4*vv,4)}")
    lab = a.newlabel("noD")
    a(f"s_cmp_lg_u32 s86, 0")
    a(f"s_cbranch_scc1 {lab}")
    for vv in range(8):
        a(f"v_mfma_f32_16x16x32_bf16 {v(CA+4*vv,4)}, {v(AD,4)}, {v(FB+4*vv,4)}, {v(CA+4*vv,4)}")
    a.label(lab)
    a("s_waitcnt lgkmcnt(0)")
    for i in range(1, 8):
        for vv in range(8 - i):
            t = i + vv
            a(f"v_mfma_f32_16x16x32_bf16 {v(CA+4*t,4)}, {v(FA+4*i,4)}, {v(FB+4*vv,4)}, {v(CA+4*t,4)}")
    a(f"v_add_u32 v{VA}, 64, v{VA}")
    a(f"v_add_u32 v{VB}, 64, v{VB}")
    a(f"s_add_u32 s86, s86, 1")
    a(f"s_cmp_lt_u32 s86, 8")
    a(f"s_cbranch_scc1 {PL}")
    a(f"s_lshl_b32 s28, s{S_CH}, 12")
    a(f"s_add_u32 s28, s28, {YT_OFF}")
    a(f"v_and_b32 v{CT2}, 15, v1")
    a(f"v_lshlrev_b32 v{CT2}, 5, v{CT2}")
    a(f"v_lshrrev_b32 v{CT3}, 4, v1")
    a(f"v_lshlrev_b32 v{CT3}, 3, v{CT3}")
    a(f"v_add_u32 v{CT2}, v{CT2}, v{CT3}")
    a.nop(4)
    for t in range(8):
        a(f"v_cvt_pk_bf16_f32 v{FB+2*t}, v{CA+4*t}, v{CA+4*t+1}")
        a(f"v_cvt_pk_bf16_f32 v{FB+2*t+1}, v{CA+4*t+2}, v{CA+4*t+3}")
        a(f"buffer_store_dwordx2 {v(FB+2*t,2)}, v{CT2}, {R(SRD_WS)}, s28 offen offset:{512*t} sc1")

HEADER = """; gated_mix: fused single kernel (generated by dev/gen17.py, gen4 o-layout)
; @launch grid=(256,1,1) block=(768,1,1) lds=163840
.amdgcn_target "amdgcn-amd-amdhsa--gfx950"
.text
"""
if __name__ == "__main__":
    if len(sys.argv) > 2: OPT.update(sys.argv[2].split(","))
    a = Asm()
    gen(a)
    h = HEADER
    if STAMPS: h = h.replace(".amdgcn", "; STAMPS " + ",".join(STAMPS) + "\n.amdgcn")
    open(sys.argv[1], "w").write(h + a.text())
```

```python
import sys, struct
from asmlib import *

NAME = "gated_mix__ssm_conv_h3__grouped_kv_mqa__prompt"
KVF_OFF = 0
UR_OFF = 0x40000
YT_OFF = 0x2C0000
O_OFF = 0x540000
FL_OFF = 0x7C0000
H1 = FL_OFF
H2 = FL_OFF + 0x4000
H3 = FL_OFF + 0xC000
H4 = FL_OFF + 0x14000
ST_OFF = 0x800000
WS_USED = 0x900000
XB = 2048 * 640 * 2
QSCALE = (20 ** -0.5) * 1.4426950408889634
def f32bits(x): return struct.unpack("<I", struct.pack("<f", x))[0]
OPT = set()
POLL_MAX = 40000

SRD_X, SRD_WQ, SRD_WS, SRD_H = 4, 8, 12, 16
S_I, S_J, S_W, S_HH, S_G, S_NONCE, S_1280, S_ROT = 20, 21, 22, 23, 24, 25, 26, 27
SRD_K, SRD_V, SRD_SH, SRD_W, SRD_GW, SRD_WO, SRD_OUT, SRD_DBG = 44, 48, 52, 56, 60, 64, 68, 72
S_DPTR = 76
S_CH, S_NCH, S_CB = 83, 84, 85
SLOT = 36864
UT_K = 137472
UT_V = UT_K + 10720
UNIT_W = 131552
UNIT_S = 6656
QXA = 110592
QXB = QXA + 8192
GWL = 159744
GP = GWL + 1280
G_L = 162048
CNT = G_L + 256
C_FULL, C_DONE = CNT, CNT + 32
C_KVOK, C_UCNT, C_CVD = CNT + 68, CNT + 72, CNT + 80
C_UOK, C_YOK, C_OCNT, C_OOK = CNT + 84, CNT + 88, CNT + 92, CNT + 96
C_UTL, C_UTC, C_UP, C_C0C, C_C1C, C_QG, C_WOK = CNT + 100, CNT + 104, CNT + 108, CNT + 112, CNT + 116, CNT + 120, CNT + 124
C_CL = CNT + 128
C_QXF = CNT + 160
C_PROG = CNT + 192
C_PD = CNT + 228
C_WOKB = CNT + 232
C_LE, C_ST, C_PFL, C_QRD = CNT + 236, CNT + 240, CNT + 244, CNT + 248
C_LEB = CNT + 252
C_NONCE = CNT + 64
C_XF = CNT + 256
C_PF = CNT + 288
C_YW = CNT + 224
BLK = 3072
KVSLOT = 4 * BLK
RING_STRIDE = 2 * KVSLOT
CONVB = 49152
CHB = 21248
WOA = 56576
WOB = WOA + 51200
YL = 36864
DUMMY = 162688
OX = 0
OST = 12288
PX = 0
V_ST = 167
NVGPR = 168
T0, T1, T2, T3 = 2, 3, 164, 165

STAMPS = []
def stamp(a, name, real=False):
    if "stamp" not in OPT: return
    if "minst" in OPT and name not in ("rt0", "t0", "end", "rt1", "unitld", "loop0", "loopE"): return
    if name in STAMPS: idx = STAMPS.index(name)
    else:
        STAMPS.append(name); idx = len(STAMPS) - 1
    a(f"s_waitcnt lgkmcnt(0)")
    a(f"{'s_memrealtime' if real else 's_memtime'} s[98:99]")
    a(f"s_waitcnt lgkmcnt(0)")
    a(f"v_writelane_b32 v{V_ST}, s98, {idx}")
def stamp_flush(a):
    if "stamp" not in OPT: return
    a(f"s_mov_b64 exec, -1")
    a(f"s_mul_i32 s98, s2, 12")
    a(f"s_add_u32 s98, s98, s{S_W}")
    a(f"s_lshl_b32 s98, s98, 8")
    a(f"s_add_u32 s98, s98, {ST_OFF}")
    a(f"v_lshlrev_b32 v166, 2, v1")
    a(f"buffer_store_dword v{V_ST}, v166, s[{SRD_WS}:{SRD_WS+3}], s98 offen")
    a("s_waitcnt vmcnt(0)")

def R(b): return f"s[{b}:{b+3}]"

def poll_global(a, nload, check, sleep=1):
    lp = a.newlabel("poll"); dn = a.newlabel("pdone")
    a(f"s_mov_b32 s43, 0")
    a.label(lp)
    nload()
    a("s_waitcnt vmcnt(0)")
    check()
    a(f"s_cbranch_scc1 {dn}")
    a(f"s_add_u32 s43, s43, 1")
    a(f"s_cmp_lt_u32 s43, {POLL_MAX}")
    a(f"s_cbranch_scc0 {dn}")
    if sleep: a(f"s_sleep {sleep}")
    a(f"s_branch {lp}")
    a.label(dn)

def flags_check(a, vt, n):
    if n == 4:
        for k in range(4): a(f"v_xor_b32 v{vt+k}, s{S_NONCE}, v{vt+k}")
        a(f"v_or_b32 v{vt}, v{vt}, v{vt+1}")
        a(f"v_or_b32 v{vt+2}, v{vt+2}, v{vt+3}")
        a(f"v_or_b32 v{vt}, v{vt}, v{vt+2}")
        a(f"v_cmp_ne_u32 vcc, 0, v{vt}")
    else:
        a(f"v_cmp_ne_u32 vcc, s{S_NONCE}, v{vt}")
    a(f"s_nop 1")
    a(f"s_and_b64 vcc, vcc, s[40:41]")
    a(f"s_cmp_eq_u64 vcc, 0")
def poll_flags(a, vaddr, soff, lanes_mask, vt, n=1, sleep=1):
    def ld():
        if n == 1: a(f"buffer_load_dword v{vt}, v{vaddr}, {R(SRD_WS)}, {soff} offen sc1")
        else: a(f"buffer_load_dwordx4 {v(vt,4)}, v{vaddr}, {R(SRD_WS)}, {soff} offen sc1")
    a(f"s_mov_b32 s40, {lanes_mask & 0xffffffff}")
    a(f"s_mov_b32 s41, {(lanes_mask >> 32) & 0xffffffff}")
    poll_global(a, ld, lambda: flags_check(a, vt, n), sleep)

def poll_flags_pipe(a, vaddr, soff, lanes_mask, vbase, n=1, sleep=6, depth=3):
    def ld(k):
        if n == 1: a(f"buffer_load_dword v{vbase+k}, v{vaddr}, {R(SRD_WS)}, {soff} offen sc1")
        else: a(f"buffer_load_dwordx4 {v(vbase+4*k,4)}, v{vaddr}, {R(SRD_WS)}, {soff} offen sc1")
    a(f"s_mov_b32 s40, {lanes_mask & 0xffffffff}")
    a(f"s_mov_b32 s41, {(lanes_mask >> 32) & 0xffffffff}")
    a(f"s_mov_b32 s43, 0")
    for k in range(depth):
        ld(k)
        if k < depth - 1: a(f"s_sleep {sleep}")
    lp = a.newlabel("pp"); dn = a.newlabel("ppd")
    a.label(lp)
    for k in range(depth):
        a(f"s_waitcnt vmcnt({depth-1})")
        flags_check(a, vbase + k*n, n)
        a(f"s_cbranch_scc1 {dn}")
        ld(k)
        a(f"s_sleep {sleep}")
    a(f"s_add_u32 s43, s43, 1")
    a(f"s_cmp_lt_u32 s43, {POLL_MAX}")
    a(f"s_cbranch_scc1 {lp}")
    a.label(dn)

def lds_wait_ge(a, target, vt, vaddr, sleep=1):
    lp = a.newlabel("lw"); dn = a.newlabel("lwd")
    a(f"s_mov_b32 s43, 0")
    a.label(lp)
    a(f"ds_read_b32 v{vt}, v{vaddr}")
    a("s_waitcnt lgkmcnt(0)")
    a(f"v_readfirstlane_b32 s42, v{vt}")
    a("s_nop 3")
    a(f"s_cmp_ge_u32 s42, {target}")
    a(f"s_cbranch_scc1 {dn}")
    a(f"s_add_u32 s43, s43, 1")
    a(f"s_cmp_lt_u32 s43, {POLL_MAX * 8}")
    a(f"s_cbranch_scc0 {dn}")
    if sleep: a(f"s_sleep {sleep}")
    a(f"s_branch {lp}")
    a.label(dn)
def lds_wait_imm(a, addr, target, vt=T1, va=T0, sleep=1):
    a(f"v_mov_b32 v{va}, {addr}")
    lds_wait_ge(a, target, vt, va, sleep)
def lds_add1(a, vaddr, vone):
    a("s_mov_b64 exec, 1")
    a(f"ds_add_u32 v{vaddr}, v{vone}")
    a("s_mov_b64 exec, -1")
def lds_add1_imm(a, addr, va=T0, vo=T1):
    a(f"v_mov_b32 v{va}, {addr}")
    a(f"v_mov_b32 v{vo}, 1")
    lds_add1(a, va, vo)
def if_s(a, sreg, cmp, val, fn):
    lb = a.newlabel("ifw")
    inv = {"eq": "lg", "lt": "ge", "ge": "lt", "lg": "eq"}[cmp]
    a(f"s_cmp_{inv}_u32 s{sreg}, {val}")
    a(f"s_cbranch_scc1 {lb}")
    fn()
    a.label(lb)
def if_wave(a, cmp, val, fn): if_s(a, S_W, cmp, val, fn)

def div10(a, p, q, r, t):
    a(f"v_mul_u32_u24 v{q}, 6554, v{p}")
    a(f"v_lshrrev_b32 v{q}, 16, v{q}")
    a(f"v_mul_u32_u24 v{t}, 10, v{q}")
    a(f"v_sub_u32 v{r}, v{p}, v{t}")

def gen(a):
    name = NAME + "_kernel"
    a.L.append(kernel_header(name))
    END = "f_end"
    a(f"s_cmp_ge_u32 s2, 256")
    a(f"s_cbranch_scc1 {END}")
    a(f"s_load_dwordx16 s[76:91], s[0:1], 0")
    a(f"s_load_dwordx8 s[92:99], s[0:1], 64")
    a(f"s_load_dwordx4 s[28:31], s[0:1], 96")
    a(f"s_load_dwordx2 s[32:33], s[0:1], 112")
    a(f"v_lshrrev_b32 v1, 6, v0")
    a(f"s_and_b32 s{S_I}, s2, 7")
    a(f"s_lshl_b32 s{S_I}, s{S_I}, 2")
    a(f"s_lshr_b32 s{S_J}, s2, 6")
    a(f"s_add_u32 s{S_I}, s{S_I}, s{S_J}")
    a(f"s_lshr_b32 s{S_J}, s2, 3")
    a(f"s_and_b32 s{S_J}, s{S_J}, 7")
    a(f"v_readfirstlane_b32 s{S_W}, v1")
    a(f"v_and_b32 v1, 63, v0")
    a(f"s_movk_i32 s{S_1280}, 1280")
    a(f"s_add_u32 s{S_ROT}, s{S_I}, s{S_J}")
    a(f"s_and_b32 s{S_ROT}, s{S_ROT}, 7")
    a(f"s_and_b32 s{S_HH}, s{S_W}, 3")
    a(f"s_lshr_b32 s{S_G}, s{S_W}, 2")
    V_XD, V_WD, V_UST = 112, 113, 111
    HR = 116
    a(f"s_mul_i32 s37, s{S_I}, 3")
    a(f"s_lshl_b32 s34, s{S_I}, 1")
    a(f"s_add_u32 s34, s34, 16")
    a(f"s_cmp_lt_u32 s{S_I}, 16")
    a(f"s_cselect_b32 s35, s37, s34")
    a(f"s_cselect_b32 s36, 3, 2")
    a(f"s_mul_i32 s34, s{S_J}, 80")
    a(f"s_add_u32 s35, s35, s34")
    a(f"s_sub_u32 s38, s{S_W}, 9")
    a(f"s_add_u32 s35, s35, s38")
    a("s_waitcnt lgkmcnt(0)")
    srd(a, SRD_X, 76, XB)
    a(f"s_cmp_ge_u32 s{S_J}, 4")
    a(f"s_cselect_b32 s{SRD_W}, s94, s92")
    a(f"s_cselect_b32 s{SRD_W+1}, s95, s93")
    a(f"s_mov_b32 s{SRD_W+2}, 25600")
    a(f"s_mov_b32 s{SRD_W+3}, 0x00020000")
    srd(a, SRD_K, 78, XB)
    srd(a, SRD_V, 80, XB)
    srd(a, SRD_SH, 82, 640 * 4 * 2)
    srd(a, SRD_WS, 32, WS_USED)
    srd(a, SRD_DBG, 30, 256)
    srd(a, SRD_WQ, 90, 640 * 640 * 2)
    srd(a, SRD_GW, 98, 1280)
    srd(a, SRD_H, 84, XB)
    srd(a, SRD_WO, 96, 640 * 640 * 2)
    srd(a, SRD_OUT, 28, XB)
    a(f"s_mov_b32 s{S_DPTR}, s86")
    a(f"s_mov_b32 s{S_DPTR+1}, s87")
    a(f"s_mov_b32 s{S_CH}, s35")
    a(f"s_mov_b32 s{S_NCH}, s36")
    a(f"s_mul_i32 s{S_CB}, s38, {CHB}")
    a(f"s_add_u32 s{S_CB}, s{S_CB}, {CONVB}")
    if "stamp" in OPT: a(f"v_mov_b32 v{V_ST}, 0")
    stamp(a, "rt0", True); stamp(a, "t0")
    PSTART = "f_pstart"
    a(f"s_cmp_eq_u32 s{S_W}, 8")
    a(f"s_cbranch_scc1 {PSTART}")
    a(f"s_cmp_gt_u32 s{S_W}, 8")
    a(f"s_cbranch_scc1 f_lstart")

    XF, UACC, WFA, SH = 16, 4, 44, 36
    def unit_loads():
        a("s_setprio 2")
        a(f"s_and_b32 s28, s{S_J}, 3")
        a(f"s_lshl_b32 s28, s28, 4")
        a(f"s_lshl_b32 s29, s{S_I}, 6")
        a(f"s_add_u32 s28, s28, s29")
        a(f"v_and_b32 v{T0}, 15, v1")
        a(f"v_add_u32 v{T0}, s28, v{T0}")
        a(f"v_mul_lo_u32 v{T0}, v{T0}, s{S_1280}")
        a(f"v_lshrrev_b32 v{T1}, 4, v1")
        a(f"v_lshlrev_b32 v{T2}, 4, v{T1}")
        a(f"v_add_u32 v{T0}, v{T0}, v{T2}")
        a(f"s_mul_i32 s29, s{S_W}, 320")
        for s_ in range(5):
            a(f"buffer_load_dwordx4 {v(XF+4*s_,4)}, v{T0}, {R(SRD_X)}, s29 offen offset:{64*s_}")
        a(f"v_lshlrev_b32 v{T2}, 4, v1")
        a(f"s_mul_i32 s29, s{S_W}, 6400")
        a(f"s_mul_i32 s30, s{S_W}, {UNIT_S}")
        for q in range(7):
            a(f"s_add_u32 m0, s30, {UNIT_W + 1024*q}")
            a(f"s_add_u32 s31, s29, {1024*q}")
            if q == 6: a(f"s_mov_b64 exec, 0xffffffff")
            a(f"buffer_load_dwordx4 v{T2}, {R(SRD_W)}, s31 offen lds")
        a(f"s_mov_b64 exec, -1")
        a("s_setprio 0")
    if_wave(a, "lt", 4, unit_loads)
    a(f"v_lshrrev_b32 v{T0}, 4, v1")
    a(f"s_lshl_b32 s28, s{S_W}, 2")
    a(f"v_add_u32 v{T0}, s28, v{T0}")
    a(f"v_xor_b32 v{T1}, v1, v{T0}")
    a(f"v_and_b32 v{T1}, 15, v{T1}")
    a(f"v_lshlrev_b32 v{T1}, 4, v{T1}")
    a(f"s_lshl_b32 s28, s{S_I}, 6")
    a(f"v_add_u32 v{T0}, s28, v{T0}")
    a(f"v_mul_lo_u32 v{T0}, v{T0}, s{S_1280}")
    a(f"v_add_u32 v{V_XD}, v{T0}, v{T1}")
    a(f"s_mul_i32 s29, s{S_J}, 160")
    a(f"s_lshl_b32 s28, s{S_W}, 6")
    for t in range(3):
        a(f"v_add_u32 v{T0}, s28, v1")
        if t: a(f"v_add_u32 v{T0}, {512*t}, v{T0}")
        div10(a, T0, T1, T0, T2)
        a(f"v_lshlrev_b32 v{T0}, 4, v{T0}")
        a(f"v_and_b32 v{T2}, 0xfff8, v{T1}")
        a(f"v_bfe_u32 v{T3}, v{T1}, 1, 2")
        a(f"v_or_b32 v{T2}, v{T2}, v{T3}")
        a(f"v_and_b32 v{T1}, 1, v{T1}")
        a(f"v_lshlrev_b32 v{T1}, 2, v{T1}")
        a(f"v_or_b32 v{T2}, v{T2}, v{T1}")
        a(f"v_mul_lo_u32 v{T2}, v{T2}, s{S_1280}")
        a(f"v_add_u32 v{T2}, v{T2}, v{T0}")
        a(f"v_add_u32 v{V_WD+t}, s29, v{T2}")
    def dma_chunk(ch, slot):
        base = slot * SLOT
        a(f"s_lshl_b32 s28, s{S_W}, 10")
        for t in range(2):
            a(f"s_add_u32 m0, s28, {base + 8192*t}")
            a(f"s_mov_b32 s29, {256*ch + 32*1280*t}")
            a(f"buffer_load_dwordx4 v{V_XD}, {R(SRD_X)}, s29 offen lds")
        a(f"s_mov_b32 s29, {163840*ch}")
        for t in range(3):
            def one(t=t):
                a(f"s_add_u32 m0, s28, {base + 16384 + 8192*t}")
                a(f"s_nop 0")
                a(f"buffer_load_dwordx4 v{V_WD+t}, {R(SRD_WQ)}, s29 offen lds")
            if t < 2: one()
            else: if_wave(a, "lt", 4, one)
    def wait_vm(nA, nB):
        la = a.newlabel("wa"); lb = a.newlabel("wb")
        a(f"s_cmp_lt_u32 s{S_W}, 4")
        a(f"s_cbranch_scc1 {la}")
        a(f"s_waitcnt vmcnt({nB})")
        a(f"s_branch {lb}")
        a.label(la)
        a(f"s_waitcnt vmcnt({nA})")
        a.label(lb)
    NA, NB = 5, 4
    def gw():
        a(f"s_mul_i32 s28, s{S_HH}, 320")
        a(f"s_add_u32 m0, s28, {GWL}")
        a(f"v_lshlrev_b32 v{T0}, 4, v1")
        a(f"s_mov_b64 exec, 0xfffff")
        a(f"buffer_load_dwordx4 v{T0}, {R(SRD_GW)}, s28 offen lds")
        a(f"s_mov_b64 exec, -1")
    if_wave(a, "ge", 4, gw)
    dma_chunk(0, 0); dma_chunk(1, 1)
    a("s_barrier")
    def unit_compute():
        a(f"v_lshrrev_b32 v{T1}, 4, v1")
        a(f"v_bfe_u32 v{T2}, v1, 2, 2")
        a(f"v_lshlrev_b32 v{T1}, 3, v{T1}")
        a(f"v_add_u32 v{T2}, v{T2}, v{T1}")
        a(f"v_mul_u32_u24 v{T2}, 40, v{T2}")
        a(f"v_and_b32 v{T3}, 3, v1")
        a(f"v_lshlrev_b32 v{T3}, 3, v{T3}")
        a(f"v_add_u32 v{T2}, v{T2}, v{T3}")
        a(f"s_mul_i32 s30, s{S_W}, {UNIT_S}")
        a(f"s_add_u32 s30, s30, {UNIT_W}")
        a(f"v_add_u32 v{T2}, s30, v{T2}")
        for r in range(8): a(f"v_mov_b32 v{UACC+r}, 0")
        a(f"s_waitcnt vmcnt({2*NA})")
        stamp(a, "unitld")
        for s_ in range(5):
            for dt in range(2):
                for jj in range(2):
                    a(f"ds_read_b64_tr_b16 {v(WFA+8*s_+4*dt+2*jj,2)}, v{T2} offset:{1280*s_ + 160*jj + 32*dt}")
            if s_ == 2: a("s_waitcnt lgkmcnt(4)")
        labV = a.newlabel("kindV"); labD = a.newlabel("kindD")
        a("s_waitcnt lgkmcnt(0)")
        a(f"s_cmp_ge_u32 s{S_J}, 4")
        a(f"s_cbranch_scc1 {labV}")
        for kind in range(2):
            for s_ in range(5):
                for dt in range(2):
                    w_ = v(WFA+8*s_+4*dt, 4); x_ = v(XF+4*s_, 4)
                    A_, B_ = (w_, x_) if kind == 0 else (x_, w_)
                    a(f"v_mfma_f32_16x16x32_bf16 {v(UACC+4*dt,4)}, {A_}, {B_}, {v(UACC+4*dt,4)}")
            if kind == 0:
                a(f"s_branch {labD}")
                a.label(labV)
        a.label(labD)
        a.nop(8)
        a(f"s_mul_i32 s29, s{S_W}, {UNIT_S}")
        a(f"s_add_u32 s29, s29, {UNIT_W}")
        a(f"v_lshlrev_b32 v{T0}, 4, v1")
        a(f"v_add_u32 v{T1}, s29, v{T0}")
        a(f"ds_write_b128 v{T1}, {v(UACC,4)}")
        a(f"ds_write_b128 v{T1}, {v(UACC+4,4)} offset:1024")
        lds_add1_imm(a, C_UP)
    if_wave(a, "lt", 4, unit_compute)
    V_XA, V_WA, V_GWA, V_QXP = 24, 32, 33, 34
    QACC, GACC, GW, QXF, QWF = 44, 60, 76, 84, 96
    a(f"v_and_b32 v{T0}, 31, v1")
    a(f"s_lshl_b32 s28, s{S_G}, 5")
    a(f"v_add_u32 v{T0}, s28, v{T0}")
    a(f"v_lshrrev_b32 v{T1}, 5, v1")
    a(f"v_and_b32 v{T2}, 15, v{T0}")
    a(f"v_xor_b32 v{T2}, v{T2}, v{T1}")
    a(f"v_lshlrev_b32 v{T2}, 4, v{T2}")
    a(f"v_lshlrev_b32 v{T0}, 8, v{T0}")
    a(f"v_add_u32 v{V_XA}, v{T0}, v{T2}")
    for s_ in range(1, 8): a(f"v_xor_b32 v{V_XA+s_}, {32*s_}, v{V_XA}")
    a(f"v_bfe_u32 v{T0}, v1, 2, 2")
    a(f"v_lshlrev_b32 v{T0}, 1, v{T0}")
    a(f"v_lshlrev_b32 v{T2}, 3, v{T1}")
    a(f"v_add_u32 v{T0}, v{T0}, v{T2}")
    a(f"v_mul_u32_u24 v{T0}, 160, v{T0}")
    a(f"v_and_b32 v{T2}, 3, v1")
    a(f"v_lshlrev_b32 v{T2}, 3, v{T2}")
    a(f"v_and_b32 v{T3}, 16, v1")
    a(f"v_cmp_ne_u32 vcc, 0, v{T3}")
    a(f"s_mul_i32 s28, s{S_HH}, 40")
    a(f"s_add_u32 s28, s28, 16384")
    a(f"v_mov_b32 v{T3}, 32")
    a(f"v_cndmask_b32 v{T2}, v{T2}, v{T3}, vcc")
    a(f"v_add_u32 v{T0}, v{T0}, v{T2}")
    a(f"v_add_u32 v{V_WA}, s28, v{T0}")
    for r in range(16):
        a(f"v_mov_b32 v{QACC+r}, 0"); a(f"v_mov_b32 v{GACC+r}, 0")
    a(f"v_lshlrev_b32 v{T1}, 4, v{T1}")
    a(f"s_lshl_b32 s28, s{S_HH}, 5")
    a(f"s_add_u32 s28, s28, {GWL}")
    a(f"v_add_u32 v{V_GWA}, s28, v{T1}")
    def q_chunk(ch, slot):
        off = (slot & 1) * SLOT
        def loads(s_):
            b = s_ % 3
            a(f"ds_read_b128 {v(QXF+4*b,4)}, v{V_XA+s_} offset:{off}")
            a(f"ds_read_b64_tr_b16 {v(QWF+4*b,2)}, v{V_WA} offset:{off + 2560*s_}")
            a(f"ds_read_b64_tr_b16 {v(QWF+4*b+2,2)}, v{V_WA} offset:{off + 2560*s_ + 160}")
        a(f"ds_read_b128 {v(GW,4)}, v{V_GWA} offset:{128*(2*ch)}")
        a(f"ds_read_b128 {v(GW+4,4)}, v{V_GWA} offset:{128*(2*ch+1)}")
        loads(0); loads(1)
        for s_ in range(8):
            if s_ < 6:
                loads(s_+2); a("s_waitcnt lgkmcnt(6)")
            elif s_ == 6: a("s_waitcnt lgkmcnt(3)")
            else: a("s_waitcnt lgkmcnt(0)")
            b = s_ % 3
            a(f"v_mfma_f32_32x32x16_bf16 {v(QACC,16)}, {v(QWF+4*b,4)}, {v(QXF+4*b,4)}, {v(QACC,16)}")
            lg = a.newlabel("ng")
            a(f"s_cmp_lg_u32 s{S_HH}, {s_ & 3}")
            a(f"s_cbranch_scc1 {lg}")
            a(f"v_mfma_f32_32x32x16_bf16 {v(GACC,16)}, {v(GW+4*(s_>>2),4)}, {v(QXF+4*b,4)}, {v(GACC,16)}")
            a.label(lg)
    def bump(delta):
        op = "v_add_u32" if delta > 0 else "v_subrev_u32"
        for s_ in range(8): a(f"{op} v{V_XA+s_}, {abs(delta)}, v{V_XA+s_}")
        a(f"{op} v{V_WA}, {abs(delta)}, v{V_WA}")
    SF, SG = 16, 32
    P = 48
    OF, OG = 56, 72
    K16, K8, V0, V1 = 88, 92, 96, 100
    AK16, AK8, AV, AK16N, AK8N, AVN = 104, 105, 106, 107, 108, 109
    V_L16, V_ONE, V_CFW, V_CD, V_KW, V_CT = 110, 111, 112, 113, 114, 115
    KVST, KVST2 = 116, 16
    V_CFR = 128
    V_STG, V_OL0, V_OG0, V_OL1, V_OG1, V_OUT, V_WT, V_YT, V_GA, V_PX, V_TL16 = range(129, 140)
    QT, YS = 140, 150
    S_T, S_BLK, S_SLOT, S_NXT, S_FT, S_DT = 34, 35, 36, 37, 38, 39
    S_RB, S_M2, S_P1, S_DL, S_WB = 78, 79, 80, 81, 82
    S_CFB, S_CA, S_CBB = 89, 90, 91
    def tail_addrs():
        a(f"v_lshlrev_b32 v{V_TL16}, 4, v1")
        a(f"v_and_b32 v{T0}, 31, v1")
        a(f"v_mul_u32_u24 v{T0}, 160, v{T0}")
        a(f"v_lshrrev_b32 v{T1}, 5, v1")
        a(f"v_lshlrev_b32 v{T1}, 3, v{T1}")
        a(f"v_add_u32 v{T0}, v{T0}, v{T1}")
        a(f"s_mul_i32 s28, s{S_HH}, 40")
        a(f"s_mul_i32 s29, s{S_G}, 5120")
        a(f"s_add_u32 s28, s28, s29")
        a(f"s_add_u32 s28, s28, {OST}")
        a(f"v_add_u32 v{V_STG}, s28, v{T0}")
        for t, (vl, vg) in enumerate(((V_OL0, V_OG0), (V_OL1, V_OG1))):
            a(f"s_add_u32 s28, s{S_W}, {8*t}")
            a(f"s_lshl_b32 s28, s28, 2")
            a(f"v_lshrrev_b32 v{T0}, 4, v1")
            a(f"v_add_u32 v{T0}, s28, v{T0}")
            div10(a, T0, T1, T0, T2)
            a(f"v_and_b32 v{T2}, 15, v1")
            a(f"v_lshl_add_u32 v{T3}, v{T1}, 4, v{T2}")
            a(f"v_mul_u32_u24 v{T3}, 160, v{T3}")
            a(f"v_lshl_add_u32 v{vl}, v{T0}, 4, v{T3}")
            a(f"v_add_u32 v{vl}, {OST}, v{vl}")
            a(f"v_mul_u32_u24 v{T1}, 20480, v{T1}")
            a(f"v_lshl_add_u32 v{T1}, v{T0}, 8, v{T1}")
            a(f"v_lshl_add_u32 v{vg}, v{T2}, 4, v{T1}")
        a(f"v_and_b32 v{T0}, 15, v1")
        a(f"s_lshl_b32 s29, s{S_HH}, 4")
        a(f"s_lshl_b32 s28, s{S_I}, 6")
        a(f"s_add_u32 s28, s28, s29")
        a(f"v_add_u32 v{T1}, s28, v{T0}")
        a(f"v_mul_lo_u32 v{T1}, v{T1}, s{S_1280}")
        a(f"v_lshrrev_b32 v{T2}, 4, v1")
        a(f"v_lshlrev_b32 v{T3}, 3, v{T2}")
        a(f"v_add_u32 v{T1}, v{T1}, v{T3}")
        a(f"s_mul_i32 s28, s{S_J}, 160")
        a(f"v_add_u32 v{V_OUT}, s28, v{T1}")
        a(f"v_lshlrev_b32 v{T0}, 2, v{T0}")
        a(f"s_lshl_b32 s28, s{S_HH}, 6")
        a(f"s_add_u32 s28, s28, {G_L}")
        a(f"v_add_u32 v{V_GA}, s28, v{T0}")
        a(f"v_lshrrev_b32 v{T0}, 5, v1")
        a(f"v_lshlrev_b32 v{T0}, 4, v{T0}")
        a(f"v_bfe_u32 v{T1}, v1, 4, 1")
        a(f"v_lshlrev_b32 v{T1}, 2, v{T1}")
        a(f"v_add_u32 v{T0}, v{T0}, v{T1}")
        a(f"v_bfe_u32 v{T1}, v1, 2, 2")
        a(f"v_add_u32 v{T0}, v{T0}, v{T1}")
        a(f"v_mul_u32_u24 v{T0}, 160, v{T0}")
        a(f"v_and_b32 v{T1}, 3, v1")
        a(f"v_lshlrev_b32 v{T1}, 3, v{T1}")
        a(f"v_add_u32 v{T0}, v{T0}, v{T1}")
        a(f"s_mul_i32 s28, s{S_G}, 51200")
        a(f"s_add_u32 s28, s28, {WOA}")
        a(f"v_add_u32 v{V_WT}, s28, v{T0}")
        a(f"v_bfe_u32 v{T0}, v1, 2, 4")
        a(f"v_lshlrev_b32 v{T0}, 7, v{T0}")
        a(f"v_add_u32 v{T0}, v{T0}, v{T1}")
        a(f"s_lshl_b32 s28, s{S_HH}, 5")
        a(f"s_add_u32 s28, s28, {YL}")
        a(f"v_add_u32 v{V_YT}, s28, v{T0}")
        a(f"s_mul_i32 s28, s{S_W}, 3072")
        a(f"s_add_u32 s28, s28, {PX}")
        a(f"v_add_u32 v{V_PX}, s28, v{V_TL16}")
    def ring_addrs():
        a(f"s_mul_i32 s{S_RB}, s{S_G}, {RING_STRIDE}")
        a(f"v_lshlrev_b32 v{V_L16}, 4, v1")
        a(f"v_mov_b32 v{V_ONE}, 1")
        a(f"s_lshl_b32 s28, s{S_G}, 4")
        a(f"s_add_u32 s{S_CFB}, s28, {C_FULL}")
        a(f"s_mul_i32 s29, s{S_HH}, {BLK}")
        a(f"s_add_u32 s{S_WB}, s{S_RB}, s29")
        a(f"v_add_u32 v{AK16}, s{S_RB}, v{V_L16}")
        a(f"v_and_b32 v{T0}, 31, v1")
        a(f"v_lshlrev_b32 v{T1}, 3, v{T0}")
        a(f"v_add_u32 v{T1}, 1024, v{T1}")
        a(f"v_mov_b32 v{AK8}, 1280")
        a(f"v_cmp_gt_u32 vcc, 32, v1")
        a(f"v_min_u32 v{T2}, 20, v{T0}")
        a(f"v_subrev_u32 v{AV}, 16, v{T0}")
        a(f"v_cndmask_b32 v{AK8}, v{AK8}, v{T1}, vcc")
        a(f"v_add_u32 v{AK8}, s{S_RB}, v{AK8}")
        a(f"v_cmp_lt_u32 vcc, 27, v{T0}")
        a.nop(2)
        a(f"v_cndmask_b32 v{T2}, v{T2}, v{AV}, vcc")
        a(f"v_lshlrev_b32 v{T2}, 4, v{T2}")
        a(f"v_lshrrev_b32 v{AV}, 5, v1")
        a(f"v_mul_u32_u24 v{AV}, 336, v{AV}")
        a(f"v_add_u32 v{AV}, v{AV}, v{T2}")
        a(f"v_add_u32 v{AV}, 1296, v{AV}")
        a(f"v_add_u32 v{AV}, s{S_RB}, v{AV}")
        a(f"v_lshlrev_b32 v{T0}, 2, v1")
        a(f"v_add_u32 v{T0}, {DUMMY}, v{T0}")
        a(f"v_mov_b32 v{T1}, s{S_CFB}")
        a(f"v_cmp_eq_u32 vcc, 0, v1")
        a.nop(2)
        a(f"v_cndmask_b32 v{V_CFW}, v{T0}, v{T1}, vcc")
        a(f"v_add_u32 v{V_KW}, s{S_WB}, v{V_L16}")
        a(f"s_lshl_b32 s28, s{S_W}, 2")
        a(f"s_add_u32 s29, s28, {C_PROG}")
        a(f"v_mov_b32 v{T1}, s29")
        a(f"v_cndmask_b32 v150, v{T0}, v{T1}, vcc")
        a(f"s_xor_b32 s28, s28, 16")
        a(f"s_add_u32 s28, s28, {C_PROG}")
        a(f"v_mov_b32 v151, s28")
    def blk_off(t, g=None):
        a(f"s_add_u32 s28, s{S_ROT}, {t}")
        a(f"s_and_b32 s28, s28, 7")
        a(f"s_lshl_b32 s28, s28, 2")
        if g is None:
            a(f"s_lshl_b32 s29, s{S_G}, 5")
            a(f"s_add_u32 s28, s28, s29")
        elif g: a(f"s_add_u32 s28, s28, {32*g}")
        a(f"s_add_u32 s28, s28, s{S_HH}")
        a(f"s_mul_i32 s{S_BLK}, s28, 3072")
    def kv_load(dst):
        for q in range(3):
            a(f"buffer_load_dwordx4 {v(dst+4*q,4)}, v{V_L16}, {R(SRD_WS)}, s{S_BLK} offen offset:{1024*q} sc1")
    def kv_write(src, off=0):
        for q in range(3): a(f"ds_write_b128 v{V_KW}, {v(src+4*q,4)} offset:{off + 1024*q}")
    def wait_chunk(ch):
        if ch < 2:
            if ch == 0: wait_vm(NA, NB)
            else: a("s_waitcnt vmcnt(0)")
            lds_add1_imm(a, C_CL + 4*ch)
            lds_wait_imm(a, C_CL + 4*ch, 8, sleep=0)
        else:
            lds_wait_imm(a, C_CL + 4*ch, 3, sleep=1)
        stamp(a, f"cl{ch}")
    wait_chunk(0)
    q_chunk(0, 0)
    lds_add1_imm(a, C_C0C)
    wait_chunk(1)
    q_chunk(1, 1)
    lds_add1_imm(a, C_C1C)
    tail_addrs()
    bump(2 * SLOT)
    wait_chunk(2)
    q_chunk(2, 2)
    bump(-2 * SLOT)
    wait_chunk(3)
    q_chunk(3, 0)
    wait_chunk(4)
    q_chunk(4, 1)
    lds_add1_imm(a, C_QRD)
    stamp(a, "qdone")

    QF16, QF8, QG16, QG8 = 4, 8, 10, 14
    ring_addrs()
    a(f"s_lshl_b32 s28, s{S_W}, 10")
    a(f"v_lshlrev_b32 v{T2}, 4, v1")
    a(f"v_add_u32 v{T2}, s28, v{T2}")
    a(f"v_lshrrev_b32 v{T3}, 1, v{T2}")
    a(f"v_xor_b32 v{V_QXP}, 4096, v{T2}")
    a(f"v_xor_b32 v{V_QXP+1}, 2048, v{T3}")
    a(f"v_add_u32 v{T2}, {QXA}, v{T2}")
    a(f"v_add_u32 v{T3}, {QXB}, v{T3}")
    a(f"v_add_u32 v{V_QXP}, {QXA}, v{V_QXP}")
    a(f"v_add_u32 v{V_QXP+1}, {QXB}, v{V_QXP+1}")
    a(f"s_mov_b32 s28, {hex(f32bits(QSCALE))}")
    for r in range(12): a(f"v_mul_f32 v{QACC+r}, s28, v{QACC+r}")
    a(f"v_cmp_gt_u32 vcc, 32, v1")
    for r in range(4): a(f"v_cvt_pk_bf16_f32 v{QF16+r}, v{QACC+2*r}, v{QACC+2*r+1}")
    for r in range(2): a(f"v_cvt_pk_bf16_f32 v{QF8+r}, v{QACC+8+2*r}, v{QACC+8+2*r+1}")
    a(f"ds_write_b128 v{T2}, {v(QF16,4)}")
    for r in range(2): a(f"v_cndmask_b32 v{QF8+r}, 0, v{QF8+r}, vcc")
    a(f"s_lshl_b32 s28, s{S_W}, 7")
    a(f"s_add_u32 s28, s28, {GP}")
    a(f"v_lshlrev_b32 v{T1}, 2, v1")
    a(f"v_add_u32 v{T1}, s28, v{T1}")
    a(f"ds_write_b64 v{T3}, {v(QF8,2)}")
    a(f"s_mov_b64 exec, 0xffffffff")
    a(f"ds_write_b32 v{T1}, v{GACC}")
    a(f"s_mov_b64 exec, -1")
    a(f"s_lshl_b32 s28, s{S_W}, 2")
    a(f"s_add_u32 s29, s28, {C_QXF}")
    a(f"v_mov_b32 v{T0}, s29")
    lds_add1(a, T0, V_ONE)
    a(f"s_xor_b32 s28, s28, 16")
    a(f"s_add_u32 s28, s28, {C_QXF}")
    a(f"v_mov_b32 v{T0}, s28")
    for r in range(16):
        a(f"v_mov_b32 v{OF+r}, 0"); a(f"v_mov_b32 v{OG+r}, 0")
    for r in range(8): a(f"v_mov_b32 v{P+r}, 0")
    for r in range(4): a(f"v_mov_b32 v{V1+r}, 0")
    for r in range(12, 16): a(f"v_mov_b32 v{SG+r}, 0")
    lds_wait_ge(a, 1, T1, T0, sleep=0)
    a(f"ds_read_b128 {v(QG16,4)}, v{V_QXP}")
    a(f"ds_read_b64 {v(QG8,2)}, v{V_QXP+1}")
    a("s_waitcnt lgkmcnt(0)")
    lds_add1_imm(a, C_QG)
    stamp(a, "qg")
    lds_wait_ge(a, 1, V_CT, V_CFW, sleep=1)
    stamp(a, "full0")
    a(f"ds_read_b128 {v(K16,4)}, v{AK16}")
    a(f"ds_read_b64 {v(K8,2)}, v{AK8}")
    a(f"ds_read_b128 {v(V0,4)}, v{AV}")
    a("s_waitcnt lgkmcnt(0)")
    a(f"v_mfma_f32_32x32x16_bf16 {v(SF,16)}, {v(K16,4)}, {v(QF16,4)}, 0")
    a(f"v_mfma_f32_32x32x8_bf16 {v(SF,16)}, {v(K8,2)}, {v(QF8,2)}, {v(SF,16)}")
    S_U, S_B1, S_B2, S_PR = 34, 36, 37, 80
    a(f"s_mov_b32 s{S_U}, 0")
    a(f"s_mov_b32 s{S_B1}, 1")
    a(f"s_mov_b32 s{S_B2}, 2")
    a(f"s_mov_b32 s{S_PR}, 0")
    V_PG, V_PGP, V_PT = 150, 151, 128
    for mt in range(5):
        a(f"buffer_load_dwordx2 {v(QT+2*mt,2)}, v{V_OUT}, {R(SRD_X)}, 0 offen offset:{32*mt}")
    a("s_setprio 1")
    stamp(a, "loop0")
    LOOP = "f_attn"
    if "align" in OPT: a(".p2align 6")
    a.label(LOOP)
    e = lambda S, i: a(f"v_exp_f32 v{S+i}, v{S+i}")
    c = lambda S, i: a(f"v_cvt_pk_bf16_f32 v{P+i}, v{S+2*i}, v{S+2*i+1}")
    def check_cnt(target, off):
        ok = a.newlabel("ok"); lp = a.newlabel("rt")
        a(f"v_readfirstlane_b32 s42, v{V_CT}")
        a("s_nop 3")
        a(f"s_cmp_ge_u32 s42, {target}")
        a(f"s_cbranch_scc1 {ok}")
        a(f"s_mov_b32 s43, 0")
        a.label(lp)
        a("s_sleep 1")
        a(f"ds_read_b32 v{V_CT}, v{V_CFW} offset:{off}")
        a("s_waitcnt lgkmcnt(0)")
        a(f"v_readfirstlane_b32 s42, v{V_CT}")
        a(f"s_add_u32 s43, s43, 1")
        a(f"s_cmp_ge_u32 s43, {POLL_MAX*8}")
        a(f"s_cbranch_scc1 {ok}")
        a(f"s_cmp_lt_u32 s42, {target}")
        a(f"s_cbranch_scc1 {lp}")
        a.label(ok)
    HS = 2 * BLK
    for hs in range(4):
        for bb in range(2):
            so = hs * HS + bb * BLK
            koff = so + BLK if bb == 0 else ((hs + 1) & 3) * HS
            lagrd = bb == 1 and "nolag" not in OPT
            extra = (bb == 0) or lagrd
            c(SG, 6); c(SG, 7)
            a(f"v_mfma_f32_32x32x16_bf16 {v(SG,16)}, {v(K16,4)}, {v(QG16,4)}, 0")
            a(f"ds_read_b128 {v(K16,4)}, v{AK16} offset:{koff}")
            if bb == 0: a(f"ds_read_b32 v{V_CT}, v{V_CFW} offset:{4*((hs+1)&3)}")
            if lagrd: a(f"ds_read_b32 v{V_PT}, v{V_PGP}")
            for i in range(0, 4): e(SF, i)
            c(SF, 0); c(SF, 1)
            a(f"v_mfma_f32_32x32x16_bf16 {v(OG,16)}, {v(V1,4)}, {v(P+4,4)}, {v(OG,16)}")
            a(f"ds_read_b128 {v(V1,4)}, v{AV} offset:{so + 672}")
            for i in range(4, 8): e(SF, i)
            c(SF, 2); c(SF, 3)
            a(f"v_mfma_f32_32x32x8_bf16 {v(SG,16)}, {v(K8,2)}, {v(QG8,2)}, {v(SG,16)}")
            a(f"ds_read_b64 {v(K8,2)}, v{AK8} offset:{koff}")
            for i in range(8, 12): e(SF, i)
            c(SF, 4); c(SF, 5)
            a(f"s_waitcnt lgkmcnt({4 if extra else 3})")
            a(f"v_mfma_f32_32x32x16_bf16 {v(OF,16)}, {v(V0,4)}, {v(P,4)}, {v(OF,16)}")
            for i in range(12, 16): e(SF, i)
            c(SF, 6); c(SF, 7)
            a("s_waitcnt lgkmcnt(0)")
            a(f"v_mfma_f32_32x32x16_bf16 {v(SF,16)}, {v(K16,4)}, {v(QF16,4)}, 0")
            if bb == 0:
                dadd = lambda: a(f"ds_add_u32 v{V_CFW}, v{V_ONE} offset:{32 + 4*((hs-1)&3)}")
                if hs == 0: if_s(a, S_U, "lg", 0, dadd)
                else: dadd()
                lb = a.newlabel("nf")
                if hs == 3:
                    a(f"s_cmp_ge_u32 s{S_U}, 3")
                    a(f"s_cbranch_scc1 {lb}")
                if "nochk" not in OPT: check_cnt(f"s{S_B1}" if hs < 3 else f"s{S_B2}", 4*((hs+1)&3))
                a.label(lb)
            if lagrd:
                a(f"v_readfirstlane_b32 s42, v{V_PT}")
                lpa = a.newlabel("pa"); lpb = a.newlabel("pb")
                a("s_nop 1")
                a(f"s_cmp_gt_u32 s{S_PR}, s42")
                a(f"s_cbranch_scc1 {lpa}")
                a("s_setprio 2")
                a(f"s_branch {lpb}")
                a.label(lpa)
                a("s_setprio 1")
                a.label(lpb)
            for i in range(0, 4): e(SG, i)
            c(SG, 0); c(SG, 1)
            a(f"v_mfma_f32_32x32x16_bf16 {v(OF,16)}, {v(V1,4)}, {v(P+4,4)}, {v(OF,16)}")
            for i in range(4, 8): e(SG, i)
            c(SG, 2); c(SG, 3)
            a(f"v_mfma_f32_32x32x8_bf16 {v(SF,16)}, {v(K8,2)}, {v(QF8,2)}, {v(SF,16)}")
            for i in range(8, 12): e(SG, i)
            c(SG, 4); c(SG, 5)
            a(f"v_mfma_f32_32x32x16_bf16 {v(OG,16)}, {v(V0,4)}, {v(P,4)}, {v(OG,16)}")
            a(f"ds_read_b128 {v(V0,4)}, v{AV} offset:{koff}")
            for i in range(12, 16): e(SG, i)
        if "nolag" not in OPT:
            a(f"s_add_u32 s{S_PR}, s{S_PR}, 1")
            a(f"v_mov_b32 v{V_CT}, s{S_PR}")
            a(f"ds_write_b32 v{V_PG}, v{V_CT}")
    a(f"s_add_u32 s{S_U}, s{S_U}, 1")
    a(f"s_add_u32 s{S_B1}, s{S_B1}, 1")
    a(f"s_add_u32 s{S_B2}, s{S_B2}, 1")
    a(f"s_cmp_lt_u32 s{S_U}, 4")
    a(f"s_cbranch_scc1 {LOOP}")
    stamp(a, "loopE")
    S_FBD = 81
    a(f"s_mov_b32 s{S_FBD}, 0")
    c(SG, 6); c(SG, 7)
    a(f"s_mul_i32 s28, s{S_G}, {RING_STRIDE}")
    a(f"s_mul_i32 s29, s{S_HH}, 3072")
    a(f"s_add_u32 s28, s28, s29")
    a(f"v_add_u32 v{T2}, s28, v{V_L16}")
    a(f"s_xor_b32 s30, s{S_G}, 1")
    a(f"s_mul_i32 s30, s30, {RING_STRIDE}")
    a(f"s_add_u32 s29, s29, s30")
    a(f"v_mfma_f32_32x32x16_bf16 {v(OG,16)}, {v(V1,4)}, {v(P+4,4)}, {v(OG,16)}")
    a(f"v_add_u32 v{T3}, s29, v{V_L16}")
    a("s_setprio 2")
    V_LA = 94
    def cadd(addr):
        a(f"v_add_u32 v95, {addr}, v{V_LA}" if False else f"v_mov_b32 v95, {addr}")
        lds_add1(a, 95, V_ONE)
    a("s_waitcnt lgkmcnt(0)")
    a(f"s_lshl_b32 s30, s{S_G}, 4")
    a(f"s_add_u32 s30, s30, {C_LE}")
    a(f"v_mov_b32 v95, s30")
    lds_add1(a, 95, V_ONE)
    lds_wait_ge(a, 4, T1, 95, sleep=0)
    for q in range(3): a(f"ds_write_b128 v{T2}, {v(OG+4*q,4)} offset:{1024*q}")
    a(f"s_lshl_b32 s28, s{S_W}, 2")
    a(f"s_add_u32 s30, s28, {C_XF}")
    a(f"v_mov_b32 v95, s30")
    lds_add1(a, 95, V_ONE)
    a(f"s_xor_b32 s28, s28, 16")
    a(f"s_add_u32 s30, s28, {C_XF}")
    a(f"v_mov_b32 v{T0}, s30")
    lds_wait_ge(a, 1, T1, T0, sleep=0)
    stamp(a, "xf")
    stamp(a, "J1")
    PB = 16
    for q in range(3): a(f"ds_read_b128 {v(PB+4*q,4)}, v{T3} offset:{1024*q}")
    a("s_waitcnt lgkmcnt(0)")
    for r in range(12): a(f"v_add_f32 v{OF+r}, v{OF+r}, v{PB+r}")
    NORM = "f_norm"; FB = "f_fallback"
    a.label(NORM)
    a(f"v_mov_b32 v40, v{OF+8}")
    a(f"v_mov_b32 v41, v{OF+8}")
    a.nop(2)
    a(f"v_permlane32_swap_b32 v40, v41")
    a(f"v_max3_f32 v42, abs(v{OF}), abs(v{OF+1}), abs(v{OF+2})")
    a(f"v_max3_f32 v43, abs(v{OF+3}), abs(v{OF+4}), abs(v{OF+5})")
    a(f"v_max3_f32 v42, v42, abs(v{OF+6}), abs(v{OF+7})")
    a(f"v_max3_f32 v43, v43, abs(v{OF+8}), abs(v{OF+9})")
    a(f"v_max3_f32 v42, v42, abs(v{OF+10}), abs(v{OF+11})")
    a(f"v_max_f32 v42, v42, v43")
    a(f"s_mov_b32 s28, 0x21800000")
    a(f"s_mov_b32 s29, 0x5d800000")
    a(f"s_mov_b32 s30, 0x7e800000")
    a(f"v_cmp_ge_f32 s[40:41], v41, s28" if False else f"v_cmp_le_f32 s[40:41], s28, v41")
    a(f"v_cmp_ge_f32 vcc, s29, v41")
    a(f"s_and_b64 s[40:41], s[40:41], vcc")
    a(f"v_cmp_gt_f32 vcc, s30, v42")
    a(f"s_and_b64 s[40:41], s[40:41], vcc")
    a(f"s_or_b32 s40, s40, s{S_FBD}")
    a(f"s_or_b32 s41, s41, s{S_FBD}")
    a(f"s_cmp_eq_u64 s[40:41], -1")
    a(f"s_cbranch_scc0 {FB}")
    a(f"v_rcp_f32 v41, v41")
    a.nop(1)
    for r in range(12): a(f"v_mul_f32 v{OF+r}, v{OF+r}, v41")
    for r in range(6): a(f"v_cvt_pk_bf16_f32 v{104+r}, v{OF+2*r}, v{OF+2*r+1}")
    a(f"ds_write_b64 v{V_STG}, v[104:105]")
    a(f"ds_write_b64 v{V_STG}, v[106:107] offset:16")
    a(f"s_mov_b64 exec, 0xffffffff")
    a(f"ds_write_b64 v{V_STG}, v[108:109] offset:32")
    a(f"s_mov_b64 exec, -1")
    cadd(C_ST)
    a(f"s_mul_i32 s29, s{S_I}, 81920")
    a(f"s_mul_i32 s30, s{S_J}, 2560")
    a(f"s_add_u32 s29, s29, s30")
    a(f"s_add_u32 s29, s29, {O_OFF}")
    stamp(a, "stg")
    lds_wait_imm(a, C_ST, 8, sleep=0)
    stamp(a, "st8")
    a(f"ds_read_b128 v[44:47], v{V_OL0}")
    if_wave(a, "lt", 2, lambda: a(f"ds_read_b128 v[48:51], v{V_OL1}"))
    a("s_waitcnt lgkmcnt(0)")
    a(f"buffer_store_dwordx4 v[44:47], v{V_OG0}, {R(SRD_WS)}, s29 offen sc1")
    if_wave(a, "lt", 2, lambda: a(f"buffer_store_dwordx4 v[48:51], v{V_OG1}, {R(SRD_WS)}, s29 offen sc1"))
    OFR, ACC, AF = 16, 56, 76
    def ldsA(s_):
        b = s_ & 1
        for mt in range(5):
            a(f"ds_read_b64_tr_b16 {v(AF+20*b+4*mt,2)}, v{V_WT} offset:{s_*5120 + 32*mt}")
            a(f"ds_read_b64_tr_b16 {v(AF+20*b+4*mt+2,2)}, v{V_WT} offset:{s_*5120 + 1280 + 32*mt}")
    for r in range(20): a(f"v_mov_b32 v{ACC+r}, 0")
    a(f"s_mul_i32 s28, s{S_I}, 81920")
    a(f"s_mul_i32 s29, s{S_HH}, 20480")
    a(f"s_add_u32 s28, s28, s29")
    a(f"s_mul_i32 s29, s{S_G}, 10240")
    a(f"s_add_u32 s28, s28, s29")
    a(f"s_add_u32 s28, s28, {O_OFF}")
    a("s_waitcnt vmcnt(0)")
    stamp(a, "ostd")
    cadd(C_OCNT)
    lds_wait_imm(a, C_WOK, 3, sleep=1)
    stamp(a, "wok")
    ldsA(0)
    lds_wait_imm(a, C_OOK, 1, sleep=0)
    stamp(a, "h4ok")
    for s_ in range(10):
        a(f"buffer_load_dwordx4 {v(OFR+4*s_,4)}, v{V_TL16}, {R(SRD_WS)}, s28 offen offset:{1024*(s_%4)} sc1")
        if s_ % 4 == 3: a(f"s_add_u32 s28, s28, 4096")
    for s_ in range(10):
        if s_ < 9:
            ldsA(s_ + 1); a(f"s_waitcnt lgkmcnt(10) vmcnt({9 - s_})")
        else:
            a("s_waitcnt lgkmcnt(0) vmcnt(0)")
        b = s_ & 1
        for mt in range(5):
            a(f"v_mfma_f32_16x16x32_bf16 {v(ACC+4*mt,4)}, {v(AF+20*b+4*mt,4)}, {v(OFR+4*s_,4)}, {v(ACC+4*mt,4)}")
    stamp(a, "oproj")
    YF, GV = 16, 30
    FINA = "f_fina"; FINB = "f_finb"
    a(f"v_xor_b32 v{T3}, 0, v{V_PX}" if False else f"s_xor_b32 s29, s{S_W}, 4")
    a(f"s_mul_i32 s29, s29, 3072")
    a(f"s_add_u32 s29, s29, {PX}")
    a(f"v_add_u32 v{T3}, s29, v{V_TL16}")
    lds_wait_imm(a, C_YW, 2, T1, T0, sleep=0)
    stamp(a, "yw")
    def fin(keep, send):
        for mt in keep: a(f"ds_read_b64_tr_b16 {v(YF+2*mt,2)}, v{V_YT} offset:{2048*mt}")
        a(f"ds_read_b32 v{GV}, v{V_GA}")
        a.nop(4)
        for n, mt in enumerate(send): a(f"ds_write_b128 v{V_PX}, {v(ACC+4*mt,4)} offset:{1024*n}")
        a(f"s_lshl_b32 s28, s{S_W}, 2")
        a(f"s_add_u32 s30, s28, {C_PF}")
        a(f"v_mov_b32 v{T0}, s30")
        a(f"v_mov_b32 v{T1}, 1")
        lds_add1(a, T0, T1)
        a("s_waitcnt lgkmcnt(0)")
        for mt in keep:
            for hlf in range(2):
                yq = YF + 2*mt + hlf; qq = QT + 2*mt + hlf; d = 32 + 4*mt + 2*hlf
                a(f"v_lshlrev_b32 v{d}, 16, v{yq}")
                a(f"v_and_b32 v{d+1}, 0xffff0000, v{yq}")
                a(f"v_lshlrev_b32 v52, 16, v{qq}")
                a(f"v_and_b32 v53, 0xffff0000, v{qq}")
                a(f"v_mul_f32 v52, v52, v{GV}")
                a(f"v_mul_f32 v53, v53, v{GV}")
                a(f"v_mul_f32 v{d}, v{d}, v52")
                a(f"v_mul_f32 v{d+1}, v{d+1}, v53")
        a(f"v_sub_f32 v{GV+1}, 1.0, v{GV}")
        a(f"s_xor_b32 s28, s28, 16")
        a(f"s_add_u32 s30, s28, {C_PF}")
        a(f"v_mov_b32 v{T0}, s30")
        lds_wait_ge(a, 1, T1, T0, sleep=0)
        for n, mt in enumerate(keep): a(f"ds_read_b128 {v(AF+4*n,4)}, v{T3} offset:{1024*n}")
        for n, mt in enumerate(keep):
            a(f"s_waitcnt lgkmcnt({len(keep)-1-n})")
            for r in range(4): a(f"v_add_f32 v{ACC+4*mt+r}, v{ACC+4*mt+r}, v{AF+4*n+r}")
            for r in range(4): a(f"v_fmac_f32 v{32+4*mt+r}, v{ACC+4*mt+r}, v{GV+1}")
            a(f"v_cvt_pk_bf16_f32 v{100+2*mt}, v{32+4*mt}, v{32+4*mt+1}")
            a(f"v_cvt_pk_bf16_f32 v{100+2*mt+1}, v{32+4*mt+2}, v{32+4*mt+3}")
            a(f"buffer_store_dwordx2 {v(100+2*mt,2)}, v{V_OUT}, {R(SRD_OUT)}, 0 offen offset:{32*mt}")
    a(f"s_cmp_ge_u32 s{S_W}, 4")
    a(f"s_cbranch_scc1 {FINB}")
    fin([0, 1, 2], [3, 4])
    a(f"s_branch f_fin")
    a.label(FINB)
    fin([3, 4], [0, 1, 2])
    a(f"s_branch f_fin")

    a.label(FB)
    FK16, FK8, FV0, FV1 = 88, 92, 96, 100
    FA16, FA8, FAV, FM = 44, 45, 46, 47
    a(f"v_lshlrev_b32 v{FA16}, 4, v1")
    a(f"v_and_b32 v{T0}, 31, v1")
    a(f"v_lshlrev_b32 v{T1}, 3, v{T0}")
    a(f"v_add_u32 v{T1}, 1024, v{T1}")
    a(f"v_mov_b32 v{FA8}, 1280")
    a(f"v_cmp_gt_u32 vcc, 32, v1")
    a(f"v_min_u32 v{FM}, 20, v{T0}")
    a.nop(1)
    a(f"v_cndmask_b32 v{FA8}, v{FA8}, v{T1}, vcc")
    a(f"v_lshlrev_b32 v{FM}, 4, v{FM}")
    a(f"v_lshrrev_b32 v{FAV}, 5, v1")
    a(f"v_mul_u32_u24 v{FAV}, 336, v{FAV}")
    a(f"v_add_u32 v{FAV}, v{FAV}, v{FM}")
    a(f"v_add_u32 v{FAV}, 1296, v{FAV}")
    a(f"v_mov_b32 v{FM}, 0xff800000")
    a(f"s_mov_b32 s28, 0")
    FL1 = a.newlabel("fb1")
    a.label(FL1)
    a(f"buffer_load_dwordx4 {v(FK16,4)}, v{FA16}, {R(SRD_WS)}, s28 offen sc1")
    a(f"buffer_load_dwordx2 {v(FK8,2)}, v{FA8}, {R(SRD_WS)}, s28 offen sc1")
    a("s_waitcnt vmcnt(0)")
    a(f"v_mfma_f32_32x32x16_bf16 {v(SF,16)}, {v(FK16,4)}, {v(QF16,4)}, 0")
    a(f"v_mfma_f32_32x32x8_bf16 {v(SF,16)}, {v(FK8,2)}, {v(QF8,2)}, {v(SF,16)}")
    a.nop(16); a.nop(4)
    for r in range(0, 16, 2): a(f"v_max3_f32 v{FM}, v{FM}, v{SF+r}, v{SF+r+1}")
    a(f"s_add_u32 s28, s28, 3072")
    a(f"s_cmp_lt_u32 s28, {64*3072}")
    a(f"s_cbranch_scc1 {FL1}")
    a(f"v_mov_b32 v{T0}, v{FM}")
    a(f"v_mov_b32 v{T1}, v{FM}")
    a.nop(2)
    a(f"v_permlane32_swap_b32 v{T0}, v{T1}")
    a.nop(2)
    a(f"v_max3_f32 v{FM}, v{FM}, v{T0}, v{T1}")
    a(f"v_sub_f32 v{T0}, 0, v{FM}")
    a(f"v_cvt_pk_bf16_f32 v{T1}, v{T0}, v{T0}")
    a(f"v_and_b32 v42, 0xffff0000, v{T1}")
    a(f"v_sub_f32 v{T0}, v{T0}, v42")
    a(f"v_cvt_pk_bf16_f32 v43, v{T0}, v{T0}")
    a(f"v_and_b32 v42, 0xffff0000, v43")
    a(f"v_sub_f32 v{T0}, v{T0}, v42")
    a(f"v_cvt_pk_bf16_f32 v{T0}, v{T0}, v{T0}")
    a(f"v_and_b32 v{T1}, 0xffff, v{T1}")
    a(f"v_or_b32 v{T1}, v{T1}, v42")
    a(f"v_and_b32 v{T0}, 0xffff, v{T0}")
    a(f"v_cmp_gt_u32 vcc, 32, v1")
    a.nop(2)
    a(f"v_cndmask_b32 v{QF8}, v{T1}, v{QF8}, vcc")
    a(f"v_cndmask_b32 v{QF8+1}, v{T0}, v{QF8+1}, vcc")
    for r in range(16): a(f"v_mov_b32 v{OF+r}, 0")
    a(f"s_mov_b32 s28, 0")
    FL2 = a.newlabel("fb2")
    a.label(FL2)
    a(f"buffer_load_dwordx4 {v(FK16,4)}, v{FA16}, {R(SRD_WS)}, s28 offen sc1")
    a(f"buffer_load_dwordx2 {v(FK8,2)}, v{FA8}, {R(SRD_WS)}, s28 offen sc1")
    a(f"buffer_load_dwordx4 {v(FV0,4)}, v{FAV}, {R(SRD_WS)}, s28 offen sc1")
    a(f"buffer_load_dwordx4 {v(FV1,4)}, v{FAV}, {R(SRD_WS)}, s28 offen offset:672 sc1")
    a("s_waitcnt vmcnt(0)")
    a(f"v_mfma_f32_32x32x16_bf16 {v(SF,16)}, {v(FK16,4)}, {v(QF16,4)}, 0")
    a(f"v_mfma_f32_32x32x8_bf16 {v(SF,16)}, {v(FK8,2)}, {v(QF8,2)}, {v(SF,16)}")
    a.nop(16); a.nop(4)
    for i in range(16): a(f"v_exp_f32 v{SF+i}, v{SF+i}")
    a.nop(1)
    for i in range(8): a(f"v_cvt_pk_bf16_f32 v{P+i}, v{SF+2*i}, v{SF+2*i+1}")
    a.nop(2)
    a(f"v_mfma_f32_32x32x16_bf16 {v(OF,16)}, {v(FV0,4)}, {v(P,4)}, {v(OF,16)}")
    a(f"v_mfma_f32_32x32x16_bf16 {v(OF,16)}, {v(FV1,4)}, {v(P+4,4)}, {v(OF,16)}")
    a(f"s_add_u32 s28, s28, 3072")
    a(f"s_cmp_lt_u32 s28, {64*3072}")
    a(f"s_cbranch_scc1 {FL2}")
    a.nop(16)
    a(f"s_mov_b32 s{S_FBD}, -1")
    a(f"s_branch {NORM}")

    a.label(PSTART)
    a("s_setprio 3")
    a(f"v_mov_b32 v4, 0")
    if "nocpf" not in OPT:
        a(f"s_getpc_b64 s[28:29]")
        a.label("f_pcref")
        a(f"s_sub_u32 s28, s28, f_pcref-{NAME}_kernel")
        a(f"s_subb_u32 s29, s29, 0")
        a(f"s_lshr_b32 s30, s2, 3")
        a(f"s_min_u32 s30, s30, (f_end-{NAME}_kernel)/1024-1")
        a(f"s_lshl_b32 s30, s30, 10")
        a(f"v_lshlrev_b32 v24, 4, v1")
        a(f"v_add_u32 v24, s30, v24")
        a(f"global_load_dwordx4 v[28:31], v24, s[28:29]")
        if "cpf2" in OPT: a(f"global_load_dwordx4 v[28:31], v24, s[28:29] offset:0")
    lead = a.newlabel("lead")
    def lead_fn():
        a(f"s_memrealtime s[28:29]")
        a("s_waitcnt lgkmcnt(0)")
        a(f"s_or_b32 s28, s28, 1")
        a(f"v_mov_b32 v5, s28")
        a(f"s_mov_b64 exec, 1")
        a(f"buffer_store_dword v5, v4, {R(SRD_DBG)}, 0 offen sc1")
        a(f"s_mov_b64 exec, -1")
    if_s(a, 2, "eq", 0, lead_fn)
    a(f"buffer_load_dword v20, v4, {R(SRD_DBG)}, 0 offen sc1")
    a(f"v_lshlrev_b32 v6, 21, v1")
    a(f"s_mov_b64 exec, 0xf")
    a(f"buffer_load_dword v8, v6, {R(SRD_WS)}, 0 offen offset:2048")
    a(f"s_mov_b64 exec, 0x3")
    a(f"buffer_load_dword v9, v6, {R(SRD_H)}, 0 offen")
    a(f"buffer_load_dword v10, v6, {R(SRD_OUT)}, 0 offen")
    a(f"s_mov_b64 exec, 0x1")
    a(f"buffer_load_dword v11, v6, {R(SRD_WO)}, 0 offen")
    a(f"s_mov_b64 exec, -1")
    a(f"v_lshlrev_b32 v5, 2, v1")
    a(f"v_add_u32 v7, {CNT}, v5")
    a(f"ds_write_b32 v7, v4")
    a(f"ds_write_b32 v7, v4 offset:256")
    a(f"s_mov_b64 exec, -1")
    a("s_waitcnt lgkmcnt(0)")
    a("s_barrier")
    lds_wait_imm(a, C_UP, 4, sleep=0)
    PXF, PWF = 16, 48
    a(f"v_lshlrev_b32 v{T0}, 4, v1")
    a(f"v_add_u32 v{T1}, {UNIT_W}, v{T0}")
    for p_ in range(4):
        a(f"ds_read_b128 {v(PXF+8*p_,4)}, v{T1} offset:{UNIT_S*p_}")
        a(f"ds_read_b128 {v(PXF+8*p_+4,4)}, v{T1} offset:{UNIT_S*p_+1024}")
    a(f"s_lshl_b32 s28, s{S_I}, 1")
    a(f"s_bfe_u32 s29, s{S_J}, 0x10001")
    a(f"s_add_u32 s28, s28, s29")
    a(f"s_mul_i32 s29, s28, 3072")
    a(f"s_and_b32 s30, s{S_J}, 1")
    a("s_waitcnt lgkmcnt(0)")
    a(f"v_mov_b32 v12, {C_PD}")
    a(f"v_mov_b32 v13, 1")
    a(f"ds_write_b32 v12, v13")
    for p_ in range(1, 4):
        for r in range(8): a(f"v_add_f32 v{PXF+r}, v{PXF+r}, v{PXF+8*p_+r}")
    for r in range(4): a(f"v_cvt_pk_bf16_f32 v{PWF+r if r<2 else PWF+4+(r-2)}, v{PXF+2*r}, v{PXF+2*r+1}")
    a(f"v_mov_b32 v{PWF+6}, v{PWF}")
    a(f"v_mov_b32 v{PWF+7}, v{PWF+1}")
    a.nop(2)
    a(f"v_permlane32_swap_b32 v{PWF+6}, v{PWF+2}")
    a(f"v_permlane32_swap_b32 v{PWF+7}, v{PWF+3}")
    a(f"v_and_b32 v{T0}, 15, v1")
    a(f"v_bfe_u32 v{T1}, v1, 4, 1")
    labV2 = a.newlabel("stV"); labP = a.newlabel("pub")
    a(f"s_cmp_ge_u32 s{S_J}, 4")
    a(f"s_cbranch_scc1 {labV2}")
    a(f"s_lshl_b32 s31, s30, 4")
    a(f"v_add_u32 v{T0}, s31, v{T0}")
    a(f"v_lshlrev_b32 v{T1}, 5, v{T1}")
    a(f"v_add_u32 v{T1}, v{T1}, v{T0}")
    a(f"v_lshlrev_b32 v{T1}, 4, v{T1}")
    a(f"s_mov_b64 exec, 0xffffffff")
    a(f"buffer_store_dwordx4 {v(PWF,4)}, v{T1}, {R(SRD_WS)}, s29 offen sc1")
    a(f"s_mov_b64 exec, -1")
    a(f"v_lshlrev_b32 v{T0}, 3, v{T0}")
    a(f"v_add_u32 v{T0}, 1024, v{T0}")
    a(f"v_mov_b32 v{T1}, 1280")
    a(f"v_mov_b32 v{T2}, 0x3f803f80")
    a(f"v_mov_b32 v{T3}, 0x3f80")
    a(f"v_cmp_eq_u32 vcc, 16, v1")
    a.nop(2)
    a(f"v_cndmask_b32 v{T0}, v{T0}, v{T1}, vcc")
    a(f"v_cndmask_b32 v{PWF+4}, v{PWF+4}, v{T2}, vcc")
    a(f"v_cndmask_b32 v{PWF+5}, v{PWF+5}, v{T3}, vcc")
    a(f"s_mov_b32 s41, 0xffff")
    a(f"s_cmp_eq_u32 s30, 0")
    a(f"s_cselect_b32 s40, 0x1ffff, s41")
    a(f"s_mov_b32 s41, 0")
    a(f"s_mov_b64 exec, s[40:41]")
    a(f"buffer_store_dwordx2 {v(PWF+4,2)}, v{T0}, {R(SRD_WS)}, s29 offen sc1")
    a(f"s_mov_b64 exec, -1")
    a(f"s_branch {labP}")
    a.label(labV2)
    a(f"s_mul_i32 s31, s30, 672")
    a(f"s_add_u32 s31, s31, 1296")
    a(f"v_mul_u32_u24 v{T1}, 336, v{T1}")
    a(f"v_lshlrev_b32 v{T2}, 4, v{T0}")
    a(f"v_add_u32 v{T1}, v{T1}, v{T2}")
    a(f"v_add_u32 v{T1}, s31, v{T1}")
    a(f"s_mov_b64 exec, 0xffffffff")
    a(f"buffer_store_dwordx4 {v(PWF,4)}, v{T1}, {R(SRD_WS)}, s29 offen sc1")
    a(f"s_mov_b64 exec, -1")
    a(f"v_mov_b32 v{T2}, 0x3f803f80")
    a(f"v_cmp_eq_u32 vcc, 4, v{T0}")
    a.nop(2)
    a(f"v_cndmask_b32 v{PWF+4}, v{PWF+4}, v{T2}, vcc")
    a(f"v_cndmask_b32 v{PWF+5}, v{PWF+5}, v{T2}, vcc")
    a(f"v_mov_b32 v{PWF}, v{PWF+4}")
    a(f"v_mov_b32 v{PWF+1}, v{PWF+5}")
    a.nop(2)
    a(f"v_permlane32_swap_b32 v{PWF}, v{PWF+6}")
    a(f"v_permlane32_swap_b32 v{PWF+1}, v{PWF+7}")
    a(f"s_mov_b32 s40, 0x001f001f")
    a(f"s_mov_b32 s41, 0")
    a(f"s_mov_b64 exec, s[40:41]")
    a.nop(2)
    a(f"buffer_store_dwordx4 {v(PWF+4,4)}, v{T1}, {R(SRD_WS)}, s29 offen offset:256 sc1")
    a(f"s_mov_b64 exec, -1")
    a.label(labP)
    a(f"s_lshr_b32 s29, s28, 2")
    a(f"s_lshl_b32 s29, s29, 7")
    a(f"s_and_b32 s31, s28, 3")
    a(f"s_lshl_b32 s31, s31, 2")
    a(f"s_lshl_b32 s30, s30, 1")
    a(f"s_add_u32 s31, s31, s30")
    a(f"s_lshr_b32 s30, s{S_J}, 2")
    a(f"s_add_u32 s31, s31, s30")
    a(f"s_lshl_b32 s31, s31, 2")
    a(f"s_add_u32 s34, s29, s31")
    a(f"s_add_u32 s34, s34, {H1}")
    def push(nl, stride_sh, sbase):
        a(f"v_lshlrev_b32 v{T0}, {stride_sh}, v1")
        a(f"v_mov_b32 v{T1}, s{S_NONCE}")
        a(f"s_mov_b64 exec, {hex((1 << nl) - 1)}")
        a(f"buffer_store_dword v{T1}, v{T0}, {R(SRD_WS)}, s{sbase} offen sc1")
        a(f"s_mov_b64 exec, -1")
    def setw(addr):
        a(f"v_mov_b32 v12, {addr}")
        a(f"v_mov_b32 v13, 1")
        a(f"ds_write_b32 v12, v13")
    def ld(): a(f"buffer_load_dword v5, v4, {R(SRD_DBG)}, 0 offen sc1")
    def ck():
        a(f"v_readfirstlane_b32 s{S_NONCE}, v5")
        a("s_nop 3")
        a(f"s_cmp_lg_u32 s{S_NONCE}, 0")
    poll_global(a, ld, ck, sleep=0)
    push(8, 11, 34)
    a(f"v_mov_b32 v12, {C_NONCE}")
    a(f"v_mov_b32 v13, s{S_NONCE}")
    a(f"ds_write_b32 v12, v13")
    setw(C_PFL)
    stamp(a, "pflag")
    ut_issue_all(a)
    VKF = 6
    a(f"v_lshrrev_b32 v{VKF}, 2, v1")
    a(f"v_lshlrev_b32 v{VKF}, 7, v{VKF}")
    a(f"v_and_b32 v{T1}, 3, v1")
    a(f"v_lshlrev_b32 v{T1}, 4, v{T1}")
    a(f"v_add_u32 v{VKF}, v{VKF}, v{T1}")
    a(f"s_and_b32 s36, s2, 7")
    a(f"s_lshl_b32 s36, s36, 11")
    a(f"s_add_u32 s36, s36, {H1}")
    a(f"s_lshl_b32 s37, s{S_I}, 3")
    a(f"s_add_u32 s37, s37, s{S_J}")
    a(f"s_lshl_b32 s37, s37, 7")
    a(f"s_lshl_b32 s38, s{S_J}, 7")
    a(f"s_lshl_b32 s39, s{S_I}, 2")
    a(f"s_add_u32 s38, s38, s39")
    a(f"v_lshlrev_b32 v7, 2, v1")
    a(f"v_mov_b32 v14, {C_UCNT}")
    a(f"buffer_load_dwordx4 v[8:11], v{VKF}, {R(SRD_WS)}, s36 offen sc1")
    a("s_waitcnt vmcnt(1)")
    setw(C_UTL)
    if "pipe" not in OPT: poll_flags(a, VKF, "s36", 0xffffffffffffffff, 8, n=4, sleep=0)
    else: poll_flags_pipe(a, VKF, "s36", 0xffffffffffffffff, 8, n=4, sleep=5, depth=3)
    stamp(a, "pkvok")
    FL16 = 20
    BUF = [[32, 56], [80, 104]]
    S_NX = [78, 79]; S_SRC = 81
    S_IS = [82, 83]
    S_SEQ = 84
    S_SQ = [[85, 86], [87, 88]]
    a(f"v_lshlrev_b32 v{FL16}, 4, v1")
    def fissue(g, par):
        a(f"s_lshr_b32 s28, s{S_IS[g]}, 1")
        a(f"s_add_u32 s28, s28, s{S_ROT}")
        a(f"s_and_b32 s28, s28, 7")
        a(f"s_mul_i32 s28, s28, 12288")
        a(f"s_add_u32 s{S_SRC}, s28, {g*32*3072 + par*6144}")
        for k in range(6):
            a(f"buffer_load_dwordx4 {v(BUF[g][par]+4*k,4)}, v{FL16}, {R(SRD_WS)}, s{S_SRC} offen offset:{1024*(k%4)} sc1")
            if k == 3: a(f"s_add_u32 s{S_SRC}, s{S_SRC}, 4096")
        a(f"s_add_u32 s{S_IS[g]}, s{S_IS[g]}, 1")
        a(f"s_add_u32 s{S_SEQ}, s{S_SEQ}, 1")
        a(f"s_mov_b32 s{S_SQ[g][par]}, s{S_SEQ}")
    a(f"s_mov_b32 s{S_SEQ}, 0")
    for g in range(2):
        a(f"s_mov_b32 s{S_NX[g]}, 0")
        a(f"s_mov_b32 s{S_IS[g]}, 0")
    fissue(0, 0); fissue(1, 0); fissue(0, 1); fissue(1, 1)
    lds_wait_imm(a, C_QRD, 8, sleep=0)
    FLP = a.newlabel("fl"); FDN = a.newlabel("fd")
    a(f"v_and_b32 v22, 7, v1")
    a(f"v_lshlrev_b32 v22, 2, v22")
    a(f"v_add_u32 v22, {C_DONE}, v22")
    a(f"s_mov_b32 s33, 0")
    a.label(FLP)
    a(f"ds_read_b32 v24, v22")
    a("s_waitcnt lgkmcnt(0)")
    a(f"s_mov_b32 s39, 0")
    for g in range(2):
        skip = a.newlabel("fs")
        a(f"s_cmp_ge_u32 s{S_NX[g]}, 16")
        a(f"s_cbranch_scc1 {skip}")
        a(f"s_and_b32 s29, s{S_NX[g]}, 3")
        a(f"s_add_u32 s29, s29, {4*g}")
        a(f"v_readlane_b32 s42, v24, s29")
        a(f"s_lshr_b32 s28, s{S_NX[g]}, 2")
        a(f"s_lshl_b32 s28, s28, 2")
        a("s_nop 1")
        a(f"s_cmp_lt_u32 s42, s28")
        a(f"s_cbranch_scc1 {skip}")
        PARL = []
        for par in range(2):
            nxtp = a.newlabel("fp")
            a(f"s_and_b32 s28, s{S_NX[g]}, 1")
            a(f"s_cmp_lg_u32 s28, {par}")
            a(f"s_cbranch_scc1 {nxtp}")
            a(f"s_sub_u32 s28, s{S_SEQ}, s{S_SQ[g][par]}")
            lend = a.newlabel("fw")
            for age in range(3):
                ln = a.newlabel("fw")
                a(f"s_cmp_lg_u32 s28, {age}")
                a(f"s_cbranch_scc1 {ln}")
                a(f"s_waitcnt vmcnt({6*age})")
                a(f"s_branch {lend}")
                a.label(ln)
            a("s_waitcnt vmcnt(18)")
            a.label(lend)
            a(f"s_and_b32 s28, s{S_NX[g]}, 3")
            a(f"s_mul_i32 s29, s28, {2*BLK}")
            a(f"s_add_u32 s29, s29, {g*RING_STRIDE}")
            a(f"v_add_u32 v26, s29, v{FL16}")
            for k in range(6):
                a(f"ds_write_b128 v26, {v(BUF[g][par]+4*k,4)} offset:{1024*k}")
            a(f"s_lshl_b32 s28, s28, 2")
            a(f"s_add_u32 s28, s28, {C_FULL + 16*g}")
            a(f"v_mov_b32 v27, s28")
            a(f"v_mov_b32 v28, 1")
            lds_add1(a, 27, 28)
            a(f"s_add_u32 s{S_NX[g]}, s{S_NX[g]}, 1")
            a(f"s_mov_b32 s39, 1")
            a(f"s_cmp_ge_u32 s{S_IS[g]}, 16")
            a(f"s_cbranch_scc1 {skip}")
            fissue(g, par)
            a(f"s_branch {skip}")
            a.label(nxtp)
        a.label(skip)
    a(f"s_add_u32 s28, s{S_NX[0]}, s{S_NX[1]}")
    a(f"s_cmp_ge_u32 s28, 32")
    a(f"s_cbranch_scc1 {FDN}")
    a(f"s_add_u32 s33, s33, 1")
    a(f"s_cmp_ge_u32 s33, {POLL_MAX*8}")
    a(f"s_cbranch_scc1 {FDN}")
    a(f"s_cmp_lg_u32 s39, 0")
    a(f"s_cbranch_scc1 {FLP}")
    a(f"s_sleep {4 if 'fs4' in OPT else (2 if 'fs2' in OPT else 3)}")
    a(f"s_branch {FLP}")
    a.label(FDN)
    stamp(a, "pfed")
    a(f"s_lshl_b32 s37, s{S_I}, 3")
    a(f"s_add_u32 s37, s37, s{S_J}")
    a(f"s_lshl_b32 s37, s37, 7")
    a(f"v_lshlrev_b32 v7, 2, v1")
    lds_wait_imm(a, C_OCNT, 8, sleep=0)
    a(f"s_lshl_b32 s29, s{S_I}, 10")
    a(f"s_lshl_b32 s30, s{S_J}, 2")
    a(f"s_add_u32 s29, s29, s30")
    a(f"s_add_u32 s29, s29, {H4}")
    push(8, 7, 29)
    stamp(a, "popush")
    a(f"s_add_u32 s29, s37, {H4}")
    if "pipe" not in OPT: poll_flags(a, 7, "s29", 0xff, 8, sleep=0)
    else: poll_flags_pipe(a, 7, "s29", 0xff, 8, n=1, sleep=3, depth=3)
    setw(C_OOK)
    a(f"s_branch f_fin")
    gen_loader(a)
    a.label("f_fin")
    if "stamp" in OPT:
        a("s_waitcnt vmcnt(0)")
        stamp(a, "end"); stamp(a, "rt1", True)
        stamp_flush(a)
    a.label(END)
    a("s_endpgm")
    a.L.append(kernel_desc(name, NVGPR))


def ut_issue_all(a):
    a(f"s_lshl_b32 s39, s{S_I}, 6")
    a(f"s_sub_u32 s33, s39, 3")
    a(f"s_mul_i32 s38, s{S_J}, 160")
    for kind, nq, base_l, srd_, halo in (("k", 11, UT_K, SRD_K, 3), ("v", 10, UT_V, SRD_V, 0)):
        for q in range(nq):
            a(f"v_add_u32 v{T0}, {64*q}, v1")
            div10(a, T0, T1, T0, T2)
            a(f"v_lshrrev_b32 v{T2}, 3, v{T1}")
            a(f"v_sub_u32 v{T0}, v{T0}, v{T2}")
            a(f"v_add_u32 v{T2}, 10, v{T0}")
            a(f"v_min_u32 v{T0}, v{T0}, v{T2}")
            a(f"v_lshlrev_b32 v{T0}, 4, v{T0}")
            a(f"v_add_u32 v{T1}, s39, v{T1}") if halo == 0 else a(f"v_add_u32 v{T1}, s33, v{T1}")
            a(f"v_mul_lo_u32 v{T1}, v{T1}, s{S_1280}")
            a(f"v_add3_u32 v{T0}, v{T0}, v{T1}, s38")
            a(f"s_mov_b32 m0, {base_l + 1024*q}")
            if kind == "k" and q == 10: a(f"s_mov_b64 exec, 0x3fffffff")
            else: a("s_nop 0")
            a(f"buffer_load_dwordx4 v{T0}, {R(srd_)}, 0 offen lds")
            if kind == "k" and q == 10: a(f"s_mov_b64 exec, -1")

def gen_loader(a):
    S_LI = 34
    a.label("f_lstart")
    a("s_setprio 3")
    a(f"s_sub_u32 s{S_LI}, s{S_W}, 9")
    VX, VW, VL16 = 112, 116, 121
    RB3, RB4, HR = 16, 64, 112
    a(f"v_lshlrev_b32 v{T3}, 4, v1")
    if "pf" in OPT:
        a(f"s_lshr_b32 s28, s2, 3")
        a(f"s_mul_i32 s28, s28, 10240")
        a(f"s_lshl_b32 s29, s{S_LI}, 10")
        a(f"s_add_u32 s28, s28, s29")
        a(f"s_add_u32 s28, s28, {384*1280}")
        for k in range(4):
            def pf(k=k):
                a(f"buffer_load_dwordx4 v[160:163], v{T3}, {R(SRD_WQ)}, s28 offen")
            if k < 3: pf()
            else: if_s(a, S_LI, "eq", 0, pf)
            a(f"s_add_u32 s28, s28, 3072")
        a(f"v_lshrrev_b32 v{T0}, 5, v1")
        a(f"v_mul_u32_u24 v{T0}, 1280, v{T0}")
        a(f"v_and_b32 v{T1}, 31, v1")
        a(f"v_lshlrev_b32 v{T1}, 4, v{T1}")
        a(f"v_add_u32 v{T0}, v{T0}, v{T1}")
        a(f"s_lshl_b32 s28, s{S_I}, 6")
        a(f"s_lshl_b32 s30, s{S_J}, 3")
        a(f"s_add_u32 s28, s28, s30")
        a(f"s_lshl_b32 s30, s{S_LI}, 1")
        a(f"s_add_u32 s28, s28, s30")
        a(f"s_mul_i32 s28, s28, 1280")
        a(f"s_add_u32 s28, s28, 768")
        a(f"buffer_load_dwordx4 v[160:163], v{T0}, {R(SRD_X)}, s28 offen")
        def pf2():
            a(f"s_add_u32 s28, s28, {6*1280}")
            a(f"buffer_load_dwordx4 v[160:163], v{T0}, {R(SRD_X)}, s28 offen")
        if_s(a, S_LI, "eq", 0, pf2)
    a("s_barrier")
    for k in range(4):
        a(f"v_lshrrev_b32 v{T0}, 4, v1")
        a(f"v_add_u32 v{T0}, {4*k}, v{T0}")
        a(f"v_xor_b32 v{T1}, v1, v{T0}")
        a(f"v_and_b32 v{T1}, 15, v{T1}")
        a(f"v_lshlrev_b32 v{T1}, 4, v{T1}")
        a(f"s_lshl_b32 s28, s{S_I}, 6")
        a(f"v_add_u32 v{T0}, s28, v{T0}")
        a(f"v_mul_lo_u32 v{T0}, v{T0}, s{S_1280}")
        a(f"v_add_u32 v{VX+k}, v{T0}, v{T1}")
    a(f"s_mul_i32 s29, s{S_J}, 160")
    for t in range(5):
        a(f"v_add_u32 v{T0}, {64*t}, v1")
        div10(a, T0, T1, T0, T2)
        a(f"v_lshlrev_b32 v{T0}, 4, v{T0}")
        a(f"v_and_b32 v{T2}, 0xfff8, v{T1}")
        a(f"v_bfe_u32 v{VL16}, v{T1}, 1, 2")
        a(f"v_or_b32 v{T2}, v{T2}, v{VL16}")
        a(f"v_and_b32 v{T1}, 1, v{T1}")
        a(f"v_lshlrev_b32 v{T1}, 2, v{T1}")
        a(f"v_or_b32 v{T2}, v{T2}, v{T1}")
        a(f"v_mul_lo_u32 v{T2}, v{T2}, s{S_1280}")
        a(f"v_add_u32 v{T2}, v{T2}, v{T0}")
        a(f"v_add_u32 v{VW+t}, s29, v{T2}")
    lists = [[("x", q) for q in range(12)],
             [("x", q) for q in range(12, 16)] + [("w", q) for q in range(8)],
             [("w", q) for q in range(8, 20)]]
    def ldoff(kind, q): return 1024*q if kind == "x" else 16384 + 1024*q
    def issue(lst, ch, dma_slot=None, regs=None):
        for n, (kind, q) in enumerate(lst):
            if kind == "x": srd_, vr, so = SRD_X, VX+(q&3), 256*ch + (q >> 2)*16*1280
            else: srd_, vr, so = SRD_WQ, VW+(q%5), 163840*ch + (q // 5)*40960
            a(f"s_mov_b32 s28, {so}")
            if dma_slot is not None:
                a(f"s_mov_b32 m0, {dma_slot*SLOT + ldoff(kind, q)}")
                a(f"s_nop 0")
                a(f"buffer_load_dwordx4 v{vr}, {R(srd_)}, s28 offen lds")
            else:
                a(f"buffer_load_dwordx4 {v(regs+4*n,4)}, v{vr}, {R(srd_)}, s28 offen")
    def signal(addr): lds_add1_imm(a, addr)
    LD_JOIN = a.newlabel("ldj")
    for li in range(3):
        nxt = a.newlabel("ldv")
        a(f"s_cmp_lg_u32 s{S_LI}, {li}")
        a(f"s_cbranch_scc1 {nxt}")
        L = lists[li]
        if "regs" in OPT:
            issue(L, 2, dma_slot=2)
            if "nogate" not in OPT:
                a("s_waitcnt vmcnt(0)"); signal(C_CL + 8)
                lds_wait_imm(a, C_PFL, 1, sleep=1)
            issue(L, 3, regs=RB3)
            if "thr" in OPT:
                a("s_waitcnt vmcnt(12)"); signal(C_CL + 8)
            issue(L, 4, regs=RB4)
            stamp(a, "lissue")
            if "nogate" in OPT:
                a(f"s_waitcnt vmcnt(24)"); signal(C_CL + 8)
            nut = 0
            for (RBx, gate, cl, n_after, slot) in ((RB3, C_C0C, 12, 12, 0), (RB4, C_C1C, 16, 0, 1)):
                lds_wait_imm(a, gate, 8, sleep=1)
                a(f"v_add_u32 v{T2}, {slot*SLOT}, v{T3}")
                a(f"s_waitcnt vmcnt({n_after + nut})")
                stamp(a, f"lw{cl}")
                for n, (kind, q) in enumerate(L):
                    a(f"ds_write_b128 v{T2}, {v(RBx+4*n,4)} offset:{ldoff(kind, q)}")
                signal(C_CL + cl)
        else:
            issue(L, 2, dma_slot=2)
            a("s_waitcnt vmcnt(0)"); signal(C_CL + 8)
            lds_wait_imm(a, C_C0C, 8, sleep=0)
            issue(L, 3, dma_slot=0)
            lds_wait_imm(a, C_C1C, 8, sleep=0)
            issue(L, 4, dma_slot=1)
            stamp(a, "lissue")
            a("s_waitcnt vmcnt(12)"); signal(C_CL + 12)
            a("s_waitcnt vmcnt(0)"); signal(C_CL + 16)
        a(f"s_branch {LD_JOIN}")
        a.label(nxt)
    a.label(LD_JOIN)
    stamp(a, "ldone")
    def gate_fin():
        lds_wait_imm(a, C_QG, 8, sleep=1)
        a(f"v_lshrrev_b32 v{T0}, 5, v1")
        a(f"v_lshlrev_b32 v{T0}, 9, v{T0}")
        a(f"v_and_b32 v{T1}, 31, v1")
        a(f"v_lshlrev_b32 v{T1}, 2, v{T1}")
        a(f"v_add_u32 v{T0}, v{T0}, v{T1}")
        a(f"v_add_u32 v{T0}, {GP}, v{T0}")
        for k in range(4): a(f"ds_read_b32 v{96+k}, v{T0} offset:{128*k}")
        a("s_waitcnt lgkmcnt(0)")
        a(f"v_add_f32 v96, v96, v97")
        a(f"v_add_f32 v98, v98, v99")
        a(f"v_add_f32 v96, v96, v98")
        a(f"v_mul_f32 v96, {hex(f32bits(-1.4426950408889634))}, v96")
        a(f"v_exp_f32 v96, v96")
        a.nop(1)
        a(f"v_add_f32 v96, 1.0, v96")
        a(f"v_rcp_f32 v96, v96")
        a(f"v_lshlrev_b32 v{T0}, 2, v1")
        a(f"v_add_u32 v{T0}, {G_L}, v{T0}")
        a.nop(1)
        a(f"ds_write_b32 v{T0}, v96")
    if_s(a, S_LI, "eq", 2, gate_fin)
    def uround(rnd_sgpr):
        KD, VD, SH = 16, 28, 36
        KA_, KB_, WA_, WB_, UA, UB, UT = 44, 56, 68, 72, 76, 84, 92
        A0, A1, UST = 93, 94, 95
        a(f"s_lshl_b32 s28, s{rnd_sgpr}, 6")
        a(f"v_add_u32 v{T0}, s28, v1")
        a(f"v_lshrrev_b32 v{T1}, 3, v{T0}")
        a(f"v_and_b32 v{T0}, 7, v{T0}")
        a(f"s_mul_i32 s29, s{S_J}, 160")
        a(f"v_lshlrev_b32 v{T2}, 2, v{T1}")
        a(f"v_add_u32 v{T2}, s29, v{T2}")
        a(f"v_lshlrev_b32 v{UST}, 2, v{T2}")
        a(f"buffer_load_dwordx4 {v(SH,4)}, v{UST}, {R(SRD_SH)}, 0 offen")
        a(f"v_lshlrev_b32 v{UST}, 11, v{T2}")
        a(f"v_lshlrev_b32 v{T2}, 4, v{T0}")
        a(f"v_sub_u32 v{UST}, v{UST}, v{T2}")
        a(f"s_lshl_b32 s29, s{S_I}, 7")
        a(f"s_sub_u32 s29, {UR_OFF + 4080}, s29")
        a(f"v_add_u32 v{UST}, s29, v{UST}")
        a(f"v_lshrrev_b32 v{T2}, 2, v{T1}")
        a(f"v_add_u32 v{T2}, v{T2}, v{T0}")
        a(f"v_and_b32 v{T1}, 3, v{T1}")
        a(f"v_lshlrev_b32 v{T1}, 2, v{T1}")
        a(f"v_mul_u32_u24 v{T0}, 1280, v{T0}")
        a(f"v_add3_u32 v{T0}, v{T0}, v{T1}, s77" if False else f"v_add_u32 v{T0}, v{T0}, v{T1}")
        a(f"v_add_u32 v{T0}, {UT_K}, v{T0}")
        for (dst, add) in ((A0, 0), (A1, 1)):
            a(f"v_add_u32 v{UT}, {add}, v{T2}")
            a(f"v_subrev_u32 v{T1}, 10, v{UT}")
            a(f"v_min_u32 v{UT}, v{UT}, v{T1}")
            a(f"v_lshlrev_b32 v{UT}, 4, v{UT}")
            a(f"v_add_u32 v{dst}, v{T0}, v{UT}")
        for r in range(8): a(f"ds_read_b32 v{KD+r}, v{A0} offset:{160*r}")
        for r in range(8, 11): a(f"ds_read_b32 v{KD+r}, v{A1} offset:{160*r}")
        a("s_waitcnt lgkmcnt(4)")
        for r in range(8): a(f"ds_read_b32 v{VD+r}, v{A0} offset:{10720 + 160*r}")
        a("s_waitcnt lgkmcnt(0) vmcnt(0)")
        for r in range(11):
            a(f"v_lshlrev_b32 v{KA_+r}, 16, v{KD+r}")
            a(f"v_and_b32 v{KB_+r}, 0xffff0000, v{KD+r}")
        for (W, base) in ((WA_, SH), (WB_, SH + 2)):
            a(f"v_lshlrev_b32 v{W}, 16, v{base}")
            a(f"v_and_b32 v{W+1}, 0xffff0000, v{base}")
            a(f"v_lshlrev_b32 v{W+2}, 16, v{base+1}")
            a(f"v_and_b32 v{W+3}, 0xffff0000, v{base+1}")
        for e_ in range(8):
            for (U, Kf, W, lo) in ((UA, KA_, WA_, True), (UB, KB_, WB_, False)):
                a(f"v_mul_f32 v{U+e_}, v{Kf+e_+3}, v{W}")
                for jx in range(1, 4):
                    a(f"v_fmac_f32 v{U+e_}, v{Kf+e_+3-jx}, v{W+jx}")
                if lo: a(f"v_lshlrev_b32 v{UT}, 16, v{VD+e_}")
                else: a(f"v_and_b32 v{UT}, 0xffff0000, v{VD+e_}")
                a(f"v_mul_f32 v{U+e_}, v{U+e_}, v{UT}")
        for (U, O_) in ((UA, KD), (UB, KD + 4)):
            for i in range(4):
                a(f"v_cvt_pk_bf16_f32 v{O_+i}, v{U+7-2*i}, v{U+6-2*i}")
        a(f"buffer_store_dwordx4 {v(KD,4)}, v{UST}, {R(SRD_WS)}, 0 offen sc1")
        a(f"v_add_u32 v{UST}, 4096, v{UST}")
        a(f"buffer_store_dwordx4 {v(KD+4,4)}, v{UST}, {R(SRD_WS)}, 0 offen sc1")
    lds_wait_imm(a, C_UTL, 1, sleep=1)
    if "up0" in OPT: a("s_setprio 0")
    if "up1" in OPT: a("s_setprio 1")
    stamp(a, "utl")
    a(f"s_mov_b32 s87, s{S_LI}")
    if "noup" not in OPT: uround(87)
    def second():
        a(f"s_add_u32 s87, s{S_LI}, 3")
        uround(87)
    if "noup" not in OPT: if_s(a, S_LI, "lt", 2, second)
    a("s_waitcnt vmcnt(0)")
    a("s_setprio 3")
    signal(C_UCNT)
    stamp(a, "udone")
    WD = 116
    VL = 121
    def wd_calc():
        a(f"v_lshlrev_b32 v{VL}, 4, v1")
        a(f"s_mul_i32 s29, s{S_J}, 160")
        for t in range(5):
            a(f"v_add_u32 v{T0}, {64*t}, v1")
            div10(a, T0, T1, T0, T2)
            a(f"v_lshlrev_b32 v{T0}, 4, v{T0}")
            a(f"v_and_b32 v{T2}, 0xfff3, v{T1}")
            a(f"v_bfe_u32 v{T3}, v{T1}, 2, 1")
            a(f"v_lshlrev_b32 v{T3}, 3, v{T3}")
            a(f"v_or_b32 v{T2}, v{T2}, v{T3}")
            a(f"v_bfe_u32 v{T3}, v{T1}, 3, 1")
            a(f"v_lshlrev_b32 v{T3}, 2, v{T3}")
            a(f"v_or_b32 v{T2}, v{T2}, v{T3}")
            a(f"v_mul_lo_u32 v{T2}, v{T2}, s{S_1280}")
            a(f"v_add_u32 v{T2}, v{T2}, v{T0}")
            a(f"v_add_u32 v{WD+t}, s29, v{T2}")
    def wo_periods(p_first, p_cnt):
        a(f"s_add_u32 s31, s{S_LI}, {p_first}")
        WL = a.newlabel("wol"); WE = a.newlabel("woe")
        a.label(WL)
        a(f"s_cmp_ge_u32 s31, {p_first + p_cnt}")
        a(f"s_cbranch_scc1 {WE}")
        a(f"s_mul_i32 s28, s31, 5120")
        a(f"s_add_u32 s28, s28, {WOA}")
        a(f"s_mul_i32 s30, s31, {32*1280}")
        for t in range(5):
            a(f"s_add_u32 m0, s28, {1024*t}")
            a(f"s_nop 0")
            a(f"buffer_load_dwordx4 v{WD+t}, {R(SRD_WO)}, s30 offen lds")
        a(f"s_add_u32 s31, s31, 3")
        a(f"s_branch {WL}")
        a.label(WE)
    def lpush(nl, stride_sh, sbase):
        a(f"v_lshlrev_b32 v{T0}, {stride_sh}, v1")
        a(f"v_mov_b32 v{T1}, s{S_NONCE}")
        a(f"s_mov_b64 exec, {hex((1 << nl) - 1)}")
        a(f"buffer_store_dword v{T1}, v{T0}, {R(SRD_WS)}, s{sbase} offen sc1")
        a(f"s_mov_b64 exec, -1")
    def lsetw(addr):
        a(f"v_mov_b32 v{T0}, {addr}")
        a(f"v_mov_b32 v{T1}, 1")
        a(f"ds_write_b32 v{T0}, v{T1}")
    S_MB, S_PB = 89, 90
    def l2_u():
        lds_wait_imm(a, C_NONCE, 1, sleep=1)
        a(f"s_mov_b32 s{S_NONCE}, s42")
        a(f"s_lshl_b32 s{S_MB}, s{S_I}, 3")
        a(f"s_add_u32 s{S_MB}, s{S_MB}, s{S_J}")
        a(f"s_lshl_b32 s{S_MB}, s{S_MB}, 7")
        a(f"s_lshl_b32 s{S_PB}, s{S_J}, 7")
        a(f"s_lshl_b32 s28, s{S_I}, 2")
        a(f"s_add_u32 s{S_PB}, s{S_PB}, s28")
        lds_wait_imm(a, C_UCNT, 3, sleep=1)
        a(f"s_add_u32 s29, s{S_PB}, {H2}")
        lpush(32, 10, 29)
    if_s(a, S_LI, "eq", 2, l2_u)
    wd_calc()
    def wo_list(ps):
        for p_ in ps:
            a(f"s_mov_b32 s30, {p_*32*1280}")
            for t in range(5):
                a(f"s_mov_b32 m0, {WOA + p_*5120 + 1024*t}")
                a(f"s_nop 0")
                a(f"buffer_load_dwordx4 v{WD+t}, {R(SRD_WO)}, s30 offen lds")
    lds_wait_imm(a, C_UCNT, 3, sleep=1)
    lds_wait_imm(a, C_QG, 8, sleep=1)
    wo_periods(11, 9)
    a(f"v_lshlrev_b32 v{T3}, 4, v1")
    def l2_u2():
        a(f"v_lshlrev_b32 v98, 2, v1")
        a(f"s_add_u32 s29, s{S_MB}, {H2}")
        poll_flags(a, 98, "s29", 0xffffffff, 99, sleep=1)
        lsetw(C_UOK)
        stamp(a, "uok")
    if_s(a, S_LI, "eq", 2, l2_u2)
    def h_loads():
        a(f"s_lshl_b32 s28, s{S_CH}, 12")
        for q in range(4):
            a(f"s_add_u32 s29, s28, {1024*q}")
            for k in range(3):
                a(f"buffer_load_dwordx4 {v(HR+12*q+4*k,4)}, v{T3}, {R(SRD_H)}, s29 offen offset:{4*k}")
        a(f"s_lshr_b32 s30, s{S_CH}, 1")
        a(f"s_lshl_b32 s30, s30, 2")
        a(f"s_load_dword s88, s[{S_DPTR}:{S_DPTR+1}], s30")
    NOC = a.newlabel("noconv")
    a(f"s_cmp_ge_u32 s{S_LI}, s{S_NCH}")
    a(f"s_cbranch_scc1 {NOC}")
    if "noconv" in OPT: a(f"s_branch {NOC}")
    h_loads()
    lds_wait_imm(a, C_QG, 8, sleep=2)
    stamp(a, "conv0")
    gen_conv(a, HR)
    a("s_waitcnt vmcnt(0)")
    a.label(NOC)
    a("s_setprio 3")
    signal(C_CVD)
    stamp(a, "conv1")
    wd_calc()
    lds_wait_imm(a, C_QG, 8, sleep=2)
    own = [[0, 1], [3, 4, 5], [7, 8, 9, 10]]
    for li in range(3):
        if_s(a, S_LI, "eq", li, lambda li=li: wo_list(own[li]))
    lds_wait_imm(a, C_CVD, 3, sleep=4)
    def l2_y():
        a(f"s_add_u32 s29, s{S_PB}, {H3}")
        lpush(32, 10, 29)
        stamp(a, "yflag")
    if_s(a, S_LI, "eq", 2, l2_y)
    if_s(a, S_LI, "eq", 0, lambda: wo_list([2]))
    if_s(a, S_LI, "eq", 1, lambda: wo_list([6]))
    a("s_waitcnt vmcnt(0)")
    signal(C_WOK)
    stamp(a, "woready")
    def l2_yok():
        a(f"v_lshlrev_b32 v98, 2, v1")
        a(f"s_add_u32 s29, s{S_MB}, {H3}")
        poll_flags(a, 98, "s29", 0xffffffff, 99, sleep=2)
        lsetw(C_YOK)
        stamp(a, "yok")
    if_s(a, S_LI, "eq", 2, l2_yok)
    def ytile(li):
        YR = 32
        a(f"v_lshrrev_b32 v{T2}, 3, v1")
        a(f"v_lshlrev_b32 v{T2}, 12, v{T2}")
        a(f"v_and_b32 v{T3}, 7, v1")
        a(f"v_lshlrev_b32 v{T3}, 4, v{T3}")
        a(f"v_add_u32 v{T2}, v{T2}, v{T3}")
        lds_wait_imm(a, C_YOK, 1, sleep=2)
        a(f"s_mul_i32 s28, s{S_J}, {80*4096}")
        a(f"s_lshl_b32 s29, s{S_I}, 7")
        a(f"s_add_u32 s28, s28, s29")
        a(f"s_add_u32 s28, s28, {YT_OFF + li*5*8*4096}")
        for t in range(5):
            a(f"buffer_load_dwordx4 {v(YR+4*t,4)}, v{T2}, {R(SRD_WS)}, s28 offen sc1")
            a(f"s_add_u32 s28, s28, {8*4096}")
        a(f"v_add_u32 v{T2}, {YL + li*5120}, v{VL}")
        lds_wait_imm(a, C_ST, 8, sleep=1)
        a("s_waitcnt vmcnt(0)")
        for t in range(5): a(f"ds_write_b128 v{T2}, {v(YR+4*t,4)} offset:{1024*t}")
        signal(C_YW)
    for li in range(2):
        if_s(a, S_LI, "eq", li, lambda li=li: ytile(li))

def gen_conv(a, HR):
    URL = 16640
    CA, FA, FB, AD = 16, 48, 80, 112
    VA, VB, CT2, CT3 = 160, 161, 162, 163
    a(f"v_lshlrev_b32 v{T2}, 4, v1")
    a(f"v_add_u32 v{T3}, s{S_CB}, v{T2}")
    a("s_waitcnt vmcnt(0)")
    for q in range(4):
        X0, X1, X2 = HR+12*q, HR+12*q+4, HR+12*q+8
        C1, C3 = CA + 8*(q & 1), CA + 8*(q & 1) + 4
        for k in range(4):
            a(f"v_alignbit_b32 v{C1+k}, v{X1+k}, v{X0+k}, 16")
            a(f"v_alignbit_b32 v{C3+k}, v{X2+k}, v{X1+k}, 16")
        o = 1024 * q + 32
        a(f"ds_write_b128 v{T3}, {v(X0,4)} offset:{o}")
        a(f"ds_write_b128 v{T3}, {v(C1,4)} offset:{4160+o}")
        a(f"ds_write_b128 v{T3}, {v(X1,4)} offset:{8320+o}")
        a(f"ds_write_b128 v{T3}, {v(C3,4)} offset:{12480+o}")
    Z = CA + 16
    for k in range(4): a(f"v_mov_b32 v{Z+k}, 0")
    a(f"v_alignbit_b32 v{Z+4}, v{HR+4}, v{HR}, 16")
    a(f"v_lshlrev_b32 v{Z+5}, 16, v{HR}")
    a(f"v_mov_b32 v{Z+6}, v{HR}")
    a(f"v_lshrrev_b32 v{T0}, 1, v1")
    a(f"v_mul_u32_u24 v{T0}, 4160, v{T0}")
    a(f"v_and_b32 v{T1}, 1, v1")
    a(f"v_lshlrev_b32 v{T1}, 4, v{T1}")
    a(f"v_add_u32 v{T0}, v{T0}, v{T1}")
    a(f"v_add_u32 v{T0}, s{S_CB}, v{T0}")
    a(f"s_mov_b64 exec, 0xff")
    a(f"ds_write_b128 v{T0}, {v(Z,4)}")
    a(f"s_mov_b64 exec, 0xffffffff")
    a(f"ds_write_b128 v{T3}, {v(Z,4)} offset:{URL+4096}")
    a(f"s_mov_b64 exec, 1")
    a(f"ds_write_b32 v{T3}, v{Z+5} offset:{4160+28}")
    a(f"ds_write_b32 v{T3}, v{Z+6} offset:{8320+28}")
    a(f"ds_write_b32 v{T3}, v{Z+5} offset:{12480+24}")
    a(f"ds_write_b32 v{T3}, v{Z+4} offset:{12480+28}")
    a(f"s_mov_b64 exec, -1")
    a("s_waitcnt lgkmcnt(0)")
    a(f"v_mov_b32 v{FA}, v{T3}")
    a(f"v_mov_b32 v{FA+1}, v{T2}")
    lds_wait_imm(a, C_UOK, 1, sleep=2)
    a(f"s_lshl_b32 s28, s{S_CH}, 12")
    a(f"s_add_u32 s28, s28, {UR_OFF}")
    for q in range(4):
        a(f"s_add_u32 s29, s28, {1024*q}")
        a(f"buffer_load_dwordx4 {v(FB+4*q,4)}, v{FA+1}, {R(SRD_WS)}, s29 offen sc1")
    a(f"v_and_b32 v{T0}, 15, v1")
    a(f"v_lshrrev_b32 v{T1}, 4, v1")
    a(f"v_add_u32 v{CT2}, 1, v{T0}")
    a(f"v_and_b32 v{CT3}, 3, v{CT2}")
    a(f"v_mul_u32_u24 v{VA}, 4160, v{CT3}")
    a(f"v_lshrrev_b32 v{CT2}, 2, v{CT2}")
    a(f"v_lshlrev_b32 v{CT2}, 3, v{CT2}")
    a(f"v_lshlrev_b32 v{CT3}, 4, v{T1}")
    a(f"v_add_u32 v{VA}, v{VA}, v{CT2}")
    a(f"v_add_u32 v{VA}, v{VA}, v{CT3}")
    a(f"v_add_u32 v{VA}, s{S_CB}, v{VA}")
    a(f"v_lshlrev_b32 v{CT2}, 5, v{T0}")
    a(f"v_sub_u32 v{VB}, v{CT3}, v{CT2}")
    a(f"s_add_u32 s28, s{S_CB}, {URL + 480}")
    a(f"v_add_u32 v{VB}, s28, v{VB}")
    a(f"s_and_b32 s30, s{S_CH}, 1")
    a(f"s_lshl_b32 s30, s30, 4")
    a(f"s_lshr_b32 s88, s88, s30")
    a(f"s_and_b32 s88, s88, 0xffff")
    a(f"v_lshlrev_b32 v{T1}, 3, v{T1}")
    a(f"v_add_u32 v{T0}, v{T0}, v{T1}")
    a(f"v_sub_u32 v{T0}, 15, v{T0}")
    a(f"v_and_b32 v{T1}, 1, v{T0}")
    a(f"v_lshlrev_b32 v{T1}, 4, v{T1}")
    a(f"v_mov_b32 v{CT2}, s88")
    a(f"v_lshlrev_b32 v{CT2}, v{T1}, v{CT2}")
    a(f"v_lshrrev_b32 v{T0}, 1, v{T0}")
    for k in range(4):
        a(f"v_cmp_eq_u32 vcc, {k}, v{T0}")
        a.nop(2)
        a(f"v_cndmask_b32 v{AD+k}, 0, v{CT2}, vcc")
    for r in range(32): a(f"v_mov_b32 v{CA+r}, 0")
    a("s_waitcnt vmcnt(0)")
    for q in range(4):
        a(f"ds_write_b128 v{FA}, {v(FB+4*q,4)} offset:{URL + 1024*q}")
    a("s_waitcnt lgkmcnt(0)")
    stamp(a, "convm")
    a(f"s_setprio {2 if 'cp2' in OPT else (1 if 'cp1' in OPT else 0)}")
    a(f"s_mov_b32 s86, 0")
    PL = a.newlabel("convph")
    a.label(PL)
    a(f"ds_read_b64 {v(FA,2)}, v{VA}")
    a(f"ds_read_b64 {v(FA+2,2)}, v{VA} offset:8")
    for vv in range(8):
        a(f"ds_read_b128 {v(FB+4*vv,4)}, v{VB} offset:{512*(7-vv)}")
    for i in range(1, 3):
        a(f"ds_read_b64 {v(FA+4*i,2)}, v{VA} offset:{512*i}")
        a(f"ds_read_b64 {v(FA+4*i+2,2)}, v{VA} offset:{512*i+8}")
    a("s_waitcnt lgkmcnt(4)")
    for i in range(3, 8):
        a(f"ds_read_b64 {v(FA+4*i,2)}, v{VA} offset:{512*i}")
        a(f"ds_read_b64 {v(FA+4*i+2,2)}, v{VA} offset:{512*i+8}")
    for vv in range(8):
        a(f"v_mfma_f32_16x16x32_bf16 {v(CA+4*vv,4)}, {v(FA,4)}, {v(FB+4*vv,4)}, {v(CA+4*vv,4)}")
    lab = a.newlabel("noD")
    a(f"s_cmp_lg_u32 s86, 0")
    a(f"s_cbranch_scc1 {lab}")
    for vv in range(8):
        a(f"v_mfma_f32_16x16x32_bf16 {v(CA+4*vv,4)}, {v(AD,4)}, {v(FB+4*vv,4)}, {v(CA+4*vv,4)}")
    a.label(lab)
    a("s_waitcnt lgkmcnt(0)")
    for i in range(1, 8):
        for vv in range(8 - i):
            t = i + vv
            a(f"v_mfma_f32_16x16x32_bf16 {v(CA+4*t,4)}, {v(FA+4*i,4)}, {v(FB+4*vv,4)}, {v(CA+4*t,4)}")
    a(f"v_add_u32 v{VA}, 64, v{VA}")
    a(f"v_add_u32 v{VB}, 64, v{VB}")
    a(f"s_add_u32 s86, s86, 1")
    a(f"s_cmp_lt_u32 s86, 8")
    a(f"s_cbranch_scc1 {PL}")
    a(f"s_lshl_b32 s28, s{S_CH}, 12")
    a(f"s_add_u32 s28, s28, {YT_OFF}")
    a(f"v_and_b32 v{CT2}, 15, v1")
    a(f"v_lshlrev_b32 v{CT2}, 5, v{CT2}")
    a(f"v_lshrrev_b32 v{CT3}, 4, v1")
    a(f"v_lshlrev_b32 v{CT3}, 3, v{CT3}")
    a(f"v_add_u32 v{CT2}, v{CT2}, v{CT3}")
    a.nop(4)
    for t in range(8):
        a(f"v_cvt_pk_bf16_f32 v{FB+2*t}, v{CA+4*t}, v{CA+4*t+1}")
        a(f"v_cvt_pk_bf16_f32 v{FB+2*t+1}, v{CA+4*t+2}, v{CA+4*t+3}")
        a(f"buffer_store_dwordx2 {v(FB+2*t,2)}, v{CT2}, {R(SRD_WS)}, s28 offen offset:{512*t} sc1")

HEADER = """; gated_mix: fused single kernel (generated by dev/gen19.py, gen4 o-layout)
; @launch grid=(256,1,1) block=(768,1,1) lds=163840
.amdgcn_target "amdgcn-amd-amdhsa--gfx950"
.text
"""
if __name__ == "__main__":
    if len(sys.argv) > 2: OPT.update(sys.argv[2].split(","))
    a = Asm()
    gen(a)
    h = HEADER
    if STAMPS: h = h.replace(".amdgcn", "; STAMPS " + ",".join(STAMPS) + "\n.amdgcn")
    open(sys.argv[1], "w").write(h + a.text())
```

```python
import sys, struct
from asmlib import *

NAME = "gated_mix__ssm_conv_h3__grouped_kv_mqa__prompt"
KVF_OFF = 0
UR_OFF = 0x40000
YT_OFF = 0x2C0000
O_OFF = 0x540000
FL_OFF = 0x7C0000
H1 = FL_OFF
H2 = FL_OFF + 0x4000
H3 = FL_OFF + 0xC000
H4 = FL_OFF + 0x14000
ST_OFF = 0x800000
WS_USED = 0x900000
XB = 2048 * 640 * 2
QSCALE = (20 ** -0.5) * 1.4426950408889634
def f32bits(x): return struct.unpack("<I", struct.pack("<f", x))[0]
OPT = set()
POLL_MAX = 40000

SRD_X, SRD_WQ, SRD_WS, SRD_H = 4, 8, 12, 16
S_I, S_J, S_W, S_HH, S_G, S_NONCE, S_1280, S_ROT = 20, 21, 22, 23, 24, 25, 26, 27
SRD_K, SRD_V, SRD_SH, SRD_W, SRD_GW, SRD_WO, SRD_OUT, SRD_DBG = 44, 48, 52, 56, 60, 64, 68, 72
S_DPTR = 76
S_CH, S_NCH, S_CB = 83, 84, 85
SLOT = 36864
UT_K = 137472
UT_V = UT_K + 10720
UNIT_W = 131552
UNIT_S = 6656
QXA = 110592
QXB = QXA + 8192
GWL = 159744
GP = GWL + 1280
G_L = 162048
CNT = G_L + 256
C_FULL, C_DONE = CNT, CNT + 32
C_KVOK, C_UCNT, C_CVD = CNT + 68, CNT + 72, CNT + 80
C_UOK, C_YOK, C_OCNT, C_OOK = CNT + 84, CNT + 88, CNT + 92, CNT + 96
C_UTL, C_UTC, C_UP, C_C0C, C_C1C, C_QG, C_WOK = CNT + 100, CNT + 104, CNT + 108, CNT + 112, CNT + 116, CNT + 120, CNT + 124
C_CL = CNT + 128
C_QXF = CNT + 160
C_PROG = CNT + 192
C_PD = CNT + 228
C_WOKB = CNT + 232
C_LE, C_ST, C_PFL, C_QRD = CNT + 236, CNT + 240, CNT + 244, CNT + 248
C_LEB = CNT + 252
C_NONCE = CNT + 64
C_XF = CNT + 256
C_PF = CNT + 288
C_YW = CNT + 224
BLK = 3072
KVSLOT = 4 * BLK
RING_STRIDE = 2 * KVSLOT
CONVB = 49152
CHB = 21248
WOA = 56576
WOB = WOA + 51200
YL = 36864
DUMMY = 162688
OX = 0
OST = 12288
PX = 0
V_ST = 167
NVGPR = 168
T0, T1, T2, T3 = 2, 3, 164, 165

STAMPS = []
def stamp(a, name, real=False):
    if "stamp" not in OPT: return
    if "minst" in OPT and name not in ("rt0", "t0", "end", "rt1", "unitld", "loop0", "loopE"): return
    if name in STAMPS: idx = STAMPS.index(name)
    else:
        STAMPS.append(name); idx = len(STAMPS) - 1
    a(f"s_waitcnt lgkmcnt(0)")
    a(f"{'s_memrealtime' if real else 's_memtime'} s[98:99]")
    a(f"s_waitcnt lgkmcnt(0)")
    a(f"v_writelane_b32 v{V_ST}, s98, {idx}")
def stamp_flush(a):
    if "stamp" not in OPT: return
    a(f"s_mov_b64 exec, -1")
    a(f"s_mul_i32 s98, s2, 12")
    a(f"s_add_u32 s98, s98, s{S_W}")
    a(f"s_lshl_b32 s98, s98, 8")
    a(f"s_add_u32 s98, s98, {ST_OFF}")
    a(f"v_lshlrev_b32 v166, 2, v1")
    a(f"buffer_store_dword v{V_ST}, v166, s[{SRD_WS}:{SRD_WS+3}], s98 offen")
    a("s_waitcnt vmcnt(0)")

def R(b): return f"s[{b}:{b+3}]"

def poll_global(a, nload, check, sleep=1):
    lp = a.newlabel("poll"); dn = a.newlabel("pdone")
    a(f"s_mov_b32 s43, 0")
    a.label(lp)
    nload()
    a("s_waitcnt vmcnt(0)")
    check()
    a(f"s_cbranch_scc1 {dn}")
    a(f"s_add_u32 s43, s43, 1")
    a(f"s_cmp_lt_u32 s43, {POLL_MAX}")
    a(f"s_cbranch_scc0 {dn}")
    if sleep: a(f"s_sleep {sleep}")
    a(f"s_branch {lp}")
    a.label(dn)

def flags_check(a, vt, n):
    if n == 4:
        for k in range(4): a(f"v_xor_b32 v{vt+k}, s{S_NONCE}, v{vt+k}")
        a(f"v_or_b32 v{vt}, v{vt}, v{vt+1}")
        a(f"v_or_b32 v{vt+2}, v{vt+2}, v{vt+3}")
        a(f"v_or_b32 v{vt}, v{vt}, v{vt+2}")
        a(f"v_cmp_ne_u32 vcc, 0, v{vt}")
    else:
        a(f"v_cmp_ne_u32 vcc, s{S_NONCE}, v{vt}")
    a(f"s_nop 1")
    a(f"s_and_b64 vcc, vcc, s[40:41]")
    a(f"s_cmp_eq_u64 vcc, 0")
def poll_flags(a, vaddr, soff, lanes_mask, vt, n=1, sleep=1):
    def ld():
        if n == 1: a(f"buffer_load_dword v{vt}, v{vaddr}, {R(SRD_WS)}, {soff} offen sc1")
        else: a(f"buffer_load_dwordx4 {v(vt,4)}, v{vaddr}, {R(SRD_WS)}, {soff} offen sc1")
    a(f"s_mov_b32 s40, {lanes_mask & 0xffffffff}")
    a(f"s_mov_b32 s41, {(lanes_mask >> 32) & 0xffffffff}")
    poll_global(a, ld, lambda: flags_check(a, vt, n), sleep)

def poll_flags_pipe(a, vaddr, soff, lanes_mask, vbase, n=1, sleep=6, depth=3):
    def ld(k):
        if n == 1: a(f"buffer_load_dword v{vbase+k}, v{vaddr}, {R(SRD_WS)}, {soff} offen sc1")
        else: a(f"buffer_load_dwordx4 {v(vbase+4*k,4)}, v{vaddr}, {R(SRD_WS)}, {soff} offen sc1")
    a(f"s_mov_b32 s40, {lanes_mask & 0xffffffff}")
    a(f"s_mov_b32 s41, {(lanes_mask >> 32) & 0xffffffff}")
    a(f"s_mov_b32 s43, 0")
    for k in range(depth):
        ld(k)
        if k < depth - 1: a(f"s_sleep {sleep}")
    lp = a.newlabel("pp"); dn = a.newlabel("ppd")
    a.label(lp)
    for k in range(depth):
        a(f"s_waitcnt vmcnt({depth-1})")
        flags_check(a, vbase + k*n, n)
        a(f"s_cbranch_scc1 {dn}")
        ld(k)
        a(f"s_sleep {sleep}")
    a(f"s_add_u32 s43, s43, 1")
    a(f"s_cmp_lt_u32 s43, {POLL_MAX}")
    a(f"s_cbranch_scc1 {lp}")
    a.label(dn)

def lds_wait_ge(a, target, vt, vaddr, sleep=1):
    lp = a.newlabel("lw"); dn = a.newlabel("lwd")
    a(f"s_mov_b32 s43, 0")
    a.label(lp)
    a(f"ds_read_b32 v{vt}, v{vaddr}")
    a("s_waitcnt lgkmcnt(0)")
    a(f"v_readfirstlane_b32 s42, v{vt}")
    a("s_nop 3")
    a(f"s_cmp_ge_u32 s42, {target}")
    a(f"s_cbranch_scc1 {dn}")
    a(f"s_add_u32 s43, s43, 1")
    a(f"s_cmp_lt_u32 s43, {POLL_MAX * 8}")
    a(f"s_cbranch_scc0 {dn}")
    if sleep: a(f"s_sleep {sleep}")
    a(f"s_branch {lp}")
    a.label(dn)
def lds_wait_imm(a, addr, target, vt=T1, va=T0, sleep=1):
    a(f"v_mov_b32 v{va}, {addr}")
    lds_wait_ge(a, target, vt, va, sleep)
def lds_add1(a, vaddr, vone):
    a("s_mov_b64 exec, 1")
    a(f"ds_add_u32 v{vaddr}, v{vone}")
    a("s_mov_b64 exec, -1")
def lds_add1_imm(a, addr, va=T0, vo=T1):
    a(f"v_mov_b32 v{va}, {addr}")
    a(f"v_mov_b32 v{vo}, 1")
    lds_add1(a, va, vo)
def if_s(a, sreg, cmp, val, fn):
    lb = a.newlabel("ifw")
    inv = {"eq": "lg", "lt": "ge", "ge": "lt", "lg": "eq"}[cmp]
    a(f"s_cmp_{inv}_u32 s{sreg}, {val}")
    a(f"s_cbranch_scc1 {lb}")
    fn()
    a.label(lb)
def if_wave(a, cmp, val, fn): if_s(a, S_W, cmp, val, fn)

def chunk_phys(a, k):
    a(f"s_add_u32 s94, s97, {k}")
    a(f"s_sub_u32 s92, s94, 5")
    a(f"s_cmp_ge_u32 s94, 5")
    a(f"s_cselect_b32 s94, s92, s94")
    a(f"s_lshl_b32 s92, s94, 8")
    a(f"s_mul_i32 s93, s94, 163840")

def div10(a, p, q, r, t):
    a(f"v_mul_u32_u24 v{q}, 6554, v{p}")
    a(f"v_lshrrev_b32 v{q}, 16, v{q}")
    a(f"v_mul_u32_u24 v{t}, 10, v{q}")
    a(f"v_sub_u32 v{r}, v{p}, v{t}")

def gen(a):
    name = NAME + "_kernel"
    a.L.append(kernel_header(name))
    END = "f_end"
    a(f"s_cmp_ge_u32 s2, 256")
    a(f"s_cbranch_scc1 {END}")
    a(f"s_load_dwordx16 s[76:91], s[0:1], 0")
    a(f"s_load_dwordx8 s[92:99], s[0:1], 64")
    a(f"s_load_dwordx4 s[28:31], s[0:1], 96")
    a(f"s_load_dwordx2 s[32:33], s[0:1], 112")
    a(f"v_lshrrev_b32 v1, 6, v0")
    a(f"s_and_b32 s{S_I}, s2, 7")
    a(f"s_lshl_b32 s{S_I}, s{S_I}, 2")
    a(f"s_lshr_b32 s{S_J}, s2, 6")
    a(f"s_add_u32 s{S_I}, s{S_I}, s{S_J}")
    a(f"s_lshr_b32 s{S_J}, s2, 3")
    a(f"s_and_b32 s{S_J}, s{S_J}, 7")
    a(f"v_readfirstlane_b32 s{S_W}, v1")
    a(f"v_and_b32 v1, 63, v0")
    a(f"s_movk_i32 s{S_1280}, 1280")
    a(f"s_add_u32 s{S_ROT}, s{S_I}, s{S_J}")
    a(f"s_and_b32 s{S_ROT}, s{S_ROT}, 7")
    a(f"s_and_b32 s{S_HH}, s{S_W}, 3")
    a(f"s_lshr_b32 s{S_G}, s{S_W}, 2")
    V_XD, V_WD, V_UST = 112, 113, 111
    HR = 116
    a(f"s_mul_i32 s37, s{S_I}, 3")
    a(f"s_lshl_b32 s34, s{S_I}, 1")
    a(f"s_add_u32 s34, s34, 16")
    a(f"s_cmp_lt_u32 s{S_I}, 16")
    a(f"s_cselect_b32 s35, s37, s34")
    a(f"s_cselect_b32 s36, 3, 2")
    a(f"s_mul_i32 s34, s{S_J}, 80")
    a(f"s_add_u32 s35, s35, s34")
    a(f"s_sub_u32 s38, s{S_W}, 9")
    a(f"s_add_u32 s35, s35, s38")
    a("s_waitcnt lgkmcnt(0)")
    srd(a, SRD_X, 76, XB)
    a(f"s_cmp_ge_u32 s{S_J}, 4")
    a(f"s_cselect_b32 s{SRD_W}, s94, s92")
    a(f"s_cselect_b32 s{SRD_W+1}, s95, s93")
    a(f"s_mov_b32 s{SRD_W+2}, 25600")
    a(f"s_mov_b32 s{SRD_W+3}, 0x00020000")
    srd(a, SRD_K, 78, XB)
    srd(a, SRD_V, 80, XB)
    srd(a, SRD_SH, 82, 640 * 4 * 2)
    srd(a, SRD_WS, 32, WS_USED)
    srd(a, SRD_DBG, 30, 256)
    srd(a, SRD_WQ, 90, 640 * 640 * 2)
    srd(a, SRD_GW, 98, 1280)
    srd(a, SRD_H, 84, XB)
    srd(a, SRD_WO, 96, 640 * 640 * 2)
    srd(a, SRD_OUT, 28, XB)
    a(f"s_mov_b32 s{S_DPTR}, s86")
    a(f"s_mov_b32 s{S_DPTR+1}, s87")
    a(f"s_mov_b32 s{S_CH}, s35")
    a(f"s_mov_b32 s{S_NCH}, s36")
    a(f"s_mul_i32 s{S_CB}, s38, {CHB}")
    a(f"s_add_u32 s{S_CB}, s{S_CB}, {CONVB}")
    a(f"s_add_u32 s97, s{S_I}, s{S_J}")
    a(f"s_mul_i32 s96, s97, 52")
    a(f"s_lshr_b32 s96, s96, 8")
    a(f"s_mul_i32 s96, s96, 5")
    a(f"s_sub_u32 s97, s97, s96")
    if "norot" in OPT: a(f"s_mov_b32 s97, 0")
    if "stamp" in OPT: a(f"v_mov_b32 v{V_ST}, 0")
    stamp(a, "rt0", True); stamp(a, "t0")
    PSTART = "f_pstart"
    a(f"s_cmp_eq_u32 s{S_W}, 8")
    a(f"s_cbranch_scc1 {PSTART}")
    a(f"s_cmp_gt_u32 s{S_W}, 8")
    a(f"s_cbranch_scc1 f_lstart")

    XF, UACC, WFA, SH = 16, 4, 44, 36
    def unit_loads():
        a("s_setprio 2")
        a(f"s_and_b32 s28, s{S_J}, 3")
        a(f"s_lshl_b32 s28, s28, 4")
        a(f"s_lshl_b32 s29, s{S_I}, 6")
        a(f"s_add_u32 s28, s28, s29")
        a(f"v_and_b32 v{T0}, 15, v1")
        a(f"v_add_u32 v{T0}, s28, v{T0}")
        a(f"v_mul_lo_u32 v{T0}, v{T0}, s{S_1280}")
        a(f"v_lshrrev_b32 v{T1}, 4, v1")
        a(f"v_lshlrev_b32 v{T2}, 4, v{T1}")
        a(f"v_add_u32 v{T0}, v{T0}, v{T2}")
        a(f"s_mul_i32 s29, s{S_W}, 320")
        for s_ in range(5):
            a(f"buffer_load_dwordx4 {v(XF+4*s_,4)}, v{T0}, {R(SRD_X)}, s29 offen offset:{64*s_}")
        a(f"v_lshlrev_b32 v{T2}, 4, v1")
        a(f"s_mul_i32 s29, s{S_W}, 6400")
        a(f"s_mul_i32 s30, s{S_W}, {UNIT_S}")
        for q in range(7):
            a(f"s_add_u32 m0, s30, {UNIT_W + 1024*q}")
            a(f"s_add_u32 s31, s29, {1024*q}")
            if q == 6: a(f"s_mov_b64 exec, 0xffffffff")
            a(f"buffer_load_dwordx4 v{T2}, {R(SRD_W)}, s31 offen lds")
        a(f"s_mov_b64 exec, -1")
        a("s_setprio 0")
    if_wave(a, "lt", 4, unit_loads)
    a(f"v_lshrrev_b32 v{T0}, 4, v1")
    a(f"s_lshl_b32 s28, s{S_W}, 2")
    a(f"v_add_u32 v{T0}, s28, v{T0}")
    a(f"v_xor_b32 v{T1}, v1, v{T0}")
    a(f"v_and_b32 v{T1}, 15, v{T1}")
    a(f"v_lshlrev_b32 v{T1}, 4, v{T1}")
    a(f"s_lshl_b32 s28, s{S_I}, 6")
    a(f"v_add_u32 v{T0}, s28, v{T0}")
    a(f"v_mul_lo_u32 v{T0}, v{T0}, s{S_1280}")
    a(f"v_add_u32 v{V_XD}, v{T0}, v{T1}")
    a(f"s_mul_i32 s29, s{S_J}, 160")
    a(f"s_lshl_b32 s28, s{S_W}, 6")
    for t in range(3):
        a(f"v_add_u32 v{T0}, s28, v1")
        if t: a(f"v_add_u32 v{T0}, {512*t}, v{T0}")
        div10(a, T0, T1, T0, T2)
        a(f"v_lshlrev_b32 v{T0}, 4, v{T0}")
        a(f"v_and_b32 v{T2}, 0xfff8, v{T1}")
        a(f"v_bfe_u32 v{T3}, v{T1}, 1, 2")
        a(f"v_or_b32 v{T2}, v{T2}, v{T3}")
        a(f"v_and_b32 v{T1}, 1, v{T1}")
        a(f"v_lshlrev_b32 v{T1}, 2, v{T1}")
        a(f"v_or_b32 v{T2}, v{T2}, v{T1}")
        a(f"v_mul_lo_u32 v{T2}, v{T2}, s{S_1280}")
        a(f"v_add_u32 v{T2}, v{T2}, v{T0}")
        a(f"v_add_u32 v{V_WD+t}, s29, v{T2}")
    def dma_chunk(ch, slot):
        base = slot * SLOT
        chunk_phys(a, ch)
        a(f"s_lshl_b32 s28, s{S_W}, 10")
        for t in range(2):
            a(f"s_add_u32 m0, s28, {base + 8192*t}")
            a(f"s_add_u32 s29, s92, {32*1280*t}")
            a(f"buffer_load_dwordx4 v{V_XD}, {R(SRD_X)}, s29 offen lds")
        a(f"s_mov_b32 s29, s93")
        for t in range(3):
            def one(t=t):
                a(f"s_add_u32 m0, s28, {base + 16384 + 8192*t}")
                a(f"s_nop 0")
                a(f"buffer_load_dwordx4 v{V_WD+t}, {R(SRD_WQ)}, s29 offen lds")
            if t < 2: one()
            else: if_wave(a, "lt", 4, one)
    def wait_vm(nA, nB):
        la = a.newlabel("wa"); lb = a.newlabel("wb")
        a(f"s_cmp_lt_u32 s{S_W}, 4")
        a(f"s_cbranch_scc1 {la}")
        a(f"s_waitcnt vmcnt({nB})")
        a(f"s_branch {lb}")
        a.label(la)
        a(f"s_waitcnt vmcnt({nA})")
        a.label(lb)
    NA, NB = 5, 4
    def gw():
        a(f"s_mul_i32 s28, s{S_HH}, 320")
        a(f"s_add_u32 m0, s28, {GWL}")
        a(f"v_lshlrev_b32 v{T0}, 4, v1")
        a(f"s_mov_b64 exec, 0xfffff")
        a(f"buffer_load_dwordx4 v{T0}, {R(SRD_GW)}, s28 offen lds")
        a(f"s_mov_b64 exec, -1")
    if_wave(a, "ge", 4, gw)
    dma_chunk(0, 0); dma_chunk(1, 1)
    a("s_barrier")
    def unit_compute():
        a(f"v_lshrrev_b32 v{T1}, 4, v1")
        a(f"v_bfe_u32 v{T2}, v1, 2, 2")
        a(f"v_lshlrev_b32 v{T1}, 3, v{T1}")
        a(f"v_add_u32 v{T2}, v{T2}, v{T1}")
        a(f"v_mul_u32_u24 v{T2}, 40, v{T2}")
        a(f"v_and_b32 v{T3}, 3, v1")
        a(f"v_lshlrev_b32 v{T3}, 3, v{T3}")
        a(f"v_add_u32 v{T2}, v{T2}, v{T3}")
        a(f"s_mul_i32 s30, s{S_W}, {UNIT_S}")
        a(f"s_add_u32 s30, s30, {UNIT_W}")
        a(f"v_add_u32 v{T2}, s30, v{T2}")
        for r in range(8): a(f"v_mov_b32 v{UACC+r}, 0")
        a(f"s_waitcnt vmcnt({2*NA})")
        stamp(a, "unitld")
        for s_ in range(5):
            for dt in range(2):
                for jj in range(2):
                    a(f"ds_read_b64_tr_b16 {v(WFA+8*s_+4*dt+2*jj,2)}, v{T2} offset:{1280*s_ + 160*jj + 32*dt}")
            if s_ == 2: a("s_waitcnt lgkmcnt(4)")
        labV = a.newlabel("kindV"); labD = a.newlabel("kindD")
        a("s_waitcnt lgkmcnt(0)")
        a(f"s_cmp_ge_u32 s{S_J}, 4")
        a(f"s_cbranch_scc1 {labV}")
        for kind in range(2):
            for s_ in range(5):
                for dt in range(2):
                    w_ = v(WFA+8*s_+4*dt, 4); x_ = v(XF+4*s_, 4)
                    A_, B_ = (w_, x_) if kind == 0 else (x_, w_)
                    a(f"v_mfma_f32_16x16x32_bf16 {v(UACC+4*dt,4)}, {A_}, {B_}, {v(UACC+4*dt,4)}")
            if kind == 0:
                a(f"s_branch {labD}")
                a.label(labV)
        a.label(labD)
        a.nop(8)
        a(f"s_mul_i32 s29, s{S_W}, {UNIT_S}")
        a(f"s_add_u32 s29, s29, {UNIT_W}")
        a(f"v_lshlrev_b32 v{T0}, 4, v1")
        a(f"v_add_u32 v{T1}, s29, v{T0}")
        a(f"ds_write_b128 v{T1}, {v(UACC,4)}")
        a(f"ds_write_b128 v{T1}, {v(UACC+4,4)} offset:1024")
        lds_add1_imm(a, C_UP)
    if_wave(a, "lt", 4, unit_compute)
    V_XA, V_WA, V_GWA, V_QXP = 24, 32, 33, 34
    QACC, GACC, GW, QXF, QWF = 44, 60, 76, 84, 96
    a(f"v_and_b32 v{T0}, 31, v1")
    a(f"s_lshl_b32 s28, s{S_G}, 5")
    a(f"v_add_u32 v{T0}, s28, v{T0}")
    a(f"v_lshrrev_b32 v{T1}, 5, v1")
    a(f"v_and_b32 v{T2}, 15, v{T0}")
    a(f"v_xor_b32 v{T2}, v{T2}, v{T1}")
    a(f"v_lshlrev_b32 v{T2}, 4, v{T2}")
    a(f"v_lshlrev_b32 v{T0}, 8, v{T0}")
    a(f"v_add_u32 v{V_XA}, v{T0}, v{T2}")
    for s_ in range(1, 8): a(f"v_xor_b32 v{V_XA+s_}, {32*s_}, v{V_XA}")
    a(f"v_bfe_u32 v{T0}, v1, 2, 2")
    a(f"v_lshlrev_b32 v{T0}, 1, v{T0}")
    a(f"v_lshlrev_b32 v{T2}, 3, v{T1}")
    a(f"v_add_u32 v{T0}, v{T0}, v{T2}")
    a(f"v_mul_u32_u24 v{T0}, 160, v{T0}")
    a(f"v_and_b32 v{T2}, 3, v1")
    a(f"v_lshlrev_b32 v{T2}, 3, v{T2}")
    a(f"v_and_b32 v{T3}, 16, v1")
    a(f"v_cmp_ne_u32 vcc, 0, v{T3}")
    a(f"s_mul_i32 s28, s{S_HH}, 40")
    a(f"s_add_u32 s28, s28, 16384")
    a(f"v_mov_b32 v{T3}, 32")
    a(f"v_cndmask_b32 v{T2}, v{T2}, v{T3}, vcc")
    a(f"v_add_u32 v{T0}, v{T0}, v{T2}")
    a(f"v_add_u32 v{V_WA}, s28, v{T0}")
    for r in range(16):
        a(f"v_mov_b32 v{QACC+r}, 0"); a(f"v_mov_b32 v{GACC+r}, 0")
    a(f"v_lshlrev_b32 v{T1}, 4, v{T1}")
    a(f"s_lshl_b32 s28, s{S_HH}, 5")
    a(f"s_add_u32 s28, s28, {GWL}")
    a(f"v_add_u32 v{V_GWA}, s28, v{T1}")
    def q_chunk(ch, slot):
        off = (slot & 1) * SLOT
        def loads(s_):
            b = s_ % 3
            a(f"ds_read_b128 {v(QXF+4*b,4)}, v{V_XA+s_} offset:{off}")
            a(f"ds_read_b64_tr_b16 {v(QWF+4*b,2)}, v{V_WA} offset:{off + 2560*s_}")
            a(f"ds_read_b64_tr_b16 {v(QWF+4*b+2,2)}, v{V_WA} offset:{off + 2560*s_ + 160}")
        chunk_phys(a, ch)
        a(f"v_add_u32 v{T0}, s92, v{V_GWA}")
        a(f"ds_read_b128 {v(GW,4)}, v{T0}")
        a(f"ds_read_b128 {v(GW+4,4)}, v{T0} offset:128")
        loads(0); loads(1)
        for s_ in range(8):
            if s_ < 6:
                loads(s_+2); a("s_waitcnt lgkmcnt(6)")
            elif s_ == 6: a("s_waitcnt lgkmcnt(3)")
            else: a("s_waitcnt lgkmcnt(0)")
            b = s_ % 3
            a(f"v_mfma_f32_32x32x16_bf16 {v(QACC,16)}, {v(QWF+4*b,4)}, {v(QXF+4*b,4)}, {v(QACC,16)}")
            lg = a.newlabel("ng")
            a(f"s_cmp_lg_u32 s{S_HH}, {s_ & 3}")
            a(f"s_cbranch_scc1 {lg}")
            a(f"v_mfma_f32_32x32x16_bf16 {v(GACC,16)}, {v(GW+4*(s_>>2),4)}, {v(QXF+4*b,4)}, {v(GACC,16)}")
            a.label(lg)
    def bump(delta):
        op = "v_add_u32" if delta > 0 else "v_subrev_u32"
        for s_ in range(8): a(f"{op} v{V_XA+s_}, {abs(delta)}, v{V_XA+s_}")
        a(f"{op} v{V_WA}, {abs(delta)}, v{V_WA}")
    SF, SG = 16, 32
    P = 48
    OF, OG = 56, 72
    K16, K8, V0, V1 = 88, 92, 96, 100
    AK16, AK8, AV, AK16N, AK8N, AVN = 104, 105, 106, 107, 108, 109
    V_L16, V_ONE, V_CFW, V_CD, V_KW, V_CT = 110, 111, 112, 113, 114, 115
    KVST, KVST2 = 116, 16
    V_CFR = 128
    V_STG, V_OL0, V_OG0, V_OL1, V_OG1, V_OUT, V_WT, V_YT, V_GA, V_PX, V_TL16 = range(129, 140)
    QT, YS = 140, 150
    S_T, S_BLK, S_SLOT, S_NXT, S_FT, S_DT = 34, 35, 36, 37, 38, 39
    S_RB, S_M2, S_P1, S_DL, S_WB = 78, 79, 80, 81, 82
    S_CFB, S_CA, S_CBB = 89, 90, 91
    def tail_addrs():
        a(f"v_lshlrev_b32 v{V_TL16}, 4, v1")
        a(f"v_and_b32 v{T0}, 31, v1")
        a(f"v_mul_u32_u24 v{T0}, 160, v{T0}")
        a(f"v_lshrrev_b32 v{T1}, 5, v1")
        a(f"v_lshlrev_b32 v{T1}, 3, v{T1}")
        a(f"v_add_u32 v{T0}, v{T0}, v{T1}")
        a(f"s_mul_i32 s28, s{S_HH}, 40")
        a(f"s_mul_i32 s29, s{S_G}, 5120")
        a(f"s_add_u32 s28, s28, s29")
        a(f"s_add_u32 s28, s28, {OST}")
        a(f"v_add_u32 v{V_STG}, s28, v{T0}")
        for t, (vl, vg) in enumerate(((V_OL0, V_OG0), (V_OL1, V_OG1))):
            a(f"s_add_u32 s28, s{S_W}, {8*t}")
            a(f"s_lshl_b32 s28, s28, 2")
            a(f"v_lshrrev_b32 v{T0}, 4, v1")
            a(f"v_add_u32 v{T0}, s28, v{T0}")
            div10(a, T0, T1, T0, T2)
            a(f"v_and_b32 v{T2}, 15, v1")
            a(f"v_lshl_add_u32 v{T3}, v{T1}, 4, v{T2}")
            a(f"v_mul_u32_u24 v{T3}, 160, v{T3}")
            a(f"v_lshl_add_u32 v{vl}, v{T0}, 4, v{T3}")
            a(f"v_add_u32 v{vl}, {OST}, v{vl}")
            a(f"v_mul_u32_u24 v{T1}, 20480, v{T1}")
            a(f"v_lshl_add_u32 v{T1}, v{T0}, 8, v{T1}")
            a(f"v_lshl_add_u32 v{vg}, v{T2}, 4, v{T1}")
        a(f"v_and_b32 v{T0}, 15, v1")
        a(f"s_lshl_b32 s29, s{S_HH}, 4")
        a(f"s_lshl_b32 s28, s{S_I}, 6")
        a(f"s_add_u32 s28, s28, s29")
        a(f"v_add_u32 v{T1}, s28, v{T0}")
        a(f"v_mul_lo_u32 v{T1}, v{T1}, s{S_1280}")
        a(f"v_lshrrev_b32 v{T2}, 4, v1")
        a(f"v_lshlrev_b32 v{T3}, 3, v{T2}")
        a(f"v_add_u32 v{T1}, v{T1}, v{T3}")
        a(f"s_mul_i32 s28, s{S_J}, 160")
        a(f"v_add_u32 v{V_OUT}, s28, v{T1}")
        a(f"v_lshlrev_b32 v{T0}, 2, v{T0}")
        a(f"s_lshl_b32 s28, s{S_HH}, 6")
        a(f"s_add_u32 s28, s28, {G_L}")
        a(f"v_add_u32 v{V_GA}, s28, v{T0}")
        a(f"v_lshrrev_b32 v{T0}, 5, v1")
        a(f"v_lshlrev_b32 v{T0}, 4, v{T0}")
        a(f"v_bfe_u32 v{T1}, v1, 4, 1")
        a(f"v_lshlrev_b32 v{T1}, 2, v{T1}")
        a(f"v_add_u32 v{T0}, v{T0}, v{T1}")
        a(f"v_bfe_u32 v{T1}, v1, 2, 2")
        a(f"v_add_u32 v{T0}, v{T0}, v{T1}")
        a(f"v_mul_u32_u24 v{T0}, 160, v{T0}")
        a(f"v_and_b32 v{T1}, 3, v1")
        a(f"v_lshlrev_b32 v{T1}, 3, v{T1}")
        a(f"v_add_u32 v{T0}, v{T0}, v{T1}")
        a(f"s_mul_i32 s28, s{S_G}, 51200")
        a(f"s_add_u32 s28, s28, {WOA}")
        a(f"v_add_u32 v{V_WT}, s28, v{T0}")
        a(f"v_bfe_u32 v{T0}, v1, 2, 4")
        a(f"v_lshlrev_b32 v{T0}, 7, v{T0}")
        a(f"v_add_u32 v{T0}, v{T0}, v{T1}")
        a(f"s_lshl_b32 s28, s{S_HH}, 5")
        a(f"s_add_u32 s28, s28, {YL}")
        a(f"v_add_u32 v{V_YT}, s28, v{T0}")
        a(f"s_mul_i32 s28, s{S_W}, 3072")
        a(f"s_add_u32 s28, s28, {PX}")
        a(f"v_add_u32 v{V_PX}, s28, v{V_TL16}")
    def ring_addrs():
        a(f"s_mul_i32 s{S_RB}, s{S_G}, {RING_STRIDE}")
        a(f"v_lshlrev_b32 v{V_L16}, 4, v1")
        a(f"v_mov_b32 v{V_ONE}, 1")
        a(f"s_lshl_b32 s28, s{S_G}, 4")
        a(f"s_add_u32 s{S_CFB}, s28, {C_FULL}")
        a(f"s_mul_i32 s29, s{S_HH}, {BLK}")
        a(f"s_add_u32 s{S_WB}, s{S_RB}, s29")
        a(f"v_add_u32 v{AK16}, s{S_RB}, v{V_L16}")
        a(f"v_and_b32 v{T0}, 31, v1")
        a(f"v_lshlrev_b32 v{T1}, 3, v{T0}")
        a(f"v_add_u32 v{T1}, 1024, v{T1}")
        a(f"v_mov_b32 v{AK8}, 1280")
        a(f"v_cmp_gt_u32 vcc, 32, v1")
        a(f"v_min_u32 v{T2}, 20, v{T0}")
        a(f"v_subrev_u32 v{AV}, 16, v{T0}")
        a(f"v_cndmask_b32 v{AK8}, v{AK8}, v{T1}, vcc")
        a(f"v_add_u32 v{AK8}, s{S_RB}, v{AK8}")
        a(f"v_cmp_lt_u32 vcc, 27, v{T0}")
        a.nop(2)
        a(f"v_cndmask_b32 v{T2}, v{T2}, v{AV}, vcc")
        a(f"v_lshlrev_b32 v{T2}, 4, v{T2}")
        a(f"v_lshrrev_b32 v{AV}, 5, v1")
        a(f"v_mul_u32_u24 v{AV}, 336, v{AV}")
        a(f"v_add_u32 v{AV}, v{AV}, v{T2}")
        a(f"v_add_u32 v{AV}, 1296, v{AV}")
        a(f"v_add_u32 v{AV}, s{S_RB}, v{AV}")
        a(f"v_lshlrev_b32 v{T0}, 2, v1")
        a(f"v_add_u32 v{T0}, {DUMMY}, v{T0}")
        a(f"v_mov_b32 v{T1}, s{S_CFB}")
        a(f"v_cmp_eq_u32 vcc, 0, v1")
        a.nop(2)
        a(f"v_cndmask_b32 v{V_CFW}, v{T0}, v{T1}, vcc")
        a(f"v_add_u32 v{V_KW}, s{S_WB}, v{V_L16}")
        a(f"s_lshl_b32 s28, s{S_W}, 2")
        a(f"s_add_u32 s29, s28, {C_PROG}")
        a(f"v_mov_b32 v{T1}, s29")
        a(f"v_cndmask_b32 v150, v{T0}, v{T1}, vcc")
        a(f"s_xor_b32 s28, s28, 16")
        a(f"s_add_u32 s28, s28, {C_PROG}")
        a(f"v_mov_b32 v151, s28")
    def blk_off(t, g=None):
        a(f"s_add_u32 s28, s{S_ROT}, {t}")
        a(f"s_and_b32 s28, s28, 7")
        a(f"s_lshl_b32 s28, s28, 2")
        if g is None:
            a(f"s_lshl_b32 s29, s{S_G}, 5")
            a(f"s_add_u32 s28, s28, s29")
        elif g: a(f"s_add_u32 s28, s28, {32*g}")
        a(f"s_add_u32 s28, s28, s{S_HH}")
        a(f"s_mul_i32 s{S_BLK}, s28, 3072")
    def kv_load(dst):
        for q in range(3):
            a(f"buffer_load_dwordx4 {v(dst+4*q,4)}, v{V_L16}, {R(SRD_WS)}, s{S_BLK} offen offset:{1024*q} sc1")
    def kv_write(src, off=0):
        for q in range(3): a(f"ds_write_b128 v{V_KW}, {v(src+4*q,4)} offset:{off + 1024*q}")
    def wait_chunk(ch):
        if ch < 2:
            if ch == 0: wait_vm(NA, NB)
            else: a("s_waitcnt vmcnt(0)")
            lds_add1_imm(a, C_CL + 4*ch)
            lds_wait_imm(a, C_CL + 4*ch, 8, sleep=0)
        else:
            lds_wait_imm(a, C_CL + 4*ch, 3, sleep=1)
        stamp(a, f"cl{ch}")
    wait_chunk(0)
    q_chunk(0, 0)
    lds_add1_imm(a, C_C0C)
    wait_chunk(1)
    q_chunk(1, 1)
    lds_add1_imm(a, C_C1C)
    tail_addrs()
    bump(2 * SLOT)
    wait_chunk(2)
    q_chunk(2, 2)
    bump(-2 * SLOT)
    wait_chunk(3)
    q_chunk(3, 0)
    wait_chunk(4)
    q_chunk(4, 1)
    lds_add1_imm(a, C_QRD)
    stamp(a, "qdone")

    QF16, QF8, QG16, QG8 = 4, 8, 10, 14
    ring_addrs()
    a(f"s_lshl_b32 s28, s{S_W}, 10")
    a(f"v_lshlrev_b32 v{T2}, 4, v1")
    a(f"v_add_u32 v{T2}, s28, v{T2}")
    a(f"v_lshrrev_b32 v{T3}, 1, v{T2}")
    a(f"v_xor_b32 v{V_QXP}, 4096, v{T2}")
    a(f"v_xor_b32 v{V_QXP+1}, 2048, v{T3}")
    a(f"v_add_u32 v{T2}, {QXA}, v{T2}")
    a(f"v_add_u32 v{T3}, {QXB}, v{T3}")
    a(f"v_add_u32 v{V_QXP}, {QXA}, v{V_QXP}")
    a(f"v_add_u32 v{V_QXP+1}, {QXB}, v{V_QXP+1}")
    a(f"s_mov_b32 s28, {hex(f32bits(QSCALE))}")
    for r in range(12): a(f"v_mul_f32 v{QACC+r}, s28, v{QACC+r}")
    a(f"v_cmp_gt_u32 vcc, 32, v1")
    for r in range(4): a(f"v_cvt_pk_bf16_f32 v{QF16+r}, v{QACC+2*r}, v{QACC+2*r+1}")
    for r in range(2): a(f"v_cvt_pk_bf16_f32 v{QF8+r}, v{QACC+8+2*r}, v{QACC+8+2*r+1}")
    a(f"ds_write_b128 v{T2}, {v(QF16,4)}")
    for r in range(2): a(f"v_cndmask_b32 v{QF8+r}, 0, v{QF8+r}, vcc")
    a(f"s_lshl_b32 s28, s{S_W}, 7")
    a(f"s_add_u32 s28, s28, {GP}")
    a(f"v_lshlrev_b32 v{T1}, 2, v1")
    a(f"v_add_u32 v{T1}, s28, v{T1}")
    a(f"ds_write_b64 v{T3}, {v(QF8,2)}")
    a(f"s_mov_b64 exec, 0xffffffff")
    a(f"ds_write_b32 v{T1}, v{GACC}")
    a(f"s_mov_b64 exec, -1")
    a(f"s_lshl_b32 s28, s{S_W}, 2")
    a(f"s_add_u32 s29, s28, {C_QXF}")
    a(f"v_mov_b32 v{T0}, s29")
    lds_add1(a, T0, V_ONE)
    a(f"s_xor_b32 s28, s28, 16")
    a(f"s_add_u32 s28, s28, {C_QXF}")
    a(f"v_mov_b32 v{T0}, s28")
    for r in range(16):
        a(f"v_mov_b32 v{OF+r}, 0"); a(f"v_mov_b32 v{OG+r}, 0")
    for r in range(8): a(f"v_mov_b32 v{P+r}, 0")
    for r in range(4): a(f"v_mov_b32 v{V1+r}, 0")
    for r in range(12, 16): a(f"v_mov_b32 v{SG+r}, 0")
    lds_wait_ge(a, 1, T1, T0, sleep=0)
    a(f"ds_read_b128 {v(QG16,4)}, v{V_QXP}")
    a(f"ds_read_b64 {v(QG8,2)}, v{V_QXP+1}")
    a("s_waitcnt lgkmcnt(0)")
    lds_add1_imm(a, C_QG)
    stamp(a, "qg")
    lds_wait_ge(a, 1, V_CT, V_CFW, sleep=1)
    stamp(a, "full0")
    a(f"ds_read_b128 {v(K16,4)}, v{AK16}")
    a(f"ds_read_b64 {v(K8,2)}, v{AK8}")
    a(f"ds_read_b128 {v(V0,4)}, v{AV}")
    a("s_waitcnt lgkmcnt(0)")
    a(f"v_mfma_f32_32x32x16_bf16 {v(SF,16)}, {v(K16,4)}, {v(QF16,4)}, 0")
    a(f"v_mfma_f32_32x32x8_bf16 {v(SF,16)}, {v(K8,2)}, {v(QF8,2)}, {v(SF,16)}")
    S_U, S_B1, S_B2, S_PR = 34, 36, 37, 80
    a(f"s_mov_b32 s{S_U}, 0")
    a(f"s_mov_b32 s{S_B1}, 1")
    a(f"s_mov_b32 s{S_B2}, 2")
    a(f"s_mov_b32 s{S_PR}, 0")
    V_PG, V_PGP, V_PT = 150, 151, 128
    for mt in range(5):
        a(f"buffer_load_dwordx2 {v(QT+2*mt,2)}, v{V_OUT}, {R(SRD_X)}, 0 offen offset:{32*mt}")
    a("s_setprio 1")
    stamp(a, "loop0")
    LOOP = "f_attn"
    if "align" in OPT: a(".p2align 6")
    a.label(LOOP)
    e = lambda S, i: a(f"v_exp_f32 v{S+i}, v{S+i}")
    c = lambda S, i: a(f"v_cvt_pk_bf16_f32 v{P+i}, v{S+2*i}, v{S+2*i+1}")
    def check_cnt(target, off):
        ok = a.newlabel("ok"); lp = a.newlabel("rt")
        a(f"v_readfirstlane_b32 s42, v{V_CT}")
        a("s_nop 3")
        a(f"s_cmp_ge_u32 s42, {target}")
        a(f"s_cbranch_scc1 {ok}")
        a(f"s_mov_b32 s43, 0")
        a.label(lp)
        a("s_sleep 1")
        a(f"ds_read_b32 v{V_CT}, v{V_CFW} offset:{off}")
        a("s_waitcnt lgkmcnt(0)")
        a(f"v_readfirstlane_b32 s42, v{V_CT}")
        a(f"s_add_u32 s43, s43, 1")
        a(f"s_cmp_ge_u32 s43, {POLL_MAX*8}")
        a(f"s_cbranch_scc1 {ok}")
        a(f"s_cmp_lt_u32 s42, {target}")
        a(f"s_cbranch_scc1 {lp}")
        a.label(ok)
    HS = 2 * BLK
    for hs in range(4):
        for bb in range(2):
            so = hs * HS + bb * BLK
            koff = so + BLK if bb == 0 else ((hs + 1) & 3) * HS
            lagrd = bb == 1 and "nolag" not in OPT
            extra = (bb == 0) or lagrd
            c(SG, 6); c(SG, 7)
            a(f"v_mfma_f32_32x32x16_bf16 {v(SG,16)}, {v(K16,4)}, {v(QG16,4)}, 0")
            a(f"ds_read_b128 {v(K16,4)}, v{AK16} offset:{koff}")
            if bb == 0: a(f"ds_read_b32 v{V_CT}, v{V_CFW} offset:{4*((hs+1)&3)}")
            if lagrd: a(f"ds_read_b32 v{V_PT}, v{V_PGP}")
            for i in range(0, 4): e(SF, i)
            c(SF, 0); c(SF, 1)
            a(f"v_mfma_f32_32x32x16_bf16 {v(OG,16)}, {v(V1,4)}, {v(P+4,4)}, {v(OG,16)}")
            a(f"ds_read_b128 {v(V1,4)}, v{AV} offset:{so + 672}")
            for i in range(4, 8): e(SF, i)
            c(SF, 2); c(SF, 3)
            a(f"v_mfma_f32_32x32x8_bf16 {v(SG,16)}, {v(K8,2)}, {v(QG8,2)}, {v(SG,16)}")
            a(f"ds_read_b64 {v(K8,2)}, v{AK8} offset:{koff}")
            for i in range(8, 12): e(SF, i)
            c(SF, 4); c(SF, 5)
            a(f"s_waitcnt lgkmcnt({4 if extra else 3})")
            a(f"v_mfma_f32_32x32x16_bf16 {v(OF,16)}, {v(V0,4)}, {v(P,4)}, {v(OF,16)}")
            for i in range(12, 16): e(SF, i)
            c(SF, 6); c(SF, 7)
            a("s_waitcnt lgkmcnt(0)")
            a(f"v_mfma_f32_32x32x16_bf16 {v(SF,16)}, {v(K16,4)}, {v(QF16,4)}, 0")
            if bb == 0:
                dadd = lambda: a(f"ds_add_u32 v{V_CFW}, v{V_ONE} offset:{32 + 4*((hs-1)&3)}")
                if hs == 0: if_s(a, S_U, "lg", 0, dadd)
                else: dadd()
                lb = a.newlabel("nf")
                if hs == 3:
                    a(f"s_cmp_ge_u32 s{S_U}, 3")
                    a(f"s_cbranch_scc1 {lb}")
                if "nochk" not in OPT: check_cnt(f"s{S_B1}" if hs < 3 else f"s{S_B2}", 4*((hs+1)&3))
                a.label(lb)
            if lagrd:
                a(f"v_readfirstlane_b32 s42, v{V_PT}")
                lpa = a.newlabel("pa"); lpb = a.newlabel("pb")
                a("s_nop 1")
                a(f"s_cmp_gt_u32 s{S_PR}, s42")
                a(f"s_cbranch_scc1 {lpa}")
                a("s_setprio 2")
                a(f"s_branch {lpb}")
                a.label(lpa)
                a("s_setprio 1")
                a.label(lpb)
            for i in range(0, 4): e(SG, i)
            c(SG, 0); c(SG, 1)
            a(f"v_mfma_f32_32x32x16_bf16 {v(OF,16)}, {v(V1,4)}, {v(P+4,4)}, {v(OF,16)}")
            for i in range(4, 8): e(SG, i)
            c(SG, 2); c(SG, 3)
            a(f"v_mfma_f32_32x32x8_bf16 {v(SF,16)}, {v(K8,2)}, {v(QF8,2)}, {v(SF,16)}")
            for i in range(8, 12): e(SG, i)
            c(SG, 4); c(SG, 5)
            a(f"v_mfma_f32_32x32x16_bf16 {v(OG,16)}, {v(V0,4)}, {v(P,4)}, {v(OG,16)}")
            a(f"ds_read_b128 {v(V0,4)}, v{AV} offset:{koff}")
            for i in range(12, 16): e(SG, i)
        if "nolag" not in OPT:
            a(f"s_add_u32 s{S_PR}, s{S_PR}, 1")
            a(f"v_mov_b32 v{V_CT}, s{S_PR}")
            a(f"ds_write_b32 v{V_PG}, v{V_CT}")
    a(f"s_add_u32 s{S_U}, s{S_U}, 1")
    a(f"s_add_u32 s{S_B1}, s{S_B1}, 1")
    a(f"s_add_u32 s{S_B2}, s{S_B2}, 1")
    a(f"s_cmp_lt_u32 s{S_U}, 4")
    a(f"s_cbranch_scc1 {LOOP}")
    stamp(a, "loopE")
    S_FBD = 81
    a(f"s_mov_b32 s{S_FBD}, 0")
    c(SG, 6); c(SG, 7)
    a(f"s_mul_i32 s28, s{S_G}, {RING_STRIDE}")
    a(f"s_mul_i32 s29, s{S_HH}, 3072")
    a(f"s_add_u32 s28, s28, s29")
    a(f"v_add_u32 v{T2}, s28, v{V_L16}")
    a(f"s_xor_b32 s30, s{S_G}, 1")
    a(f"s_mul_i32 s30, s30, {RING_STRIDE}")
    a(f"s_add_u32 s29, s29, s30")
    a(f"v_mfma_f32_32x32x16_bf16 {v(OG,16)}, {v(V1,4)}, {v(P+4,4)}, {v(OG,16)}")
    a(f"v_add_u32 v{T3}, s29, v{V_L16}")
    a("s_setprio 2")
    V_LA = 94
    def cadd(addr):
        a(f"v_add_u32 v95, {addr}, v{V_LA}" if False else f"v_mov_b32 v95, {addr}")
        lds_add1(a, 95, V_ONE)
    a("s_waitcnt lgkmcnt(0)")
    a(f"s_lshl_b32 s30, s{S_G}, 4")
    a(f"s_add_u32 s30, s30, {C_LE}")
    a(f"v_mov_b32 v95, s30")
    lds_add1(a, 95, V_ONE)
    lds_wait_ge(a, 4, T1, 95, sleep=0)
    for q in range(3): a(f"ds_write_b128 v{T2}, {v(OG+4*q,4)} offset:{1024*q}")
    a(f"s_lshl_b32 s28, s{S_W}, 2")
    a(f"s_add_u32 s30, s28, {C_XF}")
    a(f"v_mov_b32 v95, s30")
    lds_add1(a, 95, V_ONE)
    a(f"s_xor_b32 s28, s28, 16")
    a(f"s_add_u32 s30, s28, {C_XF}")
    a(f"v_mov_b32 v{T0}, s30")
    lds_wait_ge(a, 1, T1, T0, sleep=0)
    stamp(a, "xf")
    stamp(a, "J1")
    PB = 16
    for q in range(3): a(f"ds_read_b128 {v(PB+4*q,4)}, v{T3} offset:{1024*q}")
    a("s_waitcnt lgkmcnt(0)")
    for r in range(12): a(f"v_add_f32 v{OF+r}, v{OF+r}, v{PB+r}")
    NORM = "f_norm"; FB = "f_fallback"
    a.label(NORM)
    a(f"v_mov_b32 v40, v{OF+8}")
    a(f"v_mov_b32 v41, v{OF+8}")
    a.nop(2)
    a(f"v_permlane32_swap_b32 v40, v41")
    a(f"v_max3_f32 v42, abs(v{OF}), abs(v{OF+1}), abs(v{OF+2})")
    a(f"v_max3_f32 v43, abs(v{OF+3}), abs(v{OF+4}), abs(v{OF+5})")
    a(f"v_max3_f32 v42, v42, abs(v{OF+6}), abs(v{OF+7})")
    a(f"v_max3_f32 v43, v43, abs(v{OF+8}), abs(v{OF+9})")
    a(f"v_max3_f32 v42, v42, abs(v{OF+10}), abs(v{OF+11})")
    a(f"v_max_f32 v42, v42, v43")
    a(f"s_mov_b32 s28, 0x21800000")
    a(f"s_mov_b32 s29, 0x5d800000")
    a(f"s_mov_b32 s30, 0x7e800000")
    a(f"v_cmp_ge_f32 s[40:41], v41, s28" if False else f"v_cmp_le_f32 s[40:41], s28, v41")
    a(f"v_cmp_ge_f32 vcc, s29, v41")
    a(f"s_and_b64 s[40:41], s[40:41], vcc")
    a(f"v_cmp_gt_f32 vcc, s30, v42")
    a(f"s_and_b64 s[40:41], s[40:41], vcc")
    a(f"s_or_b32 s40, s40, s{S_FBD}")
    a(f"s_or_b32 s41, s41, s{S_FBD}")
    a(f"s_cmp_eq_u64 s[40:41], -1")
    a(f"s_cbranch_scc0 {FB}")
    a(f"v_rcp_f32 v41, v41")
    a.nop(1)
    for r in range(12): a(f"v_mul_f32 v{OF+r}, v{OF+r}, v41")
    for r in range(6): a(f"v_cvt_pk_bf16_f32 v{104+r}, v{OF+2*r}, v{OF+2*r+1}")
    a(f"ds_write_b64 v{V_STG}, v[104:105]")
    a(f"ds_write_b64 v{V_STG}, v[106:107] offset:16")
    a(f"s_mov_b64 exec, 0xffffffff")
    a(f"ds_write_b64 v{V_STG}, v[108:109] offset:32")
    a(f"s_mov_b64 exec, -1")
    cadd(C_ST)
    a(f"s_mul_i32 s29, s{S_I}, 81920")
    a(f"s_mul_i32 s30, s{S_J}, 2560")
    a(f"s_add_u32 s29, s29, s30")
    a(f"s_add_u32 s29, s29, {O_OFF}")
    stamp(a, "stg")
    lds_wait_imm(a, C_ST, 8, sleep=0)
    stamp(a, "st8")
    a(f"ds_read_b128 v[44:47], v{V_OL0}")
    if_wave(a, "lt", 2, lambda: a(f"ds_read_b128 v[48:51], v{V_OL1}"))
    a("s_waitcnt lgkmcnt(0)")
    a(f"buffer_store_dwordx4 v[44:47], v{V_OG0}, {R(SRD_WS)}, s29 offen sc1")
    if_wave(a, "lt", 2, lambda: a(f"buffer_store_dwordx4 v[48:51], v{V_OG1}, {R(SRD_WS)}, s29 offen sc1"))
    OFR, ACC, AF = 16, 56, 76
    def ldsA(s_):
        b = s_ & 1
        for mt in range(5):
            a(f"ds_read_b64_tr_b16 {v(AF+20*b+4*mt,2)}, v{V_WT} offset:{s_*5120 + 32*mt}")
            a(f"ds_read_b64_tr_b16 {v(AF+20*b+4*mt+2,2)}, v{V_WT} offset:{s_*5120 + 1280 + 32*mt}")
    for r in range(20): a(f"v_mov_b32 v{ACC+r}, 0")
    a(f"s_mul_i32 s28, s{S_I}, 81920")
    a(f"s_mul_i32 s29, s{S_HH}, 20480")
    a(f"s_add_u32 s28, s28, s29")
    a(f"s_mul_i32 s29, s{S_G}, 10240")
    a(f"s_add_u32 s28, s28, s29")
    a(f"s_add_u32 s28, s28, {O_OFF}")
    a("s_waitcnt vmcnt(0)")
    stamp(a, "ostd")
    cadd(C_OCNT)
    lds_wait_imm(a, C_WOK, 3, sleep=1)
    stamp(a, "wok")
    ldsA(0)
    lds_wait_imm(a, C_OOK, 1, sleep=0)
    stamp(a, "h4ok")
    for s_ in range(10):
        a(f"buffer_load_dwordx4 {v(OFR+4*s_,4)}, v{V_TL16}, {R(SRD_WS)}, s28 offen offset:{1024*(s_%4)} sc1")
        if s_ % 4 == 3: a(f"s_add_u32 s28, s28, 4096")
    for s_ in range(10):
        if s_ < 9:
            ldsA(s_ + 1); a(f"s_waitcnt lgkmcnt(10) vmcnt({9 - s_})")
        else:
            a("s_waitcnt lgkmcnt(0) vmcnt(0)")
        b = s_ & 1
        for mt in range(5):
            a(f"v_mfma_f32_16x16x32_bf16 {v(ACC+4*mt,4)}, {v(AF+20*b+4*mt,4)}, {v(OFR+4*s_,4)}, {v(ACC+4*mt,4)}")
    stamp(a, "oproj")
    YF, GV = 16, 30
    FINA = "f_fina"; FINB = "f_finb"
    a(f"v_xor_b32 v{T3}, 0, v{V_PX}" if False else f"s_xor_b32 s29, s{S_W}, 4")
    a(f"s_mul_i32 s29, s29, 3072")
    a(f"s_add_u32 s29, s29, {PX}")
    a(f"v_add_u32 v{T3}, s29, v{V_TL16}")
    lds_wait_imm(a, C_YW, 2, T1, T0, sleep=0)
    stamp(a, "yw")
    def fin(keep, send):
        for mt in keep: a(f"ds_read_b64_tr_b16 {v(YF+2*mt,2)}, v{V_YT} offset:{2048*mt}")
        a(f"ds_read_b32 v{GV}, v{V_GA}")
        a.nop(4)
        for n, mt in enumerate(send): a(f"ds_write_b128 v{V_PX}, {v(ACC+4*mt,4)} offset:{1024*n}")
        a(f"s_lshl_b32 s28, s{S_W}, 2")
        a(f"s_add_u32 s30, s28, {C_PF}")
        a(f"v_mov_b32 v{T0}, s30")
        a(f"v_mov_b32 v{T1}, 1")
        lds_add1(a, T0, T1)
        a("s_waitcnt lgkmcnt(0)")
        for mt in keep:
            for hlf in range(2):
                yq = YF + 2*mt + hlf; qq = QT + 2*mt + hlf; d = 32 + 4*mt + 2*hlf
                a(f"v_lshlrev_b32 v{d}, 16, v{yq}")
                a(f"v_and_b32 v{d+1}, 0xffff0000, v{yq}")
                a(f"v_lshlrev_b32 v52, 16, v{qq}")
                a(f"v_and_b32 v53, 0xffff0000, v{qq}")
                a(f"v_mul_f32 v52, v52, v{GV}")
                a(f"v_mul_f32 v53, v53, v{GV}")
                a(f"v_mul_f32 v{d}, v{d}, v52")
                a(f"v_mul_f32 v{d+1}, v{d+1}, v53")
        a(f"v_sub_f32 v{GV+1}, 1.0, v{GV}")
        a(f"s_xor_b32 s28, s28, 16")
        a(f"s_add_u32 s30, s28, {C_PF}")
        a(f"v_mov_b32 v{T0}, s30")
        lds_wait_ge(a, 1, T1, T0, sleep=0)
        for n, mt in enumerate(keep): a(f"ds_read_b128 {v(AF+4*n,4)}, v{T3} offset:{1024*n}")
        for n, mt in enumerate(keep):
            a(f"s_waitcnt lgkmcnt({len(keep)-1-n})")
            for r in range(4): a(f"v_add_f32 v{ACC+4*mt+r}, v{ACC+4*mt+r}, v{AF+4*n+r}")
            for r in range(4): a(f"v_fmac_f32 v{32+4*mt+r}, v{ACC+4*mt+r}, v{GV+1}")
            a(f"v_cvt_pk_bf16_f32 v{100+2*mt}, v{32+4*mt}, v{32+4*mt+1}")
            a(f"v_cvt_pk_bf16_f32 v{100+2*mt+1}, v{32+4*mt+2}, v{32+4*mt+3}")
            a(f"buffer_store_dwordx2 {v(100+2*mt,2)}, v{V_OUT}, {R(SRD_OUT)}, 0 offen offset:{32*mt}" + (" sc1" if "osc1" in OPT else "") + (" nt" if "ont" in OPT else ""))
    a(f"s_cmp_ge_u32 s{S_W}, 4")
    a(f"s_cbranch_scc1 {FINB}")
    fin([0, 1, 2], [3, 4])
    a(f"s_branch f_fin")
    a.label(FINB)
    fin([3, 4], [0, 1, 2])
    a(f"s_branch f_fin")

    a.label(FB)
    FK16, FK8, FV0, FV1 = 88, 92, 96, 100
    FA16, FA8, FAV, FM = 44, 45, 46, 47
    a(f"v_lshlrev_b32 v{FA16}, 4, v1")
    a(f"v_and_b32 v{T0}, 31, v1")
    a(f"v_lshlrev_b32 v{T1}, 3, v{T0}")
    a(f"v_add_u32 v{T1}, 1024, v{T1}")
    a(f"v_mov_b32 v{FA8}, 1280")
    a(f"v_cmp_gt_u32 vcc, 32, v1")
    a(f"v_min_u32 v{FM}, 20, v{T0}")
    a.nop(1)
    a(f"v_cndmask_b32 v{FA8}, v{FA8}, v{T1}, vcc")
    a(f"v_lshlrev_b32 v{FM}, 4, v{FM}")
    a(f"v_lshrrev_b32 v{FAV}, 5, v1")
    a(f"v_mul_u32_u24 v{FAV}, 336, v{FAV}")
    a(f"v_add_u32 v{FAV}, v{FAV}, v{FM}")
    a(f"v_add_u32 v{FAV}, 1296, v{FAV}")
    a(f"v_mov_b32 v{FM}, 0xff800000")
    a(f"s_mov_b32 s28, 0")
    FL1 = a.newlabel("fb1")
    a.label(FL1)
    a(f"buffer_load_dwordx4 {v(FK16,4)}, v{FA16}, {R(SRD_WS)}, s28 offen sc1")
    a(f"buffer_load_dwordx2 {v(FK8,2)}, v{FA8}, {R(SRD_WS)}, s28 offen sc1")
    a("s_waitcnt vmcnt(0)")
    a(f"v_mfma_f32_32x32x16_bf16 {v(SF,16)}, {v(FK16,4)}, {v(QF16,4)}, 0")
    a(f"v_mfma_f32_32x32x8_bf16 {v(SF,16)}, {v(FK8,2)}, {v(QF8,2)}, {v(SF,16)}")
    a.nop(16); a.nop(4)
    for r in range(0, 16, 2): a(f"v_max3_f32 v{FM}, v{FM}, v{SF+r}, v{SF+r+1}")
    a(f"s_add_u32 s28, s28, 3072")
    a(f"s_cmp_lt_u32 s28, {64*3072}")
    a(f"s_cbranch_scc1 {FL1}")
    a(f"v_mov_b32 v{T0}, v{FM}")
    a(f"v_mov_b32 v{T1}, v{FM}")
    a.nop(2)
    a(f"v_permlane32_swap_b32 v{T0}, v{T1}")
    a.nop(2)
    a(f"v_max3_f32 v{FM}, v{FM}, v{T0}, v{T1}")
    a(f"v_sub_f32 v{T0}, 0, v{FM}")
    a(f"v_cvt_pk_bf16_f32 v{T1}, v{T0}, v{T0}")
    a(f"v_and_b32 v42, 0xffff0000, v{T1}")
    a(f"v_sub_f32 v{T0}, v{T0}, v42")
    a(f"v_cvt_pk_bf16_f32 v43, v{T0}, v{T0}")
    a(f"v_and_b32 v42, 0xffff0000, v43")
    a(f"v_sub_f32 v{T0}, v{T0}, v42")
    a(f"v_cvt_pk_bf16_f32 v{T0}, v{T0}, v{T0}")
    a(f"v_and_b32 v{T1}, 0xffff, v{T1}")
    a(f"v_or_b32 v{T1}, v{T1}, v42")
    a(f"v_and_b32 v{T0}, 0xffff, v{T0}")
    a(f"v_cmp_gt_u32 vcc, 32, v1")
    a.nop(2)
    a(f"v_cndmask_b32 v{QF8}, v{T1}, v{QF8}, vcc")
    a(f"v_cndmask_b32 v{QF8+1}, v{T0}, v{QF8+1}, vcc")
    for r in range(16): a(f"v_mov_b32 v{OF+r}, 0")
    a(f"s_mov_b32 s28, 0")
    FL2 = a.newlabel("fb2")
    a.label(FL2)
    a(f"buffer_load_dwordx4 {v(FK16,4)}, v{FA16}, {R(SRD_WS)}, s28 offen sc1")
    a(f"buffer_load_dwordx2 {v(FK8,2)}, v{FA8}, {R(SRD_WS)}, s28 offen sc1")
    a(f"buffer_load_dwordx4 {v(FV0,4)}, v{FAV}, {R(SRD_WS)}, s28 offen sc1")
    a(f"buffer_load_dwordx4 {v(FV1,4)}, v{FAV}, {R(SRD_WS)}, s28 offen offset:672 sc1")
    a("s_waitcnt vmcnt(0)")
    a(f"v_mfma_f32_32x32x16_bf16 {v(SF,16)}, {v(FK16,4)}, {v(QF16,4)}, 0")
    a(f"v_mfma_f32_32x32x8_bf16 {v(SF,16)}, {v(FK8,2)}, {v(QF8,2)}, {v(SF,16)}")
    a.nop(16); a.nop(4)
    for i in range(16): a(f"v_exp_f32 v{SF+i}, v{SF+i}")
    a.nop(1)
    for i in range(8): a(f"v_cvt_pk_bf16_f32 v{P+i}, v{SF+2*i}, v{SF+2*i+1}")
    a.nop(2)
    a(f"v_mfma_f32_32x32x16_bf16 {v(OF,16)}, {v(FV0,4)}, {v(P,4)}, {v(OF,16)}")
    a(f"v_mfma_f32_32x32x16_bf16 {v(OF,16)}, {v(FV1,4)}, {v(P+4,4)}, {v(OF,16)}")
    a(f"s_add_u32 s28, s28, 3072")
    a(f"s_cmp_lt_u32 s28, {64*3072}")
    a(f"s_cbranch_scc1 {FL2}")
    a.nop(16)
    a(f"s_mov_b32 s{S_FBD}, -1")
    a(f"s_branch {NORM}")

    a.label(PSTART)
    a("s_setprio 3")
    a(f"v_mov_b32 v4, 0")
    if "nocpf" not in OPT:
        a(f"s_getpc_b64 s[28:29]")
        a.label("f_pcref")
        a(f"s_sub_u32 s28, s28, f_pcref-{NAME}_kernel")
        a(f"s_subb_u32 s29, s29, 0")
        a(f"s_lshr_b32 s30, s2, 3")
        a(f"s_min_u32 s30, s30, (f_end-{NAME}_kernel)/1024-1")
        a(f"s_lshl_b32 s30, s30, 10")
        a(f"v_lshlrev_b32 v24, 4, v1")
        a(f"v_add_u32 v24, s30, v24")
        a(f"global_load_dwordx4 v[28:31], v24, s[28:29]")
        if "cpf2" in OPT: a(f"global_load_dwordx4 v[28:31], v24, s[28:29] offset:0")
    lead = a.newlabel("lead")
    def lead_fn():
        a(f"s_memrealtime s[28:29]")
        a("s_waitcnt lgkmcnt(0)")
        a(f"s_or_b32 s28, s28, 1")
        a(f"v_mov_b32 v5, s28")
        a(f"s_mov_b64 exec, 1")
        a(f"buffer_store_dword v5, v4, {R(SRD_DBG)}, 0 offen sc1")
        a(f"s_mov_b64 exec, -1")
    if_s(a, 2, "eq", 0, lead_fn)
    a(f"buffer_load_dword v20, v4, {R(SRD_DBG)}, 0 offen sc1")
    a(f"v_lshlrev_b32 v6, 21, v1")
    a(f"s_mov_b64 exec, 0xf")
    a(f"buffer_load_dword v8, v6, {R(SRD_WS)}, 0 offen offset:2048")
    a(f"s_mov_b64 exec, 0x3")
    a(f"buffer_load_dword v9, v6, {R(SRD_H)}, 0 offen")
    a(f"buffer_load_dword v10, v6, {R(SRD_OUT)}, 0 offen")
    a(f"s_mov_b64 exec, 0x1")
    a(f"buffer_load_dword v11, v6, {R(SRD_WO)}, 0 offen")
    a(f"s_mov_b64 exec, -1")
    a(f"v_lshlrev_b32 v5, 2, v1")
    a(f"v_add_u32 v7, {CNT}, v5")
    a(f"ds_write_b32 v7, v4")
    a(f"ds_write_b32 v7, v4 offset:256")
    a(f"s_mov_b64 exec, -1")
    a("s_waitcnt lgkmcnt(0)")
    a("s_barrier")
    lds_wait_imm(a, C_UP, 4, sleep=0)
    PXF, PWF = 16, 48
    a(f"v_lshlrev_b32 v{T0}, 4, v1")
    a(f"v_add_u32 v{T1}, {UNIT_W}, v{T0}")
    for p_ in range(4):
        a(f"ds_read_b128 {v(PXF+8*p_,4)}, v{T1} offset:{UNIT_S*p_}")
        a(f"ds_read_b128 {v(PXF+8*p_+4,4)}, v{T1} offset:{UNIT_S*p_+1024}")
    a(f"s_lshl_b32 s28, s{S_I}, 1")
    a(f"s_bfe_u32 s29, s{S_J}, 0x10001")
    a(f"s_add_u32 s28, s28, s29")
    a(f"s_mul_i32 s29, s28, 3072")
    a(f"s_and_b32 s30, s{S_J}, 1")
    a("s_waitcnt lgkmcnt(0)")
    a(f"v_mov_b32 v12, {C_PD}")
    a(f"v_mov_b32 v13, 1")
    a(f"ds_write_b32 v12, v13")
    for p_ in range(1, 4):
        for r in range(8): a(f"v_add_f32 v{PXF+r}, v{PXF+r}, v{PXF+8*p_+r}")
    for r in range(4): a(f"v_cvt_pk_bf16_f32 v{PWF+r if r<2 else PWF+4+(r-2)}, v{PXF+2*r}, v{PXF+2*r+1}")
    a(f"v_mov_b32 v{PWF+6}, v{PWF}")
    a(f"v_mov_b32 v{PWF+7}, v{PWF+1}")
    a.nop(2)
    a(f"v_permlane32_swap_b32 v{PWF+6}, v{PWF+2}")
    a(f"v_permlane32_swap_b32 v{PWF+7}, v{PWF+3}")
    a(f"v_and_b32 v{T0}, 15, v1")
    a(f"v_bfe_u32 v{T1}, v1, 4, 1")
    labV2 = a.newlabel("stV"); labP = a.newlabel("pub")
    a(f"s_cmp_ge_u32 s{S_J}, 4")
    a(f"s_cbranch_scc1 {labV2}")
    a(f"s_lshl_b32 s31, s30, 4")
    a(f"v_add_u32 v{T0}, s31, v{T0}")
    a(f"v_lshlrev_b32 v{T1}, 5, v{T1}")
    a(f"v_add_u32 v{T1}, v{T1}, v{T0}")
    a(f"v_lshlrev_b32 v{T1}, 4, v{T1}")
    a(f"s_mov_b64 exec, 0xffffffff")
    a(f"buffer_store_dwordx4 {v(PWF,4)}, v{T1}, {R(SRD_WS)}, s29 offen sc1")
    a(f"s_mov_b64 exec, -1")
    a(f"v_lshlrev_b32 v{T0}, 3, v{T0}")
    a(f"v_add_u32 v{T0}, 1024, v{T0}")
    a(f"v_mov_b32 v{T1}, 1280")
    a(f"v_mov_b32 v{T2}, 0x3f803f80")
    a(f"v_mov_b32 v{T3}, 0x3f80")
    a(f"v_cmp_eq_u32 vcc, 16, v1")
    a.nop(2)
    a(f"v_cndmask_b32 v{T0}, v{T0}, v{T1}, vcc")
    a(f"v_cndmask_b32 v{PWF+4}, v{PWF+4}, v{T2}, vcc")
    a(f"v_cndmask_b32 v{PWF+5}, v{PWF+5}, v{T3}, vcc")
    a(f"s_mov_b32 s41, 0xffff")
    a(f"s_cmp_eq_u32 s30, 0")
    a(f"s_cselect_b32 s40, 0x1ffff, s41")
    a(f"s_mov_b32 s41, 0")
    a(f"s_mov_b64 exec, s[40:41]")
    a(f"buffer_store_dwordx2 {v(PWF+4,2)}, v{T0}, {R(SRD_WS)}, s29 offen sc1")
    a(f"s_mov_b64 exec, -1")
    a(f"s_branch {labP}")
    a.label(labV2)
    a(f"s_mul_i32 s31, s30, 672")
    a(f"s_add_u32 s31, s31, 1296")
    a(f"v_mul_u32_u24 v{T1}, 336, v{T1}")
    a(f"v_lshlrev_b32 v{T2}, 4, v{T0}")
    a(f"v_add_u32 v{T1}, v{T1}, v{T2}")
    a(f"v_add_u32 v{T1}, s31, v{T1}")
    a(f"s_mov_b64 exec, 0xffffffff")
    a(f"buffer_store_dwordx4 {v(PWF,4)}, v{T1}, {R(SRD_WS)}, s29 offen sc1")
    a(f"s_mov_b64 exec, -1")
    a(f"v_mov_b32 v{T2}, 0x3f803f80")
    a(f"v_cmp_eq_u32 vcc, 4, v{T0}")
    a.nop(2)
    a(f"v_cndmask_b32 v{PWF+4}, v{PWF+4}, v{T2}, vcc")
    a(f"v_cndmask_b32 v{PWF+5}, v{PWF+5}, v{T2}, vcc")
    a(f"v_mov_b32 v{PWF}, v{PWF+4}")
    a(f"v_mov_b32 v{PWF+1}, v{PWF+5}")
    a.nop(2)
    a(f"v_permlane32_swap_b32 v{PWF}, v{PWF+6}")
    a(f"v_permlane32_swap_b32 v{PWF+1}, v{PWF+7}")
    a(f"s_mov_b32 s40, 0x001f001f")
    a(f"s_mov_b32 s41, 0")
    a(f"s_mov_b64 exec, s[40:41]")
    a.nop(2)
    a(f"buffer_store_dwordx4 {v(PWF+4,4)}, v{T1}, {R(SRD_WS)}, s29 offen offset:256 sc1")
    a(f"s_mov_b64 exec, -1")
    a.label(labP)
    a(f"s_lshr_b32 s29, s28, 2")
    a(f"s_lshl_b32 s29, s29, 7")
    a(f"s_and_b32 s31, s28, 3")
    a(f"s_lshl_b32 s31, s31, 2")
    a(f"s_lshl_b32 s30, s30, 1")
    a(f"s_add_u32 s31, s31, s30")
    a(f"s_lshr_b32 s30, s{S_J}, 2")
    a(f"s_add_u32 s31, s31, s30")
    a(f"s_lshl_b32 s31, s31, 2")
    a(f"s_add_u32 s34, s29, s31")
    a(f"s_add_u32 s34, s34, {H1}")
    def push(nl, stride_sh, sbase):
        a(f"v_lshlrev_b32 v{T0}, {stride_sh}, v1")
        a(f"v_mov_b32 v{T1}, s{S_NONCE}")
        a(f"s_mov_b64 exec, {hex((1 << nl) - 1)}")
        a(f"buffer_store_dword v{T1}, v{T0}, {R(SRD_WS)}, s{sbase} offen sc1")
        a(f"s_mov_b64 exec, -1")
    def setw(addr):
        a(f"v_mov_b32 v12, {addr}")
        a(f"v_mov_b32 v13, 1")
        a(f"ds_write_b32 v12, v13")
    def ld(): a(f"buffer_load_dword v5, v4, {R(SRD_DBG)}, 0 offen sc1")
    def ck():
        a(f"v_readfirstlane_b32 s{S_NONCE}, v5")
        a("s_nop 3")
        a(f"s_cmp_lg_u32 s{S_NONCE}, 0")
    poll_global(a, ld, ck, sleep=0)
    push(8, 11, 34)
    a(f"v_mov_b32 v12, {C_NONCE}")
    a(f"v_mov_b32 v13, s{S_NONCE}")
    a(f"ds_write_b32 v12, v13")
    setw(C_PFL)
    stamp(a, "pflag")
    ut_issue_all(a)
    VKF = 6
    a(f"v_lshrrev_b32 v{VKF}, 2, v1")
    a(f"v_lshlrev_b32 v{VKF}, 7, v{VKF}")
    a(f"v_and_b32 v{T1}, 3, v1")
    a(f"v_lshlrev_b32 v{T1}, 4, v{T1}")
    a(f"v_add_u32 v{VKF}, v{VKF}, v{T1}")
    a(f"s_and_b32 s36, s2, 7")
    a(f"s_lshl_b32 s36, s36, 11")
    a(f"s_add_u32 s36, s36, {H1}")
    a(f"s_lshl_b32 s37, s{S_I}, 3")
    a(f"s_add_u32 s37, s37, s{S_J}")
    a(f"s_lshl_b32 s37, s37, 7")
    a(f"s_lshl_b32 s38, s{S_J}, 7")
    a(f"s_lshl_b32 s39, s{S_I}, 2")
    a(f"s_add_u32 s38, s38, s39")
    a(f"v_lshlrev_b32 v7, 2, v1")
    a(f"v_mov_b32 v14, {C_UCNT}")
    a(f"buffer_load_dwordx4 v[8:11], v{VKF}, {R(SRD_WS)}, s36 offen sc1")
    a("s_waitcnt vmcnt(1)")
    setw(C_UTL)
    if "pipe" not in OPT: poll_flags(a, VKF, "s36", 0xffffffffffffffff, 8, n=4, sleep=0)
    else: poll_flags_pipe(a, VKF, "s36", 0xffffffffffffffff, 8, n=4, sleep=5, depth=3)
    stamp(a, "pkvok")
    FL16 = 20
    BUF = [[32, 56], [80, 104]]
    S_NX = [78, 79]; S_SRC = 81
    S_IS = [82, 83]
    S_SEQ = 84
    S_SQ = [[85, 86], [87, 88]]
    a(f"v_lshlrev_b32 v{FL16}, 4, v1")
    def fissue(g, par):
        a(f"s_lshr_b32 s28, s{S_IS[g]}, 1")
        a(f"s_add_u32 s28, s28, s{S_ROT}")
        a(f"s_and_b32 s28, s28, 7")
        a(f"s_mul_i32 s28, s28, 12288")
        a(f"s_add_u32 s{S_SRC}, s28, {g*32*3072 + par*6144}")
        for k in range(6):
            a(f"buffer_load_dwordx4 {v(BUF[g][par]+4*k,4)}, v{FL16}, {R(SRD_WS)}, s{S_SRC} offen offset:{1024*(k%4)} sc1")
            if k == 3: a(f"s_add_u32 s{S_SRC}, s{S_SRC}, 4096")
        a(f"s_add_u32 s{S_IS[g]}, s{S_IS[g]}, 1")
        a(f"s_add_u32 s{S_SEQ}, s{S_SEQ}, 1")
        a(f"s_mov_b32 s{S_SQ[g][par]}, s{S_SEQ}")
    a(f"s_mov_b32 s{S_SEQ}, 0")
    for g in range(2):
        a(f"s_mov_b32 s{S_NX[g]}, 0")
        a(f"s_mov_b32 s{S_IS[g]}, 0")
    fissue(0, 0); fissue(1, 0); fissue(0, 1); fissue(1, 1)
    lds_wait_imm(a, C_QRD, 8, sleep=0)
    FLP = a.newlabel("fl"); FDN = a.newlabel("fd")
    a(f"v_and_b32 v22, 7, v1")
    a(f"v_lshlrev_b32 v22, 2, v22")
    a(f"v_add_u32 v22, {C_DONE}, v22")
    a(f"s_mov_b32 s33, 0")
    a.label(FLP)
    a(f"ds_read_b32 v24, v22")
    a("s_waitcnt lgkmcnt(0)")
    a(f"s_mov_b32 s39, 0")
    for g in range(2):
        skip = a.newlabel("fs")
        a(f"s_cmp_ge_u32 s{S_NX[g]}, 16")
        a(f"s_cbranch_scc1 {skip}")
        a(f"s_and_b32 s29, s{S_NX[g]}, 3")
        a(f"s_add_u32 s29, s29, {4*g}")
        a(f"v_readlane_b32 s42, v24, s29")
        a(f"s_lshr_b32 s28, s{S_NX[g]}, 2")
        a(f"s_lshl_b32 s28, s28, 2")
        a("s_nop 1")
        a(f"s_cmp_lt_u32 s42, s28")
        a(f"s_cbranch_scc1 {skip}")
        PARL = []
        for par in range(2):
            nxtp = a.newlabel("fp")
            a(f"s_and_b32 s28, s{S_NX[g]}, 1")
            a(f"s_cmp_lg_u32 s28, {par}")
            a(f"s_cbranch_scc1 {nxtp}")
            a(f"s_sub_u32 s28, s{S_SEQ}, s{S_SQ[g][par]}")
            lend = a.newlabel("fw")
            for age in range(3):
                ln = a.newlabel("fw")
                a(f"s_cmp_lg_u32 s28, {age}")
                a(f"s_cbranch_scc1 {ln}")
                a(f"s_waitcnt vmcnt({6*age})")
                a(f"s_branch {lend}")
                a.label(ln)
            a("s_waitcnt vmcnt(18)")
            a.label(lend)
            a(f"s_and_b32 s28, s{S_NX[g]}, 3")
            a(f"s_mul_i32 s29, s28, {2*BLK}")
            a(f"s_add_u32 s29, s29, {g*RING_STRIDE}")
            a(f"v_add_u32 v26, s29, v{FL16}")
            for k in range(6):
                a(f"ds_write_b128 v26, {v(BUF[g][par]+4*k,4)} offset:{1024*k}")
            a(f"s_lshl_b32 s28, s28, 2")
            a(f"s_add_u32 s28, s28, {C_FULL + 16*g}")
            a(f"v_mov_b32 v27, s28")
            a(f"v_mov_b32 v28, 1")
            lds_add1(a, 27, 28)
            a(f"s_add_u32 s{S_NX[g]}, s{S_NX[g]}, 1")
            a(f"s_mov_b32 s39, 1")
            a(f"s_cmp_ge_u32 s{S_IS[g]}, 16")
            a(f"s_cbranch_scc1 {skip}")
            fissue(g, par)
            a(f"s_branch {skip}")
            a.label(nxtp)
        a.label(skip)
    a(f"s_add_u32 s28, s{S_NX[0]}, s{S_NX[1]}")
    a(f"s_cmp_ge_u32 s28, 32")
    a(f"s_cbranch_scc1 {FDN}")
    a(f"s_add_u32 s33, s33, 1")
    a(f"s_cmp_ge_u32 s33, {POLL_MAX*8}")
    a(f"s_cbranch_scc1 {FDN}")
    a(f"s_cmp_lg_u32 s39, 0")
    a(f"s_cbranch_scc1 {FLP}")
    a(f"s_sleep {4 if 'fs4' in OPT else (2 if 'fs2' in OPT else 3)}")
    a(f"s_branch {FLP}")
    a.label(FDN)
    stamp(a, "pfed")
    a(f"s_lshl_b32 s37, s{S_I}, 3")
    a(f"s_add_u32 s37, s37, s{S_J}")
    a(f"s_lshl_b32 s37, s37, 7")
    a(f"v_lshlrev_b32 v7, 2, v1")
    lds_wait_imm(a, C_OCNT, 8, sleep=0)
    a(f"s_lshl_b32 s29, s{S_I}, 10")
    a(f"s_lshl_b32 s30, s{S_J}, 2")
    a(f"s_add_u32 s29, s29, s30")
    a(f"s_add_u32 s29, s29, {H4}")
    push(8, 7, 29)
    stamp(a, "popush")
    a(f"s_add_u32 s29, s37, {H4}")
    if "pipe" not in OPT: poll_flags(a, 7, "s29", 0xff, 8, sleep=0)
    else: poll_flags_pipe(a, 7, "s29", 0xff, 8, n=1, sleep=3, depth=3)
    setw(C_OOK)
    a(f"s_branch f_fin")
    gen_loader(a)
    a.label("f_fin")
    if "stamp" in OPT:
        a("s_waitcnt vmcnt(0)")
        stamp(a, "end"); stamp(a, "rt1", True)
        stamp_flush(a)
    a.label(END)
    a("s_endpgm")
    a.L.append(kernel_desc(name, NVGPR))


def ut_issue_all(a):
    a(f"s_lshl_b32 s39, s{S_I}, 6")
    a(f"s_sub_u32 s33, s39, 3")
    a(f"s_mul_i32 s38, s{S_J}, 160")
    for kind, nq, base_l, srd_, halo in (("k", 11, UT_K, SRD_K, 3), ("v", 10, UT_V, SRD_V, 0)):
        for q in range(nq):
            a(f"v_add_u32 v{T0}, {64*q}, v1")
            div10(a, T0, T1, T0, T2)
            a(f"v_lshrrev_b32 v{T2}, 3, v{T1}")
            a(f"v_sub_u32 v{T0}, v{T0}, v{T2}")
            a(f"v_add_u32 v{T2}, 10, v{T0}")
            a(f"v_min_u32 v{T0}, v{T0}, v{T2}")
            a(f"v_lshlrev_b32 v{T0}, 4, v{T0}")
            a(f"v_add_u32 v{T1}, s39, v{T1}") if halo == 0 else a(f"v_add_u32 v{T1}, s33, v{T1}")
            a(f"v_mul_lo_u32 v{T1}, v{T1}, s{S_1280}")
            a(f"v_add3_u32 v{T0}, v{T0}, v{T1}, s38")
            a(f"s_mov_b32 m0, {base_l + 1024*q}")
            if kind == "k" and q == 10: a(f"s_mov_b64 exec, 0x3fffffff")
            else: a("s_nop 0")
            a(f"buffer_load_dwordx4 v{T0}, {R(srd_)}, 0 offen lds")
            if kind == "k" and q == 10: a(f"s_mov_b64 exec, -1")

def gen_loader(a):
    S_LI = 34
    a.label("f_lstart")
    a("s_setprio 3")
    a(f"s_sub_u32 s{S_LI}, s{S_W}, 9")
    VX, VW, VL16 = 112, 116, 121
    RB3, RB4, HR = 16, 64, 112
    a(f"v_lshlrev_b32 v{T3}, 4, v1")
    if "pf" in OPT:
        a(f"s_lshr_b32 s28, s2, 3")
        a(f"s_mul_i32 s28, s28, 10240")
        a(f"s_lshl_b32 s29, s{S_LI}, 10")
        a(f"s_add_u32 s28, s28, s29")
        a(f"s_add_u32 s28, s28, {384*1280}")
        for k in range(4):
            def pf(k=k):
                a(f"buffer_load_dwordx4 v[160:163], v{T3}, {R(SRD_WQ)}, s28 offen")
            if k < 3: pf()
            else: if_s(a, S_LI, "eq", 0, pf)
            a(f"s_add_u32 s28, s28, 3072")
        a(f"v_lshrrev_b32 v{T0}, 5, v1")
        a(f"v_mul_u32_u24 v{T0}, 1280, v{T0}")
        a(f"v_and_b32 v{T1}, 31, v1")
        a(f"v_lshlrev_b32 v{T1}, 4, v{T1}")
        a(f"v_add_u32 v{T0}, v{T0}, v{T1}")
        a(f"s_lshl_b32 s28, s{S_I}, 6")
        a(f"s_lshl_b32 s30, s{S_J}, 3")
        a(f"s_add_u32 s28, s28, s30")
        a(f"s_lshl_b32 s30, s{S_LI}, 1")
        a(f"s_add_u32 s28, s28, s30")
        a(f"s_mul_i32 s28, s28, 1280")
        a(f"s_add_u32 s28, s28, 768")
        a(f"buffer_load_dwordx4 v[160:163], v{T0}, {R(SRD_X)}, s28 offen")
        def pf2():
            a(f"s_add_u32 s28, s28, {6*1280}")
            a(f"buffer_load_dwordx4 v[160:163], v{T0}, {R(SRD_X)}, s28 offen")
        if_s(a, S_LI, "eq", 0, pf2)
    a("s_barrier")
    for k in range(4):
        a(f"v_lshrrev_b32 v{T0}, 4, v1")
        a(f"v_add_u32 v{T0}, {4*k}, v{T0}")
        a(f"v_xor_b32 v{T1}, v1, v{T0}")
        a(f"v_and_b32 v{T1}, 15, v{T1}")
        a(f"v_lshlrev_b32 v{T1}, 4, v{T1}")
        a(f"s_lshl_b32 s28, s{S_I}, 6")
        a(f"v_add_u32 v{T0}, s28, v{T0}")
        a(f"v_mul_lo_u32 v{T0}, v{T0}, s{S_1280}")
        a(f"v_add_u32 v{VX+k}, v{T0}, v{T1}")
    a(f"s_mul_i32 s29, s{S_J}, 160")
    for t in range(5):
        a(f"v_add_u32 v{T0}, {64*t}, v1")
        div10(a, T0, T1, T0, T2)
        a(f"v_lshlrev_b32 v{T0}, 4, v{T0}")
        a(f"v_and_b32 v{T2}, 0xfff8, v{T1}")
        a(f"v_bfe_u32 v{VL16}, v{T1}, 1, 2")
        a(f"v_or_b32 v{T2}, v{T2}, v{VL16}")
        a(f"v_and_b32 v{T1}, 1, v{T1}")
        a(f"v_lshlrev_b32 v{T1}, 2, v{T1}")
        a(f"v_or_b32 v{T2}, v{T2}, v{T1}")
        a(f"v_mul_lo_u32 v{T2}, v{T2}, s{S_1280}")
        a(f"v_add_u32 v{T2}, v{T2}, v{T0}")
        a(f"v_add_u32 v{VW+t}, s29, v{T2}")
    lists = [[("x", q) for q in range(12)],
             [("x", q) for q in range(12, 16)] + [("w", q) for q in range(8)],
             [("w", q) for q in range(8, 20)]]
    def ldoff(kind, q): return 1024*q if kind == "x" else 16384 + 1024*q
    def issue(lst, ch, dma_slot=None, regs=None):
        chunk_phys(a, ch)
        for n, (kind, q) in enumerate(lst):
            if kind == "x": srd_, vr, so, sb = SRD_X, VX+(q&3), (q >> 2)*16*1280, 92
            else: srd_, vr, so, sb = SRD_WQ, VW+(q%5), (q // 5)*40960, 93
            a(f"s_add_u32 s28, s{sb}, {so}")
            if dma_slot is not None:
                a(f"s_mov_b32 m0, {dma_slot*SLOT + ldoff(kind, q)}")
                a(f"s_nop 0")
                a(f"buffer_load_dwordx4 v{vr}, {R(srd_)}, s28 offen lds")
            else:
                a(f"buffer_load_dwordx4 {v(regs+4*n,4)}, v{vr}, {R(srd_)}, s28 offen")
    def signal(addr): lds_add1_imm(a, addr)
    LD_JOIN = a.newlabel("ldj")
    for li in range(3):
        nxt = a.newlabel("ldv")
        a(f"s_cmp_lg_u32 s{S_LI}, {li}")
        a(f"s_cbranch_scc1 {nxt}")
        L = lists[li]
        if "regs" in OPT:
            issue(L, 2, dma_slot=2)
            if "nogate" not in OPT:
                a("s_waitcnt vmcnt(0)"); signal(C_CL + 8)
                lds_wait_imm(a, C_PFL, 1, sleep=1)
            issue(L, 3, regs=RB3)
            if "thr" in OPT:
                a("s_waitcnt vmcnt(12)"); signal(C_CL + 8)
            issue(L, 4, regs=RB4)
            stamp(a, "lissue")
            if "nogate" in OPT:
                a(f"s_waitcnt vmcnt(24)"); signal(C_CL + 8)
            nut = 0
            for (RBx, gate, cl, n_after, slot) in ((RB3, C_C0C, 12, 12, 0), (RB4, C_C1C, 16, 0, 1)):
                lds_wait_imm(a, gate, 8, sleep=1)
                a(f"v_add_u32 v{T2}, {slot*SLOT}, v{T3}")
                a(f"s_waitcnt vmcnt({n_after + nut})")
                stamp(a, f"lw{cl}")
                for n, (kind, q) in enumerate(L):
                    a(f"ds_write_b128 v{T2}, {v(RBx+4*n,4)} offset:{ldoff(kind, q)}")
                signal(C_CL + cl)
        else:
            issue(L, 2, dma_slot=2)
            a("s_waitcnt vmcnt(0)"); signal(C_CL + 8)
            lds_wait_imm(a, C_C0C, 8, sleep=0)
            issue(L, 3, dma_slot=0)
            lds_wait_imm(a, C_C1C, 8, sleep=0)
            issue(L, 4, dma_slot=1)
            stamp(a, "lissue")
            a("s_waitcnt vmcnt(12)"); signal(C_CL + 12)
            a("s_waitcnt vmcnt(0)"); signal(C_CL + 16)
        a(f"s_branch {LD_JOIN}")
        a.label(nxt)
    a.label(LD_JOIN)
    stamp(a, "ldone")
    def gate_fin():
        lds_wait_imm(a, C_QG, 8, sleep=1)
        a(f"v_lshrrev_b32 v{T0}, 5, v1")
        a(f"v_lshlrev_b32 v{T0}, 9, v{T0}")
        a(f"v_and_b32 v{T1}, 31, v1")
        a(f"v_lshlrev_b32 v{T1}, 2, v{T1}")
        a(f"v_add_u32 v{T0}, v{T0}, v{T1}")
        a(f"v_add_u32 v{T0}, {GP}, v{T0}")
        for k in range(4): a(f"ds_read_b32 v{96+k}, v{T0} offset:{128*k}")
        a("s_waitcnt lgkmcnt(0)")
        a(f"v_add_f32 v96, v96, v97")
        a(f"v_add_f32 v98, v98, v99")
        a(f"v_add_f32 v96, v96, v98")
        a(f"v_mul_f32 v96, {hex(f32bits(-1.4426950408889634))}, v96")
        a(f"v_exp_f32 v96, v96")
        a.nop(1)
        a(f"v_add_f32 v96, 1.0, v96")
        a(f"v_rcp_f32 v96, v96")
        a(f"v_lshlrev_b32 v{T0}, 2, v1")
        a(f"v_add_u32 v{T0}, {G_L}, v{T0}")
        a.nop(1)
        a(f"ds_write_b32 v{T0}, v96")
    if_s(a, S_LI, "eq", 2, gate_fin)
    def uround(rnd_sgpr):
        KD, VD, SH = 16, 28, 36
        KA_, KB_, WA_, WB_, UA, UB, UT = 44, 56, 68, 72, 76, 84, 92
        A0, A1, UST = 93, 94, 95
        a(f"s_lshl_b32 s28, s{rnd_sgpr}, 6")
        a(f"v_add_u32 v{T0}, s28, v1")
        a(f"v_lshrrev_b32 v{T1}, 3, v{T0}")
        a(f"v_and_b32 v{T0}, 7, v{T0}")
        a(f"s_mul_i32 s29, s{S_J}, 160")
        a(f"v_lshlrev_b32 v{T2}, 2, v{T1}")
        a(f"v_add_u32 v{T2}, s29, v{T2}")
        a(f"v_lshlrev_b32 v{UST}, 2, v{T2}")
        a(f"buffer_load_dwordx4 {v(SH,4)}, v{UST}, {R(SRD_SH)}, 0 offen")
        a(f"v_lshlrev_b32 v{UST}, 11, v{T2}")
        a(f"v_lshlrev_b32 v{T2}, 4, v{T0}")
        a(f"v_sub_u32 v{UST}, v{UST}, v{T2}")
        a(f"s_lshl_b32 s29, s{S_I}, 7")
        a(f"s_sub_u32 s29, {UR_OFF + 4080}, s29")
        a(f"v_add_u32 v{UST}, s29, v{UST}")
        a(f"v_lshrrev_b32 v{T2}, 2, v{T1}")
        a(f"v_add_u32 v{T2}, v{T2}, v{T0}")
        a(f"v_and_b32 v{T1}, 3, v{T1}")
        a(f"v_lshlrev_b32 v{T1}, 2, v{T1}")
        a(f"v_mul_u32_u24 v{T0}, 1280, v{T0}")
        a(f"v_add3_u32 v{T0}, v{T0}, v{T1}, s77" if False else f"v_add_u32 v{T0}, v{T0}, v{T1}")
        a(f"v_add_u32 v{T0}, {UT_K}, v{T0}")
        for (dst, add) in ((A0, 0), (A1, 1)):
            a(f"v_add_u32 v{UT}, {add}, v{T2}")
            a(f"v_subrev_u32 v{T1}, 10, v{UT}")
            a(f"v_min_u32 v{UT}, v{UT}, v{T1}")
            a(f"v_lshlrev_b32 v{UT}, 4, v{UT}")
            a(f"v_add_u32 v{dst}, v{T0}, v{UT}")
        for r in range(8): a(f"ds_read_b32 v{KD+r}, v{A0} offset:{160*r}")
        for r in range(8, 11): a(f"ds_read_b32 v{KD+r}, v{A1} offset:{160*r}")
        a("s_waitcnt lgkmcnt(4)")
        for r in range(8): a(f"ds_read_b32 v{VD+r}, v{A0} offset:{10720 + 160*r}")
        a("s_waitcnt lgkmcnt(0) vmcnt(0)")
        for r in range(11):
            a(f"v_lshlrev_b32 v{KA_+r}, 16, v{KD+r}")
            a(f"v_and_b32 v{KB_+r}, 0xffff0000, v{KD+r}")
        for (W, base) in ((WA_, SH), (WB_, SH + 2)):
            a(f"v_lshlrev_b32 v{W}, 16, v{base}")
            a(f"v_and_b32 v{W+1}, 0xffff0000, v{base}")
            a(f"v_lshlrev_b32 v{W+2}, 16, v{base+1}")
            a(f"v_and_b32 v{W+3}, 0xffff0000, v{base+1}")
        for e_ in range(8):
            for (U, Kf, W, lo) in ((UA, KA_, WA_, True), (UB, KB_, WB_, False)):
                a(f"v_mul_f32 v{U+e_}, v{Kf+e_+3}, v{W}")
                for jx in range(1, 4):
                    a(f"v_fmac_f32 v{U+e_}, v{Kf+e_+3-jx}, v{W+jx}")
                if lo: a(f"v_lshlrev_b32 v{UT}, 16, v{VD+e_}")
                else: a(f"v_and_b32 v{UT}, 0xffff0000, v{VD+e_}")
                a(f"v_mul_f32 v{U+e_}, v{U+e_}, v{UT}")
        for (U, O_) in ((UA, KD), (UB, KD + 4)):
            for i in range(4):
                a(f"v_cvt_pk_bf16_f32 v{O_+i}, v{U+7-2*i}, v{U+6-2*i}")
        a(f"buffer_store_dwordx4 {v(KD,4)}, v{UST}, {R(SRD_WS)}, 0 offen sc1")
        a(f"v_add_u32 v{UST}, 4096, v{UST}")
        a(f"buffer_store_dwordx4 {v(KD+4,4)}, v{UST}, {R(SRD_WS)}, 0 offen sc1")
    lds_wait_imm(a, C_UTL, 1, sleep=1)
    if "up0" in OPT: a("s_setprio 0")
    if "up1" in OPT: a("s_setprio 1")
    stamp(a, "utl")
    a(f"s_mov_b32 s87, s{S_LI}")
    if "noup" not in OPT: uround(87)
    def second():
        a(f"s_add_u32 s87, s{S_LI}, 3")
        uround(87)
    if "noup" not in OPT: if_s(a, S_LI, "lt", 2, second)
    a("s_waitcnt vmcnt(0)")
    a("s_setprio 3")
    signal(C_UCNT)
    stamp(a, "udone")
    WD = 116
    VL = 121
    def wd_calc():
        a(f"v_lshlrev_b32 v{VL}, 4, v1")
        a(f"s_mul_i32 s29, s{S_J}, 160")
        for t in range(5):
            a(f"v_add_u32 v{T0}, {64*t}, v1")
            div10(a, T0, T1, T0, T2)
            a(f"v_lshlrev_b32 v{T0}, 4, v{T0}")
            a(f"v_and_b32 v{T2}, 0xfff3, v{T1}")
            a(f"v_bfe_u32 v{T3}, v{T1}, 2, 1")
            a(f"v_lshlrev_b32 v{T3}, 3, v{T3}")
            a(f"v_or_b32 v{T2}, v{T2}, v{T3}")
            a(f"v_bfe_u32 v{T3}, v{T1}, 3, 1")
            a(f"v_lshlrev_b32 v{T3}, 2, v{T3}")
            a(f"v_or_b32 v{T2}, v{T2}, v{T3}")
            a(f"v_mul_lo_u32 v{T2}, v{T2}, s{S_1280}")
            a(f"v_add_u32 v{T2}, v{T2}, v{T0}")
            a(f"v_add_u32 v{WD+t}, s29, v{T2}")
    def wo_periods(p_first, p_cnt):
        a(f"s_add_u32 s31, s{S_LI}, {p_first}")
        WL = a.newlabel("wol"); WE = a.newlabel("woe")
        a.label(WL)
        a(f"s_cmp_ge_u32 s31, {p_first + p_cnt}")
        a(f"s_cbranch_scc1 {WE}")
        a(f"s_mul_i32 s28, s31, 5120")
        a(f"s_add_u32 s28, s28, {WOA}")
        a(f"s_mul_i32 s30, s31, {32*1280}")
        for t in range(5):
            a(f"s_add_u32 m0, s28, {1024*t}")
            a(f"s_nop 0")
            a(f"buffer_load_dwordx4 v{WD+t}, {R(SRD_WO)}, s30 offen lds")
        a(f"s_add_u32 s31, s31, 3")
        a(f"s_branch {WL}")
        a.label(WE)
    def lpush(nl, stride_sh, sbase):
        a(f"v_lshlrev_b32 v{T0}, {stride_sh}, v1")
        a(f"v_mov_b32 v{T1}, s{S_NONCE}")
        a(f"s_mov_b64 exec, {hex((1 << nl) - 1)}")
        a(f"buffer_store_dword v{T1}, v{T0}, {R(SRD_WS)}, s{sbase} offen sc1")
        a(f"s_mov_b64 exec, -1")
    def lsetw(addr):
        a(f"v_mov_b32 v{T0}, {addr}")
        a(f"v_mov_b32 v{T1}, 1")
        a(f"ds_write_b32 v{T0}, v{T1}")
    S_MB, S_PB = 89, 90
    def l2_u():
        lds_wait_imm(a, C_NONCE, 1, sleep=1)
        a(f"s_mov_b32 s{S_NONCE}, s42")
        a(f"s_lshl_b32 s{S_MB}, s{S_I}, 3")
        a(f"s_add_u32 s{S_MB}, s{S_MB}, s{S_J}")
        a(f"s_lshl_b32 s{S_MB}, s{S_MB}, 7")
        a(f"s_lshl_b32 s{S_PB}, s{S_J}, 7")
        a(f"s_lshl_b32 s28, s{S_I}, 2")
        a(f"s_add_u32 s{S_PB}, s{S_PB}, s28")
        lds_wait_imm(a, C_UCNT, 3, sleep=1)
        a(f"s_add_u32 s29, s{S_PB}, {H2}")
        lpush(32, 10, 29)
    if_s(a, S_LI, "eq", 2, l2_u)
    wd_calc()
    def wo_list(ps):
        for p_ in ps:
            a(f"s_mov_b32 s30, {p_*32*1280}")
            for t in range(5):
                a(f"s_mov_b32 m0, {WOA + p_*5120 + 1024*t}")
                a(f"s_nop 0")
                a(f"buffer_load_dwordx4 v{WD+t}, {R(SRD_WO)}, s30 offen lds")
    lds_wait_imm(a, C_UCNT, 3, sleep=1)
    lds_wait_imm(a, C_QG, 8, sleep=1)
    wo_periods(11, 9)
    a(f"v_lshlrev_b32 v{T3}, 4, v1")
    def l2_u2():
        a(f"v_lshlrev_b32 v98, 2, v1")
        a(f"s_add_u32 s29, s{S_MB}, {H2}")
        poll_flags(a, 98, "s29", 0xffffffff, 99, sleep=1)
        lsetw(C_UOK)
        stamp(a, "uok")
    if_s(a, S_LI, "eq", 2, l2_u2)
    def h_loads():
        a(f"s_lshl_b32 s28, s{S_CH}, 12")
        for q in range(4):
            a(f"s_add_u32 s29, s28, {1024*q}")
            for k in range(3):
                a(f"buffer_load_dwordx4 {v(HR+12*q+4*k,4)}, v{T3}, {R(SRD_H)}, s29 offen offset:{4*k}")
        a(f"s_lshr_b32 s30, s{S_CH}, 1")
        a(f"s_lshl_b32 s30, s30, 2")
        a(f"s_load_dword s88, s[{S_DPTR}:{S_DPTR+1}], s30")
    NOC = a.newlabel("noconv")
    a(f"s_cmp_ge_u32 s{S_LI}, s{S_NCH}")
    a(f"s_cbranch_scc1 {NOC}")
    if "noconv" in OPT: a(f"s_branch {NOC}")
    h_loads()
    lds_wait_imm(a, C_QG, 8, sleep=2)
    stamp(a, "conv0")
    gen_conv(a, HR)
    a("s_waitcnt vmcnt(0)")
    a.label(NOC)
    a("s_setprio 3")
    signal(C_CVD)
    stamp(a, "conv1")
    wd_calc()
    lds_wait_imm(a, C_QG, 8, sleep=2)
    own = [[0, 1], [3, 4, 5], [7, 8, 9, 10]]
    for li in range(3):
        if_s(a, S_LI, "eq", li, lambda li=li: wo_list(own[li]))
    lds_wait_imm(a, C_CVD, 3, sleep=4)
    def l2_y():
        a(f"s_add_u32 s29, s{S_PB}, {H3}")
        lpush(32, 10, 29)
        stamp(a, "yflag")
    if_s(a, S_LI, "eq", 2, l2_y)
    if_s(a, S_LI, "eq", 0, lambda: wo_list([2]))
    if_s(a, S_LI, "eq", 1, lambda: wo_list([6]))
    a("s_waitcnt vmcnt(0)")
    signal(C_WOK)
    stamp(a, "woready")
    def l2_yok():
        a(f"v_lshlrev_b32 v98, 2, v1")
        a(f"s_add_u32 s29, s{S_MB}, {H3}")
        poll_flags(a, 98, "s29", 0xffffffff, 99, sleep=2)
        lsetw(C_YOK)
        stamp(a, "yok")
    if_s(a, S_LI, "eq", 2, l2_yok)
    def ytile(li):
        YR = 32
        a(f"v_lshrrev_b32 v{T2}, 3, v1")
        a(f"v_lshlrev_b32 v{T2}, 12, v{T2}")
        a(f"v_and_b32 v{T3}, 7, v1")
        a(f"v_lshlrev_b32 v{T3}, 4, v{T3}")
        a(f"v_add_u32 v{T2}, v{T2}, v{T3}")
        lds_wait_imm(a, C_YOK, 1, sleep=2)
        a(f"s_mul_i32 s28, s{S_J}, {80*4096}")
        a(f"s_lshl_b32 s29, s{S_I}, 7")
        a(f"s_add_u32 s28, s28, s29")
        a(f"s_add_u32 s28, s28, {YT_OFF + li*5*8*4096}")
        for t in range(5):
            a(f"buffer_load_dwordx4 {v(YR+4*t,4)}, v{T2}, {R(SRD_WS)}, s28 offen sc1")
            a(f"s_add_u32 s28, s28, {8*4096}")
        a(f"v_add_u32 v{T2}, {YL + li*5120}, v{VL}")
        lds_wait_imm(a, C_ST, 8, sleep=1)
        a("s_waitcnt vmcnt(0)")
        for t in range(5): a(f"ds_write_b128 v{T2}, {v(YR+4*t,4)} offset:{1024*t}")
        signal(C_YW)
    for li in range(2):
        if_s(a, S_LI, "eq", li, lambda li=li: ytile(li))

def gen_conv(a, HR):
    URL = 16640
    CA, FA, FB, AD = 16, 48, 80, 112
    VA, VB, CT2, CT3 = 160, 161, 162, 163
    a(f"v_lshlrev_b32 v{T2}, 4, v1")
    a(f"v_add_u32 v{T3}, s{S_CB}, v{T2}")
    a("s_waitcnt vmcnt(0)")
    for q in range(4):
        X0, X1, X2 = HR+12*q, HR+12*q+4, HR+12*q+8
        C1, C3 = CA + 8*(q & 1), CA + 8*(q & 1) + 4
        for k in range(4):
            a(f"v_alignbit_b32 v{C1+k}, v{X1+k}, v{X0+k}, 16")
            a(f"v_alignbit_b32 v{C3+k}, v{X2+k}, v{X1+k}, 16")
        o = 1024 * q + 32
        a(f"ds_write_b128 v{T3}, {v(X0,4)} offset:{o}")
        a(f"ds_write_b128 v{T3}, {v(C1,4)} offset:{4160+o}")
        a(f"ds_write_b128 v{T3}, {v(X1,4)} offset:{8320+o}")
        a(f"ds_write_b128 v{T3}, {v(C3,4)} offset:{12480+o}")
    Z = CA + 16
    for k in range(4): a(f"v_mov_b32 v{Z+k}, 0")
    a(f"v_alignbit_b32 v{Z+4}, v{HR+4}, v{HR}, 16")
    a(f"v_lshlrev_b32 v{Z+5}, 16, v{HR}")
    a(f"v_mov_b32 v{Z+6}, v{HR}")
    a(f"v_lshrrev_b32 v{T0}, 1, v1")
    a(f"v_mul_u32_u24 v{T0}, 4160, v{T0}")
    a(f"v_and_b32 v{T1}, 1, v1")
    a(f"v_lshlrev_b32 v{T1}, 4, v{T1}")
    a(f"v_add_u32 v{T0}, v{T0}, v{T1}")
    a(f"v_add_u32 v{T0}, s{S_CB}, v{T0}")
    a(f"s_mov_b64 exec, 0xff")
    a(f"ds_write_b128 v{T0}, {v(Z,4)}")
    a(f"s_mov_b64 exec, 0xffffffff")
    a(f"ds_write_b128 v{T3}, {v(Z,4)} offset:{URL+4096}")
    a(f"s_mov_b64 exec, 1")
    a(f"ds_write_b32 v{T3}, v{Z+5} offset:{4160+28}")
    a(f"ds_write_b32 v{T3}, v{Z+6} offset:{8320+28}")
    a(f"ds_write_b32 v{T3}, v{Z+5} offset:{12480+24}")
    a(f"ds_write_b32 v{T3}, v{Z+4} offset:{12480+28}")
    a(f"s_mov_b64 exec, -1")
    a("s_waitcnt lgkmcnt(0)")
    a(f"v_mov_b32 v{FA}, v{T3}")
    a(f"v_mov_b32 v{FA+1}, v{T2}")
    lds_wait_imm(a, C_UOK, 1, sleep=2)
    a(f"s_lshl_b32 s28, s{S_CH}, 12")
    a(f"s_add_u32 s28, s28, {UR_OFF}")
    for q in range(4):
        a(f"s_add_u32 s29, s28, {1024*q}")
        a(f"buffer_load_dwordx4 {v(FB+4*q,4)}, v{FA+1}, {R(SRD_WS)}, s29 offen sc1")
    a(f"v_and_b32 v{T0}, 15, v1")
    a(f"v_lshrrev_b32 v{T1}, 4, v1")
    a(f"v_add_u32 v{CT2}, 1, v{T0}")
    a(f"v_and_b32 v{CT3}, 3, v{CT2}")
    a(f"v_mul_u32_u24 v{VA}, 4160, v{CT3}")
    a(f"v_lshrrev_b32 v{CT2}, 2, v{CT2}")
    a(f"v_lshlrev_b32 v{CT2}, 3, v{CT2}")
    a(f"v_lshlrev_b32 v{CT3}, 4, v{T1}")
    a(f"v_add_u32 v{VA}, v{VA}, v{CT2}")
    a(f"v_add_u32 v{VA}, v{VA}, v{CT3}")
    a(f"v_add_u32 v{VA}, s{S_CB}, v{VA}")
    a(f"v_lshlrev_b32 v{CT2}, 5, v{T0}")
    a(f"v_sub_u32 v{VB}, v{CT3}, v{CT2}")
    a(f"s_add_u32 s28, s{S_CB}, {URL + 480}")
    a(f"v_add_u32 v{VB}, s28, v{VB}")
    a(f"s_and_b32 s30, s{S_CH}, 1")
    a(f"s_lshl_b32 s30, s30, 4")
    a(f"s_lshr_b32 s88, s88, s30")
    a(f"s_and_b32 s88, s88, 0xffff")
    a(f"v_lshlrev_b32 v{T1}, 3, v{T1}")
    a(f"v_add_u32 v{T0}, v{T0}, v{T1}")
    a(f"v_sub_u32 v{T0}, 15, v{T0}")
    a(f"v_and_b32 v{T1}, 1, v{T0}")
    a(f"v_lshlrev_b32 v{T1}, 4, v{T1}")
    a(f"v_mov_b32 v{CT2}, s88")
    a(f"v_lshlrev_b32 v{CT2}, v{T1}, v{CT2}")
    a(f"v_lshrrev_b32 v{T0}, 1, v{T0}")
    for k in range(4):
        a(f"v_cmp_eq_u32 vcc, {k}, v{T0}")
        a.nop(2)
        a(f"v_cndmask_b32 v{AD+k}, 0, v{CT2}, vcc")
    for r in range(32): a(f"v_mov_b32 v{CA+r}, 0")
    a("s_waitcnt vmcnt(0)")
    for q in range(4):
        a(f"ds_write_b128 v{FA}, {v(FB+4*q,4)} offset:{URL + 1024*q}")
    a("s_waitcnt lgkmcnt(0)")
    stamp(a, "convm")
    a(f"s_setprio {2 if 'cp2' in OPT else (1 if 'cp1' in OPT else 0)}")
    a(f"s_mov_b32 s86, 0")
    PL = a.newlabel("convph")
    a.label(PL)
    a(f"ds_read_b64 {v(FA,2)}, v{VA}")
    a(f"ds_read_b64 {v(FA+2,2)}, v{VA} offset:8")
    for vv in range(8):
        a(f"ds_read_b128 {v(FB+4*vv,4)}, v{VB} offset:{512*(7-vv)}")
    for i in range(1, 3):
        a(f"ds_read_b64 {v(FA+4*i,2)}, v{VA} offset:{512*i}")
        a(f"ds_read_b64 {v(FA+4*i+2,2)}, v{VA} offset:{512*i+8}")
    a("s_waitcnt lgkmcnt(4)")
    for i in range(3, 8):
        a(f"ds_read_b64 {v(FA+4*i,2)}, v{VA} offset:{512*i}")
        a(f"ds_read_b64 {v(FA+4*i+2,2)}, v{VA} offset:{512*i+8}")
    for vv in range(8):
        a(f"v_mfma_f32_16x16x32_bf16 {v(CA+4*vv,4)}, {v(FA,4)}, {v(FB+4*vv,4)}, {v(CA+4*vv,4)}")
    lab = a.newlabel("noD")
    a(f"s_cmp_lg_u32 s86, 0")
    a(f"s_cbranch_scc1 {lab}")
    for vv in range(8):
        a(f"v_mfma_f32_16x16x32_bf16 {v(CA+4*vv,4)}, {v(AD,4)}, {v(FB+4*vv,4)}, {v(CA+4*vv,4)}")
    a.label(lab)
    a("s_waitcnt lgkmcnt(0)")
    for i in range(1, 8):
        for vv in range(8 - i):
            t = i + vv
            a(f"v_mfma_f32_16x16x32_bf16 {v(CA+4*t,4)}, {v(FA+4*i,4)}, {v(FB+4*vv,4)}, {v(CA+4*t,4)}")
    a(f"v_add_u32 v{VA}, 64, v{VA}")
    a(f"v_add_u32 v{VB}, 64, v{VB}")
    a(f"s_add_u32 s86, s86, 1")
    a(f"s_cmp_lt_u32 s86, 8")
    a(f"s_cbranch_scc1 {PL}")
    a(f"s_lshl_b32 s28, s{S_CH}, 12")
    a(f"s_add_u32 s28, s28, {YT_OFF}")
    a(f"v_and_b32 v{CT2}, 15, v1")
    a(f"v_lshlrev_b32 v{CT2}, 5, v{CT2}")
    a(f"v_lshrrev_b32 v{CT3}, 4, v1")
    a(f"v_lshlrev_b32 v{CT3}, 3, v{CT3}")
    a(f"v_add_u32 v{CT2}, v{CT2}, v{CT3}")
    a.nop(4)
    for t in range(8):
        a(f"v_cvt_pk_bf16_f32 v{FB+2*t}, v{CA+4*t}, v{CA+4*t+1}")
        a(f"v_cvt_pk_bf16_f32 v{FB+2*t+1}, v{CA+4*t+2}, v{CA+4*t+3}")
        a(f"buffer_store_dwordx2 {v(FB+2*t,2)}, v{CT2}, {R(SRD_WS)}, s28 offen offset:{512*t} sc1")

HEADER = """; gated_mix: fused single kernel (generated by dev/gen20.py, gen4 o-layout)
; @launch grid=(256,1,1) block=(768,1,1) lds=163840
.amdgcn_target "amdgcn-amd-amdhsa--gfx950"
.text
"""
if __name__ == "__main__":
    if len(sys.argv) > 2: OPT.update(sys.argv[2].split(","))
    a = Asm()
    gen(a)
    h = HEADER
    if STAMPS: h = h.replace(".amdgcn", "; STAMPS " + ",".join(STAMPS) + "\n.amdgcn")
    open(sys.argv[1], "w").write(h + a.text())
```

```python
import sys, struct
from asmlib import *

NAME = "gated_mix__ssm_conv_h3__grouped_kv_mqa__prompt"
KVF_OFF = 0
UR_OFF = 0x40000
YT_OFF = 0x2C0000
O_OFF = 0x540000
FL_OFF = 0x7C0000
H1 = FL_OFF
H2 = FL_OFF + 0x4000
H3 = FL_OFF + 0xC000
H4 = FL_OFF + 0x14000
ST_OFF = 0x800000
WS_USED = 0x900000
XB = 2048 * 640 * 2
QSCALE = (20 ** -0.5) * 1.4426950408889634
def f32bits(x): return struct.unpack("<I", struct.pack("<f", x))[0]
OPT = set()
POLL_MAX = 40000

SRD_X, SRD_WQ, SRD_WS, SRD_H = 4, 8, 12, 16
S_I, S_J, S_W, S_HH, S_G, S_NONCE, S_1280, S_ROT = 20, 21, 22, 23, 24, 25, 26, 27
SRD_K, SRD_V, SRD_SH, SRD_W, SRD_GW, SRD_WO, SRD_OUT, SRD_DBG = 44, 48, 52, 56, 60, 64, 68, 72
S_DPTR = 76
S_CH, S_NCH, S_CB = 83, 84, 85
SLOT = 36864
UT_K = 137472
UT_V = UT_K + 10720
UNIT_W = 131552
UNIT_S = 6656
QXA = 110592
QXB = QXA + 8192
GWL = 159744
GP = GWL + 1280
G_L = 162048
CNT = G_L + 256
C_FULL, C_DONE = CNT, CNT + 32
C_KVOK, C_UCNT, C_CVD = CNT + 68, CNT + 72, CNT + 80
C_UOK, C_YOK, C_OCNT, C_OOK = CNT + 84, CNT + 88, CNT + 92, CNT + 96
C_UTL, C_UTC, C_UP, C_C0C, C_C1C, C_QG, C_WOK = CNT + 100, CNT + 104, CNT + 108, CNT + 112, CNT + 116, CNT + 120, CNT + 124
C_CL = CNT + 128
C_QXF = CNT + 160
C_PROG = CNT + 192
C_PD = CNT + 228
C_WOKB = CNT + 232
C_LE, C_ST, C_PFL, C_QRD = CNT + 236, CNT + 240, CNT + 244, CNT + 248
C_LEB = CNT + 252
C_NONCE = CNT + 64
C_XF = CNT + 256
C_PF = CNT + 288
C_YW = CNT + 224
BLK = 3072
KVSLOT = 4 * BLK
RING_STRIDE = 2 * KVSLOT
CONVB = 49152
CHB = 21248
WOA = 56576
WOB = WOA + 51200
YL = 36864
DUMMY = 162688
OX = 0
OST = 12288
PX = 0
V_ST = 167
NVGPR = 168
T0, T1, T2, T3 = 2, 3, 164, 165

STAMPS = []
def stamp(a, name, real=False):
    if "stamp" not in OPT: return
    if "minst" in OPT and name not in ("rt0", "t0", "end", "rt1", "unitld", "loop0", "loopE"): return
    if name in STAMPS: idx = STAMPS.index(name)
    else:
        STAMPS.append(name); idx = len(STAMPS) - 1
    a(f"s_waitcnt lgkmcnt(0)")
    a(f"{'s_memrealtime' if real else 's_memtime'} s[98:99]")
    a(f"s_waitcnt lgkmcnt(0)")
    a(f"v_writelane_b32 v{V_ST}, s98, {idx}")
def stamp_flush(a):
    if "stamp" not in OPT: return
    a(f"s_mov_b64 exec, -1")
    a(f"s_mul_i32 s98, s2, 12")
    a(f"s_add_u32 s98, s98, s{S_W}")
    a(f"s_lshl_b32 s98, s98, 8")
    a(f"s_add_u32 s98, s98, {ST_OFF}")
    a(f"v_lshlrev_b32 v166, 2, v1")
    a(f"buffer_store_dword v{V_ST}, v166, s[{SRD_WS}:{SRD_WS+3}], s98 offen")
    a("s_waitcnt vmcnt(0)")

def R(b): return f"s[{b}:{b+3}]"

def poll_global(a, nload, check, sleep=1):
    lp = a.newlabel("poll"); dn = a.newlabel("pdone")
    a(f"s_mov_b32 s43, 0")
    a.label(lp)
    nload()
    a("s_waitcnt vmcnt(0)")
    check()
    a(f"s_cbranch_scc1 {dn}")
    a(f"s_add_u32 s43, s43, 1")
    a(f"s_cmp_lt_u32 s43, {POLL_MAX}")
    a(f"s_cbranch_scc0 {dn}")
    if sleep: a(f"s_sleep {sleep}")
    a(f"s_branch {lp}")
    a.label(dn)

def flags_check(a, vt, n):
    if n == 4:
        for k in range(4): a(f"v_xor_b32 v{vt+k}, s{S_NONCE}, v{vt+k}")
        a(f"v_or_b32 v{vt}, v{vt}, v{vt+1}")
        a(f"v_or_b32 v{vt+2}, v{vt+2}, v{vt+3}")
        a(f"v_or_b32 v{vt}, v{vt}, v{vt+2}")
        a(f"v_cmp_ne_u32 vcc, 0, v{vt}")
    else:
        a(f"v_cmp_ne_u32 vcc, s{S_NONCE}, v{vt}")
    a(f"s_nop 1")
    a(f"s_and_b64 vcc, vcc, s[40:41]")
    a(f"s_cmp_eq_u64 vcc, 0")
def poll_flags(a, vaddr, soff, lanes_mask, vt, n=1, sleep=1):
    def ld():
        if n == 1: a(f"buffer_load_dword v{vt}, v{vaddr}, {R(SRD_WS)}, {soff} offen sc1")
        else: a(f"buffer_load_dwordx4 {v(vt,4)}, v{vaddr}, {R(SRD_WS)}, {soff} offen sc1")
    a(f"s_mov_b32 s40, {lanes_mask & 0xffffffff}")
    a(f"s_mov_b32 s41, {(lanes_mask >> 32) & 0xffffffff}")
    poll_global(a, ld, lambda: flags_check(a, vt, n), sleep)

def poll_flags_pipe(a, vaddr, soff, lanes_mask, vbase, n=1, sleep=6, depth=3):
    def ld(k):
        if n == 1: a(f"buffer_load_dword v{vbase+k}, v{vaddr}, {R(SRD_WS)}, {soff} offen sc1")
        else: a(f"buffer_load_dwordx4 {v(vbase+4*k,4)}, v{vaddr}, {R(SRD_WS)}, {soff} offen sc1")
    a(f"s_mov_b32 s40, {lanes_mask & 0xffffffff}")
    a(f"s_mov_b32 s41, {(lanes_mask >> 32) & 0xffffffff}")
    a(f"s_mov_b32 s43, 0")
    for k in range(depth):
        ld(k)
        if k < depth - 1: a(f"s_sleep {sleep}")
    lp = a.newlabel("pp"); dn = a.newlabel("ppd")
    a.label(lp)
    for k in range(depth):
        a(f"s_waitcnt vmcnt({depth-1})")
        flags_check(a, vbase + k*n, n)
        a(f"s_cbranch_scc1 {dn}")
        ld(k)
        a(f"s_sleep {sleep}")
    a(f"s_add_u32 s43, s43, 1")
    a(f"s_cmp_lt_u32 s43, {POLL_MAX}")
    a(f"s_cbranch_scc1 {lp}")
    a.label(dn)

def lds_wait_ge(a, target, vt, vaddr, sleep=1):
    lp = a.newlabel("lw"); dn = a.newlabel("lwd")
    a(f"s_mov_b32 s43, 0")
    a.label(lp)
    a(f"ds_read_b32 v{vt}, v{vaddr}")
    a("s_waitcnt lgkmcnt(0)")
    a(f"v_readfirstlane_b32 s42, v{vt}")
    a("s_nop 3")
    a(f"s_cmp_ge_u32 s42, {target}")
    a(f"s_cbranch_scc1 {dn}")
    a(f"s_add_u32 s43, s43, 1")
    a(f"s_cmp_lt_u32 s43, {POLL_MAX * 8}")
    a(f"s_cbranch_scc0 {dn}")
    if sleep: a(f"s_sleep {sleep}")
    a(f"s_branch {lp}")
    a.label(dn)
def lds_wait_imm(a, addr, target, vt=T1, va=T0, sleep=1):
    a(f"v_mov_b32 v{va}, {addr}")
    lds_wait_ge(a, target, vt, va, sleep)
def lds_add1(a, vaddr, vone):
    a("s_mov_b64 exec, 1")
    a(f"ds_add_u32 v{vaddr}, v{vone}")
    a("s_mov_b64 exec, -1")
def lds_add1_imm(a, addr, va=T0, vo=T1):
    a(f"v_mov_b32 v{va}, {addr}")
    a(f"v_mov_b32 v{vo}, 1")
    lds_add1(a, va, vo)
def if_s(a, sreg, cmp, val, fn):
    lb = a.newlabel("ifw")
    inv = {"eq": "lg", "lt": "ge", "ge": "lt", "lg": "eq"}[cmp]
    a(f"s_cmp_{inv}_u32 s{sreg}, {val}")
    a(f"s_cbranch_scc1 {lb}")
    fn()
    a.label(lb)
def if_wave(a, cmp, val, fn): if_s(a, S_W, cmp, val, fn)

def chunk_phys(a, k):
    a(f"s_add_u32 s94, s97, {k}")
    a(f"s_sub_u32 s92, s94, 5")
    a(f"s_cmp_ge_u32 s94, 5")
    a(f"s_cselect_b32 s94, s92, s94")
    a(f"s_lshl_b32 s92, s94, 8")
    a(f"s_mul_i32 s93, s94, 163840")

def div10(a, p, q, r, t):
    a(f"v_mul_u32_u24 v{q}, 6554, v{p}")
    a(f"v_lshrrev_b32 v{q}, 16, v{q}")
    a(f"v_mul_u32_u24 v{t}, 10, v{q}")
    a(f"v_sub_u32 v{r}, v{p}, v{t}")

def gen(a):
    name = NAME + "_kernel"
    a.L.append(kernel_header(name))
    END = "f_end"
    a(f"s_cmp_ge_u32 s2, 256")
    a(f"s_cbranch_scc1 {END}")
    a(f"s_load_dwordx16 s[76:91], s[0:1], 0")
    a(f"s_load_dwordx8 s[92:99], s[0:1], 64")
    a(f"s_load_dwordx4 s[28:31], s[0:1], 96")
    a(f"s_load_dwordx2 s[32:33], s[0:1], 112")
    a(f"v_lshrrev_b32 v1, 6, v0")
    a(f"s_and_b32 s{S_I}, s2, 7")
    a(f"s_lshl_b32 s{S_I}, s{S_I}, 2")
    a(f"s_lshr_b32 s{S_J}, s2, 6")
    a(f"s_add_u32 s{S_I}, s{S_I}, s{S_J}")
    a(f"s_lshr_b32 s{S_J}, s2, 3")
    a(f"s_and_b32 s{S_J}, s{S_J}, 7")
    a(f"v_readfirstlane_b32 s{S_W}, v1")
    a(f"v_and_b32 v1, 63, v0")
    a(f"s_movk_i32 s{S_1280}, 1280")
    a(f"s_add_u32 s{S_ROT}, s{S_I}, s{S_J}")
    a(f"s_and_b32 s{S_ROT}, s{S_ROT}, 7")
    a(f"s_and_b32 s{S_HH}, s{S_W}, 3")
    a(f"s_lshr_b32 s{S_G}, s{S_W}, 2")
    V_XD, V_WD, V_UST = 112, 113, 111
    HR = 116
    XF, UACC, WFA, SH = 16, 4, 44, 36
    for reg, size in ((SRD_X, XB), (SRD_W, 25600)):
        a(f"s_mov_b32 s{reg+2}, {size}")
        a(f"s_mov_b32 s{reg+3}, 0x00020000")
    a(f"s_and_b32 s34, s{S_J}, 3")
    a(f"s_lshl_b32 s34, s34, 4")
    a(f"s_lshl_b32 s35, s{S_I}, 6")
    a(f"s_add_u32 s34, s34, s35")
    a(f"v_and_b32 v{T0}, 15, v1")
    a(f"v_add_u32 v{T0}, s34, v{T0}")
    a(f"v_mul_lo_u32 v{T0}, v{T0}, s{S_1280}")
    a(f"v_lshrrev_b32 v{T1}, 4, v1")
    a(f"v_lshlrev_b32 v{T2}, 4, v{T1}")
    a(f"v_add_u32 v{T0}, v{T0}, v{T2}")
    a(f"v_lshlrev_b32 v{T2}, 4, v1")
    a(f"s_mul_i32 s35, s{S_W}, 320")
    a(f"s_mul_i32 s36, s{S_W}, 6400")
    a(f"s_mul_i32 s37, s{S_W}, {UNIT_S}")
    a(f"s_cmp_ge_u32 s{S_J}, 4")
    a("s_waitcnt lgkmcnt(0)")
    a(f"s_cselect_b32 s{SRD_W}, s94, s92")
    a(f"s_cselect_b32 s{SRD_W+1}, s95, s93")
    a(f"s_mov_b32 s{SRD_X}, s76")
    a(f"s_mov_b32 s{SRD_X+1}, s77")
    if "stamp" in OPT: a(f"v_mov_b32 v{V_ST}, 0")
    stamp(a, "rt0", True); stamp(a, "t0")
    def unit_loads():
        a("s_setprio 2")
        for s_ in range(5):
            a(f"buffer_load_dwordx4 {v(XF+4*s_,4)}, v{T0}, {R(SRD_X)}, s35 offen offset:{64*s_}")
        for q in range(7):
            a(f"s_add_u32 m0, s37, {UNIT_W + 1024*q}")
            a(f"s_add_u32 s31, s36, {1024*q}")
            if q == 6: a(f"s_mov_b64 exec, 0xffffffff")
            a(f"buffer_load_dwordx4 v{T2}, {R(SRD_W)}, s31 offen lds")
        a(f"s_mov_b64 exec, -1")
        a("s_setprio 0")
    a(f"s_mov_b32 s38, s31")
    if_wave(a, "lt", 4, unit_loads)
    a(f"s_mov_b32 s31, s38")
    srd(a, SRD_WQ, 90, 640 * 640 * 2)
    srd(a, SRD_GW, 98, 1280)
    srd(a, SRD_K, 78, XB)
    srd(a, SRD_V, 80, XB)
    srd(a, SRD_SH, 82, 640 * 4 * 2)
    srd(a, SRD_WS, 32, WS_USED)
    srd(a, SRD_DBG, 30, 256)
    srd(a, SRD_H, 84, XB)
    srd(a, SRD_WO, 96, 640 * 640 * 2)
    srd(a, SRD_OUT, 28, XB)
    a(f"s_mov_b32 s{S_DPTR}, s86")
    a(f"s_mov_b32 s{S_DPTR+1}, s87")
    a(f"s_mul_i32 s37, s{S_I}, 3")
    a(f"s_lshl_b32 s34, s{S_I}, 1")
    a(f"s_add_u32 s34, s34, 16")
    a(f"s_cmp_lt_u32 s{S_I}, 16")
    a(f"s_cselect_b32 s35, s37, s34")
    a(f"s_cselect_b32 s{S_NCH}, 3, 2")
    a(f"s_mul_i32 s34, s{S_J}, 80")
    a(f"s_add_u32 s35, s35, s34")
    a(f"s_sub_u32 s38, s{S_W}, 9")
    a(f"s_add_u32 s{S_CH}, s35, s38")
    a(f"s_mul_i32 s{S_CB}, s38, {CHB}")
    a(f"s_add_u32 s{S_CB}, s{S_CB}, {CONVB}")
    a(f"s_add_u32 s97, s{S_I}, s{S_J}")
    a(f"s_mul_i32 s96, s97, 52")
    a(f"s_lshr_b32 s96, s96, 8")
    a(f"s_mul_i32 s96, s96, 5")
    a(f"s_sub_u32 s97, s97, s96")
    PSTART = "f_pstart"
    a(f"s_cmp_eq_u32 s{S_W}, 8")
    a(f"s_cbranch_scc1 {PSTART}")
    a(f"s_cmp_gt_u32 s{S_W}, 8")
    a(f"s_cbranch_scc1 f_lstart")

    a(f"v_lshrrev_b32 v{T0}, 4, v1")
    a(f"s_lshl_b32 s28, s{S_W}, 2")
    a(f"v_add_u32 v{T0}, s28, v{T0}")
    a(f"v_xor_b32 v{T1}, v1, v{T0}")
    a(f"v_and_b32 v{T1}, 15, v{T1}")
    a(f"v_lshlrev_b32 v{T1}, 4, v{T1}")
    a(f"s_lshl_b32 s28, s{S_I}, 6")
    a(f"v_add_u32 v{T0}, s28, v{T0}")
    a(f"v_mul_lo_u32 v{T0}, v{T0}, s{S_1280}")
    a(f"v_add_u32 v{V_XD}, v{T0}, v{T1}")
    a(f"s_mul_i32 s29, s{S_J}, 160")
    a(f"s_lshl_b32 s28, s{S_W}, 6")
    for t in range(3):
        a(f"v_add_u32 v{T0}, s28, v1")
        if t: a(f"v_add_u32 v{T0}, {512*t}, v{T0}")
        div10(a, T0, T1, T0, T2)
        a(f"v_lshlrev_b32 v{T0}, 4, v{T0}")
        a(f"v_and_b32 v{T2}, 0xfff8, v{T1}")
        a(f"v_bfe_u32 v{T3}, v{T1}, 1, 2")
        a(f"v_or_b32 v{T2}, v{T2}, v{T3}")
        a(f"v_and_b32 v{T1}, 1, v{T1}")
        a(f"v_lshlrev_b32 v{T1}, 2, v{T1}")
        a(f"v_or_b32 v{T2}, v{T2}, v{T1}")
        a(f"v_mul_lo_u32 v{T2}, v{T2}, s{S_1280}")
        a(f"v_add_u32 v{T2}, v{T2}, v{T0}")
        a(f"v_add_u32 v{V_WD+t}, s29, v{T2}")
    def dma_chunk(ch, slot):
        base = slot * SLOT
        chunk_phys(a, ch)
        a(f"s_lshl_b32 s28, s{S_W}, 10")
        for t in range(2):
            a(f"s_add_u32 m0, s28, {base + 8192*t}")
            a(f"s_add_u32 s29, s92, {32*1280*t}")
            a(f"buffer_load_dwordx4 v{V_XD}, {R(SRD_X)}, s29 offen lds")
        a(f"s_mov_b32 s29, s93")
        for t in range(3):
            def one(t=t):
                a(f"s_add_u32 m0, s28, {base + 16384 + 8192*t}")
                a(f"s_nop 0")
                a(f"buffer_load_dwordx4 v{V_WD+t}, {R(SRD_WQ)}, s29 offen lds")
            if t < 2: one()
            else: if_wave(a, "lt", 4, one)
    def wait_vm(nA, nB):
        la = a.newlabel("wa"); lb = a.newlabel("wb")
        a(f"s_cmp_lt_u32 s{S_W}, 4")
        a(f"s_cbranch_scc1 {la}")
        a(f"s_waitcnt vmcnt({nB})")
        a(f"s_branch {lb}")
        a.label(la)
        a(f"s_waitcnt vmcnt({nA})")
        a.label(lb)
    NA, NB = 5, 4
    def gw():
        a(f"s_mul_i32 s28, s{S_HH}, 320")
        a(f"s_add_u32 m0, s28, {GWL}")
        a(f"v_lshlrev_b32 v{T0}, 4, v1")
        a(f"s_mov_b64 exec, 0xfffff")
        a(f"buffer_load_dwordx4 v{T0}, {R(SRD_GW)}, s28 offen lds")
        a(f"s_mov_b64 exec, -1")
    if_wave(a, "ge", 4, gw)
    dma_chunk(0, 0); dma_chunk(1, 1)
    a("s_barrier")
    def unit_compute():
        a(f"v_lshrrev_b32 v{T1}, 4, v1")
        a(f"v_bfe_u32 v{T2}, v1, 2, 2")
        a(f"v_lshlrev_b32 v{T1}, 3, v{T1}")
        a(f"v_add_u32 v{T2}, v{T2}, v{T1}")
        a(f"v_mul_u32_u24 v{T2}, 40, v{T2}")
        a(f"v_and_b32 v{T3}, 3, v1")
        a(f"v_lshlrev_b32 v{T3}, 3, v{T3}")
        a(f"v_add_u32 v{T2}, v{T2}, v{T3}")
        a(f"s_mul_i32 s30, s{S_W}, {UNIT_S}")
        a(f"s_add_u32 s30, s30, {UNIT_W}")
        a(f"v_add_u32 v{T2}, s30, v{T2}")
        for r in range(8): a(f"v_mov_b32 v{UACC+r}, 0")
        a(f"s_waitcnt vmcnt({2*NA})")
        stamp(a, "unitld")
        for s_ in range(5):
            for dt in range(2):
                for jj in range(2):
                    a(f"ds_read_b64_tr_b16 {v(WFA+8*s_+4*dt+2*jj,2)}, v{T2} offset:{1280*s_ + 160*jj + 32*dt}")
            if s_ == 2: a("s_waitcnt lgkmcnt(4)")
        labV = a.newlabel("kindV"); labD = a.newlabel("kindD")
        a("s_waitcnt lgkmcnt(0)")
        a(f"s_cmp_ge_u32 s{S_J}, 4")
        a(f"s_cbranch_scc1 {labV}")
        for kind in range(2):
            for s_ in range(5):
                for dt in range(2):
                    w_ = v(WFA+8*s_+4*dt, 4); x_ = v(XF+4*s_, 4)
                    A_, B_ = (w_, x_) if kind == 0 else (x_, w_)
                    a(f"v_mfma_f32_16x16x32_bf16 {v(UACC+4*dt,4)}, {A_}, {B_}, {v(UACC+4*dt,4)}")
            if kind == 0:
                a(f"s_branch {labD}")
                a.label(labV)
        a.label(labD)
        a.nop(8)
        a(f"s_mul_i32 s29, s{S_W}, {UNIT_S}")
        a(f"s_add_u32 s29, s29, {UNIT_W}")
        a(f"v_lshlrev_b32 v{T0}, 4, v1")
        a(f"v_add_u32 v{T1}, s29, v{T0}")
        a(f"ds_write_b128 v{T1}, {v(UACC,4)}")
        a(f"ds_write_b128 v{T1}, {v(UACC+4,4)} offset:1024")
        lds_add1_imm(a, C_UP)
    if_wave(a, "lt", 4, unit_compute)
    V_XA, V_WA, V_GWA, V_QXP = 24, 32, 33, 34
    QACC, GACC, GW, QXF, QWF = 44, 60, 76, 84, 96
    a(f"v_and_b32 v{T0}, 31, v1")
    a(f"s_lshl_b32 s28, s{S_G}, 5")
    a(f"v_add_u32 v{T0}, s28, v{T0}")
    a(f"v_lshrrev_b32 v{T1}, 5, v1")
    a(f"v_and_b32 v{T2}, 15, v{T0}")
    a(f"v_xor_b32 v{T2}, v{T2}, v{T1}")
    a(f"v_lshlrev_b32 v{T2}, 4, v{T2}")
    a(f"v_lshlrev_b32 v{T0}, 8, v{T0}")
    a(f"v_add_u32 v{V_XA}, v{T0}, v{T2}")
    for s_ in range(1, 8): a(f"v_xor_b32 v{V_XA+s_}, {32*s_}, v{V_XA}")
    a(f"v_bfe_u32 v{T0}, v1, 2, 2")
    a(f"v_lshlrev_b32 v{T0}, 1, v{T0}")
    a(f"v_lshlrev_b32 v{T2}, 3, v{T1}")
    a(f"v_add_u32 v{T0}, v{T0}, v{T2}")
    a(f"v_mul_u32_u24 v{T0}, 160, v{T0}")
    a(f"v_and_b32 v{T2}, 3, v1")
    a(f"v_lshlrev_b32 v{T2}, 3, v{T2}")
    a(f"v_and_b32 v{T3}, 16, v1")
    a(f"v_cmp_ne_u32 vcc, 0, v{T3}")
    a(f"s_mul_i32 s28, s{S_HH}, 40")
    a(f"s_add_u32 s28, s28, 16384")
    a(f"v_mov_b32 v{T3}, 32")
    a(f"v_cndmask_b32 v{T2}, v{T2}, v{T3}, vcc")
    a(f"v_add_u32 v{T0}, v{T0}, v{T2}")
    a(f"v_add_u32 v{V_WA}, s28, v{T0}")
    for r in range(16):
        a(f"v_mov_b32 v{QACC+r}, 0"); a(f"v_mov_b32 v{GACC+r}, 0")
    a(f"v_lshlrev_b32 v{T1}, 4, v{T1}")
    a(f"s_lshl_b32 s28, s{S_HH}, 5")
    a(f"s_add_u32 s28, s28, {GWL}")
    a(f"v_add_u32 v{V_GWA}, s28, v{T1}")
    def q_chunk(ch, slot):
        off = (slot & 1) * SLOT
        def loads(s_):
            b = s_ % 3
            a(f"ds_read_b128 {v(QXF+4*b,4)}, v{V_XA+s_} offset:{off}")
            a(f"ds_read_b64_tr_b16 {v(QWF+4*b,2)}, v{V_WA} offset:{off + 2560*s_}")
            a(f"ds_read_b64_tr_b16 {v(QWF+4*b+2,2)}, v{V_WA} offset:{off + 2560*s_ + 160}")
        chunk_phys(a, ch)
        a(f"v_add_u32 v{T0}, s92, v{V_GWA}")
        a(f"ds_read_b128 {v(GW,4)}, v{T0}")
        a(f"ds_read_b128 {v(GW+4,4)}, v{T0} offset:128")
        loads(0); loads(1)
        for s_ in range(8):
            if s_ < 6:
                loads(s_+2); a("s_waitcnt lgkmcnt(6)")
            elif s_ == 6: a("s_waitcnt lgkmcnt(3)")
            else: a("s_waitcnt lgkmcnt(0)")
            b = s_ % 3
            a(f"v_mfma_f32_32x32x16_bf16 {v(QACC,16)}, {v(QWF+4*b,4)}, {v(QXF+4*b,4)}, {v(QACC,16)}")
            lg = a.newlabel("ng")
            a(f"s_cmp_lg_u32 s{S_HH}, {s_ & 3}")
            a(f"s_cbranch_scc1 {lg}")
            a(f"v_mfma_f32_32x32x16_bf16 {v(GACC,16)}, {v(GW+4*(s_>>2),4)}, {v(QXF+4*b,4)}, {v(GACC,16)}")
            a.label(lg)
    def bump(delta):
        op = "v_add_u32" if delta > 0 else "v_subrev_u32"
        for s_ in range(8): a(f"{op} v{V_XA+s_}, {abs(delta)}, v{V_XA+s_}")
        a(f"{op} v{V_WA}, {abs(delta)}, v{V_WA}")
    SF, SG = 16, 32
    P = 48
    OF, OG = 56, 72
    K16, K8, V0, V1 = 88, 92, 96, 100
    AK16, AK8, AV, AK16N, AK8N, AVN = 104, 105, 106, 107, 108, 109
    V_L16, V_ONE, V_CFW, V_CD, V_KW, V_CT = 110, 111, 112, 113, 114, 115
    KVST, KVST2 = 116, 16
    V_CFR = 128
    V_STG, V_OL0, V_OG0, V_OL1, V_OG1, V_OUT, V_WT, V_YT, V_GA, V_PX, V_TL16 = range(129, 140)
    QT, YS = 140, 150
    S_T, S_BLK, S_SLOT, S_NXT, S_FT, S_DT = 34, 35, 36, 37, 38, 39
    S_RB, S_M2, S_P1, S_DL, S_WB = 78, 79, 80, 81, 82
    S_CFB, S_CA, S_CBB = 89, 90, 91
    def tail_addrs():
        a(f"v_lshlrev_b32 v{V_TL16}, 4, v1")
        a(f"v_and_b32 v{T0}, 31, v1")
        a(f"v_mul_u32_u24 v{T0}, 160, v{T0}")
        a(f"v_lshrrev_b32 v{T1}, 5, v1")
        a(f"v_lshlrev_b32 v{T1}, 3, v{T1}")
        a(f"v_add_u32 v{T0}, v{T0}, v{T1}")
        a(f"s_mul_i32 s28, s{S_HH}, 40")
        a(f"s_mul_i32 s29, s{S_G}, 5120")
        a(f"s_add_u32 s28, s28, s29")
        a(f"s_add_u32 s28, s28, {OST}")
        a(f"v_add_u32 v{V_STG}, s28, v{T0}")
        for t, (vl, vg) in enumerate(((V_OL0, V_OG0), (V_OL1, V_OG1))):
            a(f"s_add_u32 s28, s{S_W}, {8*t}")
            a(f"s_lshl_b32 s28, s28, 2")
            a(f"v_lshrrev_b32 v{T0}, 4, v1")
            a(f"v_add_u32 v{T0}, s28, v{T0}")
            div10(a, T0, T1, T0, T2)
            a(f"v_and_b32 v{T2}, 15, v1")
            a(f"v_lshl_add_u32 v{T3}, v{T1}, 4, v{T2}")
            a(f"v_mul_u32_u24 v{T3}, 160, v{T3}")
            a(f"v_lshl_add_u32 v{vl}, v{T0}, 4, v{T3}")
            a(f"v_add_u32 v{vl}, {OST}, v{vl}")
            a(f"v_mul_u32_u24 v{T1}, 20480, v{T1}")
            a(f"v_lshl_add_u32 v{T1}, v{T0}, 8, v{T1}")
            a(f"v_lshl_add_u32 v{vg}, v{T2}, 4, v{T1}")
        a(f"v_and_b32 v{T0}, 15, v1")
        a(f"s_lshl_b32 s29, s{S_HH}, 4")
        a(f"s_lshl_b32 s28, s{S_I}, 6")
        a(f"s_add_u32 s28, s28, s29")
        a(f"v_add_u32 v{T1}, s28, v{T0}")
        a(f"v_mul_lo_u32 v{T1}, v{T1}, s{S_1280}")
        a(f"v_lshrrev_b32 v{T2}, 4, v1")
        a(f"v_lshlrev_b32 v{T3}, 3, v{T2}")
        a(f"v_add_u32 v{T1}, v{T1}, v{T3}")
        a(f"s_mul_i32 s28, s{S_J}, 160")
        a(f"v_add_u32 v{V_OUT}, s28, v{T1}")
        a(f"v_lshlrev_b32 v{T0}, 2, v{T0}")
        a(f"s_lshl_b32 s28, s{S_HH}, 6")
        a(f"s_add_u32 s28, s28, {G_L}")
        a(f"v_add_u32 v{V_GA}, s28, v{T0}")
        a(f"v_lshrrev_b32 v{T0}, 5, v1")
        a(f"v_lshlrev_b32 v{T0}, 4, v{T0}")
        a(f"v_bfe_u32 v{T1}, v1, 4, 1")
        a(f"v_lshlrev_b32 v{T1}, 2, v{T1}")
        a(f"v_add_u32 v{T0}, v{T0}, v{T1}")
        a(f"v_bfe_u32 v{T1}, v1, 2, 2")
        a(f"v_add_u32 v{T0}, v{T0}, v{T1}")
        a(f"v_mul_u32_u24 v{T0}, 160, v{T0}")
        a(f"v_and_b32 v{T1}, 3, v1")
        a(f"v_lshlrev_b32 v{T1}, 3, v{T1}")
        a(f"v_add_u32 v{T0}, v{T0}, v{T1}")
        a(f"s_mul_i32 s28, s{S_G}, 51200")
        a(f"s_add_u32 s28, s28, {WOA}")
        a(f"v_add_u32 v{V_WT}, s28, v{T0}")
        a(f"v_bfe_u32 v{T0}, v1, 2, 4")
        a(f"v_lshlrev_b32 v{T0}, 7, v{T0}")
        a(f"v_add_u32 v{T0}, v{T0}, v{T1}")
        a(f"s_lshl_b32 s28, s{S_HH}, 5")
        a(f"s_add_u32 s28, s28, {YL}")
        a(f"v_add_u32 v{V_YT}, s28, v{T0}")
        a(f"s_mul_i32 s28, s{S_W}, 3072")
        a(f"s_add_u32 s28, s28, {PX}")
        a(f"v_add_u32 v{V_PX}, s28, v{V_TL16}")
    def ring_addrs():
        a(f"s_mul_i32 s{S_RB}, s{S_G}, {RING_STRIDE}")
        a(f"v_lshlrev_b32 v{V_L16}, 4, v1")
        a(f"v_mov_b32 v{V_ONE}, 1")
        a(f"s_lshl_b32 s28, s{S_G}, 4")
        a(f"s_add_u32 s{S_CFB}, s28, {C_FULL}")
        a(f"s_mul_i32 s29, s{S_HH}, {BLK}")
        a(f"s_add_u32 s{S_WB}, s{S_RB}, s29")
        a(f"v_add_u32 v{AK16}, s{S_RB}, v{V_L16}")
        a(f"v_and_b32 v{T0}, 31, v1")
        a(f"v_lshlrev_b32 v{T1}, 3, v{T0}")
        a(f"v_add_u32 v{T1}, 1024, v{T1}")
        a(f"v_mov_b32 v{AK8}, 1280")
        a(f"v_cmp_gt_u32 vcc, 32, v1")
        a(f"v_min_u32 v{T2}, 20, v{T0}")
        a(f"v_subrev_u32 v{AV}, 16, v{T0}")
        a(f"v_cndmask_b32 v{AK8}, v{AK8}, v{T1}, vcc")
        a(f"v_add_u32 v{AK8}, s{S_RB}, v{AK8}")
        a(f"v_cmp_lt_u32 vcc, 27, v{T0}")
        a.nop(2)
        a(f"v_cndmask_b32 v{T2}, v{T2}, v{AV}, vcc")
        a(f"v_lshlrev_b32 v{T2}, 4, v{T2}")
        a(f"v_lshrrev_b32 v{AV}, 5, v1")
        a(f"v_mul_u32_u24 v{AV}, 336, v{AV}")
        a(f"v_add_u32 v{AV}, v{AV}, v{T2}")
        a(f"v_add_u32 v{AV}, 1296, v{AV}")
        a(f"v_add_u32 v{AV}, s{S_RB}, v{AV}")
        a(f"v_lshlrev_b32 v{T0}, 2, v1")
        a(f"v_add_u32 v{T0}, {DUMMY}, v{T0}")
        a(f"v_mov_b32 v{T1}, s{S_CFB}")
        a(f"v_cmp_eq_u32 vcc, 0, v1")
        a.nop(2)
        a(f"v_cndmask_b32 v{V_CFW}, v{T0}, v{T1}, vcc")
        a(f"v_add_u32 v{V_KW}, s{S_WB}, v{V_L16}")
        a(f"s_lshl_b32 s28, s{S_W}, 2")
        a(f"s_add_u32 s29, s28, {C_PROG}")
        a(f"v_mov_b32 v{T1}, s29")
        a(f"v_cndmask_b32 v150, v{T0}, v{T1}, vcc")
        a(f"s_xor_b32 s28, s28, 16")
        a(f"s_add_u32 s28, s28, {C_PROG}")
        a(f"v_mov_b32 v151, s28")
    def blk_off(t, g=None):
        a(f"s_add_u32 s28, s{S_ROT}, {t}")
        a(f"s_and_b32 s28, s28, 7")
        a(f"s_lshl_b32 s28, s28, 2")
        if g is None:
            a(f"s_lshl_b32 s29, s{S_G}, 5")
            a(f"s_add_u32 s28, s28, s29")
        elif g: a(f"s_add_u32 s28, s28, {32*g}")
        a(f"s_add_u32 s28, s28, s{S_HH}")
        a(f"s_mul_i32 s{S_BLK}, s28, 3072")
    def kv_load(dst):
        for q in range(3):
            a(f"buffer_load_dwordx4 {v(dst+4*q,4)}, v{V_L16}, {R(SRD_WS)}, s{S_BLK} offen offset:{1024*q} sc1")
    def kv_write(src, off=0):
        for q in range(3): a(f"ds_write_b128 v{V_KW}, {v(src+4*q,4)} offset:{off + 1024*q}")
    def wait_chunk(ch):
        if ch < 2:
            if ch == 0: wait_vm(NA, NB)
            else: a("s_waitcnt vmcnt(0)")
            lds_add1_imm(a, C_CL + 4*ch)
            lds_wait_imm(a, C_CL + 4*ch, 8, sleep=0)
        else:
            lds_wait_imm(a, C_CL + 4*ch, 3, sleep=1)
        stamp(a, f"cl{ch}")
    wait_chunk(0)
    q_chunk(0, 0)
    lds_add1_imm(a, C_C0C)
    wait_chunk(1)
    q_chunk(1, 1)
    lds_add1_imm(a, C_C1C)
    tail_addrs()
    bump(2 * SLOT)
    wait_chunk(2)
    q_chunk(2, 2)
    bump(-2 * SLOT)
    wait_chunk(3)
    q_chunk(3, 0)
    wait_chunk(4)
    q_chunk(4, 1)
    lds_add1_imm(a, C_QRD)
    stamp(a, "qdone")

    QF16, QF8, QG16, QG8 = 4, 8, 10, 14
    ring_addrs()
    a(f"s_lshl_b32 s28, s{S_W}, 10")
    a(f"v_lshlrev_b32 v{T2}, 4, v1")
    a(f"v_add_u32 v{T2}, s28, v{T2}")
    a(f"v_lshrrev_b32 v{T3}, 1, v{T2}")
    a(f"v_xor_b32 v{V_QXP}, 4096, v{T2}")
    a(f"v_xor_b32 v{V_QXP+1}, 2048, v{T3}")
    a(f"v_add_u32 v{T2}, {QXA}, v{T2}")
    a(f"v_add_u32 v{T3}, {QXB}, v{T3}")
    a(f"v_add_u32 v{V_QXP}, {QXA}, v{V_QXP}")
    a(f"v_add_u32 v{V_QXP+1}, {QXB}, v{V_QXP+1}")
    a(f"s_mov_b32 s28, {hex(f32bits(QSCALE))}")
    for r in range(12): a(f"v_mul_f32 v{QACC+r}, s28, v{QACC+r}")
    a(f"v_cmp_gt_u32 vcc, 32, v1")
    for r in range(4): a(f"v_cvt_pk_bf16_f32 v{QF16+r}, v{QACC+2*r}, v{QACC+2*r+1}")
    for r in range(2): a(f"v_cvt_pk_bf16_f32 v{QF8+r}, v{QACC+8+2*r}, v{QACC+8+2*r+1}")
    a(f"ds_write_b128 v{T2}, {v(QF16,4)}")
    for r in range(2): a(f"v_cndmask_b32 v{QF8+r}, 0, v{QF8+r}, vcc")
    a(f"s_lshl_b32 s28, s{S_W}, 7")
    a(f"s_add_u32 s28, s28, {GP}")
    a(f"v_lshlrev_b32 v{T1}, 2, v1")
    a(f"v_add_u32 v{T1}, s28, v{T1}")
    a(f"ds_write_b64 v{T3}, {v(QF8,2)}")
    a(f"s_mov_b64 exec, 0xffffffff")
    a(f"ds_write_b32 v{T1}, v{GACC}")
    a(f"s_mov_b64 exec, -1")
    a(f"s_lshl_b32 s28, s{S_W}, 2")
    a(f"s_add_u32 s29, s28, {C_QXF}")
    a(f"v_mov_b32 v{T0}, s29")
    lds_add1(a, T0, V_ONE)
    a(f"s_xor_b32 s28, s28, 16")
    a(f"s_add_u32 s28, s28, {C_QXF}")
    a(f"v_mov_b32 v{T0}, s28")
    for r in range(16):
        a(f"v_mov_b32 v{OF+r}, 0"); a(f"v_mov_b32 v{OG+r}, 0")
    for r in range(8): a(f"v_mov_b32 v{P+r}, 0")
    for r in range(4): a(f"v_mov_b32 v{V1+r}, 0")
    for r in range(12, 16): a(f"v_mov_b32 v{SG+r}, 0")
    lds_wait_ge(a, 1, T1, T0, sleep=0)
    a(f"ds_read_b128 {v(QG16,4)}, v{V_QXP}")
    a(f"ds_read_b64 {v(QG8,2)}, v{V_QXP+1}")
    a("s_waitcnt lgkmcnt(0)")
    lds_add1_imm(a, C_QG)
    stamp(a, "qg")
    lds_wait_ge(a, 1, V_CT, V_CFW, sleep=1)
    stamp(a, "full0")
    a(f"ds_read_b128 {v(K16,4)}, v{AK16}")
    a(f"ds_read_b64 {v(K8,2)}, v{AK8}")
    a(f"ds_read_b128 {v(V0,4)}, v{AV}")
    a("s_waitcnt lgkmcnt(0)")
    a(f"v_mfma_f32_32x32x16_bf16 {v(SF,16)}, {v(K16,4)}, {v(QF16,4)}, 0")
    a(f"v_mfma_f32_32x32x8_bf16 {v(SF,16)}, {v(K8,2)}, {v(QF8,2)}, {v(SF,16)}")
    S_U, S_B1, S_B2, S_PR = 34, 36, 37, 80
    a(f"s_mov_b32 s{S_U}, 0")
    a(f"s_mov_b32 s{S_B1}, 1")
    a(f"s_mov_b32 s{S_B2}, 2")
    a(f"s_mov_b32 s{S_PR}, 0")
    V_PG, V_PGP, V_PT = 150, 151, 128
    for mt in range(5):
        a(f"buffer_load_dwordx2 {v(QT+2*mt,2)}, v{V_OUT}, {R(SRD_X)}, 0 offen offset:{32*mt}")
    a("s_setprio 1")
    stamp(a, "loop0")
    LOOP = "f_attn"
    if "align" in OPT: a(".p2align 6")
    a.label(LOOP)
    e = lambda S, i: a(f"v_exp_f32 v{S+i}, v{S+i}")
    c = lambda S, i: a(f"v_cvt_pk_bf16_f32 v{P+i}, v{S+2*i}, v{S+2*i+1}")
    def check_cnt(target, off):
        ok = a.newlabel("ok"); lp = a.newlabel("rt")
        a(f"v_readfirstlane_b32 s42, v{V_CT}")
        a("s_nop 3")
        a(f"s_cmp_ge_u32 s42, {target}")
        a(f"s_cbranch_scc1 {ok}")
        a(f"s_mov_b32 s43, 0")
        a.label(lp)
        a("s_sleep 1")
        a(f"ds_read_b32 v{V_CT}, v{V_CFW} offset:{off}")
        a("s_waitcnt lgkmcnt(0)")
        a(f"v_readfirstlane_b32 s42, v{V_CT}")
        a(f"s_add_u32 s43, s43, 1")
        a(f"s_cmp_ge_u32 s43, {POLL_MAX*8}")
        a(f"s_cbranch_scc1 {ok}")
        a(f"s_cmp_lt_u32 s42, {target}")
        a(f"s_cbranch_scc1 {lp}")
        a.label(ok)
    HS = 2 * BLK
    for hs in range(4):
        for bb in range(2):
            so = hs * HS + bb * BLK
            koff = so + BLK if bb == 0 else ((hs + 1) & 3) * HS
            lagrd = bb == 1 and "nolag" not in OPT
            extra = (bb == 0) or lagrd
            c(SG, 6); c(SG, 7)
            a(f"v_mfma_f32_32x32x16_bf16 {v(SG,16)}, {v(K16,4)}, {v(QG16,4)}, 0")
            a(f"ds_read_b128 {v(K16,4)}, v{AK16} offset:{koff}")
            if bb == 0: a(f"ds_read_b32 v{V_CT}, v{V_CFW} offset:{4*((hs+1)&3)}")
            if lagrd: a(f"ds_read_b32 v{V_PT}, v{V_PGP}")
            for i in range(0, 4): e(SF, i)
            c(SF, 0); c(SF, 1)
            a(f"v_mfma_f32_32x32x16_bf16 {v(OG,16)}, {v(V1,4)}, {v(P+4,4)}, {v(OG,16)}")
            a(f"ds_read_b128 {v(V1,4)}, v{AV} offset:{so + 672}")
            for i in range(4, 8): e(SF, i)
            c(SF, 2); c(SF, 3)
            a(f"v_mfma_f32_32x32x8_bf16 {v(SG,16)}, {v(K8,2)}, {v(QG8,2)}, {v(SG,16)}")
            a(f"ds_read_b64 {v(K8,2)}, v{AK8} offset:{koff}")
            for i in range(8, 12): e(SF, i)
            c(SF, 4); c(SF, 5)
            a(f"s_waitcnt lgkmcnt({4 if extra else 3})")
            a(f"v_mfma_f32_32x32x16_bf16 {v(OF,16)}, {v(V0,4)}, {v(P,4)}, {v(OF,16)}")
            for i in range(12, 16): e(SF, i)
            c(SF, 6); c(SF, 7)
            a("s_waitcnt lgkmcnt(0)")
            a(f"v_mfma_f32_32x32x16_bf16 {v(SF,16)}, {v(K16,4)}, {v(QF16,4)}, 0")
            if bb == 0:
                dadd = lambda: a(f"ds_add_u32 v{V_CFW}, v{V_ONE} offset:{32 + 4*((hs-1)&3)}")
                if hs == 0: if_s(a, S_U, "lg", 0, dadd)
                else: dadd()
                lb = a.newlabel("nf")
                if hs == 3:
                    a(f"s_cmp_ge_u32 s{S_U}, 3")
                    a(f"s_cbranch_scc1 {lb}")
                if "nochk" not in OPT: check_cnt(f"s{S_B1}" if hs < 3 else f"s{S_B2}", 4*((hs+1)&3))
                a.label(lb)
            if lagrd:
                a(f"v_readfirstlane_b32 s42, v{V_PT}")
                lpa = a.newlabel("pa"); lpb = a.newlabel("pb")
                a("s_nop 1")
                a(f"s_cmp_gt_u32 s{S_PR}, s42")
                a(f"s_cbranch_scc1 {lpa}")
                a("s_setprio 2")
                a(f"s_branch {lpb}")
                a.label(lpa)
                a("s_setprio 1")
                a.label(lpb)
            for i in range(0, 4): e(SG, i)
            c(SG, 0); c(SG, 1)
            a(f"v_mfma_f32_32x32x16_bf16 {v(OF,16)}, {v(V1,4)}, {v(P+4,4)}, {v(OF,16)}")
            for i in range(4, 8): e(SG, i)
            c(SG, 2); c(SG, 3)
            a(f"v_mfma_f32_32x32x8_bf16 {v(SF,16)}, {v(K8,2)}, {v(QF8,2)}, {v(SF,16)}")
            for i in range(8, 12): e(SG, i)
            c(SG, 4); c(SG, 5)
            a(f"v_mfma_f32_32x32x16_bf16 {v(OG,16)}, {v(V0,4)}, {v(P,4)}, {v(OG,16)}")
            a(f"ds_read_b128 {v(V0,4)}, v{AV} offset:{koff}")
            for i in range(12, 16): e(SG, i)
        if "nolag" not in OPT:
            a(f"s_add_u32 s{S_PR}, s{S_PR}, 1")
            a(f"v_mov_b32 v{V_CT}, s{S_PR}")
            a(f"ds_write_b32 v{V_PG}, v{V_CT}")
    a(f"s_add_u32 s{S_U}, s{S_U}, 1")
    a(f"s_add_u32 s{S_B1}, s{S_B1}, 1")
    a(f"s_add_u32 s{S_B2}, s{S_B2}, 1")
    a(f"s_cmp_lt_u32 s{S_U}, 4")
    a(f"s_cbranch_scc1 {LOOP}")
    stamp(a, "loopE")
    S_FBD = 81
    a(f"s_mov_b32 s{S_FBD}, 0")
    c(SG, 6); c(SG, 7)
    a(f"s_mul_i32 s28, s{S_G}, {RING_STRIDE}")
    a(f"s_mul_i32 s29, s{S_HH}, 3072")
    a(f"s_add_u32 s28, s28, s29")
    a(f"v_add_u32 v{T2}, s28, v{V_L16}")
    a(f"s_xor_b32 s30, s{S_G}, 1")
    a(f"s_mul_i32 s30, s30, {RING_STRIDE}")
    a(f"s_add_u32 s29, s29, s30")
    a(f"v_mfma_f32_32x32x16_bf16 {v(OG,16)}, {v(V1,4)}, {v(P+4,4)}, {v(OG,16)}")
    a(f"v_add_u32 v{T3}, s29, v{V_L16}")
    a("s_setprio 2")
    V_LA = 94
    def cadd(addr):
        a(f"v_add_u32 v95, {addr}, v{V_LA}" if False else f"v_mov_b32 v95, {addr}")
        lds_add1(a, 95, V_ONE)
    a("s_waitcnt lgkmcnt(0)")
    a(f"s_lshl_b32 s30, s{S_G}, 4")
    a(f"s_add_u32 s30, s30, {C_LE}")
    a(f"v_mov_b32 v95, s30")
    lds_add1(a, 95, V_ONE)
    lds_wait_ge(a, 4, T1, 95, sleep=0)
    for q in range(3): a(f"ds_write_b128 v{T2}, {v(OG+4*q,4)} offset:{1024*q}")
    a(f"s_lshl_b32 s28, s{S_W}, 2")
    a(f"s_add_u32 s30, s28, {C_XF}")
    a(f"v_mov_b32 v95, s30")
    lds_add1(a, 95, V_ONE)
    a(f"s_xor_b32 s28, s28, 16")
    a(f"s_add_u32 s30, s28, {C_XF}")
    a(f"v_mov_b32 v{T0}, s30")
    lds_wait_ge(a, 1, T1, T0, sleep=0)
    stamp(a, "xf")
    stamp(a, "J1")
    PB = 16
    for q in range(3): a(f"ds_read_b128 {v(PB+4*q,4)}, v{T3} offset:{1024*q}")
    a("s_waitcnt lgkmcnt(0)")
    for r in range(12): a(f"v_add_f32 v{OF+r}, v{OF+r}, v{PB+r}")
    NORM = "f_norm"; FB = "f_fallback"
    a.label(NORM)
    a(f"v_mov_b32 v40, v{OF+8}")
    a(f"v_mov_b32 v41, v{OF+8}")
    a.nop(2)
    a(f"v_permlane32_swap_b32 v40, v41")
    a(f"v_max3_f32 v42, abs(v{OF}), abs(v{OF+1}), abs(v{OF+2})")
    a(f"v_max3_f32 v43, abs(v{OF+3}), abs(v{OF+4}), abs(v{OF+5})")
    a(f"v_max3_f32 v42, v42, abs(v{OF+6}), abs(v{OF+7})")
    a(f"v_max3_f32 v43, v43, abs(v{OF+8}), abs(v{OF+9})")
    a(f"v_max3_f32 v42, v42, abs(v{OF+10}), abs(v{OF+11})")
    a(f"v_max_f32 v42, v42, v43")
    a(f"s_mov_b32 s28, 0x21800000")
    a(f"s_mov_b32 s29, 0x5d800000")
    a(f"s_mov_b32 s30, 0x7e800000")
    a(f"v_cmp_ge_f32 s[40:41], v41, s28" if False else f"v_cmp_le_f32 s[40:41], s28, v41")
    a(f"v_cmp_ge_f32 vcc, s29, v41")
    a(f"s_and_b64 s[40:41], s[40:41], vcc")
    a(f"v_cmp_gt_f32 vcc, s30, v42")
    a(f"s_and_b64 s[40:41], s[40:41], vcc")
    a(f"s_or_b32 s40, s40, s{S_FBD}")
    a(f"s_or_b32 s41, s41, s{S_FBD}")
    a(f"s_cmp_eq_u64 s[40:41], -1")
    a(f"s_cbranch_scc0 {FB}")
    a(f"v_rcp_f32 v41, v41")
    a.nop(1)
    for r in range(12): a(f"v_mul_f32 v{OF+r}, v{OF+r}, v41")
    for r in range(6): a(f"v_cvt_pk_bf16_f32 v{104+r}, v{OF+2*r}, v{OF+2*r+1}")
    a(f"ds_write_b64 v{V_STG}, v[104:105]")
    a(f"ds_write_b64 v{V_STG}, v[106:107] offset:16")
    a(f"s_mov_b64 exec, 0xffffffff")
    a(f"ds_write_b64 v{V_STG}, v[108:109] offset:32")
    a(f"s_mov_b64 exec, -1")
    cadd(C_ST)
    a(f"s_mul_i32 s29, s{S_I}, 81920")
    a(f"s_mul_i32 s30, s{S_J}, 2560")
    a(f"s_add_u32 s29, s29, s30")
    a(f"s_add_u32 s29, s29, {O_OFF}")
    stamp(a, "stg")
    lds_wait_imm(a, C_ST, 8, sleep=0)
    stamp(a, "st8")
    a(f"ds_read_b128 v[44:47], v{V_OL0}")
    if_wave(a, "lt", 2, lambda: a(f"ds_read_b128 v[48:51], v{V_OL1}"))
    a("s_waitcnt lgkmcnt(0)")
    a(f"buffer_store_dwordx4 v[44:47], v{V_OG0}, {R(SRD_WS)}, s29 offen sc1")
    if_wave(a, "lt", 2, lambda: a(f"buffer_store_dwordx4 v[48:51], v{V_OG1}, {R(SRD_WS)}, s29 offen sc1"))
    OFR, ACC, AF = 16, 56, 76
    def ldsA(s_):
        b = s_ & 1
        for mt in range(5):
            a(f"ds_read_b64_tr_b16 {v(AF+20*b+4*mt,2)}, v{V_WT} offset:{s_*5120 + 32*mt}")
            a(f"ds_read_b64_tr_b16 {v(AF+20*b+4*mt+2,2)}, v{V_WT} offset:{s_*5120 + 1280 + 32*mt}")
    for r in range(20): a(f"v_mov_b32 v{ACC+r}, 0")
    a(f"s_mul_i32 s28, s{S_I}, 81920")
    a(f"s_mul_i32 s29, s{S_HH}, 20480")
    a(f"s_add_u32 s28, s28, s29")
    a(f"s_mul_i32 s29, s{S_G}, 10240")
    a(f"s_add_u32 s28, s28, s29")
    a(f"s_add_u32 s28, s28, {O_OFF}")
    a("s_waitcnt vmcnt(0)")
    stamp(a, "ostd")
    cadd(C_OCNT)
    lds_wait_imm(a, C_WOK, 3, sleep=1)
    stamp(a, "wok")
    ldsA(0)
    lds_wait_imm(a, C_OOK, 1, sleep=0)
    stamp(a, "h4ok")
    for s_ in range(10):
        a(f"buffer_load_dwordx4 {v(OFR+4*s_,4)}, v{V_TL16}, {R(SRD_WS)}, s28 offen offset:{1024*(s_%4)} sc1")
        if s_ % 4 == 3: a(f"s_add_u32 s28, s28, 4096")
    for s_ in range(10):
        if s_ < 9:
            ldsA(s_ + 1); a(f"s_waitcnt lgkmcnt(10) vmcnt({9 - s_})")
        else:
            a("s_waitcnt lgkmcnt(0) vmcnt(0)")
        b = s_ & 1
        for mt in range(5):
            a(f"v_mfma_f32_16x16x32_bf16 {v(ACC+4*mt,4)}, {v(AF+20*b+4*mt,4)}, {v(OFR+4*s_,4)}, {v(ACC+4*mt,4)}")
    stamp(a, "oproj")
    YF, GV = 16, 30
    FINA = "f_fina"; FINB = "f_finb"
    a(f"v_xor_b32 v{T3}, 0, v{V_PX}" if False else f"s_xor_b32 s29, s{S_W}, 4")
    a(f"s_mul_i32 s29, s29, 3072")
    a(f"s_add_u32 s29, s29, {PX}")
    a(f"v_add_u32 v{T3}, s29, v{V_TL16}")
    lds_wait_imm(a, C_YW, 2, T1, T0, sleep=0)
    stamp(a, "yw")
    def fin(keep, send):
        for mt in keep: a(f"ds_read_b64_tr_b16 {v(YF+2*mt,2)}, v{V_YT} offset:{2048*mt}")
        a(f"ds_read_b32 v{GV}, v{V_GA}")
        a.nop(4)
        for n, mt in enumerate(send): a(f"ds_write_b128 v{V_PX}, {v(ACC+4*mt,4)} offset:{1024*n}")
        a(f"s_lshl_b32 s28, s{S_W}, 2")
        a(f"s_add_u32 s30, s28, {C_PF}")
        a(f"v_mov_b32 v{T0}, s30")
        a(f"v_mov_b32 v{T1}, 1")
        lds_add1(a, T0, T1)
        a("s_waitcnt lgkmcnt(0)")
        for mt in keep:
            for hlf in range(2):
                yq = YF + 2*mt + hlf; qq = QT + 2*mt + hlf; d = 32 + 4*mt + 2*hlf
                a(f"v_lshlrev_b32 v{d}, 16, v{yq}")
                a(f"v_and_b32 v{d+1}, 0xffff0000, v{yq}")
                a(f"v_lshlrev_b32 v52, 16, v{qq}")
                a(f"v_and_b32 v53, 0xffff0000, v{qq}")
                a(f"v_mul_f32 v52, v52, v{GV}")
                a(f"v_mul_f32 v53, v53, v{GV}")
                a(f"v_mul_f32 v{d}, v{d}, v52")
                a(f"v_mul_f32 v{d+1}, v{d+1}, v53")
        a(f"v_sub_f32 v{GV+1}, 1.0, v{GV}")
        a(f"s_xor_b32 s28, s28, 16")
        a(f"s_add_u32 s30, s28, {C_PF}")
        a(f"v_mov_b32 v{T0}, s30")
        lds_wait_ge(a, 1, T1, T0, sleep=0)
        for n, mt in enumerate(keep): a(f"ds_read_b128 {v(AF+4*n,4)}, v{T3} offset:{1024*n}")
        for n, mt in enumerate(keep):
            a(f"s_waitcnt lgkmcnt({len(keep)-1-n})")
            for r in range(4): a(f"v_add_f32 v{ACC+4*mt+r}, v{ACC+4*mt+r}, v{AF+4*n+r}")
            for r in range(4): a(f"v_fmac_f32 v{32+4*mt+r}, v{ACC+4*mt+r}, v{GV+1}")
            a(f"v_cvt_pk_bf16_f32 v{100+2*mt}, v{32+4*mt}, v{32+4*mt+1}")
            a(f"v_cvt_pk_bf16_f32 v{100+2*mt+1}, v{32+4*mt+2}, v{32+4*mt+3}")
            a(f"buffer_store_dwordx2 {v(100+2*mt,2)}, v{V_OUT}, {R(SRD_OUT)}, 0 offen offset:{32*mt}" + (" sc1" if "osc1" in OPT else "") + (" nt" if "ont" in OPT else ""))
    a(f"s_cmp_ge_u32 s{S_W}, 4")
    a(f"s_cbranch_scc1 {FINB}")
    fin([0, 1, 2], [3, 4])
    a(f"s_branch f_fin")
    a.label(FINB)
    fin([3, 4], [0, 1, 2])
    a(f"s_branch f_fin")

    a.label(FB)
    FK16, FK8, FV0, FV1 = 88, 92, 96, 100
    FA16, FA8, FAV, FM = 44, 45, 46, 47
    a(f"v_lshlrev_b32 v{FA16}, 4, v1")
    a(f"v_and_b32 v{T0}, 31, v1")
    a(f"v_lshlrev_b32 v{T1}, 3, v{T0}")
    a(f"v_add_u32 v{T1}, 1024, v{T1}")
    a(f"v_mov_b32 v{FA8}, 1280")
    a(f"v_cmp_gt_u32 vcc, 32, v1")
    a(f"v_min_u32 v{FM}, 20, v{T0}")
    a.nop(1)
    a(f"v_cndmask_b32 v{FA8}, v{FA8}, v{T1}, vcc")
    a(f"v_lshlrev_b32 v{FM}, 4, v{FM}")
    a(f"v_lshrrev_b32 v{FAV}, 5, v1")
    a(f"v_mul_u32_u24 v{FAV}, 336, v{FAV}")
    a(f"v_add_u32 v{FAV}, v{FAV}, v{FM}")
    a(f"v_add_u32 v{FAV}, 1296, v{FAV}")
    a(f"v_mov_b32 v{FM}, 0xff800000")
    a(f"s_mov_b32 s28, 0")
    FL1 = a.newlabel("fb1")
    a.label(FL1)
    a(f"buffer_load_dwordx4 {v(FK16,4)}, v{FA16}, {R(SRD_WS)}, s28 offen sc1")
    a(f"buffer_load_dwordx2 {v(FK8,2)}, v{FA8}, {R(SRD_WS)}, s28 offen sc1")
    a("s_waitcnt vmcnt(0)")
    a(f"v_mfma_f32_32x32x16_bf16 {v(SF,16)}, {v(FK16,4)}, {v(QF16,4)}, 0")
    a(f"v_mfma_f32_32x32x8_bf16 {v(SF,16)}, {v(FK8,2)}, {v(QF8,2)}, {v(SF,16)}")
    a.nop(16); a.nop(4)
    for r in range(0, 16, 2): a(f"v_max3_f32 v{FM}, v{FM}, v{SF+r}, v{SF+r+1}")
    a(f"s_add_u32 s28, s28, 3072")
    a(f"s_cmp_lt_u32 s28, {64*3072}")
    a(f"s_cbranch_scc1 {FL1}")
    a(f"v_mov_b32 v{T0}, v{FM}")
    a(f"v_mov_b32 v{T1}, v{FM}")
    a.nop(2)
    a(f"v_permlane32_swap_b32 v{T0}, v{T1}")
    a.nop(2)
    a(f"v_max3_f32 v{FM}, v{FM}, v{T0}, v{T1}")
    a(f"v_sub_f32 v{T0}, 0, v{FM}")
    a(f"v_cvt_pk_bf16_f32 v{T1}, v{T0}, v{T0}")
    a(f"v_and_b32 v42, 0xffff0000, v{T1}")
    a(f"v_sub_f32 v{T0}, v{T0}, v42")
    a(f"v_cvt_pk_bf16_f32 v43, v{T0}, v{T0}")
    a(f"v_and_b32 v42, 0xffff0000, v43")
    a(f"v_sub_f32 v{T0}, v{T0}, v42")
    a(f"v_cvt_pk_bf16_f32 v{T0}, v{T0}, v{T0}")
    a(f"v_and_b32 v{T1}, 0xffff, v{T1}")
    a(f"v_or_b32 v{T1}, v{T1}, v42")
    a(f"v_and_b32 v{T0}, 0xffff, v{T0}")
    a(f"v_cmp_gt_u32 vcc, 32, v1")
    a.nop(2)
    a(f"v_cndmask_b32 v{QF8}, v{T1}, v{QF8}, vcc")
    a(f"v_cndmask_b32 v{QF8+1}, v{T0}, v{QF8+1}, vcc")
    for r in range(16): a(f"v_mov_b32 v{OF+r}, 0")
    a(f"s_mov_b32 s28, 0")
    FL2 = a.newlabel("fb2")
    a.label(FL2)
    a(f"buffer_load_dwordx4 {v(FK16,4)}, v{FA16}, {R(SRD_WS)}, s28 offen sc1")
    a(f"buffer_load_dwordx2 {v(FK8,2)}, v{FA8}, {R(SRD_WS)}, s28 offen sc1")
    a(f"buffer_load_dwordx4 {v(FV0,4)}, v{FAV}, {R(SRD_WS)}, s28 offen sc1")
    a(f"buffer_load_dwordx4 {v(FV1,4)}, v{FAV}, {R(SRD_WS)}, s28 offen offset:672 sc1")
    a("s_waitcnt vmcnt(0)")
    a(f"v_mfma_f32_32x32x16_bf16 {v(SF,16)}, {v(FK16,4)}, {v(QF16,4)}, 0")
    a(f"v_mfma_f32_32x32x8_bf16 {v(SF,16)}, {v(FK8,2)}, {v(QF8,2)}, {v(SF,16)}")
    a.nop(16); a.nop(4)
    for i in range(16): a(f"v_exp_f32 v{SF+i}, v{SF+i}")
    a.nop(1)
    for i in range(8): a(f"v_cvt_pk_bf16_f32 v{P+i}, v{SF+2*i}, v{SF+2*i+1}")
    a.nop(2)
    a(f"v_mfma_f32_32x32x16_bf16 {v(OF,16)}, {v(FV0,4)}, {v(P,4)}, {v(OF,16)}")
    a(f"v_mfma_f32_32x32x16_bf16 {v(OF,16)}, {v(FV1,4)}, {v(P+4,4)}, {v(OF,16)}")
    a(f"s_add_u32 s28, s28, 3072")
    a(f"s_cmp_lt_u32 s28, {64*3072}")
    a(f"s_cbranch_scc1 {FL2}")
    a.nop(16)
    a(f"s_mov_b32 s{S_FBD}, -1")
    a(f"s_branch {NORM}")

    a.label(PSTART)
    a("s_setprio 3")
    a(f"v_mov_b32 v4, 0")
    if "nocpf" not in OPT:
        a(f"s_getpc_b64 s[28:29]")
        a.label("f_pcref")
        a(f"s_sub_u32 s28, s28, f_pcref-{NAME}_kernel")
        a(f"s_subb_u32 s29, s29, 0")
        a(f"s_lshr_b32 s30, s2, 3")
        a(f"s_min_u32 s30, s30, (f_end-{NAME}_kernel)/1024-1")
        a(f"s_lshl_b32 s30, s30, 10")
        a(f"v_lshlrev_b32 v24, 4, v1")
        a(f"v_add_u32 v24, s30, v24")
        a(f"global_load_dwordx4 v[28:31], v24, s[28:29]")
        if "cpf2" in OPT: a(f"global_load_dwordx4 v[28:31], v24, s[28:29] offset:0")
    lead = a.newlabel("lead")
    def lead_fn():
        a(f"s_memrealtime s[28:29]")
        a("s_waitcnt lgkmcnt(0)")
        a(f"s_or_b32 s28, s28, 1")
        a(f"v_mov_b32 v5, s28")
        a(f"s_mov_b64 exec, 1")
        a(f"buffer_store_dword v5, v4, {R(SRD_DBG)}, 0 offen sc1")
        a(f"s_mov_b64 exec, -1")
    if_s(a, 2, "eq", 0, lead_fn)
    a(f"buffer_load_dword v20, v4, {R(SRD_DBG)}, 0 offen sc1")
    a(f"v_lshlrev_b32 v6, 21, v1")
    a(f"s_mov_b64 exec, 0xf")
    a(f"buffer_load_dword v8, v6, {R(SRD_WS)}, 0 offen offset:2048")
    a(f"s_mov_b64 exec, 0x3")
    a(f"buffer_load_dword v9, v6, {R(SRD_H)}, 0 offen")
    a(f"buffer_load_dword v10, v6, {R(SRD_OUT)}, 0 offen")
    a(f"s_mov_b64 exec, 0x1")
    a(f"buffer_load_dword v11, v6, {R(SRD_WO)}, 0 offen")
    a(f"s_mov_b64 exec, -1")
    a(f"v_lshlrev_b32 v5, 2, v1")
    a(f"v_add_u32 v7, {CNT}, v5")
    a(f"ds_write_b32 v7, v4")
    a(f"ds_write_b32 v7, v4 offset:256")
    a(f"s_mov_b64 exec, -1")
    a("s_waitcnt lgkmcnt(0)")
    a("s_barrier")
    lds_wait_imm(a, C_UP, 4, sleep=0)
    PXF, PWF = 16, 48
    a(f"v_lshlrev_b32 v{T0}, 4, v1")
    a(f"v_add_u32 v{T1}, {UNIT_W}, v{T0}")
    for p_ in range(4):
        a(f"ds_read_b128 {v(PXF+8*p_,4)}, v{T1} offset:{UNIT_S*p_}")
        a(f"ds_read_b128 {v(PXF+8*p_+4,4)}, v{T1} offset:{UNIT_S*p_+1024}")
    a(f"s_lshl_b32 s28, s{S_I}, 1")
    a(f"s_bfe_u32 s29, s{S_J}, 0x10001")
    a(f"s_add_u32 s28, s28, s29")
    a(f"s_mul_i32 s29, s28, 3072")
    a(f"s_and_b32 s30, s{S_J}, 1")
    a("s_waitcnt lgkmcnt(0)")
    a(f"v_mov_b32 v12, {C_PD}")
    a(f"v_mov_b32 v13, 1")
    a(f"ds_write_b32 v12, v13")
    for p_ in range(1, 4):
        for r in range(8): a(f"v_add_f32 v{PXF+r}, v{PXF+r}, v{PXF+8*p_+r}")
    for r in range(4): a(f"v_cvt_pk_bf16_f32 v{PWF+r if r<2 else PWF+4+(r-2)}, v{PXF+2*r}, v{PXF+2*r+1}")
    a(f"v_mov_b32 v{PWF+6}, v{PWF}")
    a(f"v_mov_b32 v{PWF+7}, v{PWF+1}")
    a.nop(2)
    a(f"v_permlane32_swap_b32 v{PWF+6}, v{PWF+2}")
    a(f"v_permlane32_swap_b32 v{PWF+7}, v{PWF+3}")
    a(f"v_and_b32 v{T0}, 15, v1")
    a(f"v_bfe_u32 v{T1}, v1, 4, 1")
    labV2 = a.newlabel("stV"); labP = a.newlabel("pub")
    a(f"s_cmp_ge_u32 s{S_J}, 4")
    a(f"s_cbranch_scc1 {labV2}")
    a(f"s_lshl_b32 s31, s30, 4")
    a(f"v_add_u32 v{T0}, s31, v{T0}")
    a(f"v_lshlrev_b32 v{T1}, 5, v{T1}")
    a(f"v_add_u32 v{T1}, v{T1}, v{T0}")
    a(f"v_lshlrev_b32 v{T1}, 4, v{T1}")
    a(f"s_mov_b64 exec, 0xffffffff")
    a(f"buffer_store_dwordx4 {v(PWF,4)}, v{T1}, {R(SRD_WS)}, s29 offen sc1")
    a(f"s_mov_b64 exec, -1")
    a(f"v_lshlrev_b32 v{T0}, 3, v{T0}")
    a(f"v_add_u32 v{T0}, 1024, v{T0}")
    a(f"v_mov_b32 v{T1}, 1280")
    a(f"v_mov_b32 v{T2}, 0x3f803f80")
    a(f"v_mov_b32 v{T3}, 0x3f80")
    a(f"v_cmp_eq_u32 vcc, 16, v1")
    a.nop(2)
    a(f"v_cndmask_b32 v{T0}, v{T0}, v{T1}, vcc")
    a(f"v_cndmask_b32 v{PWF+4}, v{PWF+4}, v{T2}, vcc")
    a(f"v_cndmask_b32 v{PWF+5}, v{PWF+5}, v{T3}, vcc")
    a(f"s_mov_b32 s41, 0xffff")
    a(f"s_cmp_eq_u32 s30, 0")
    a(f"s_cselect_b32 s40, 0x1ffff, s41")
    a(f"s_mov_b32 s41, 0")
    a(f"s_mov_b64 exec, s[40:41]")
    a(f"buffer_store_dwordx2 {v(PWF+4,2)}, v{T0}, {R(SRD_WS)}, s29 offen sc1")
    a(f"s_mov_b64 exec, -1")
    a(f"s_branch {labP}")
    a.label(labV2)
    a(f"s_mul_i32 s31, s30, 672")
    a(f"s_add_u32 s31, s31, 1296")
    a(f"v_mul_u32_u24 v{T1}, 336, v{T1}")
    a(f"v_lshlrev_b32 v{T2}, 4, v{T0}")
    a(f"v_add_u32 v{T1}, v{T1}, v{T2}")
    a(f"v_add_u32 v{T1}, s31, v{T1}")
    a(f"s_mov_b64 exec, 0xffffffff")
    a(f"buffer_store_dwordx4 {v(PWF,4)}, v{T1}, {R(SRD_WS)}, s29 offen sc1")
    a(f"s_mov_b64 exec, -1")
    a(f"v_mov_b32 v{T2}, 0x3f803f80")
    a(f"v_cmp_eq_u32 vcc, 4, v{T0}")
    a.nop(2)
    a(f"v_cndmask_b32 v{PWF+4}, v{PWF+4}, v{T2}, vcc")
    a(f"v_cndmask_b32 v{PWF+5}, v{PWF+5}, v{T2}, vcc")
    a(f"v_mov_b32 v{PWF}, v{PWF+4}")
    a(f"v_mov_b32 v{PWF+1}, v{PWF+5}")
    a.nop(2)
    a(f"v_permlane32_swap_b32 v{PWF}, v{PWF+6}")
    a(f"v_permlane32_swap_b32 v{PWF+1}, v{PWF+7}")
    a(f"s_mov_b32 s40, 0x001f001f")
    a(f"s_mov_b32 s41, 0")
    a(f"s_mov_b64 exec, s[40:41]")
    a.nop(2)
    a(f"buffer_store_dwordx4 {v(PWF+4,4)}, v{T1}, {R(SRD_WS)}, s29 offen offset:256 sc1")
    a(f"s_mov_b64 exec, -1")
    a.label(labP)
    a(f"s_lshr_b32 s29, s28, 2")
    a(f"s_lshl_b32 s29, s29, 7")
    a(f"s_and_b32 s31, s28, 3")
    a(f"s_lshl_b32 s31, s31, 2")
    a(f"s_lshl_b32 s30, s30, 1")
    a(f"s_add_u32 s31, s31, s30")
    a(f"s_lshr_b32 s30, s{S_J}, 2")
    a(f"s_add_u32 s31, s31, s30")
    a(f"s_lshl_b32 s31, s31, 2")
    a(f"s_add_u32 s34, s29, s31")
    a(f"s_add_u32 s34, s34, {H1}")
    def push(nl, stride_sh, sbase):
        a(f"v_lshlrev_b32 v{T0}, {stride_sh}, v1")
        a(f"v_mov_b32 v{T1}, s{S_NONCE}")
        a(f"s_mov_b64 exec, {hex((1 << nl) - 1)}")
        a(f"buffer_store_dword v{T1}, v{T0}, {R(SRD_WS)}, s{sbase} offen sc1")
        a(f"s_mov_b64 exec, -1")
    def setw(addr):
        a(f"v_mov_b32 v12, {addr}")
        a(f"v_mov_b32 v13, 1")
        a(f"ds_write_b32 v12, v13")
    def ld(): a(f"buffer_load_dword v5, v4, {R(SRD_DBG)}, 0 offen sc1")
    def ck():
        a(f"v_readfirstlane_b32 s{S_NONCE}, v5")
        a("s_nop 3")
        a(f"s_cmp_lg_u32 s{S_NONCE}, 0")
    poll_global(a, ld, ck, sleep=0)
    push(8, 11, 34)
    a(f"v_mov_b32 v12, {C_NONCE}")
    a(f"v_mov_b32 v13, s{S_NONCE}")
    a(f"ds_write_b32 v12, v13")
    setw(C_PFL)
    stamp(a, "pflag")
    ut_issue_all(a)
    VKF = 6
    a(f"v_lshrrev_b32 v{VKF}, 2, v1")
    a(f"v_lshlrev_b32 v{VKF}, 7, v{VKF}")
    a(f"v_and_b32 v{T1}, 3, v1")
    a(f"v_lshlrev_b32 v{T1}, 4, v{T1}")
    a(f"v_add_u32 v{VKF}, v{VKF}, v{T1}")
    a(f"s_and_b32 s36, s2, 7")
    a(f"s_lshl_b32 s36, s36, 11")
    a(f"s_add_u32 s36, s36, {H1}")
    a(f"s_lshl_b32 s37, s{S_I}, 3")
    a(f"s_add_u32 s37, s37, s{S_J}")
    a(f"s_lshl_b32 s37, s37, 7")
    a(f"s_lshl_b32 s38, s{S_J}, 7")
    a(f"s_lshl_b32 s39, s{S_I}, 2")
    a(f"s_add_u32 s38, s38, s39")
    a(f"v_lshlrev_b32 v7, 2, v1")
    a(f"v_mov_b32 v14, {C_UCNT}")
    a(f"buffer_load_dwordx4 v[8:11], v{VKF}, {R(SRD_WS)}, s36 offen sc1")
    a("s_waitcnt vmcnt(1)")
    setw(C_UTL)
    if "pipe" not in OPT: poll_flags(a, VKF, "s36", 0xffffffffffffffff, 8, n=4, sleep=0)
    else: poll_flags_pipe(a, VKF, "s36", 0xffffffffffffffff, 8, n=4, sleep=5, depth=3)
    stamp(a, "pkvok")
    FL16 = 20
    BUF = [[32, 56], [80, 104]]
    S_NX = [78, 79]; S_SRC = 81
    S_IS = [82, 83]
    S_SEQ = 84
    S_SQ = [[85, 86], [87, 88]]
    a(f"v_lshlrev_b32 v{FL16}, 4, v1")
    def fissue(g, par):
        a(f"s_lshr_b32 s28, s{S_IS[g]}, 1")
        a(f"s_add_u32 s28, s28, s{S_ROT}")
        a(f"s_and_b32 s28, s28, 7")
        a(f"s_mul_i32 s28, s28, 12288")
        a(f"s_add_u32 s{S_SRC}, s28, {g*32*3072 + par*6144}")
        for k in range(6):
            a(f"buffer_load_dwordx4 {v(BUF[g][par]+4*k,4)}, v{FL16}, {R(SRD_WS)}, s{S_SRC} offen offset:{1024*(k%4)} sc1")
            if k == 3: a(f"s_add_u32 s{S_SRC}, s{S_SRC}, 4096")
        a(f"s_add_u32 s{S_IS[g]}, s{S_IS[g]}, 1")
        a(f"s_add_u32 s{S_SEQ}, s{S_SEQ}, 1")
        a(f"s_mov_b32 s{S_SQ[g][par]}, s{S_SEQ}")
    a(f"s_mov_b32 s{S_SEQ}, 0")
    for g in range(2):
        a(f"s_mov_b32 s{S_NX[g]}, 0")
        a(f"s_mov_b32 s{S_IS[g]}, 0")
    fissue(0, 0); fissue(1, 0); fissue(0, 1); fissue(1, 1)
    lds_wait_imm(a, C_QRD, 8, sleep=0)
    FLP = a.newlabel("fl"); FDN = a.newlabel("fd")
    a(f"v_and_b32 v22, 7, v1")
    a(f"v_lshlrev_b32 v22, 2, v22")
    a(f"v_add_u32 v22, {C_DONE}, v22")
    a(f"s_mov_b32 s33, 0")
    a.label(FLP)
    a(f"ds_read_b32 v24, v22")
    a("s_waitcnt lgkmcnt(0)")
    a(f"s_mov_b32 s39, 0")
    for g in range(2):
        skip = a.newlabel("fs")
        a(f"s_cmp_ge_u32 s{S_NX[g]}, 16")
        a(f"s_cbranch_scc1 {skip}")
        a(f"s_and_b32 s29, s{S_NX[g]}, 3")
        a(f"s_add_u32 s29, s29, {4*g}")
        a(f"v_readlane_b32 s42, v24, s29")
        a(f"s_lshr_b32 s28, s{S_NX[g]}, 2")
        a(f"s_lshl_b32 s28, s28, 2")
        a("s_nop 1")
        a(f"s_cmp_lt_u32 s42, s28")
        a(f"s_cbranch_scc1 {skip}")
        PARL = []
        for par in range(2):
            nxtp = a.newlabel("fp")
            a(f"s_and_b32 s28, s{S_NX[g]}, 1")
            a(f"s_cmp_lg_u32 s28, {par}")
            a(f"s_cbranch_scc1 {nxtp}")
            a(f"s_sub_u32 s28, s{S_SEQ}, s{S_SQ[g][par]}")
            lend = a.newlabel("fw")
            for age in range(3):
                ln = a.newlabel("fw")
                a(f"s_cmp_lg_u32 s28, {age}")
                a(f"s_cbranch_scc1 {ln}")
                a(f"s_waitcnt vmcnt({6*age})")
                a(f"s_branch {lend}")
                a.label(ln)
            a("s_waitcnt vmcnt(18)")
            a.label(lend)
            a(f"s_and_b32 s28, s{S_NX[g]}, 3")
            a(f"s_mul_i32 s29, s28, {2*BLK}")
            a(f"s_add_u32 s29, s29, {g*RING_STRIDE}")
            a(f"v_add_u32 v26, s29, v{FL16}")
            for k in range(6):
                a(f"ds_write_b128 v26, {v(BUF[g][par]+4*k,4)} offset:{1024*k}")
            a(f"s_lshl_b32 s28, s28, 2")
            a(f"s_add_u32 s28, s28, {C_FULL + 16*g}")
            a(f"v_mov_b32 v27, s28")
            a(f"v_mov_b32 v28, 1")
            lds_add1(a, 27, 28)
            a(f"s_add_u32 s{S_NX[g]}, s{S_NX[g]}, 1")
            a(f"s_mov_b32 s39, 1")
            a(f"s_cmp_ge_u32 s{S_IS[g]}, 16")
            a(f"s_cbranch_scc1 {skip}")
            fissue(g, par)
            a(f"s_branch {skip}")
            a.label(nxtp)
        a.label(skip)
    a(f"s_add_u32 s28, s{S_NX[0]}, s{S_NX[1]}")
    a(f"s_cmp_ge_u32 s28, 32")
    a(f"s_cbranch_scc1 {FDN}")
    a(f"s_add_u32 s33, s33, 1")
    a(f"s_cmp_ge_u32 s33, {POLL_MAX*8}")
    a(f"s_cbranch_scc1 {FDN}")
    a(f"s_cmp_lg_u32 s39, 0")
    a(f"s_cbranch_scc1 {FLP}")
    a(f"s_sleep {4 if 'fs4' in OPT else (2 if 'fs2' in OPT else 3)}")
    a(f"s_branch {FLP}")
    a.label(FDN)
    stamp(a, "pfed")
    a(f"s_lshl_b32 s37, s{S_I}, 3")
    a(f"s_add_u32 s37, s37, s{S_J}")
    a(f"s_lshl_b32 s37, s37, 7")
    a(f"v_lshlrev_b32 v7, 2, v1")
    lds_wait_imm(a, C_OCNT, 8, sleep=0)
    a(f"s_lshl_b32 s29, s{S_I}, 10")
    a(f"s_lshl_b32 s30, s{S_J}, 2")
    a(f"s_add_u32 s29, s29, s30")
    a(f"s_add_u32 s29, s29, {H4}")
    push(8, 7, 29)
    stamp(a, "popush")
    a(f"s_add_u32 s29, s37, {H4}")
    if "pipe" not in OPT: poll_flags(a, 7, "s29", 0xff, 8, sleep=0)
    else: poll_flags_pipe(a, 7, "s29", 0xff, 8, n=1, sleep=3, depth=3)
    setw(C_OOK)
    a(f"s_branch f_fin")
    gen_loader(a)
    a.label("f_fin")
    if "stamp" in OPT:
        a("s_waitcnt vmcnt(0)")
        stamp(a, "end"); stamp(a, "rt1", True)
        stamp_flush(a)
    a.label(END)
    a("s_endpgm")
    a.L.append(kernel_desc(name, NVGPR))


def ut_issue_all(a):
    a(f"s_lshl_b32 s39, s{S_I}, 6")
    a(f"s_sub_u32 s33, s39, 3")
    a(f"s_mul_i32 s38, s{S_J}, 160")
    for kind, nq, base_l, srd_, halo in (("k", 11, UT_K, SRD_K, 3), ("v", 10, UT_V, SRD_V, 0)):
        for q in range(nq):
            a(f"v_add_u32 v{T0}, {64*q}, v1")
            div10(a, T0, T1, T0, T2)
            a(f"v_lshrrev_b32 v{T2}, 3, v{T1}")
            a(f"v_sub_u32 v{T0}, v{T0}, v{T2}")
            a(f"v_add_u32 v{T2}, 10, v{T0}")
            a(f"v_min_u32 v{T0}, v{T0}, v{T2}")
            a(f"v_lshlrev_b32 v{T0}, 4, v{T0}")
            a(f"v_add_u32 v{T1}, s39, v{T1}") if halo == 0 else a(f"v_add_u32 v{T1}, s33, v{T1}")
            a(f"v_mul_lo_u32 v{T1}, v{T1}, s{S_1280}")
            a(f"v_add3_u32 v{T0}, v{T0}, v{T1}, s38")
            a(f"s_mov_b32 m0, {base_l + 1024*q}")
            if kind == "k" and q == 10: a(f"s_mov_b64 exec, 0x3fffffff")
            else: a("s_nop 0")
            a(f"buffer_load_dwordx4 v{T0}, {R(srd_)}, 0 offen lds")
            if kind == "k" and q == 10: a(f"s_mov_b64 exec, -1")

def gen_loader(a):
    S_LI = 34
    a.label("f_lstart")
    a("s_setprio 3")
    a(f"s_sub_u32 s{S_LI}, s{S_W}, 9")
    VX, VW, VL16 = 112, 116, 121
    RB3, RB4, HR = 16, 64, 112
    a(f"v_lshlrev_b32 v{T3}, 4, v1")
    if "pf" in OPT:
        a(f"s_lshr_b32 s28, s2, 3")
        a(f"s_mul_i32 s28, s28, 10240")
        a(f"s_lshl_b32 s29, s{S_LI}, 10")
        a(f"s_add_u32 s28, s28, s29")
        a(f"s_add_u32 s28, s28, {384*1280}")
        for k in range(4):
            def pf(k=k):
                a(f"buffer_load_dwordx4 v[160:163], v{T3}, {R(SRD_WQ)}, s28 offen")
            if k < 3: pf()
            else: if_s(a, S_LI, "eq", 0, pf)
            a(f"s_add_u32 s28, s28, 3072")
        a(f"v_lshrrev_b32 v{T0}, 5, v1")
        a(f"v_mul_u32_u24 v{T0}, 1280, v{T0}")
        a(f"v_and_b32 v{T1}, 31, v1")
        a(f"v_lshlrev_b32 v{T1}, 4, v{T1}")
        a(f"v_add_u32 v{T0}, v{T0}, v{T1}")
        a(f"s_lshl_b32 s28, s{S_I}, 6")
        a(f"s_lshl_b32 s30, s{S_J}, 3")
        a(f"s_add_u32 s28, s28, s30")
        a(f"s_lshl_b32 s30, s{S_LI}, 1")
        a(f"s_add_u32 s28, s28, s30")
        a(f"s_mul_i32 s28, s28, 1280")
        a(f"s_add_u32 s28, s28, 768")
        a(f"buffer_load_dwordx4 v[160:163], v{T0}, {R(SRD_X)}, s28 offen")
        def pf2():
            a(f"s_add_u32 s28, s28, {6*1280}")
            a(f"buffer_load_dwordx4 v[160:163], v{T0}, {R(SRD_X)}, s28 offen")
        if_s(a, S_LI, "eq", 0, pf2)
    a("s_barrier")
    for k in range(4):
        a(f"v_lshrrev_b32 v{T0}, 4, v1")
        a(f"v_add_u32 v{T0}, {4*k}, v{T0}")
        a(f"v_xor_b32 v{T1}, v1, v{T0}")
        a(f"v_and_b32 v{T1}, 15, v{T1}")
        a(f"v_lshlrev_b32 v{T1}, 4, v{T1}")
        a(f"s_lshl_b32 s28, s{S_I}, 6")
        a(f"v_add_u32 v{T0}, s28, v{T0}")
        a(f"v_mul_lo_u32 v{T0}, v{T0}, s{S_1280}")
        a(f"v_add_u32 v{VX+k}, v{T0}, v{T1}")
    a(f"s_mul_i32 s29, s{S_J}, 160")
    for t in range(5):
        a(f"v_add_u32 v{T0}, {64*t}, v1")
        div10(a, T0, T1, T0, T2)
        a(f"v_lshlrev_b32 v{T0}, 4, v{T0}")
        a(f"v_and_b32 v{T2}, 0xfff8, v{T1}")
        a(f"v_bfe_u32 v{VL16}, v{T1}, 1, 2")
        a(f"v_or_b32 v{T2}, v{T2}, v{VL16}")
        a(f"v_and_b32 v{T1}, 1, v{T1}")
        a(f"v_lshlrev_b32 v{T1}, 2, v{T1}")
        a(f"v_or_b32 v{T2}, v{T2}, v{T1}")
        a(f"v_mul_lo_u32 v{T2}, v{T2}, s{S_1280}")
        a(f"v_add_u32 v{T2}, v{T2}, v{T0}")
        a(f"v_add_u32 v{VW+t}, s29, v{T2}")
    lists = [[("x", q) for q in range(12)],
             [("x", q) for q in range(12, 16)] + [("w", q) for q in range(8)],
             [("w", q) for q in range(8, 20)]]
    def ldoff(kind, q): return 1024*q if kind == "x" else 16384 + 1024*q
    def issue(lst, ch, dma_slot=None, regs=None):
        chunk_phys(a, ch)
        for n, (kind, q) in enumerate(lst):
            if kind == "x": srd_, vr, so, sb = SRD_X, VX+(q&3), (q >> 2)*16*1280, 92
            else: srd_, vr, so, sb = SRD_WQ, VW+(q%5), (q // 5)*40960, 93
            a(f"s_add_u32 s28, s{sb}, {so}")
            if dma_slot is not None:
                a(f"s_mov_b32 m0, {dma_slot*SLOT + ldoff(kind, q)}")
                a(f"s_nop 0")
                a(f"buffer_load_dwordx4 v{vr}, {R(srd_)}, s28 offen lds")
            else:
                a(f"buffer_load_dwordx4 {v(regs+4*n,4)}, v{vr}, {R(srd_)}, s28 offen")
    def signal(addr): lds_add1_imm(a, addr)
    LD_JOIN = a.newlabel("ldj")
    for li in range(3):
        nxt = a.newlabel("ldv")
        a(f"s_cmp_lg_u32 s{S_LI}, {li}")
        a(f"s_cbranch_scc1 {nxt}")
        L = lists[li]
        if "regs" in OPT:
            issue(L, 2, dma_slot=2)
            if "nogate" not in OPT:
                a("s_waitcnt vmcnt(0)"); signal(C_CL + 8)
                lds_wait_imm(a, C_PFL, 1, sleep=1)
            issue(L, 3, regs=RB3)
            if "thr" in OPT:
                a("s_waitcnt vmcnt(12)"); signal(C_CL + 8)
            issue(L, 4, regs=RB4)
            stamp(a, "lissue")
            if "nogate" in OPT:
                a(f"s_waitcnt vmcnt(24)"); signal(C_CL + 8)
            nut = 0
            for (RBx, gate, cl, n_after, slot) in ((RB3, C_C0C, 12, 12, 0), (RB4, C_C1C, 16, 0, 1)):
                lds_wait_imm(a, gate, 8, sleep=1)
                a(f"v_add_u32 v{T2}, {slot*SLOT}, v{T3}")
                a(f"s_waitcnt vmcnt({n_after + nut})")
                stamp(a, f"lw{cl}")
                for n, (kind, q) in enumerate(L):
                    a(f"ds_write_b128 v{T2}, {v(RBx+4*n,4)} offset:{ldoff(kind, q)}")
                signal(C_CL + cl)
        else:
            issue(L, 2, dma_slot=2)
            a("s_waitcnt vmcnt(0)"); signal(C_CL + 8)
            lds_wait_imm(a, C_C0C, 8, sleep=0)
            issue(L, 3, dma_slot=0)
            lds_wait_imm(a, C_C1C, 8, sleep=0)
            issue(L, 4, dma_slot=1)
            stamp(a, "lissue")
            a("s_waitcnt vmcnt(12)"); signal(C_CL + 12)
            a("s_waitcnt vmcnt(0)"); signal(C_CL + 16)
        a(f"s_branch {LD_JOIN}")
        a.label(nxt)
    a.label(LD_JOIN)
    stamp(a, "ldone")
    def gate_fin():
        lds_wait_imm(a, C_QG, 8, sleep=1)
        a(f"v_lshrrev_b32 v{T0}, 5, v1")
        a(f"v_lshlrev_b32 v{T0}, 9, v{T0}")
        a(f"v_and_b32 v{T1}, 31, v1")
        a(f"v_lshlrev_b32 v{T1}, 2, v{T1}")
        a(f"v_add_u32 v{T0}, v{T0}, v{T1}")
        a(f"v_add_u32 v{T0}, {GP}, v{T0}")
        for k in range(4): a(f"ds_read_b32 v{96+k}, v{T0} offset:{128*k}")
        a("s_waitcnt lgkmcnt(0)")
        a(f"v_add_f32 v96, v96, v97")
        a(f"v_add_f32 v98, v98, v99")
        a(f"v_add_f32 v96, v96, v98")
        a(f"v_mul_f32 v96, {hex(f32bits(-1.4426950408889634))}, v96")
        a(f"v_exp_f32 v96, v96")
        a.nop(1)
        a(f"v_add_f32 v96, 1.0, v96")
        a(f"v_rcp_f32 v96, v96")
        a(f"v_lshlrev_b32 v{T0}, 2, v1")
        a(f"v_add_u32 v{T0}, {G_L}, v{T0}")
        a.nop(1)
        a(f"ds_write_b32 v{T0}, v96")
    if_s(a, S_LI, "eq", 2, gate_fin)
    def uround(rnd_sgpr):
        KD, VD, SH = 16, 28, 36
        KA_, KB_, WA_, WB_, UA, UB, UT = 44, 56, 68, 72, 76, 84, 92
        A0, A1, UST = 93, 94, 95
        a(f"s_lshl_b32 s28, s{rnd_sgpr}, 6")
        a(f"v_add_u32 v{T0}, s28, v1")
        a(f"v_lshrrev_b32 v{T1}, 3, v{T0}")
        a(f"v_and_b32 v{T0}, 7, v{T0}")
        a(f"s_mul_i32 s29, s{S_J}, 160")
        a(f"v_lshlrev_b32 v{T2}, 2, v{T1}")
        a(f"v_add_u32 v{T2}, s29, v{T2}")
        a(f"v_lshlrev_b32 v{UST}, 2, v{T2}")
        a(f"buffer_load_dwordx4 {v(SH,4)}, v{UST}, {R(SRD_SH)}, 0 offen")
        a(f"v_lshlrev_b32 v{UST}, 11, v{T2}")
        a(f"v_lshlrev_b32 v{T2}, 4, v{T0}")
        a(f"v_sub_u32 v{UST}, v{UST}, v{T2}")
        a(f"s_lshl_b32 s29, s{S_I}, 7")
        a(f"s_sub_u32 s29, {UR_OFF + 4080}, s29")
        a(f"v_add_u32 v{UST}, s29, v{UST}")
        a(f"v_lshrrev_b32 v{T2}, 2, v{T1}")
        a(f"v_add_u32 v{T2}, v{T2}, v{T0}")
        a(f"v_and_b32 v{T1}, 3, v{T1}")
        a(f"v_lshlrev_b32 v{T1}, 2, v{T1}")
        a(f"v_mul_u32_u24 v{T0}, 1280, v{T0}")
        a(f"v_add3_u32 v{T0}, v{T0}, v{T1}, s77" if False else f"v_add_u32 v{T0}, v{T0}, v{T1}")
        a(f"v_add_u32 v{T0}, {UT_K}, v{T0}")
        for (dst, add) in ((A0, 0), (A1, 1)):
            a(f"v_add_u32 v{UT}, {add}, v{T2}")
            a(f"v_subrev_u32 v{T1}, 10, v{UT}")
            a(f"v_min_u32 v{UT}, v{UT}, v{T1}")
            a(f"v_lshlrev_b32 v{UT}, 4, v{UT}")
            a(f"v_add_u32 v{dst}, v{T0}, v{UT}")
        for r in range(8): a(f"ds_read_b32 v{KD+r}, v{A0} offset:{160*r}")
        for r in range(8, 11): a(f"ds_read_b32 v{KD+r}, v{A1} offset:{160*r}")
        a("s_waitcnt lgkmcnt(4)")
        for r in range(8): a(f"ds_read_b32 v{VD+r}, v{A0} offset:{10720 + 160*r}")
        a("s_waitcnt lgkmcnt(0) vmcnt(0)")
        for r in range(11):
            a(f"v_lshlrev_b32 v{KA_+r}, 16, v{KD+r}")
            a(f"v_and_b32 v{KB_+r}, 0xffff0000, v{KD+r}")
        for (W, base) in ((WA_, SH), (WB_, SH + 2)):
            a(f"v_lshlrev_b32 v{W}, 16, v{base}")
            a(f"v_and_b32 v{W+1}, 0xffff0000, v{base}")
            a(f"v_lshlrev_b32 v{W+2}, 16, v{base+1}")
            a(f"v_and_b32 v{W+3}, 0xffff0000, v{base+1}")
        for e_ in range(8):
            for (U, Kf, W, lo) in ((UA, KA_, WA_, True), (UB, KB_, WB_, False)):
                a(f"v_mul_f32 v{U+e_}, v{Kf+e_+3}, v{W}")
                for jx in range(1, 4):
                    a(f"v_fmac_f32 v{U+e_}, v{Kf+e_+3-jx}, v{W+jx}")
                if lo: a(f"v_lshlrev_b32 v{UT}, 16, v{VD+e_}")
                else: a(f"v_and_b32 v{UT}, 0xffff0000, v{VD+e_}")
                a(f"v_mul_f32 v{U+e_}, v{U+e_}, v{UT}")
        for (U, O_) in ((UA, KD), (UB, KD + 4)):
            for i in range(4):
                a(f"v_cvt_pk_bf16_f32 v{O_+i}, v{U+7-2*i}, v{U+6-2*i}")
        a(f"buffer_store_dwordx4 {v(KD,4)}, v{UST}, {R(SRD_WS)}, 0 offen sc1")
        a(f"v_add_u32 v{UST}, 4096, v{UST}")
        a(f"buffer_store_dwordx4 {v(KD+4,4)}, v{UST}, {R(SRD_WS)}, 0 offen sc1")
    lds_wait_imm(a, C_UTL, 1, sleep=1)
    if "up0" in OPT: a("s_setprio 0")
    if "up1" in OPT: a("s_setprio 1")
    stamp(a, "utl")
    a(f"s_mov_b32 s87, s{S_LI}")
    if "noup" not in OPT: uround(87)
    def second():
        a(f"s_add_u32 s87, s{S_LI}, 3")
        uround(87)
    if "noup" not in OPT: if_s(a, S_LI, "lt", 2, second)
    a("s_waitcnt vmcnt(0)")
    a("s_setprio 3")
    signal(C_UCNT)
    stamp(a, "udone")
    WD = 116
    VL = 121
    def wd_calc():
        a(f"v_lshlrev_b32 v{VL}, 4, v1")
        a(f"s_mul_i32 s29, s{S_J}, 160")
        for t in range(5):
            a(f"v_add_u32 v{T0}, {64*t}, v1")
            div10(a, T0, T1, T0, T2)
            a(f"v_lshlrev_b32 v{T0}, 4, v{T0}")
            a(f"v_and_b32 v{T2}, 0xfff3, v{T1}")
            a(f"v_bfe_u32 v{T3}, v{T1}, 2, 1")
            a(f"v_lshlrev_b32 v{T3}, 3, v{T3}")
            a(f"v_or_b32 v{T2}, v{T2}, v{T3}")
            a(f"v_bfe_u32 v{T3}, v{T1}, 3, 1")
            a(f"v_lshlrev_b32 v{T3}, 2, v{T3}")
            a(f"v_or_b32 v{T2}, v{T2}, v{T3}")
            a(f"v_mul_lo_u32 v{T2}, v{T2}, s{S_1280}")
            a(f"v_add_u32 v{T2}, v{T2}, v{T0}")
            a(f"v_add_u32 v{WD+t}, s29, v{T2}")
    def wo_periods(p_first, p_cnt):
        a(f"s_add_u32 s31, s{S_LI}, {p_first}")
        WL = a.newlabel("wol"); WE = a.newlabel("woe")
        a.label(WL)
        a(f"s_cmp_ge_u32 s31, {p_first + p_cnt}")
        a(f"s_cbranch_scc1 {WE}")
        a(f"s_mul_i32 s28, s31, 5120")
        a(f"s_add_u32 s28, s28, {WOA}")
        a(f"s_mul_i32 s30, s31, {32*1280}")
        for t in range(5):
            a(f"s_add_u32 m0, s28, {1024*t}")
            a(f"s_nop 0")
            a(f"buffer_load_dwordx4 v{WD+t}, {R(SRD_WO)}, s30 offen lds")
        a(f"s_add_u32 s31, s31, 3")
        a(f"s_branch {WL}")
        a.label(WE)
    def lpush(nl, stride_sh, sbase):
        a(f"v_lshlrev_b32 v{T0}, {stride_sh}, v1")
        a(f"v_mov_b32 v{T1}, s{S_NONCE}")
        a(f"s_mov_b64 exec, {hex((1 << nl) - 1)}")
        a(f"buffer_store_dword v{T1}, v{T0}, {R(SRD_WS)}, s{sbase} offen sc1")
        a(f"s_mov_b64 exec, -1")
    def lsetw(addr):
        a(f"v_mov_b32 v{T0}, {addr}")
        a(f"v_mov_b32 v{T1}, 1")
        a(f"ds_write_b32 v{T0}, v{T1}")
    S_MB, S_PB = 89, 90
    def l2_u():
        lds_wait_imm(a, C_NONCE, 1, sleep=1)
        a(f"s_mov_b32 s{S_NONCE}, s42")
        a(f"s_lshl_b32 s{S_MB}, s{S_I}, 3")
        a(f"s_add_u32 s{S_MB}, s{S_MB}, s{S_J}")
        a(f"s_lshl_b32 s{S_MB}, s{S_MB}, 7")
        a(f"s_lshl_b32 s{S_PB}, s{S_J}, 7")
        a(f"s_lshl_b32 s28, s{S_I}, 2")
        a(f"s_add_u32 s{S_PB}, s{S_PB}, s28")
        lds_wait_imm(a, C_UCNT, 3, sleep=1)
        a(f"s_add_u32 s29, s{S_PB}, {H2}")
        lpush(32, 10, 29)
    if_s(a, S_LI, "eq", 2, l2_u)
    wd_calc()
    def wo_list(ps):
        for p_ in ps:
            a(f"s_mov_b32 s30, {p_*32*1280}")
            for t in range(5):
                a(f"s_mov_b32 m0, {WOA + p_*5120 + 1024*t}")
                a(f"s_nop 0")
                a(f"buffer_load_dwordx4 v{WD+t}, {R(SRD_WO)}, s30 offen lds")
    lds_wait_imm(a, C_UCNT, 3, sleep=1)
    lds_wait_imm(a, C_QG, 8, sleep=1)
    wo_periods(11, 9)
    a(f"v_lshlrev_b32 v{T3}, 4, v1")
    def l2_u2():
        a(f"v_lshlrev_b32 v98, 2, v1")
        a(f"s_add_u32 s29, s{S_MB}, {H2}")
        poll_flags(a, 98, "s29", 0xffffffff, 99, sleep=1)
        lsetw(C_UOK)
        stamp(a, "uok")
    if_s(a, S_LI, "eq", 2, l2_u2)
    def h_loads():
        a(f"s_lshl_b32 s28, s{S_CH}, 12")
        for q in range(4):
            a(f"s_add_u32 s29, s28, {1024*q}")
            for k in range(3):
                a(f"buffer_load_dwordx4 {v(HR+12*q+4*k,4)}, v{T3}, {R(SRD_H)}, s29 offen offset:{4*k}")
        a(f"s_lshr_b32 s30, s{S_CH}, 1")
        a(f"s_lshl_b32 s30, s30, 2")
        a(f"s_load_dword s88, s[{S_DPTR}:{S_DPTR+1}], s30")
    NOC = a.newlabel("noconv")
    a(f"s_cmp_ge_u32 s{S_LI}, s{S_NCH}")
    a(f"s_cbranch_scc1 {NOC}")
    if "noconv" in OPT: a(f"s_branch {NOC}")
    h_loads()
    lds_wait_imm(a, C_QG, 8, sleep=2)
    stamp(a, "conv0")
    gen_conv(a, HR)
    a("s_waitcnt vmcnt(0)")
    a.label(NOC)
    a("s_setprio 3")
    signal(C_CVD)
    stamp(a, "conv1")
    wd_calc()
    lds_wait_imm(a, C_QG, 8, sleep=2)
    own = [[0, 1], [3, 4, 5], [7, 8, 9, 10]]
    for li in range(3):
        if_s(a, S_LI, "eq", li, lambda li=li: wo_list(own[li]))
    lds_wait_imm(a, C_CVD, 3, sleep=4)
    def l2_y():
        a(f"s_add_u32 s29, s{S_PB}, {H3}")
        lpush(32, 10, 29)
        stamp(a, "yflag")
    if_s(a, S_LI, "eq", 2, l2_y)
    if_s(a, S_LI, "eq", 0, lambda: wo_list([2]))
    if_s(a, S_LI, "eq", 1, lambda: wo_list([6]))
    a("s_waitcnt vmcnt(0)")
    signal(C_WOK)
    stamp(a, "woready")
    def l2_yok():
        a(f"v_lshlrev_b32 v98, 2, v1")
        a(f"s_add_u32 s29, s{S_MB}, {H3}")
        poll_flags(a, 98, "s29", 0xffffffff, 99, sleep=2)
        lsetw(C_YOK)
        stamp(a, "yok")
    if_s(a, S_LI, "eq", 2, l2_yok)
    def ytile(li):
        YR = 32
        a(f"v_lshrrev_b32 v{T2}, 3, v1")
        a(f"v_lshlrev_b32 v{T2}, 12, v{T2}")
        a(f"v_and_b32 v{T3}, 7, v1")
        a(f"v_lshlrev_b32 v{T3}, 4, v{T3}")
        a(f"v_add_u32 v{T2}, v{T2}, v{T3}")
        lds_wait_imm(a, C_YOK, 1, sleep=2)
        a(f"s_mul_i32 s28, s{S_J}, {80*4096}")
        a(f"s_lshl_b32 s29, s{S_I}, 7")
        a(f"s_add_u32 s28, s28, s29")
        a(f"s_add_u32 s28, s28, {YT_OFF + li*5*8*4096}")
        for t in range(5):
            a(f"buffer_load_dwordx4 {v(YR+4*t,4)}, v{T2}, {R(SRD_WS)}, s28 offen sc1")
            a(f"s_add_u32 s28, s28, {8*4096}")
        a(f"v_add_u32 v{T2}, {YL + li*5120}, v{VL}")
        lds_wait_imm(a, C_ST, 8, sleep=1)
        a("s_waitcnt vmcnt(0)")
        for t in range(5): a(f"ds_write_b128 v{T2}, {v(YR+4*t,4)} offset:{1024*t}")
        signal(C_YW)
    for li in range(2):
        if_s(a, S_LI, "eq", li, lambda li=li: ytile(li))

def gen_conv(a, HR):
    URL = 16640
    CA, FA, FB, AD = 16, 48, 80, 112
    VA, VB, CT2, CT3 = 160, 161, 162, 163
    a(f"v_lshlrev_b32 v{T2}, 4, v1")
    a(f"v_add_u32 v{T3}, s{S_CB}, v{T2}")
    a("s_waitcnt vmcnt(0)")
    for q in range(4):
        X0, X1, X2 = HR+12*q, HR+12*q+4, HR+12*q+8
        C1, C3 = CA + 8*(q & 1), CA + 8*(q & 1) + 4
        for k in range(4):
            a(f"v_alignbit_b32 v{C1+k}, v{X1+k}, v{X0+k}, 16")
            a(f"v_alignbit_b32 v{C3+k}, v{X2+k}, v{X1+k}, 16")
        o = 1024 * q + 32
        a(f"ds_write_b128 v{T3}, {v(X0,4)} offset:{o}")
        a(f"ds_write_b128 v{T3}, {v(C1,4)} offset:{4160+o}")
        a(f"ds_write_b128 v{T3}, {v(X1,4)} offset:{8320+o}")
        a(f"ds_write_b128 v{T3}, {v(C3,4)} offset:{12480+o}")
    Z = CA + 16
    for k in range(4): a(f"v_mov_b32 v{Z+k}, 0")
    a(f"v_alignbit_b32 v{Z+4}, v{HR+4}, v{HR}, 16")
    a(f"v_lshlrev_b32 v{Z+5}, 16, v{HR}")
    a(f"v_mov_b32 v{Z+6}, v{HR}")
    a(f"v_lshrrev_b32 v{T0}, 1, v1")
    a(f"v_mul_u32_u24 v{T0}, 4160, v{T0}")
    a(f"v_and_b32 v{T1}, 1, v1")
    a(f"v_lshlrev_b32 v{T1}, 4, v{T1}")
    a(f"v_add_u32 v{T0}, v{T0}, v{T1}")
    a(f"v_add_u32 v{T0}, s{S_CB}, v{T0}")
    a(f"s_mov_b64 exec, 0xff")
    a(f"ds_write_b128 v{T0}, {v(Z,4)}")
    a(f"s_mov_b64 exec, 0xffffffff")
    a(f"ds_write_b128 v{T3}, {v(Z,4)} offset:{URL+4096}")
    a(f"s_mov_b64 exec, 1")
    a(f"ds_write_b32 v{T3}, v{Z+5} offset:{4160+28}")
    a(f"ds_write_b32 v{T3}, v{Z+6} offset:{8320+28}")
    a(f"ds_write_b32 v{T3}, v{Z+5} offset:{12480+24}")
    a(f"ds_write_b32 v{T3}, v{Z+4} offset:{12480+28}")
    a(f"s_mov_b64 exec, -1")
    a("s_waitcnt lgkmcnt(0)")
    a(f"v_mov_b32 v{FA}, v{T3}")
    a(f"v_mov_b32 v{FA+1}, v{T2}")
    lds_wait_imm(a, C_UOK, 1, sleep=2)
    a(f"s_lshl_b32 s28, s{S_CH}, 12")
    a(f"s_add_u32 s28, s28, {UR_OFF}")
    for q in range(4):
        a(f"s_add_u32 s29, s28, {1024*q}")
        a(f"buffer_load_dwordx4 {v(FB+4*q,4)}, v{FA+1}, {R(SRD_WS)}, s29 offen sc1")
    a(f"v_and_b32 v{T0}, 15, v1")
    a(f"v_lshrrev_b32 v{T1}, 4, v1")
    a(f"v_add_u32 v{CT2}, 1, v{T0}")
    a(f"v_and_b32 v{CT3}, 3, v{CT2}")
    a(f"v_mul_u32_u24 v{VA}, 4160, v{CT3}")
    a(f"v_lshrrev_b32 v{CT2}, 2, v{CT2}")
    a(f"v_lshlrev_b32 v{CT2}, 3, v{CT2}")
    a(f"v_lshlrev_b32 v{CT3}, 4, v{T1}")
    a(f"v_add_u32 v{VA}, v{VA}, v{CT2}")
    a(f"v_add_u32 v{VA}, v{VA}, v{CT3}")
    a(f"v_add_u32 v{VA}, s{S_CB}, v{VA}")
    a(f"v_lshlrev_b32 v{CT2}, 5, v{T0}")
    a(f"v_sub_u32 v{VB}, v{CT3}, v{CT2}")
    a(f"s_add_u32 s28, s{S_CB}, {URL + 480}")
    a(f"v_add_u32 v{VB}, s28, v{VB}")
    a(f"s_and_b32 s30, s{S_CH}, 1")
    a(f"s_lshl_b32 s30, s30, 4")
    a(f"s_lshr_b32 s88, s88, s30")
    a(f"s_and_b32 s88, s88, 0xffff")
    a(f"v_lshlrev_b32 v{T1}, 3, v{T1}")
    a(f"v_add_u32 v{T0}, v{T0}, v{T1}")
    a(f"v_sub_u32 v{T0}, 15, v{T0}")
    a(f"v_and_b32 v{T1}, 1, v{T0}")
    a(f"v_lshlrev_b32 v{T1}, 4, v{T1}")
    a(f"v_mov_b32 v{CT2}, s88")
    a(f"v_lshlrev_b32 v{CT2}, v{T1}, v{CT2}")
    a(f"v_lshrrev_b32 v{T0}, 1, v{T0}")
    for k in range(4):
        a(f"v_cmp_eq_u32 vcc, {k}, v{T0}")
        a.nop(2)
        a(f"v_cndmask_b32 v{AD+k}, 0, v{CT2}, vcc")
    for r in range(32): a(f"v_mov_b32 v{CA+r}, 0")
    a("s_waitcnt vmcnt(0)")
    for q in range(4):
        a(f"ds_write_b128 v{FA}, {v(FB+4*q,4)} offset:{URL + 1024*q}")
    a("s_waitcnt lgkmcnt(0)")
    stamp(a, "convm")
    a(f"s_setprio {2 if 'cp2' in OPT else (1 if 'cp1' in OPT else 0)}")
    a(f"s_mov_b32 s86, 0")
    PL = a.newlabel("convph")
    a.label(PL)
    a(f"ds_read_b64 {v(FA,2)}, v{VA}")
    a(f"ds_read_b64 {v(FA+2,2)}, v{VA} offset:8")
    for vv in range(8):
        a(f"ds_read_b128 {v(FB+4*vv,4)}, v{VB} offset:{512*(7-vv)}")
    for i in range(1, 3):
        a(f"ds_read_b64 {v(FA+4*i,2)}, v{VA} offset:{512*i}")
        a(f"ds_read_b64 {v(FA+4*i+2,2)}, v{VA} offset:{512*i+8}")
    a("s_waitcnt lgkmcnt(4)")
    for i in range(3, 8):
        a(f"ds_read_b64 {v(FA+4*i,2)}, v{VA} offset:{512*i}")
        a(f"ds_read_b64 {v(FA+4*i+2,2)}, v{VA} offset:{512*i+8}")
    for vv in range(8):
        a(f"v_mfma_f32_16x16x32_bf16 {v(CA+4*vv,4)}, {v(FA,4)}, {v(FB+4*vv,4)}, {v(CA+4*vv,4)}")
    lab = a.newlabel("noD")
    a(f"s_cmp_lg_u32 s86, 0")
    a(f"s_cbranch_scc1 {lab}")
    for vv in range(8):
        a(f"v_mfma_f32_16x16x32_bf16 {v(CA+4*vv,4)}, {v(AD,4)}, {v(FB+4*vv,4)}, {v(CA+4*vv,4)}")
    a.label(lab)
    a("s_waitcnt lgkmcnt(0)")
    for i in range(1, 8):
        for vv in range(8 - i):
            t = i + vv
            a(f"v_mfma_f32_16x16x32_bf16 {v(CA+4*t,4)}, {v(FA+4*i,4)}, {v(FB+4*vv,4)}, {v(CA+4*t,4)}")
    a(f"v_add_u32 v{VA}, 64, v{VA}")
    a(f"v_add_u32 v{VB}, 64, v{VB}")
    a(f"s_add_u32 s86, s86, 1")
    a(f"s_cmp_lt_u32 s86, 8")
    a(f"s_cbranch_scc1 {PL}")
    a(f"s_lshl_b32 s28, s{S_CH}, 12")
    a(f"s_add_u32 s28, s28, {YT_OFF}")
    a(f"v_and_b32 v{CT2}, 15, v1")
    a(f"v_lshlrev_b32 v{CT2}, 5, v{CT2}")
    a(f"v_lshrrev_b32 v{CT3}, 4, v1")
    a(f"v_lshlrev_b32 v{CT3}, 3, v{CT3}")
    a(f"v_add_u32 v{CT2}, v{CT2}, v{CT3}")
    a.nop(4)
    for t in range(8):
        a(f"v_cvt_pk_bf16_f32 v{FB+2*t}, v{CA+4*t}, v{CA+4*t+1}")
        a(f"v_cvt_pk_bf16_f32 v{FB+2*t+1}, v{CA+4*t+2}, v{CA+4*t+3}")
        a(f"buffer_store_dwordx2 {v(FB+2*t,2)}, v{CT2}, {R(SRD_WS)}, s28 offen offset:{512*t} sc1")

HEADER = """; gated_mix: fused single kernel (generated by dev/gen22.py, gen4 o-layout)
; @launch grid=(256,1,1) block=(768,1,1) lds=163840
.amdgcn_target "amdgcn-amd-amdhsa--gfx950"
.text
"""
if __name__ == "__main__":
    if len(sys.argv) > 2: OPT.update(sys.argv[2].split(","))
    a = Asm()
    gen(a)
    h = HEADER
    if STAMPS: h = h.replace(".amdgcn", "; STAMPS " + ",".join(STAMPS) + "\n.amdgcn")
    open(sys.argv[1], "w").write(h + a.text())
```
